```python
import torch

def _softmax(x, axis=-1):
    return torch.softmax(x, dim=axis)
def _gelu(x):
    return torch.nn.functional.gelu(x, approximate="tanh")
def _silu(x):
    return torch.nn.functional.silu(x)
def _sigmoid(x):
    return torch.sigmoid(x)
def _layernorm(x, axis=-1, eps=1e-5):
    m = x.mean(dim=axis, keepdim=True)
    v = x.var(dim=axis, keepdim=True, unbiased=False)
    return (x - m) / torch.sqrt(v + eps)
def _scatter_add(tgt, idx, src, axis=0):
    return tgt.clone().index_add_(axis, idx, src)
def _segment_sum(src, seg, n):
    out = torch.zeros((n,) + src.shape[1:], dtype=src.dtype)
    return out.index_add_(0, seg, src)
def _pad(x, pw):
    flat = tuple(v for pair in reversed(pw) for v in pair)
    return torch.nn.functional.pad(x, flat)

kernel_name = 'concat_heads__gqa_block_cached__gqa_block_cached__near_ridge'

def setup_inputs():

    _w = (lambda a: (lambda t: t.to(torch.bfloat16) if t.is_floating_point() else t)(torch.as_tensor(a)))
    def _A_setup():
        B, Sq, D = 8, 48, 512
        Hq, Hkv, Sk, Dh = 32, 8, 1024, 128
        assert Hq % Hkv == 0, (Hq, Hkv)
        return {
            "x": _w((lambda *s: torch.randn(*s, dtype=torch.bfloat16) * 0.8)(B, Sq, D)),
            "k_cache": _w((lambda *s: torch.randn(*s, dtype=torch.bfloat16) * 0.8)(B, Hkv, Sk, Dh)),
            "v_cache": _w((lambda *s: torch.randn(*s, dtype=torch.bfloat16) * 0.05)(B, Hkv, Sk, Dh)),
            "wq": _w((lambda *s: torch.randn(*s, dtype=torch.bfloat16) * 0.8)(D, Hq * Dh) * (D ** -0.5)),
            "wo": _w((lambda *s: torch.randn(*s, dtype=torch.bfloat16) * 0.05)(Hq * Dh, D) * ((Hq * Dh) ** -0.5)),
        }
    _A_in = _A_setup()

    def _B_setup():
        B, Sq, D = 8, 48, 512
        Hq, Hkv, Sk, Dh = 32, 8, 1024, 128
        assert Hq % Hkv == 0, (Hq, Hkv)
        return {
            "x": _w((lambda *s: torch.randn(*s, dtype=torch.bfloat16) * 0.8)(B, Sq, D)),
            "k_cache": _w((lambda *s: torch.randn(*s, dtype=torch.bfloat16) * 0.8)(B, Hkv, Sk, Dh)),
            "v_cache": _w((lambda *s: torch.randn(*s, dtype=torch.bfloat16) * 0.05)(B, Hkv, Sk, Dh)),
            "wq": _w((lambda *s: torch.randn(*s, dtype=torch.bfloat16) * 0.8)(D, Hq * Dh) * (D ** -0.5)),
            "wo": _w((lambda *s: torch.randn(*s, dtype=torch.bfloat16) * 0.05)(Hq * Dh, D) * ((Hq * Dh) ** -0.5)),
        }
    _B_in = _B_setup()

    return {
        "A_x": _A_in["x"],
        "A_k_cache": _A_in["k_cache"],
        "A_v_cache": _A_in["v_cache"],
        "A_wq": _A_in["wq"],
        "A_wo": _A_in["wo"],
        "B_x": _B_in["x"],
        "B_k_cache": _B_in["k_cache"],
        "B_v_cache": _B_in["v_cache"],
        "B_wq": _B_in["wq"],
        "B_wo": _B_in["wo"],
    }

def reference(A_x, A_k_cache, A_v_cache, A_wq, A_wo, B_x, B_k_cache, B_v_cache, B_wq, B_wo):
    def _A_ref(x, k_cache, v_cache, wq, wo):
        B, Sq, D = x.shape
        Hq, Dh = 32, 128
        Hkv = k_cache.shape[1]
        rep = Hq // Hkv
        q = (lambda x, *d: x.permute(*d))((x @ wq).reshape(B, Sq, Hq, Dh), 0, 2, 1, 3)
        k = (lambda x, n, axis: torch.repeat_interleave(x, n, dim=axis))(k_cache, rep, axis=1)
        v = (lambda x, n, axis: torch.repeat_interleave(x, n, dim=axis))(v_cache, rep, axis=1)
        scores = torch.einsum("bhqd,bhkd->bhqk", q, k) * (Dh ** -0.5)
        p = _softmax(scores, axis=-1)
        o = torch.einsum("bhqk,bhkd->bhqd", p, v)
        return (lambda x, *d: x.permute(*d))(o, 0, 2, 1, 3).reshape(B, Sq, Hq * Dh) @ wo

    def _B_ref(x, k_cache, v_cache, wq, wo):
        B, Sq, D = x.shape
        Hq, Dh = 32, 128
        Hkv = k_cache.shape[1]
        rep = Hq // Hkv
        q = (lambda x, *d: x.permute(*d))((x @ wq).reshape(B, Sq, Hq, Dh), 0, 2, 1, 3)
        k = (lambda x, n, axis: torch.repeat_interleave(x, n, dim=axis))(k_cache, rep, axis=1)
        v = (lambda x, n, axis: torch.repeat_interleave(x, n, dim=axis))(v_cache, rep, axis=1)
        scores = torch.einsum("bhqd,bhkd->bhqk", q, k) * (Dh ** -0.5)
        p = _softmax(scores, axis=-1)
        o = torch.einsum("bhqk,bhkd->bhqd", p, v)
        return (lambda x, *d: x.permute(*d))(o, 0, 2, 1, 3).reshape(B, Sq, Hq * Dh) @ wo

    a = _A_ref(A_x, A_k_cache, A_v_cache, A_wq, A_wo)
    b = _B_ref(B_x, B_k_cache, B_v_cache, B_wq, B_wo)
    return torch.concatenate([a, b], axis=-1)
```

```python
import re

class G:
    def __init__(self):
        self.L = []
        self.vm = []
        self.lg = []
    def A(self, s):
        for line in s.split("\n"):
            line = line.strip()
            if line:
                self.L.append(line)
    def C(self, s):
        self.L.append("; " + s)
    def label(self, s):
        self.L.append(s + ":")
    def vmem(self, s, tag):
        self.A(s); self.vm.append(tag)
    def lds(self, s, tag):
        self.A(s); self.lg.append(tag)
    def _n(self, lst, tags):
        if isinstance(tags, str): tags = [tags]
        idx = [i for i, t in enumerate(lst) if t in tags]
        if not idx: return None
        return max(idx)
    def wait_vm(self, tags, extra=""):
        i = self._n(self.vm, tags)
        if i is None: return
        n = len(self.vm) - 1 - i
        n = min(n, 63)
        self.A(f"s_waitcnt vmcnt({n})")
        self.vm = self.vm[len(self.vm) - n:] if n else []
    def wait_lg(self, tags):
        i = self._n(self.lg, tags)
        if i is None: return
        n = len(self.lg) - 1 - i
        n = min(n, 15)
        self.A(f"s_waitcnt lgkmcnt({n})")
        self.lg = self.lg[len(self.lg) - n:] if n else []
    def wait_lg0(self):
        self.A("s_waitcnt lgkmcnt(0)"); self.lg = []
    def wait_vm0(self):
        self.A("s_waitcnt vmcnt(0)"); self.vm = []
    def text(self):
        out = []
        for l in self.L:
            if l.endswith(":") or l.startswith(".") or l.startswith(";"):
                out.append(l)
            else:
                out.append("    " + l)
        return "\n".join(out) + "\n"

_REG = re.compile(r"\b([vas])(\d+)\b|\b([vas])\[(\d+):(\d+)\]")
def regs(tok):
    out = []
    for m in _REG.finditer(tok):
        if m.group(1):
            out.append((m.group(1), int(m.group(2))))
        else:
            out += [(m.group(3), i) for i in range(int(m.group(4)), int(m.group(5)) + 1)]
    return out

TRANS = ("v_exp_f32", "v_log_f32", "v_rcp_f32", "v_rsq_f32", "v_sqrt_f32", "v_sin_f32", "v_cos_f32")

def parse(line):
    line = line.split(";")[0].strip()
    if not line or line.endswith(":") or line.startswith("."): return None
    parts = line.split(None, 1)
    op = parts[0]
    ops = [o.strip() for o in parts[1].split(",")] if len(parts) > 1 else []
    d = dict(op=op, ops=ops, line=line, w=[], r=[])
    allr = lambda xs: [r for x in xs for r in regs(x)]
    if op.startswith("v_mfma"):
        d["kind"] = "mfma"; d["w"] = regs(ops[0]); d["a"] = regs(ops[1]); d["b"] = regs(ops[2]); d["c"] = regs(ops[3])
        d["r"] = d["a"] + d["b"] + d["c"]
        d["passes"] = 8 if "32x32" in op else 4
    elif op.startswith("v_cmp"):
        d["kind"] = "valu"; d["w"] = regs(ops[0]); d["r"] = allr(ops[1:]); d["wvcc"] = ops[0] == "vcc"
    elif op.startswith("v_readfirstlane") or op.startswith("v_readlane"):
        d["kind"] = "valu"; d["w"] = regs(ops[0]); d["r"] = allr(ops[1:]); d["rl"] = True
    elif op.startswith("v_permlane"):
        d["kind"] = "valu"; d["w"] = allr(ops[:2]); d["r"] = allr(ops[:2]); d["perm"] = True
    elif op.startswith("v_"):
        d["kind"] = "valu"; d["w"] = regs(ops[0]); d["r"] = allr(ops[1:])
        if op.startswith(("v_fmac", "v_mac")): d["r"] += d["w"]
        d["trans"] = op.replace("_e32", "") in TRANS
        d["rvcc"] = op.startswith("v_cndmask") and "vcc" in ops[-1]
        d["dpp"] = "dpp" in op or "row_" in line or "quad_perm" in line
    elif op.startswith("ds_read"):
        d["kind"] = "ds"; d["w"] = regs(ops[0]); d["r"] = allr(ops[1:])
    elif op.startswith("ds_"):
        d["kind"] = "ds"; d["r"] = allr(ops)
    elif op.startswith(("buffer_load", "global_load")):
        d["kind"] = "vmem"
        if " lds" in line or "_lds_" in op: d["r"] = allr(ops)
        else: d["w"] = regs(ops[0]); d["r"] = allr(ops[1:])
    elif op.startswith(("buffer_", "global_")):
        d["kind"] = "vmem"; d["r"] = allr(ops); d["store"] = op.startswith(("buffer_store", "global_store"))
        d["wide"] = "x4" in op or "x3" in op
        if d.get("store"):
            d["sdata"] = regs(ops[0]) if op.startswith("buffer") else regs(ops[1])
    elif op == "s_nop":
        d["kind"] = "nop"; d["n"] = int(ops[0], 0) + 1
    elif op.startswith("s_"):
        d["kind"] = "salu"
        if op.startswith(("s_waitcnt", "s_barrier", "s_cbranch", "s_branch", "s_cmp", "s_endpgm", "s_setprio", "s_sleep", "s_bitcmp")):
            d["r"] = allr(ops)
        else:
            d["w"] = regs(ops[0]) if ops else []; d["r"] = allr(ops[1:])
            if ops and ops[0] == "m0": d["wm0"] = True
    else:
        d["kind"] = "other"
    return d

def check(lines, window=24):
    ins = [(i, parse(l)) for i, l in enumerate(lines)]
    ins = [(i, d) for i, d in ins if d]
    probs = []
    for k, (i, c) in enumerate(ins):
        dist = 0
        for kk in range(k - 1, max(-1, k - window - 1), -1):
            j, p = ins[kk]
            need = 0; why = ""
            W = set(p["w"]); R = set(c["r"]); CW = set(c["w"])
            if p["kind"] == "mfma":
                big = p["passes"] == 8
                if c["kind"] == "mfma":
                    if W & (set(c["a"]) | set(c["b"])): need, why = (12 if big else 8), "mfma D -> mfma A/B"
                    elif W & set(c["c"]) and not (c["c"] == p["w"] and c["passes"] == p["passes"]):
                        need, why = (10 if big else 6), "mfma D -> mfma C overlap"
                elif c["kind"] in ("valu", "ds", "vmem") and (W & (R | CW)):
                    need, why = (12 if big else 8), "mfma D -> valu/mem"
                if c["kind"] == "valu" and (set(p["c"]) & CW) and not need:
                    need, why = (7 if big else 3), "mfma C read -> valu write"
            elif p["kind"] == "valu":
                vW = {x for x in W if x[0] in "va"}; sW = {x for x in W if x[0] == "s"}
                if c["kind"] == "mfma" and vW & R: need, why = 2, "valu -> mfma"
                if c["kind"] == "valu":
                    if p.get("trans") and not c.get("trans") and vW & R: need, why = max(need, 1), "trans -> valu"
                    if c.get("perm") and vW & R: need, why = 2, "valu -> permlane"
                    if c.get("rl") and vW & R: need, why = max(need, 1), "valu -> readlane"
                    if c.get("dpp") and vW & R: need, why = 2, "valu -> dpp"
                    if sW & R: need, why = 2, "valu sgpr -> valu"
                    if p.get("wvcc") and c.get("rvcc"): need, why = 2, "vcc -> cndmask"
                if c["kind"] == "vmem" and sW & R: need, why = 5, "valu sgpr -> vmem"
            elif p["kind"] == "salu":
                if p.get("wm0") and c["kind"] == "vmem" and " lds" in c["line"]: need, why = 1, "m0 -> lds dma"
            elif p["kind"] == "vmem" and p.get("store") and p.get("wide"):
                if c["kind"] in ("valu", "ds", "vmem", "mfma") and set(p["sdata"]) & CW:
                    need, why = 2, "wide store data WAR"
            if need > dist:
                probs.append(f"line {i}: '{c['line']}' needs {need} states after line {j} '{p['line']}' ({why}), has {dist}")
            dist += p["n"] if p["kind"] == "nop" else 1
            if dist >= 20: break
    return probs
```

```python
import sys
from asmlib import G, check

PREFIX = "concat_heads__gqa_block_cached__gqa_block_cached__near_ridge"
K1 = PREFIX + "_kernel"
K2 = PREFIX + "_red_kernel"

VB = 0
KB = 65536
XB = 114688
QB = XB
OB = 139264
WQB = 16384
NS = 6
def kslot(i): return KB + (NS - 1 - i % NS) * 8192
def vslot(i): return VB + (i % NS) * 8192

CSCALE = 0.12751743
import math, struct
CSCALE = math.log2(math.e) / math.sqrt(128.0)
def fbits(x): return struct.unpack("<I", struct.pack("<f", x))[0]
THR = float(2 ** 20)

S_W = 3
SRD_X, SRD_WQ, SRD_K, SRD_V, SRD_WO, SRD_P = 4, 8, 12, 16, 20, 24
S_HKV, S_HALF, S_B, S_BR = 54, 55, 56, 57
S_S0 = 58
S_RING = 59
S_T0, S_T1, S_T2, S_T3 = 60, 61, 62, 63
S_CNT = 64
S_KOFF, S_VOFF = 65, 66
S_THR = 67
S_C = 68
S_RET = 70
S_STAMP = 72
S_SAVE = 96

V_LANE = 1
V_XD, V_WD0, V_WD1 = 2, 3, 4
V_XR, V_XT0, V_XT1 = 5, 6, 7
V_WR = 8
V_KE0, V_KE1, V_VE = 12, 13, 14
V_KD = 16
V_VD = 20
V_OR, V_OT0, V_OT1 = 21, 22, 23
V_WOR = 24
V_S = [32, 48]
V_P = [64, 72]
V_NEGM = 80
V_E = 96
V_L, V_TS = 100, 101
V_T = 102
V_KA = 104
V_VA = 112
V_WOD = 116
V_TMP = 118
A_O, A_Q, A_K, A_V = 0, 64, 96, 128
V_A1 = [128, 144]; V_B1 = [160, 172]; V_ACC1 = 184
A_A3 = 160; A_B3 = [192, 204]; V_ACC3 = 128

def vr(b, n=1): return f"v{b}" if n == 1 else f"v[{b}:{b+n-1}]"
def ar(b, n=1): return f"a{b}" if n == 1 else f"a[{b}:{b+n-1}]"
def sr(b, n=1): return f"s{b}" if n == 1 else f"s[{b}:{b+n-1}]"

class Opt:
    nt_kv = "nt"
    pol_w = ""
    pol_x = ""
    pol_st = ""
    stamps = False
    rot = True
    dbg = None

def stamp(g, o, idx):
    if o.stamps:
        g.A(f"s_memrealtime s[{S_STAMP+2*idx}:{S_STAMP+2*idx+1}]")
        g.A("s_waitcnt lgkmcnt(0)"); g.lg = []

def header(g, name):
    g.A(".text"); g.A(f".globl {name}"); g.A(".p2align 8"); g.A(f".type {name},@function"); g.label(name)

def descriptor(g, name, vgpr, accum, sgpr=102):
    g.A('.section .rodata,"a"'); g.A(".p2align 6"); g.A(f".amdhsa_kernel {name}")
    g.A(f".amdhsa_next_free_vgpr {vgpr}"); g.A(f".amdhsa_next_free_sgpr {sgpr}"); g.A(f".amdhsa_accum_offset {accum}")
    g.A(".amdhsa_group_segment_fixed_size 0"); g.A(".amdhsa_kernarg_size 104"); g.A(".amdhsa_user_sgpr_count 2")
    g.A(".amdhsa_user_sgpr_kernarg_segment_ptr 1"); g.A(".amdhsa_system_sgpr_workgroup_id_x 1"); g.A(".end_amdhsa_kernel")

def srd(g, d, lo, hi, off_s, nrec):
    if off_s is None:
        g.A(f"s_mov_b32 s{d}, s{lo}"); g.A(f"s_and_b32 s{d+1}, s{hi}, 0xffff")
    else:
        g.A(f"s_add_u32 s{d}, s{lo}, {off_s}"); g.A(f"s_addc_u32 s{d+1}, s{hi}, 0"); g.A(f"s_and_b32 s{d+1}, s{d+1}, 0xffff")
    g.A(f"s_mov_b32 s{d+2}, {nrec}"); g.A(f"s_mov_b32 s{d+3}, 0x20000")

def dma(g, voff, srd_, soff, imm, pol, tag):
    off = f" offset:{imm}" if imm else ""
    pol = f" {pol}" if pol else ""
    g.vmem(f"buffer_load_dwordx4 v{voff}, s[{srd_}:{srd_+3}], {soff} offen{off}{pol} lds", tag)

def setup(g, o):
    g.A("s_cmp_ge_u32 s2, 256"); g.A("s_cbranch_scc1 L_k1_end")
    stamp(g, o, 0)
    g.A("s_load_dwordx16 s[32:47], s[0:1], 0")
    g.A("s_load_dwordx4 s[48:51], s[0:1], 64")
    g.A("s_load_dwordx2 s[52:53], s[0:1], 96")
    g.A(f"v_and_b32 v{V_LANE}, 63, v0")
    g.A("v_lshrrev_b32 v2, 6, v0")
    g.A(f"s_and_b32 s{S_HKV}, s2, 7")
    g.A(f"v_readfirstlane_b32 s{S_W}, v2")
    g.A(f"s_lshr_b32 s{S_T0}, s2, 3")
    g.A(f"s_and_b32 s{S_HALF}, s{S_T0}, 1")
    g.A(f"s_lshr_b32 s{S_B}, s{S_T0}, 1"); g.A(f"s_and_b32 s{S_B}, s{S_B}, 7")
    g.A(f"s_lshr_b32 s{S_BR}, s{S_T0}, 4")
    for i in range(64):
        g.A(f"v_accvgpr_write_b32 a{A_O+i}, 0")
    g.A("s_waitcnt lgkmcnt(0)")
    g.A(f"s_cmp_eq_u32 s{S_BR}, 1")
    for i in range(10):
        g.A(f"s_cselect_b32 s{32+i}, s{42+i}, s{32+i}")
    g.A(f"s_mul_i32 s{S_T0}, s{S_B}, 49152"); srd(g, SRD_X, 32, 33, f"s{S_T0}", 49152)
    g.A(f"s_lshl_b32 s{S_T0}, s{S_B}, 3"); g.A(f"s_add_u32 s{S_T0}, s{S_T0}, s{S_HKV}"); g.A(f"s_lshl_b32 s{S_T0}, s{S_T0}, 18")
    srd(g, SRD_K, 34, 35, f"s{S_T0}", 262144); srd(g, SRD_V, 36, 37, f"s{S_T0}", 262144)
    g.A(f"s_lshl_b32 s{S_T0}, s{S_HKV}, 1"); g.A(f"s_add_u32 s{S_T0}, s{S_T0}, s{S_HALF}")
    g.A(f"s_lshl_b32 s{S_T1}, s{S_T0}, 9")
    srd(g, SRD_WQ, 38, 39, f"s{S_T1}", 0)
    g.A(f"s_sub_u32 s{SRD_WQ+2}, 0x400000, s{S_T1}")
    g.A(f"s_lshl_b32 s{S_T1}, s{S_T0}, 18")
    srd(g, SRD_WO, 40, 41, f"s{S_T1}", 262144)
    g.A(f"s_lshl_b32 s{S_T1}, s{S_BR}, 3"); g.A(f"s_add_u32 s{S_T1}, s{S_T1}, s{S_B}"); g.A(f"s_lshl_b32 s{S_T1}, s{S_T1}, 4")
    g.A(f"s_add_u32 s{S_T1}, s{S_T1}, s{S_T0}"); g.A(f"s_mul_i32 s{S_T1}, s{S_T1}, 49152")
    srd(g, SRD_P, 52, 53, f"s{S_T1}", 49152)
    g.A(f"s_mov_b32 s{S_THR}, {hex(fbits(THR))}")
    g.A(f"s_mov_b32 s{S_C}, {hex(fbits(CSCALE))}")
    if o.rot:
        g.A(f"s_lshl_b32 s{S_S0}, s{S_B}, 1")
    else:
        g.A(f"s_mov_b32 s{S_S0}, 0")

def p1_addresses(g):
    L = V_LANE; t0, t1, t2, t3 = V_TMP, V_TMP+1, V_TMP+2, V_TMP+3
    g.C("q = lane>>4, p = lane&15")
    g.A(f"v_lshrrev_b32 v{t0}, 4, v{L}")
    g.A(f"v_and_b32 v{t1}, 15, v{L}")
    g.A(f"s_lshl_b32 s{S_T0}, s{S_W}, 2")
    g.A(f"v_add_u32 v{t2}, s{S_T0}, v{t0}")
    g.A(f"v_xor_b32 v{t2}, v{t2}, v{t1}")
    g.A(f"v_lshlrev_b32 v{t2}, 4, v{t2}")
    g.A(f"v_lshl_add_u32 v{V_XD}, v{t0}, 10, v{t2}")
    g.A(f"v_xor_b32 v{t2}, v{t0}, v{t1}")
    g.A(f"v_lshlrev_b32 v{t2}, 4, v{t2}")
    g.A(f"v_lshl_add_u32 v{V_XR}, v{t1}, 8, v{t2}")
    g.A(f"v_lshrrev_b32 v{t2}, 3, v{L}")
    g.A(f"v_and_b32 v{t3}, 7, v{L}")
    g.A(f"s_lshl_b32 s{S_T0}, s{S_W}, 7")
    for e in range(2):
        d = V_WD0 + e
        g.A(f"v_and_b32 v{d}, 2, v{t2}")
        if e: g.A(f"v_or_b32 v{d}, 4, v{d}")
        g.A(f"v_xor_b32 v{d}, v{d}, v{t3}")
        g.A(f"v_lshlrev_b32 v{d}, 4, v{d}")
        g.A(f"v_lshl_add_u32 v{d}, v{t2}, 13, v{d}")
        g.A(f"v_add_u32 v{d}, s{S_T0}, v{d}")
    g.A(f"s_lshl_b32 s{S_RING}, s{S_W}, 14"); g.A(f"s_add_u32 s{S_RING}, s{S_RING}, {WQB}")
    r_, cc, sw = V_TMP+4, V_TMP+5, V_TMP+6
    g.A(f"v_bfe_u32 v{r_}, v{L}, 2, 2")
    g.A(f"v_and_b32 v{cc}, 3, v{L}")
    g.A(f"v_and_b32 v{sw}, 2, v{r_}")
    g.A(f"v_and_b32 v{t2}, 1, v{t0}")
    g.A(f"v_lshl_or_b32 v{sw}, v{t2}, 2, v{sw}")
    g.A(f"v_lshrrev_b32 v{t2}, 1, v{cc}")
    g.A(f"v_or_b32 v{sw}, v{sw}, v{t2}")
    g.A(f"v_lshlrev_b32 v{sw}, 4, v{sw}")
    g.A(f"v_and_b32 v{t2}, 1, v{cc}")
    g.A(f"v_lshl_add_u32 v{sw}, v{t2}, 3, v{sw}")
    g.A(f"v_lshl_add_u32 v{t2}, v{t0}, 3, v{r_}")
    g.A(f"v_lshl_add_u32 v{sw}, v{t2}, 7, v{sw}")
    g.A(f"v_add_u32 v{sw}, s{S_RING}, v{sw}")
    for cb in range(4):
        g.A(f"v_xor_b32 v{V_WR+cb}, {cb << 5}, v{sw}")
    g.A(f"s_lshl_b32 s{S_T0}, s{S_W}, 11")
    g.A(f"v_lshlrev_b32 v{t2}, 8, v{t0}")
    g.A(f"v_add_u32 v{t2}, s{S_T0}, v{t2}")
    g.A(f"s_lshl_b32 s{S_T1}, s{S_W}, 3"); g.A(f"s_and_b32 s{S_T1}, s{S_T1}, 15")
    for e in range(2):
        d = V_KE0 + e
        g.A(f"v_add_u32 v{d}, s{S_T1}, v{t0}")
        if e: g.A(f"v_add_u32 v{d}, 4, v{d}")
        g.A(f"v_xor_b32 v{d}, v{d}, v{t1}")
        g.A(f"v_lshl_add_u32 v{d}, v{d}, 4, v{t2}")
    g.A(f"v_lshlrev_b32 v{V_VE}, 2, v{t0}")
    g.A(f"v_xor_b32 v{V_VE}, v{V_VE}, v{t1}")
    g.A(f"v_lshl_add_u32 v{V_VE}, v{V_VE}, 4, v{t2}")

def p1_dma_x(g, o):
    for kq in range(4):
        for i3 in range(3):
            g.A(f"s_lshl_b32 s{S_T0}, s{S_W}, 12"); g.A(f"s_add_u32 s{S_T0}, s{S_T0}, {i3*16384 + kq*256}")
            g.A(f"s_lshl_b32 s{S_T1}, s{S_W}, 10"); g.A(f"s_add_u32 m0, s{S_T1}, {XB + kq*12288 + i3*4096}")
            g.A("s_nop 0")
            dma(g, V_XD, SRD_X, f"s{S_T0}", 0, o.pol_x, "x")

def p1_dma_wq(g, o, i):
    out = []
    slot = i % 4
    def first():
        g.A(f"s_add_u32 s{S_T2}, s{S_S0}, {i}"); g.A(f"s_and_b32 s{S_T2}, s{S_T2}, 15"); g.A(f"s_lshl_b32 s{S_T2}, s{S_T2}, 18")
    for jj in range(4):
        def f(jj=jj):
            if jj == 0: first()
            else: g.A(f"s_add_u32 s{S_T2}, s{S_T2}, 65536")
            g.A(f"s_add_u32 m0, s{S_RING}, {slot*4096 + jj*1024}")
            g.A("s_nop 0")
            dma(g, V_WD0 + (jj & 1), SRD_WQ, f"s{S_T2}", 0, o.pol_w, f"wq{i}")
        out.append(f)
    return out

EARLY = [("K", 0), ("K", 1), ("V", 0), ("K", 2), ("V", 1), ("K", 3)]
def early_kv(g, o, idx):
    kind, t = EARLY[idx]
    out = []
    for e in range(2):
        def f(e=e):
            if e == 0:
                base = kslot(t) if kind == "K" else vslot(t)
                g.A(f"s_lshl_b32 s{S_T3}, s{S_W}, 11"); g.A(f"s_add_u32 m0, s{S_T3}, {base}")
                g.A(f"s_mov_b32 s{S_T3}, {t*8192}")
            if kind == "K": dma(g, V_KE0 + e, SRD_K, f"s{S_T3}", 1024*e, o.nt_kv, f"e{kind}{t}")
            else: dma(g, V_VE, SRD_V, f"s{S_T3}", 1024*e, o.nt_kv, f"e{kind}{t}")
        out.append(f)
    return out

def p1_reads(g, i):
    out = []
    buf = i % 2; slot = i % 4
    vt = V_XT0 + buf
    def addr():
        g.A(f"s_add_u32 s{S_T0}, s{S_S0}, {i}"); g.A(f"s_and_b32 s{S_T0}, s{S_T0}, 15")
        g.A(f"s_and_b32 s{S_T1}, s{S_T0}, 3"); g.A(f"s_lshl_b32 s{S_T1}, s{S_T1}, 6")
        g.A(f"s_lshr_b32 s{S_T0}, s{S_T0}, 2"); g.A(f"s_mul_i32 s{S_T0}, s{S_T0}, 12288"); g.A(f"s_add_u32 s{S_T0}, s{S_T0}, {XB}")
        g.A(f"v_xor_b32 v{vt}, s{S_T1}, v{V_XR}"); g.A(f"v_add_u32 v{vt}, s{S_T0}, v{vt}")
    out.append(addr)
    for rb in range(3):
        out.append(lambda rb=rb: g.lds(f"ds_read_b128 {vr(V_B1[buf]+4*rb,4)}, v{vt} offset:{rb*4096}", f"f{i}"))
    for cb in range(4):
        for u in range(2):
            out.append(lambda cb=cb, u=u: g.lds(
                f"ds_read_b64_tr_b16 {vr(V_A1[buf]+4*cb+2*u,2)}, v{V_WR+cb} offset:{slot*4096+u*512}", f"f{i}"))
    return out

def weave(main, fill):
    n = len(main); m = len(fill); k = 0
    for i, f in enumerate(main):
        f()
        tgt = (i + 1) * m // n
        while k < tgt:
            fill[k](); k += 1

def p1(g, o):
    g.C("==== P1: Q projection")
    p1_addresses(g)
    p1_dma_x(g, o)
    for i in range(3):
        for f in p1_dma_wq(g, o, i): f()
    g.wait_vm("x"); g.A("s_barrier")
    stamp(g, o, 1)
    g.wait_vm("wq0")
    for f in p1_reads(g, 0): f()
    early_q = [f for idx in range(6) for f in early_kv(g, o, idx)]
    for i in range(16):
        buf = i % 2
        fill = []
        if i + 1 < 16:
            g.wait_vm(f"wq{i+1}")
            rd = p1_reads(g, i + 1)
        else:
            rd = []
        for f in rd: f()
        g.wait_lg(f"f{i}")
        if i + 3 < 16: fill = p1_dma_wq(g, o, i + 3)
        else:
            k = (i - 13) * 4
            fill = early_q[k:k+4]
        mf = []
        for cb in range(4):
            for rb in range(3):
                acc = vr(V_ACC1 + (cb*3 + rb)*4, 4)
                c = "0" if i == 0 else acc
                mf.append(lambda acc=acc, c=c, cb=cb, rb=rb: g.A(
                    f"v_mfma_f32_16x16x32_bf16 {acc}, {vr(V_A1[buf]+4*cb,4)}, {vr(V_B1[buf]+4*rb,4)}, {c}"))
        weave(mf, fill)
    stamp(g, o, 2)
    L = V_LANE; t0, t1, t2, base = V_TMP, V_TMP+1, V_TMP+2, V_TMP+3
    g.A(f"v_lshrrev_b32 v{t0}, 4, v{L}"); g.A(f"v_and_b32 v{t1}, 15, v{L}")
    g.A(f"s_and_b32 s{S_T0}, s{S_W}, 1"); g.A(f"s_lshl_b32 s{S_T0}, s{S_T0}, 3")
    g.A(f"v_lshrrev_b32 v{t2}, 1, v{t0}")
    g.A(f"v_xor_b32 v{t2}, v{t2}, v{t1}"); g.A(f"v_xor_b32 v{t2}, s{S_T0}, v{t2}")
    g.A(f"v_lshlrev_b32 v{t2}, 4, v{t2}")
    g.A(f"v_and_b32 v{t0}, 1, v{t0}"); g.A(f"v_lshl_add_u32 v{t2}, v{t0}, 3, v{t2}")
    g.A(f"s_lshr_b32 s{S_T0}, s{S_W}, 1"); g.A(f"s_mul_i32 s{S_T0}, s{S_T0}, {48*256}"); g.A(f"s_add_u32 s{S_T0}, s{S_T0}, {QB}")
    g.A(f"v_lshl_add_u32 v{base}, v{t1}, 8, v{t2}"); g.A(f"v_add_u32 v{base}, s{S_T0}, v{base}")
    g.A("s_barrier")
    for cb in range(4):
        g.A(f"v_xor_b32 v{t0}, {cb << 5}, v{base}")
        for rb in range(3):
            a = V_ACC1 + (cb*3 + rb)*4
            for j in range(4): g.A(f"v_mul_f32 v{a+j}, s{S_C}, v{a+j}")
            g.A(f"v_cvt_pk_bf16_f32 v{a}, v{a}, v{a+1}"); g.A(f"v_cvt_pk_bf16_f32 v{a+1}, v{a+2}, v{a+3}")
            g.lds(f"ds_write_b64 v{t0}, {vr(a,2)} offset:{rb*4096}", "qw")
    g.wait_lg0()
    g.wait_vm(["eK0", "eK1"])
    g.A("s_barrier")
    stamp(g, o, 3)

def qk_mfma(g, s, dst, first_c):
    c = first_c if s == 0 else vr(dst, 16)
    g.A(f"v_mfma_f32_32x32x16_bf16 {vr(dst,16)}, {ar(A_K+4*s,4)}, {ar(A_Q+4*s,4)}, {c}")
def pv_mfma(g, s, blk, p):
    g.A(f"v_mfma_f32_32x32x16_bf16 {ar(A_O+16*blk,16)}, {ar(A_V+(s*4+blk)*4,4)}, {vr(p+4*s,4)}, {ar(A_O+16*blk,16)}")
def k_read(g, s, t):
    g.lds(f"ds_read_b128 {ar(A_K+4*s,4)}, v{V_KA+s} offset:{kslot(t)-KB}", "K")
def v_read(g, s, blk, u, t):
    g.lds(f"ds_read_b64_tr_b16 {ar(A_V+(s*4+blk)*4+2*u,2)}, v{V_VA+blk} offset:{vslot(t)-VB+4096*s+2048*u}", "V")

def softmax_ops(g, S, P):
    slots = [[] for _ in range(17)]
    for i in range(16):
        slots[i].append(lambda i=i: g.A(f"v_exp_f32 v{V_E+i%4}, v{S+i}"))
    for i in range(1, 16):
        if i == 1: slots[2].append(lambda: g.A(f"v_add_f32 v{V_TS}, v{V_E}, v{V_E+1}"))
        else: slots[i+1].append(lambda i=i: g.A(f"v_add_f32 v{V_TS}, v{V_TS}, v{V_E+i%4}"))
    for k in range(8):
        slots[2*k+2].append(lambda k=k: g.A(f"v_cvt_pk_bf16_f32 v{P+k}, v{V_E+(2*k)%4}, v{V_E+(2*k+1)%4}"))
    return slots

def p2_iter(g, t, do_qk=True, do_pv=True, vm0=False):
    par = t % 2
    Scur, Snew, Pcur, Pprev = V_S[par], V_S[1-par], V_P[par], V_P[1-par]
    g.C(f"---- iteration {t}")
    if vm0: g.A("s_waitcnt vmcnt(0)")
    g.A("s_barrier")
    sm = softmax_ops(g, Scur, Pcur)
    extra = [[] for _ in range(17)]
    if do_qk:
        for s in range(8): extra[min(s+1, 16)].append(lambda s=s: k_read(g, s, t+2))
    for s in range(2):
        for blk in range(4):
            m = 8 + 4*s + blk
            sl = min(m + 1, 16) if do_pv else (4*s + blk)
            for u in range(2): extra[sl].append(lambda s=s, blk=blk, u=u: v_read(g, s, blk, u, t))
    if do_qk: g.A(f"s_waitcnt lgkmcnt({15 if do_pv else 0})")
    for m in range(16):
        if m < 8:
            if do_qk: qk_mfma(g, m, Snew, vr(V_NEGM, 16))
        else:
            if m == 8 and do_pv: g.A(f"s_waitcnt lgkmcnt({7 if do_qk else 0})")
            if do_pv: pv_mfma(g, (m-8)//4, (m-8) % 4, Pprev)
        for f in sm[m][:1]: f()
        for f in extra[m]: f()
        for f in sm[m][1:]: f()
    if not extra[16]: g.A("s_nop 0")
    for f in extra[16]: f()
    for f in sm[16]: f()
    g.A(f"v_cmp_lt_f32 vcc, s{S_THR}, v{V_TS}")
    g.A(f"s_cbranch_vccnz L_rare_{t}")
    g.label(f"L_back_{t}")
    g.A(f"v_add_f32 v{V_L}, v{V_L}, v{V_TS}")
    g.lg = []

def rare_stub(g, t):
    g.label(f"L_rare_{t}")
    g.A(f"s_call_b64 s[{S_RET}:{S_RET+1}], L_rescale_{t%2}")
    g.A(f"s_branch L_back_{t}")

def rowmax(g, S, dst, tmp):
    g.A(f"v_max3_f32 v{dst}, v{S}, v{S+1}, v{S+2}")
    for k in range(3, 15, 2): g.A(f"v_max3_f32 v{dst}, v{dst}, v{S+k}, v{S+k+1}")
    g.A(f"v_max_f32 v{dst}, v{dst}, v{S+15}")
    g.A(f"v_mov_b32 v{tmp}, v{dst}"); g.A("s_nop 1")
    g.A(f"v_permlane32_swap_b32 v{tmp}, v{dst}")
    g.A(f"v_max_f32 v{dst}, v{dst}, v{tmp}")

def rescale_sub(g, par):
    Scur, Snew, Pcur = V_S[par], V_S[1-par], V_P[par]
    d, tmp, f = V_T, V_T+1, V_TMP
    g.label(f"L_rescale_{par}")
    g.A("s_nop 15"); g.A("s_nop 15")
    rowmax(g, Scur, d, tmp)
    g.A(f"v_max_f32 v{d}, 0, v{d}")
    for i in range(16):
        g.A(f"v_sub_f32 v{Scur+i}, v{Scur+i}, v{d}")
        g.A(f"v_sub_f32 v{Snew+i}, v{Snew+i}, v{d}")
        g.A(f"v_sub_f32 v{V_NEGM+i}, v{V_NEGM+i}, v{d}")
    g.A(f"v_sub_f32 v{f}, 0, v{d}"); g.A(f"v_exp_f32 v{f}, v{f}"); g.A("s_nop 0")
    g.A(f"v_mul_f32 v{V_L}, v{V_L}, v{f}")
    for i in range(64):
        g.A(f"v_accvgpr_read_b32 v{tmp}, a{A_O+i}"); g.A(f"v_mul_f32 v{tmp}, v{tmp}, v{f}"); g.A(f"v_accvgpr_write_b32 a{A_O+i}, v{tmp}")
    for k in range(8):
        g.A(f"v_exp_f32 v{V_E}, v{Scur+2*k}"); g.A(f"v_exp_f32 v{V_E+1}, v{Scur+2*k+1}"); g.A("s_nop 0")
        if k == 0: g.A(f"v_add_f32 v{V_TS}, v{V_E}, v{V_E+1}")
        else:
            g.A(f"v_add_f32 v{V_TS}, v{V_TS}, v{V_E}"); g.A(f"v_add_f32 v{V_TS}, v{V_TS}, v{V_E+1}")
        g.A(f"v_cvt_pk_bf16_f32 v{Pcur+k}, v{V_E}, v{V_E+1}")
    g.A("s_nop 1")
    g.A(f"s_setpc_b64 s[{S_RET}:{S_RET+1}]")

def p2_addresses(g):
    L = V_LANE; t0, t1, t2, t3 = V_TMP, V_TMP+1, V_TMP+2, V_TMP+3
    g.A(f"v_and_b32 v{t0}, 31, v{L}"); g.A(f"v_lshrrev_b32 v{t1}, 5, v{L}")
    g.A(f"v_and_b32 v{t2}, 15, v{L}"); g.A(f"v_xor_b32 v{t2}, v{t2}, v{t1}")
    g.A(f"v_lshlrev_b32 v{t2}, 4, v{t2}"); g.A(f"v_lshl_add_u32 v{t2}, v{t0}, 8, v{t2}")
    g.A(f"v_add_u32 v{t2}, {KB}, v{t2}")
    for s in range(8): g.A(f"v_xor_b32 v{V_KA+s}, {s << 5}, v{t2}")
    g.A(f"v_bfe_u32 v{t0}, v{L}, 2, 2")
    g.A(f"v_lshl_add_u32 v{t2}, v{t1}, 2, v{t0}"); g.A(f"v_lshlrev_b32 v{t2}, 8, v{t2}")
    g.A(f"v_lshl_add_u32 v{t2}, v{t0}, 6, v{t2}")
    g.A(f"v_bfe_u32 v{t3}, v{L}, 4, 1"); g.A(f"v_lshl_add_u32 v{t2}, v{t3}, 5, v{t2}")
    g.A(f"v_and_b32 v{t3}, 3, v{L}"); g.A(f"v_lshl_add_u32 v{t2}, v{t3}, 3, v{t2}")
    if VB: g.A(f"v_add_u32 v{t2}, {VB}, v{t2}")
    for blk in range(4): g.A(f"v_xor_b32 v{V_VA+blk}, {blk << 6}, v{t2}")

def p2_compute(g, o):
    g.C("==== P2: attention, compute waves 0..2")
    p2_addresses(g)
    g.A(f"s_lshl_b32 s{S_T0}, s{S_W}, 13"); g.A(f"s_add_u32 s{S_T0}, s{S_T0}, {QB-KB}")
    for s in range(8):
        g.A(f"v_add_u32 v{V_TMP+s}, s{S_T0}, v{V_KA+s}")
        g.lds(f"ds_read_b128 {ar(A_Q+4*s,4)}, v{V_TMP+s}", "Q")
    for s in range(8): k_read(g, s, 0)
    g.A(f"v_mov_b32 v{V_L}, 0")
    g.wait_lg0()
    for s in range(8):
        qk_mfma(g, s, V_S[0], "0")
        if s >= 1: k_read(g, s-1, 1)
    k_read(g, 7, 1)
    g.A("s_nop 15")
    rowmax(g, V_S[0], V_T, V_T+1)
    for i in range(16): g.A(f"v_sub_f32 v{V_NEGM+i}, 0, v{V_T}")
    for i in range(16): g.A(f"v_sub_f32 v{V_S[0]+i}, v{V_S[0]+i}, v{V_T}")
    g.A("s_waitcnt vmcnt(4)")
    p2_iter(g, 0, do_pv=False)
    g.A("s_waitcnt lgkmcnt(0)")
    g.A(f"s_mov_b32 s{S_CNT}, 5")
    g.label("L_p2_loop")
    for t in range(1, 7): p2_iter(g, t, vm0=(t == 1))
    g.A(f"s_sub_u32 s{S_CNT}, s{S_CNT}, 1"); g.A(f"s_cmp_lg_u32 s{S_CNT}, 0"); g.A("s_cbranch_scc1 L_p2_loop")
    p2_iter(g, 31, do_qk=False)
    g.A("s_waitcnt lgkmcnt(0)")
    g.A("s_barrier")
    stamp(g, o, 4)
    wo = wo_prefetch(g, o)
    for s in range(2):
        for blk in range(4): pv_mfma(g, s, blk, V_P[1])
    g.A(f"v_mov_b32 v{V_T}, v{V_L}"); g.A("s_nop 1")
    g.A(f"v_permlane32_swap_b32 v{V_T}, v{V_L}")
    g.A(f"v_add_f32 v{V_L}, v{V_L}, v{V_T}")
    g.A(f"v_rcp_f32 v{V_L}, v{V_L}")
    L = V_LANE; t0, t1, t2, base = V_TMP, V_TMP+1, V_TMP+2, V_TMP+3
    g.A(f"s_lshl_b32 s{S_T0}, s{S_W}, 5")
    g.A(f"v_and_b32 v{t0}, 31, v{L}"); g.A(f"v_add_u32 v{t0}, s{S_T0}, v{t0}")
    g.A(f"v_cmp_le_u32 vcc, 48, v{t0}")
    g.A(f"v_subrev_u32 v{t1}, 48, v{t0}")
    g.A(f"v_mov_b32 v{t2}, 0")
    g.A(f"v_cndmask_b32 v{t0}, v{t0}, v{t1}, vcc")
    g.A(f"v_mov_b32 v{t1}, 256")
    g.A(f"v_cndmask_b32 v{t2}, v{t2}, v{t1}, vcc")
    g.A(f"v_lshl_add_u32 v{base}, v{t0}, 9, v{t2}")
    g.A(f"v_and_b32 v{t0}, 15, v{t0}"); g.A(f"v_lshl_add_u32 v{base}, v{t0}, 4, v{base}")
    g.A(f"v_lshrrev_b32 v{t0}, 5, v{L}"); g.A(f"v_lshl_add_u32 v{base}, v{t0}, 3, v{base}")
    g.A(f"v_add_u32 v{base}, {OB}, v{base}")
    g.A("s_nop 7")
    main = []
    for blk in range(4):
        for i in range(4):
            def f(blk=blk, i=i):
                a = A_O + 16*blk + 4*i; r = V_S[0] + 4*((blk*4+i) % 4); ad = V_TMP + 4 + ((blk*4+i) % 2)
                for j in range(4): g.A(f"v_accvgpr_read_b32 v{r+j}, a{a+j}")
                g.A(f"v_xor_b32 v{ad}, {(4*blk+i) << 4}, v{base}")
                for j in range(4): g.A(f"v_mul_f32 v{r+j}, v{r+j}, v{V_L}")
                g.A(f"v_cvt_pk_bf16_f32 v{r}, v{r}, v{r+1}"); g.A(f"v_cvt_pk_bf16_f32 v{r+1}, v{r+2}, v{r+3}")
                g.lds(f"ds_write_b64 v{ad}, {vr(r,2)}", "ow")
            main.append(f)
    weave(main, wo)
    g.wait_lg0()
    g.A("s_barrier")

def p2_loader(g, o):
    g.C("==== P2: loader wave 3")
    L = V_LANE; t0, t1 = V_TMP, V_TMP+1
    g.A(f"v_lshrrev_b32 v{t0}, 4, v{L}"); g.A(f"v_and_b32 v{t1}, 15, v{L}")
    for e in range(4):
        d = V_KD + e
        g.A(f"v_add_u32 v{d}, {4*e}, v{t0}"); g.A(f"v_xor_b32 v{d}, v{d}, v{t1}"); g.A(f"v_lshlrev_b32 v{d}, 4, v{d}")
        g.A(f"v_lshl_add_u32 v{d}, v{t0}, 8, v{d}")
    g.A(f"v_lshlrev_b32 v{V_VD}, 2, v{t0}"); g.A(f"v_xor_b32 v{V_VD}, v{V_VD}, v{t1}"); g.A(f"v_lshlrev_b32 v{V_VD}, 4, v{V_VD}")
    g.A(f"v_lshl_add_u32 v{V_VD}, v{t0}, 8, v{V_VD}")
    def tile(kind, t, tag):
        so = S_KOFF if kind == "K" else S_VOFF
        base = kslot(t) if kind == "K" else vslot(t)
        for hf in range(2):
            g.A(f"s_mov_b32 m0, {base + hf*4096}")
            if hf == 1 or True: pass
            for e in range(4):
                if kind == "K": dma(g, V_KD + e, SRD_K, f"s{so}", 1024*e, o.nt_kv, tag)
                else: dma(g, V_VD, SRD_V, f"s{so}", 1024*e, o.nt_kv, tag)
                if e == 0 and False: pass
            g.A(f"s_add_u32 s{so}, s{so}, 4096")
    def tile_safe(kind, t, tag):
        n0 = len(g.L); tile(kind, t, tag)
        out = []
        for l in g.L[n0:]:
            out.append(l)
            if l.startswith("s_mov_b32 m0"): out.append("s_nop 0")
        g.L[n0:] = out
    g.A(f"s_mov_b32 s{S_KOFF}, {4*8192}"); g.A(f"s_mov_b32 s{S_VOFF}, {2*8192}")
    tile_safe("K", 4, "K4"); tile_safe("V", 2, "V2"); tile_safe("K", 5, "K5"); tile_safe("V", 3, "V3")
    def it(t, wait, k=True, v=True):
        g.C(f"loader iteration {t}")
        g.A(f"s_waitcnt vmcnt({wait})"); g.A("s_barrier")
        if k: tile_safe("K", t+6, f"X{t}")
        if v: tile_safe("V", t+4, f"X{t}")
    it(0, 36)
    g.A(f"s_mov_b32 s{S_CNT}, 4")
    g.label("L_ld_loop")
    for t in range(1, 7): it(t, 48)
    g.A(f"s_sub_u32 s{S_CNT}, s{S_CNT}, 1"); g.A(f"s_cmp_lg_u32 s{S_CNT}, 0"); g.A("s_cbranch_scc1 L_ld_loop")
    it(25, 48); it(26, 48, k=False); it(27, 40, k=False)
    it(28, 32, False, False); it(29, 16, False, False); it(30, 8, False, False); it(31, 0, False, False)
    g.vm = []
    g.A("s_barrier")
    stamp(g, o, 4)
    for f in wo_prefetch(g, o): f()
    g.A("s_barrier")

def wo_dma(g, o, i):
    out = []
    slot = i % 4
    for jj in range(8):
        def f(jj=jj):
            if jj == 0:
                g.A(f"s_add_u32 s{S_T2}, s{S_S0}, {i}"); g.A(f"s_and_b32 s{S_T2}, s{S_T2}, 7"); g.A(f"s_lshl_b32 s{S_T2}, s{S_T2}, 15")
            else: g.A(f"s_add_u32 s{S_T2}, s{S_T2}, 4096")
            g.A(f"s_add_u32 m0, s{S_RING}, {slot*8192 + jj*1024}")
            g.A("s_nop 0")
            dma(g, V_WOD + ((jj >> 1) & 1), SRD_WO, f"s{S_T2}", 0, o.pol_w, f"wo{i}")
        out.append(f)
    return out

def wo_prefetch(g, o):
    L = V_LANE; t0, t1, t2 = V_TMP+6, V_TMP+7, V_TMP+8
    g.A(f"s_lshl_b32 s{S_RING}, s{S_W}, 15")
    g.A(f"s_mov_b32 s{S_S0}, s{S_B}" if o.rot else f"s_mov_b32 s{S_S0}, 0")
    g.A(f"v_lshrrev_b32 v{t0}, 4, v{L}"); g.A(f"v_and_b32 v{t1}, 15, v{L}")
    g.A(f"s_lshl_b32 s{S_T0}, s{S_W}, 8")
    for e in range(2):
        d = V_WOD + e
        g.A(f"v_lshlrev_b32 v{d}, 1, v{t0}")
        if e: g.A(f"v_or_b32 v{d}, 8, v{d}")
        g.A(f"v_xor_b32 v{d}, v{d}, v{t1}"); g.A(f"v_lshlrev_b32 v{d}, 4, v{d}")
        g.A(f"v_lshl_add_u32 v{d}, v{t0}, 10, v{d}"); g.A(f"v_add_u32 v{d}, s{S_T0}, v{d}")
    g.vm = []
    return [f for i in range(4) for f in wo_dma(g, o, i)]

def p3(g, o):
    g.C("==== P3: partial output projection")
    L = V_LANE; t0, t1, t2, t3 = V_TMP, V_TMP+1, V_TMP+2, V_TMP+3
    g.vm = [f"wo{i}" for i in range(4) for _ in range(8)]
    stamp(g, o, 5)
    g.A(f"v_lshrrev_b32 v{t0}, 4, v{L}"); g.A(f"v_and_b32 v{t1}, 15, v{L}")
    g.A(f"v_xor_b32 v{t2}, v{t0}, v{t1}"); g.A(f"v_lshlrev_b32 v{t2}, 4, v{t2}")
    g.A(f"v_lshl_add_u32 v{V_OR}, v{t1}, 9, v{t2}"); g.A(f"v_add_u32 v{V_OR}, {OB}, v{V_OR}")
    g.A(f"v_bfe_u32 v{t1}, v{L}, 2, 2")
    g.A(f"v_and_b32 v{t2}, 1, v{t0}"); g.A(f"v_lshl_or_b32 v{t2}, v{t2}, 2, v{t1}"); g.A(f"v_lshlrev_b32 v{t2}, 5, v{t2}")
    g.A(f"v_lshl_add_u32 v{t3}, v{t0}, 3, v{t1}"); g.A(f"v_lshl_add_u32 v{t2}, v{t3}, 8, v{t2}")
    g.A(f"v_and_b32 v{t3}, 3, v{L}"); g.A(f"v_lshl_add_u32 v{t2}, v{t3}, 3, v{t2}")
    g.A(f"v_add_u32 v{t2}, s{S_RING}, v{t2}")
    for cb in range(8): g.A(f"v_xor_b32 v{V_WOR+cb}, {cb << 5}, v{t2}")
    def b_reads(i):
        vt = V_OT0 + i % 2
        g.A(f"s_add_u32 s{S_T0}, s{S_S0}, {i}"); g.A(f"s_and_b32 s{S_T0}, s{S_T0}, 7"); g.A(f"s_lshl_b32 s{S_T0}, s{S_T0}, 6")
        g.A(f"v_xor_b32 v{vt}, s{S_T0}, v{V_OR}")
        for rb in range(3): g.lds(f"ds_read_b128 {ar(A_B3[i%2]+4*rb,4)}, v{vt} offset:{rb*8192}", f"B{i}")
    def a_read(i, cb, u):
        g.lds(f"ds_read_b64_tr_b16 {ar(A_A3+4*cb+2*u,2)}, v{V_WOR+cb} offset:{(i%4)*8192+u*1024}", f"A{i}_{cb}")
    b_reads(0)
    g.wait_vm("wo0")
    for cb in range(8):
        for u in range(2): a_read(0, cb, u)
    for i in range(8):
        nxt = i + 1 < 8
        if nxt:
            g.wait_vm(f"wo{i+1}")
            b_reads(i + 1)
        dm = wo_dma(g, o, i + 4) if i + 4 < 8 else []
        for cb in range(8):
            g.wait_lg([f"A{i}_{cb}", f"B{i}"])
            for rb in range(3):
                acc = vr(V_ACC3 + (cb*3 + rb)*4, 4)
                c = "0" if i == 0 else acc
                g.A(f"v_mfma_f32_16x16x32_bf16 {acc}, {ar(A_A3+4*cb,4)}, {ar(A_B3[i%2]+4*rb,4)}, {c}")
            if nxt and cb >= 1:
                for u in range(2): a_read(i + 1, cb - 1, u)
        if nxt:
            for u in range(2): a_read(i + 1, 7, u)
        if dm:
            for f in dm: f()
    stamp(g, o, 6)
    g.A("s_nop 7")
    g.A(f"v_lshlrev_b32 v{t0}, 4, v{L}")
    g.A(f"s_mul_i32 s{S_T0}, s{S_W}, 12288")
    for rb in range(3):
        if rb: g.A(f"s_add_u32 s{S_T0}, s{S_T0}, 4096")
        for cbp in range(4):
            a0 = V_ACC3 + ((2*cbp)*3 + rb)*4; a1 = V_ACC3 + ((2*cbp+1)*3 + rb)*4
            d = V_S[0] + 4*((rb*4+cbp) % 8)
            g.A(f"v_cvt_pk_bf16_f32 v{d}, v{a0}, v{a0+1}"); g.A(f"v_cvt_pk_bf16_f32 v{d+1}, v{a0+2}, v{a0+3}")
            g.A(f"v_cvt_pk_bf16_f32 v{d+2}, v{a1}, v{a1+1}"); g.A(f"v_cvt_pk_bf16_f32 v{d+3}, v{a1+2}, v{a1+3}")
            pol = f" {o.pol_st}" if o.pol_st else ""
            g.vmem(f"buffer_store_dwordx4 {vr(d,4)}, v{t0}, s[{SRD_P}:{SRD_P+3}], s{S_T0} offen offset:{cbp*1024}{pol}", "st")
    if o.stamps:
        g.wait_vm0()
        stamp(g, o, 7)
        g.A(f"s_cmp_lg_u32 s{S_W}, 0"); g.A("s_cbranch_scc1 L_k1_end")
        g.A(f"s_add_u32 s28, s52, 0x1000000"); g.A("s_addc_u32 s29, s53, 0"); g.A("s_and_b32 s29, s29, 0xffff")
        g.A("s_mov_b32 s30, 0x10000"); g.A("s_mov_b32 s31, 0x20000")
        for k in range(8): g.A(f"v_mov_b32 v{V_S[0]+k}, s{S_STAMP+2*k}")
        g.A(f"s_lshl_b32 s{S_T0}, s2, 5"); g.A(f"v_mov_b32 v{t0}, s{S_T0}")
        g.A(f"v_cmp_eq_u32 vcc, 0, v{L}"); g.A(f"s_and_saveexec_b64 s[{S_SAVE}:{S_SAVE+1}], vcc")
        g.A(f"buffer_store_dwordx4 {vr(V_S[0],4)}, v{t0}, s[28:31], 0 offen")
        g.A(f"buffer_store_dwordx4 {vr(V_S[0]+4,4)}, v{t0}, s[28:31], 0 offen offset:16")
        g.A("s_waitcnt vmcnt(0)")

def k1(g, o):
    header(g, K1)
    setup(g, o)
    p1(g, o)
    g.A(f"s_cmp_eq_u32 s{S_W}, 3"); g.A("s_cbranch_scc1 L_loader")
    vm_save = list(g.vm)
    p2_compute(g, o)
    g.A("s_branch L_p3")
    g.label("L_loader")
    g.vm = vm_save; g.lg = []
    p2_loader(g, o)
    g.label("L_p3")
    g.lg = []
    p3(g, o)
    g.label("L_k1_end")
    g.A("s_endpgm")
    for par in range(2): rescale_sub(g, par)
    for t in [0, 1, 2, 3, 4, 5, 6, 31]: rare_stub(g, t)

def k2(g, o):
    header(g, K2)
    g.A("s_cmp_ge_u32 s2, 256"); g.A("s_cbranch_scc1 L_k2_end")
    g.A("s_load_dwordx2 s[4:5], s[0:1], 96"); g.A("s_load_dwordx2 s[6:7], s[0:1], 80")
    g.A("v_and_b32 v1, 63, v0"); g.A("v_lshrrev_b32 v2, 6, v0")
    g.A("s_lshr_b32 s20, s2, 4")
    g.A("v_readfirstlane_b32 s21, v2")
    g.A("s_and_b32 s22, s2, 15"); g.A("s_mul_i32 s22, s22, 3")
    g.A("s_add_u32 s22, s22, s21")
    g.A("s_mul_i32 s23, s20, 786432")
    g.A("s_lshl_b32 s24, s22, 10"); g.A("s_add_u32 s23, s23, s24")
    g.A("v_lshlrev_b32 v2, 4, v1")
    g.A("s_waitcnt lgkmcnt(0)")
    srd(g, 8, 4, 5, None, 256*49152)
    srd(g, 12, 6, 7, None, 786432)
    for q in range(16):
        g.vmem(f"buffer_load_dwordx4 v[{16+4*q}:{19+4*q}], v2, s[8:11], s23 offen", f"p{q}")
        if q < 15: g.A("s_add_u32 s23, s23, 49152")
    g.A("s_mul_i32 s24, s22, 43"); g.A("s_lshr_b32 s24, s24, 9")
    g.A("s_mul_i32 s25, s24, 12"); g.A("s_sub_u32 s25, s22, s25")
    g.A("s_lshr_b32 s26, s25, 2"); g.A("s_and_b32 s25, s25, 3")
    g.A("s_and_b32 s27, s20, 7"); g.A("s_mul_i32 s27, s27, 98304")
    g.A("s_lshr_b32 s28, s20, 3"); g.A("s_lshl_b32 s28, s28, 10"); g.A("s_add_u32 s27, s27, s28")
    g.A("s_lshl_b32 s28, s26, 15"); g.A("s_add_u32 s27, s27, s28")
    g.A("s_lshl_b32 s28, s24, 8"); g.A("s_add_u32 s27, s27, s28")
    g.A("s_lshl_b32 s28, s25, 6"); g.A("s_add_u32 s27, s27, s28")
    g.A("v_and_b32 v3, 15, v1"); g.A("v_lshrrev_b32 v4, 4, v1")
    g.A("v_lshlrev_b32 v3, 11, v3"); g.A("v_lshl_add_u32 v3, v4, 3, v3")
    for q in range(16):
        g.wait_vm(f"p{q}")
        for j in range(4):
            src = 16 + 4*q + j
            if q == 0:
                g.A(f"v_lshlrev_b32 v{8+2*j}, 16, v{src}"); g.A(f"v_and_b32 v{9+2*j}, 0xffff0000, v{src}")
            else:
                g.A(f"v_lshlrev_b32 v5, 16, v{src}"); g.A(f"v_and_b32 v6, 0xffff0000, v{src}")
                g.A(f"v_add_f32 v{8+2*j}, v{8+2*j}, v5"); g.A(f"v_add_f32 v{9+2*j}, v{9+2*j}, v6")
    for j in range(4): g.A(f"v_cvt_pk_bf16_f32 v{16+j}, v{8+2*j}, v{9+2*j}")
    g.A("buffer_store_dwordx2 v[16:17], v3, s[12:15], s27 offen")
    g.A("buffer_store_dwordx2 v[18:19], v3, s[12:15], s27 offen offset:32")
    g.label("L_k2_end")
    g.A("s_endpgm")

def build(o):
    g = G()
    g.A(f"; @launch kernel={K1} grid=(256,1,1) block=(256,1,1) lds=163840")
    g.A(f"; @launch kernel={K2} grid=(256,1,1) block=(192,1,1) lds=0")
    g.A('.amdgcn_target "amdgcn-amd-amdhsa--gfx950"')
    k1(g, o)
    g2 = G()
    k2(g2, o)
    g.L += g2.L
    descriptor(g, K1, 512, 256)
    descriptor(g, K2, 96, 96, 40)
    return g

if __name__ == "__main__":
    o = Opt()
    for a in sys.argv[2:]:
        k, v = a.split("=", 1)
        setattr(o, k, {"True": True, "False": False}.get(v, v))
    g = build(o)
    probs = check(g.L)
    for p in probs: print("HAZARD", p)
    open(sys.argv[1], "w").write(g.text())
    print("lines", len(g.L))
```

```python
import sys
from asmlib import G, check

PREFIX = "concat_heads__gqa_block_cached__gqa_block_cached__near_ridge"
K1 = PREFIX + "_kernel"
K2 = PREFIX + "_red_kernel"

VB = 0
KB = 65536
XB = 114688
QB = XB
OB = 139264
WQB = 16384
NS = 6
def kslot(i): return KB + (NS - 1 - i % NS) * 8192
def vslot(i): return VB + (i % NS) * 8192

CSCALE = 0.12751743
import math, struct
CSCALE = math.log2(math.e) / math.sqrt(128.0)
def fbits(x): return struct.unpack("<I", struct.pack("<f", x))[0]
THR = float(2 ** 20)

S_W = 3
SRD_X, SRD_WQ, SRD_K, SRD_V, SRD_WO, SRD_P = 4, 8, 12, 16, 20, 24
S_HKV, S_HALF, S_B, S_BR = 54, 55, 56, 57
S_S0 = 58
S_RING = 59
S_T0, S_T1, S_T2, S_T3 = 60, 61, 62, 63
S_CNT = 64
S_KOFF, S_VOFF = 65, 66
S_THR = 67
S_C = 68
S_RET = 70
S_STAMP = 72
S_SAVE = 96

V_LANE = 1
V_XD, V_WD0, V_WD1 = 2, 3, 4
V_XR, V_XT0, V_XT1 = 5, 6, 7
V_WR = 8
V_KE0, V_KE1, V_VE = 12, 13, 14
V_KD = 16
V_VD = 20
V_OR, V_OT0, V_OT1 = 21, 22, 23
V_WOR = 24
V_S = [32, 48]
V_P = [64, 72]
V_NEGM = 80
V_E = 96
V_L, V_TS = 100, 101
V_T = 102
V_KA = 104
V_VA = 112
V_WOD = 116
V_TMP = 118
A_O, A_Q, A_K, A_V = 0, 64, 96, 128
V_A1 = [128, 144]; V_B1 = [160, 172]; V_ACC1 = 184
A_A3 = 160; A_B3 = [192, 204]; V_ACC3 = 128

def vr(b, n=1): return f"v{b}" if n == 1 else f"v[{b}:{b+n-1}]"
def ar(b, n=1): return f"a{b}" if n == 1 else f"a[{b}:{b+n-1}]"
def sr(b, n=1): return f"s{b}" if n == 1 else f"s[{b}:{b+n-1}]"

class Opt:
    nt_kv = "nt"
    pol_w = ""
    pol_x = ""
    pol_st = ""
    stamps = False
    rot = True
    dbg = None
    extra_empty = 0

def stamp(g, o, idx):
    if o.stamps:
        g.A(f"s_memrealtime s[{S_STAMP+2*idx}:{S_STAMP+2*idx+1}]")
        g.A("s_waitcnt lgkmcnt(0)"); g.lg = []

def header(g, name):
    g.A(".text"); g.A(f".globl {name}"); g.A(".p2align 8"); g.A(f".type {name},@function"); g.label(name)

def descriptor(g, name, vgpr, accum, sgpr=102):
    g.A('.section .rodata,"a"'); g.A(".p2align 6"); g.A(f".amdhsa_kernel {name}")
    g.A(f".amdhsa_next_free_vgpr {vgpr}"); g.A(f".amdhsa_next_free_sgpr {sgpr}"); g.A(f".amdhsa_accum_offset {accum}")
    g.A(".amdhsa_group_segment_fixed_size 0"); g.A(".amdhsa_kernarg_size 104"); g.A(".amdhsa_user_sgpr_count 2")
    g.A(".amdhsa_user_sgpr_kernarg_segment_ptr 1"); g.A(".amdhsa_system_sgpr_workgroup_id_x 1"); g.A(".end_amdhsa_kernel")

def srd(g, d, lo, hi, off_s, nrec):
    if off_s is None:
        g.A(f"s_mov_b32 s{d}, s{lo}"); g.A(f"s_and_b32 s{d+1}, s{hi}, 0xffff")
    else:
        g.A(f"s_add_u32 s{d}, s{lo}, {off_s}"); g.A(f"s_addc_u32 s{d+1}, s{hi}, 0"); g.A(f"s_and_b32 s{d+1}, s{d+1}, 0xffff")
    g.A(f"s_mov_b32 s{d+2}, {nrec}"); g.A(f"s_mov_b32 s{d+3}, 0x20000")

def dma(g, voff, srd_, soff, imm, pol, tag):
    off = f" offset:{imm}" if imm else ""
    pol = f" {pol}" if pol else ""
    g.vmem(f"buffer_load_dwordx4 v{voff}, s[{srd_}:{srd_+3}], {soff} offen{off}{pol} lds", tag)

def setup(g, o):
    g.A("s_cmp_ge_u32 s2, 256"); g.A("s_cbranch_scc1 L_k1_end")
    stamp(g, o, 0)
    g.A("s_load_dwordx16 s[32:47], s[0:1], 0")
    g.A("s_load_dwordx4 s[48:51], s[0:1], 64")
    g.A("s_load_dwordx2 s[52:53], s[0:1], 96")
    g.A(f"v_and_b32 v{V_LANE}, 63, v0")
    g.A("v_lshrrev_b32 v2, 6, v0")
    g.A(f"s_and_b32 s{S_HKV}, s2, 7")
    g.A(f"v_readfirstlane_b32 s{S_W}, v2")
    g.A(f"s_lshr_b32 s{S_T0}, s2, 3")
    g.A(f"s_and_b32 s{S_HALF}, s{S_T0}, 1")
    g.A(f"s_lshr_b32 s{S_B}, s{S_T0}, 1"); g.A(f"s_and_b32 s{S_B}, s{S_B}, 7")
    g.A(f"s_lshr_b32 s{S_BR}, s{S_T0}, 4")
    for i in range(64):
        g.A(f"v_accvgpr_write_b32 a{A_O+i}, 0")
    g.A("s_waitcnt lgkmcnt(0)")
    g.A(f"s_cmp_eq_u32 s{S_BR}, 1")
    for i in range(10):
        g.A(f"s_cselect_b32 s{32+i}, s{42+i}, s{32+i}")
    g.A(f"s_mul_i32 s{S_T0}, s{S_B}, 49152"); srd(g, SRD_X, 32, 33, f"s{S_T0}", 49152)
    g.A(f"s_lshl_b32 s{S_T0}, s{S_B}, 3"); g.A(f"s_add_u32 s{S_T0}, s{S_T0}, s{S_HKV}"); g.A(f"s_lshl_b32 s{S_T0}, s{S_T0}, 18")
    srd(g, SRD_K, 34, 35, f"s{S_T0}", 262144); srd(g, SRD_V, 36, 37, f"s{S_T0}", 262144)
    g.A(f"s_lshl_b32 s{S_T0}, s{S_HKV}, 1"); g.A(f"s_add_u32 s{S_T0}, s{S_T0}, s{S_HALF}")
    g.A(f"s_lshl_b32 s{S_T1}, s{S_T0}, 9")
    srd(g, SRD_WQ, 38, 39, f"s{S_T1}", 0)
    g.A(f"s_sub_u32 s{SRD_WQ+2}, 0x400000, s{S_T1}")
    g.A(f"s_lshl_b32 s{S_T1}, s{S_T0}, 18")
    srd(g, SRD_WO, 40, 41, f"s{S_T1}", 262144)
    g.A(f"s_lshl_b32 s{S_T1}, s{S_BR}, 3"); g.A(f"s_add_u32 s{S_T1}, s{S_T1}, s{S_B}"); g.A(f"s_lshl_b32 s{S_T1}, s{S_T1}, 4")
    g.A(f"s_add_u32 s{S_T1}, s{S_T1}, s{S_T0}"); g.A(f"s_mul_i32 s{S_T1}, s{S_T1}, 49152")
    srd(g, SRD_P, 52, 53, f"s{S_T1}", 49152)
    g.A(f"s_mov_b32 s{S_THR}, {hex(fbits(THR))}")
    g.A(f"s_mov_b32 s{S_C}, {hex(fbits(CSCALE))}")
    if o.rot:
        g.A(f"s_lshl_b32 s{S_S0}, s{S_B}, 1")
    else:
        g.A(f"s_mov_b32 s{S_S0}, 0")

def p1_addresses(g):
    L = V_LANE; t0, t1, t2, t3 = V_TMP, V_TMP+1, V_TMP+2, V_TMP+3
    g.C("q = lane>>4, p = lane&15")
    g.A(f"v_lshrrev_b32 v{t0}, 4, v{L}")
    g.A(f"v_and_b32 v{t1}, 15, v{L}")
    g.A(f"s_lshl_b32 s{S_T0}, s{S_W}, 2")
    g.A(f"v_add_u32 v{t2}, s{S_T0}, v{t0}")
    g.A(f"v_xor_b32 v{t2}, v{t2}, v{t1}")
    g.A(f"v_lshlrev_b32 v{t2}, 4, v{t2}")
    g.A(f"v_lshl_add_u32 v{V_XD}, v{t0}, 10, v{t2}")
    g.A(f"v_xor_b32 v{t2}, v{t0}, v{t1}")
    g.A(f"v_lshlrev_b32 v{t2}, 4, v{t2}")
    g.A(f"v_lshl_add_u32 v{V_XR}, v{t1}, 8, v{t2}")
    g.A(f"v_lshrrev_b32 v{t2}, 3, v{L}")
    g.A(f"v_and_b32 v{t3}, 7, v{L}")
    g.A(f"s_lshl_b32 s{S_T0}, s{S_W}, 7")
    for e in range(2):
        d = V_WD0 + e
        g.A(f"v_and_b32 v{d}, 2, v{t2}")
        if e: g.A(f"v_or_b32 v{d}, 4, v{d}")
        g.A(f"v_xor_b32 v{d}, v{d}, v{t3}")
        g.A(f"v_lshlrev_b32 v{d}, 4, v{d}")
        g.A(f"v_lshl_add_u32 v{d}, v{t2}, 13, v{d}")
        g.A(f"v_add_u32 v{d}, s{S_T0}, v{d}")
    g.A(f"s_lshl_b32 s{S_RING}, s{S_W}, 14"); g.A(f"s_add_u32 s{S_RING}, s{S_RING}, {WQB}")
    r_, cc, sw = V_TMP+4, V_TMP+5, V_TMP+6
    g.A(f"v_bfe_u32 v{r_}, v{L}, 2, 2")
    g.A(f"v_and_b32 v{cc}, 3, v{L}")
    g.A(f"v_and_b32 v{sw}, 2, v{r_}")
    g.A(f"v_and_b32 v{t2}, 1, v{t0}")
    g.A(f"v_lshl_or_b32 v{sw}, v{t2}, 2, v{sw}")
    g.A(f"v_lshrrev_b32 v{t2}, 1, v{cc}")
    g.A(f"v_or_b32 v{sw}, v{sw}, v{t2}")
    g.A(f"v_lshlrev_b32 v{sw}, 4, v{sw}")
    g.A(f"v_and_b32 v{t2}, 1, v{cc}")
    g.A(f"v_lshl_add_u32 v{sw}, v{t2}, 3, v{sw}")
    g.A(f"v_lshl_add_u32 v{t2}, v{t0}, 3, v{r_}")
    g.A(f"v_lshl_add_u32 v{sw}, v{t2}, 7, v{sw}")
    g.A(f"v_add_u32 v{sw}, s{S_RING}, v{sw}")
    for cb in range(4):
        g.A(f"v_xor_b32 v{V_WR+cb}, {cb << 5}, v{sw}")
    g.A(f"s_lshl_b32 s{S_T0}, s{S_W}, 11")
    g.A(f"v_lshlrev_b32 v{t2}, 8, v{t0}")
    g.A(f"v_add_u32 v{t2}, s{S_T0}, v{t2}")
    g.A(f"s_lshl_b32 s{S_T1}, s{S_W}, 3"); g.A(f"s_and_b32 s{S_T1}, s{S_T1}, 15")
    for e in range(2):
        d = V_KE0 + e
        g.A(f"v_add_u32 v{d}, s{S_T1}, v{t0}")
        if e: g.A(f"v_add_u32 v{d}, 4, v{d}")
        g.A(f"v_xor_b32 v{d}, v{d}, v{t1}")
        g.A(f"v_lshl_add_u32 v{d}, v{d}, 4, v{t2}")
    g.A(f"v_lshlrev_b32 v{V_VE}, 2, v{t0}")
    g.A(f"v_xor_b32 v{V_VE}, v{V_VE}, v{t1}")
    g.A(f"v_lshl_add_u32 v{V_VE}, v{V_VE}, 4, v{t2}")

def p1_dma_x(g, o):
    for kq in range(4):
        for i3 in range(3):
            g.A(f"s_lshl_b32 s{S_T0}, s{S_W}, 12"); g.A(f"s_add_u32 s{S_T0}, s{S_T0}, {i3*16384 + kq*256}")
            g.A(f"s_lshl_b32 s{S_T1}, s{S_W}, 10"); g.A(f"s_add_u32 m0, s{S_T1}, {XB + kq*12288 + i3*4096}")
            g.A("s_nop 0")
            dma(g, V_XD, SRD_X, f"s{S_T0}", 0, o.pol_x, "x")

def p1_dma_wq(g, o, i):
    out = []
    slot = i % 4
    def first():
        g.A(f"s_add_u32 s{S_T2}, s{S_S0}, {i}"); g.A(f"s_and_b32 s{S_T2}, s{S_T2}, 15"); g.A(f"s_lshl_b32 s{S_T2}, s{S_T2}, 18")
    for jj in range(4):
        def f(jj=jj):
            if jj == 0: first()
            else: g.A(f"s_add_u32 s{S_T2}, s{S_T2}, 65536")
            g.A(f"s_add_u32 m0, s{S_RING}, {slot*4096 + jj*1024}")
            g.A("s_nop 0")
            dma(g, V_WD0 + (jj & 1), SRD_WQ, f"s{S_T2}", 0, o.pol_w, f"wq{i}")
        out.append(f)
    return out

EARLY = [("K", 0), ("K", 1), ("V", 0), ("K", 2), ("V", 1), ("K", 3)]
def early_kv(g, o, idx):
    kind, t = EARLY[idx]
    out = []
    for e in range(2):
        def f(e=e):
            if e == 0:
                base = kslot(t) if kind == "K" else vslot(t)
                g.A(f"s_lshl_b32 s{S_T3}, s{S_W}, 11"); g.A(f"s_add_u32 m0, s{S_T3}, {base}")
                g.A(f"s_mov_b32 s{S_T3}, {t*8192}")
            if kind == "K": dma(g, V_KE0 + e, SRD_K, f"s{S_T3}", 1024*e, o.nt_kv, f"e{kind}{t}")
            else: dma(g, V_VE, SRD_V, f"s{S_T3}", 1024*e, o.nt_kv, f"e{kind}{t}")
        out.append(f)
    return out

def p1_reads(g, i):
    out = []
    buf = i % 2; slot = i % 4
    vt = V_XT0 + buf
    def addr():
        g.A(f"s_add_u32 s{S_T0}, s{S_S0}, {i}"); g.A(f"s_and_b32 s{S_T0}, s{S_T0}, 15")
        g.A(f"s_and_b32 s{S_T1}, s{S_T0}, 3"); g.A(f"s_lshl_b32 s{S_T1}, s{S_T1}, 6")
        g.A(f"s_lshr_b32 s{S_T0}, s{S_T0}, 2"); g.A(f"s_mul_i32 s{S_T0}, s{S_T0}, 12288"); g.A(f"s_add_u32 s{S_T0}, s{S_T0}, {XB}")
        g.A(f"v_xor_b32 v{vt}, s{S_T1}, v{V_XR}"); g.A(f"v_add_u32 v{vt}, s{S_T0}, v{vt}")
    out.append(addr)
    for rb in range(3):
        out.append(lambda rb=rb: g.lds(f"ds_read_b128 {vr(V_B1[buf]+4*rb,4)}, v{vt} offset:{rb*4096}", f"f{i}"))
    for cb in range(4):
        for u in range(2):
            out.append(lambda cb=cb, u=u: g.lds(
                f"ds_read_b64_tr_b16 {vr(V_A1[buf]+4*cb+2*u,2)}, v{V_WR+cb} offset:{slot*4096+u*512}", f"f{i}"))
    return out

def weave(main, fill):
    n = len(main); m = len(fill); k = 0
    for i, f in enumerate(main):
        f()
        tgt = (i + 1) * m // n
        while k < tgt:
            fill[k](); k += 1

def p1(g, o):
    g.C("==== P1: Q projection")
    p1_addresses(g)
    p1_dma_x(g, o)
    for i in range(3):
        for f in p1_dma_wq(g, o, i): f()
    g.wait_vm("x"); g.A("s_barrier")
    stamp(g, o, 1)
    g.wait_vm("wq0")
    for f in p1_reads(g, 0): f()
    early_q = [f for idx in range(6) for f in early_kv(g, o, idx)]
    for i in range(16):
        buf = i % 2
        fill = []
        if i + 1 < 16:
            g.wait_vm(f"wq{i+1}")
            rd = p1_reads(g, i + 1)
        else:
            rd = []
        for f in rd: f()
        g.wait_lg(f"f{i}")
        if i + 3 < 16: fill = p1_dma_wq(g, o, i + 3)
        else:
            k = (i - 13) * 4
            fill = early_q[k:k+4]
        mf = []
        for cb in range(4):
            for rb in range(3):
                acc = vr(V_ACC1 + (cb*3 + rb)*4, 4)
                c = "0" if i == 0 else acc
                mf.append(lambda acc=acc, c=c, cb=cb, rb=rb: g.A(
                    f"v_mfma_f32_16x16x32_bf16 {acc}, {vr(V_A1[buf]+4*cb,4)}, {vr(V_B1[buf]+4*rb,4)}, {c}"))
        weave(mf, fill)
    stamp(g, o, 2)
    L = V_LANE; t0, t1, t2, base = V_TMP, V_TMP+1, V_TMP+2, V_TMP+3
    g.A(f"v_lshrrev_b32 v{t0}, 4, v{L}"); g.A(f"v_and_b32 v{t1}, 15, v{L}")
    g.A(f"s_and_b32 s{S_T0}, s{S_W}, 1"); g.A(f"s_lshl_b32 s{S_T0}, s{S_T0}, 3")
    g.A(f"v_lshrrev_b32 v{t2}, 1, v{t0}")
    g.A(f"v_xor_b32 v{t2}, v{t2}, v{t1}"); g.A(f"v_xor_b32 v{t2}, s{S_T0}, v{t2}")
    g.A(f"v_lshlrev_b32 v{t2}, 4, v{t2}")
    g.A(f"v_and_b32 v{t0}, 1, v{t0}"); g.A(f"v_lshl_add_u32 v{t2}, v{t0}, 3, v{t2}")
    g.A(f"s_lshr_b32 s{S_T0}, s{S_W}, 1"); g.A(f"s_mul_i32 s{S_T0}, s{S_T0}, {48*256}"); g.A(f"s_add_u32 s{S_T0}, s{S_T0}, {QB}")
    g.A(f"v_lshl_add_u32 v{base}, v{t1}, 8, v{t2}"); g.A(f"v_add_u32 v{base}, s{S_T0}, v{base}")
    g.A("s_barrier")
    for cb in range(4):
        g.A(f"v_xor_b32 v{t0}, {cb << 5}, v{base}")
        for rb in range(3):
            a = V_ACC1 + (cb*3 + rb)*4
            for j in range(4): g.A(f"v_mul_f32 v{a+j}, s{S_C}, v{a+j}")
            g.A(f"v_cvt_pk_bf16_f32 v{a}, v{a}, v{a+1}"); g.A(f"v_cvt_pk_bf16_f32 v{a+1}, v{a+2}, v{a+3}")
            g.lds(f"ds_write_b64 v{t0}, {vr(a,2)} offset:{rb*4096}", "qw")
    g.wait_lg0()
    g.wait_vm(["eK0", "eK1"])
    g.A("s_barrier")
    stamp(g, o, 3)

def qk_mfma(g, s, dst, first_c):
    c = first_c if s == 0 else vr(dst, 16)
    g.A(f"v_mfma_f32_32x32x16_bf16 {vr(dst,16)}, {ar(A_K+4*s,4)}, {ar(A_Q+4*s,4)}, {c}")
def pv_mfma(g, s, blk, p):
    g.A(f"v_mfma_f32_32x32x16_bf16 {ar(A_O+16*blk,16)}, {ar(A_V+(s*4+blk)*4,4)}, {vr(p+4*s,4)}, {ar(A_O+16*blk,16)}")
def k_read(g, s, t):
    g.lds(f"ds_read_b128 {ar(A_K+4*s,4)}, v{V_KA+s} offset:{kslot(t)-KB}", "K")
def v_read(g, s, blk, u, t):
    g.lds(f"ds_read_b64_tr_b16 {ar(A_V+(s*4+blk)*4+2*u,2)}, v{V_VA+blk} offset:{vslot(t)-VB+4096*s+2048*u}", "V")

def softmax_ops(g, S, P):
    slots = [[] for _ in range(17)]
    for i in range(16):
        slots[i].append(lambda i=i: g.A(f"v_exp_f32 v{V_E+i%4}, v{S+i}"))
    for i in range(1, 16):
        if i == 1: slots[2].append(lambda: g.A(f"v_add_f32 v{V_TS}, v{V_E}, v{V_E+1}"))
        else: slots[i+1].append(lambda i=i: g.A(f"v_add_f32 v{V_TS}, v{V_TS}, v{V_E+i%4}"))
    for k in range(8):
        slots[2*k+2].append(lambda k=k: g.A(f"v_cvt_pk_bf16_f32 v{P+k}, v{V_E+(2*k)%4}, v{V_E+(2*k+1)%4}"))
    return slots

def p2_iter(g, t, do_qk=True, do_pv=True, vm0=False):
    par = t % 2
    Scur, Snew, Pcur, Pprev = V_S[par], V_S[1-par], V_P[par], V_P[1-par]
    g.C(f"---- iteration {t}")
    if vm0: g.A("s_waitcnt vmcnt(0)")
    g.A("s_barrier")
    sm = softmax_ops(g, Scur, Pcur)
    extra = [[] for _ in range(17)]
    if do_qk:
        for s in range(8): extra[min(s+1, 16)].append(lambda s=s: k_read(g, s, t+2))
    for s in range(2):
        for blk in range(4):
            m = 8 + 4*s + blk
            sl = min(m + 1, 16) if do_pv else (4*s + blk)
            for u in range(2): extra[sl].append(lambda s=s, blk=blk, u=u: v_read(g, s, blk, u, t))
    if do_qk: g.A(f"s_waitcnt lgkmcnt({15 if do_pv else 0})")
    for m in range(16):
        if m < 8:
            if do_qk: qk_mfma(g, m, Snew, vr(V_NEGM, 16))
        else:
            if m == 8 and do_pv: g.A(f"s_waitcnt lgkmcnt({7 if do_qk else 0})")
            if do_pv: pv_mfma(g, (m-8)//4, (m-8) % 4, Pprev)
        for f in sm[m][:1]: f()
        for f in extra[m]: f()
        for f in sm[m][1:]: f()
    if not extra[16]: g.A("s_nop 0")
    for f in extra[16]: f()
    for f in sm[16]: f()
    g.A(f"v_cmp_lt_f32 vcc, s{S_THR}, v{V_TS}")
    g.A(f"s_cbranch_vccnz L_rare_{t}")
    g.label(f"L_back_{t}")
    g.A(f"v_add_f32 v{V_L}, v{V_L}, v{V_TS}")
    g.lg = []

def rare_stub(g, t):
    g.label(f"L_rare_{t}")
    g.A(f"s_call_b64 s[{S_RET}:{S_RET+1}], L_rescale_{t%2}")
    g.A(f"s_branch L_back_{t}")

def rowmax(g, S, dst, tmp):
    g.A(f"v_max3_f32 v{dst}, v{S}, v{S+1}, v{S+2}")
    for k in range(3, 15, 2): g.A(f"v_max3_f32 v{dst}, v{dst}, v{S+k}, v{S+k+1}")
    g.A(f"v_max_f32 v{dst}, v{dst}, v{S+15}")
    g.A(f"v_mov_b32 v{tmp}, v{dst}"); g.A("s_nop 1")
    g.A(f"v_permlane32_swap_b32 v{tmp}, v{dst}")
    g.A(f"v_max_f32 v{dst}, v{dst}, v{tmp}")

def rescale_sub(g, par):
    Scur, Snew, Pcur = V_S[par], V_S[1-par], V_P[par]
    d, tmp, f = V_T, V_T+1, V_TMP
    g.label(f"L_rescale_{par}")
    g.A("s_nop 15"); g.A("s_nop 15")
    rowmax(g, Scur, d, tmp)
    g.A(f"v_max_f32 v{d}, 0, v{d}")
    for i in range(16):
        g.A(f"v_sub_f32 v{Scur+i}, v{Scur+i}, v{d}")
        g.A(f"v_sub_f32 v{Snew+i}, v{Snew+i}, v{d}")
        g.A(f"v_sub_f32 v{V_NEGM+i}, v{V_NEGM+i}, v{d}")
    g.A(f"v_sub_f32 v{f}, 0, v{d}"); g.A(f"v_exp_f32 v{f}, v{f}"); g.A("s_nop 0")
    g.A(f"v_mul_f32 v{V_L}, v{V_L}, v{f}")
    for i in range(64):
        g.A(f"v_accvgpr_read_b32 v{tmp}, a{A_O+i}"); g.A(f"v_mul_f32 v{tmp}, v{tmp}, v{f}"); g.A(f"v_accvgpr_write_b32 a{A_O+i}, v{tmp}")
    for k in range(8):
        g.A(f"v_exp_f32 v{V_E}, v{Scur+2*k}"); g.A(f"v_exp_f32 v{V_E+1}, v{Scur+2*k+1}"); g.A("s_nop 0")
        if k == 0: g.A(f"v_add_f32 v{V_TS}, v{V_E}, v{V_E+1}")
        else:
            g.A(f"v_add_f32 v{V_TS}, v{V_TS}, v{V_E}"); g.A(f"v_add_f32 v{V_TS}, v{V_TS}, v{V_E+1}")
        g.A(f"v_cvt_pk_bf16_f32 v{Pcur+k}, v{V_E}, v{V_E+1}")
    g.A("s_nop 1")
    g.A(f"s_setpc_b64 s[{S_RET}:{S_RET+1}]")

def p2_addresses(g):
    L = V_LANE; t0, t1, t2, t3 = V_TMP, V_TMP+1, V_TMP+2, V_TMP+3
    g.A(f"v_and_b32 v{t0}, 31, v{L}"); g.A(f"v_lshrrev_b32 v{t1}, 5, v{L}")
    g.A(f"v_and_b32 v{t2}, 15, v{L}"); g.A(f"v_xor_b32 v{t2}, v{t2}, v{t1}")
    g.A(f"v_lshlrev_b32 v{t2}, 4, v{t2}"); g.A(f"v_lshl_add_u32 v{t2}, v{t0}, 8, v{t2}")
    g.A(f"v_add_u32 v{t2}, {KB}, v{t2}")
    for s in range(8): g.A(f"v_xor_b32 v{V_KA+s}, {s << 5}, v{t2}")
    g.A(f"v_bfe_u32 v{t0}, v{L}, 2, 2")
    g.A(f"v_lshl_add_u32 v{t2}, v{t1}, 2, v{t0}"); g.A(f"v_lshlrev_b32 v{t2}, 8, v{t2}")
    g.A(f"v_lshl_add_u32 v{t2}, v{t0}, 6, v{t2}")
    g.A(f"v_bfe_u32 v{t3}, v{L}, 4, 1"); g.A(f"v_lshl_add_u32 v{t2}, v{t3}, 5, v{t2}")
    g.A(f"v_and_b32 v{t3}, 3, v{L}"); g.A(f"v_lshl_add_u32 v{t2}, v{t3}, 3, v{t2}")
    if VB: g.A(f"v_add_u32 v{t2}, {VB}, v{t2}")
    for blk in range(4): g.A(f"v_xor_b32 v{V_VA+blk}, {blk << 6}, v{t2}")

def p2_compute(g, o):
    g.C("==== P2: attention, compute waves 0..2")
    p2_addresses(g)
    g.A(f"s_lshl_b32 s{S_T0}, s{S_W}, 13"); g.A(f"s_add_u32 s{S_T0}, s{S_T0}, {QB-KB}")
    for s in range(8):
        g.A(f"v_add_u32 v{V_TMP+s}, s{S_T0}, v{V_KA+s}")
        g.lds(f"ds_read_b128 {ar(A_Q+4*s,4)}, v{V_TMP+s}", "Q")
    for s in range(8): k_read(g, s, 0)
    g.A(f"v_mov_b32 v{V_L}, 0")
    g.wait_lg0()
    for s in range(8):
        qk_mfma(g, s, V_S[0], "0")
        if s >= 1: k_read(g, s-1, 1)
    k_read(g, 7, 1)
    g.A("s_nop 15")
    rowmax(g, V_S[0], V_T, V_T+1)
    for i in range(16): g.A(f"v_sub_f32 v{V_NEGM+i}, 0, v{V_T}")
    for i in range(16): g.A(f"v_sub_f32 v{V_S[0]+i}, v{V_S[0]+i}, v{V_T}")
    g.A("s_waitcnt vmcnt(4)")
    p2_iter(g, 0, do_pv=False)
    g.A("s_waitcnt lgkmcnt(0)")
    g.A(f"s_mov_b32 s{S_CNT}, 5")
    g.label("L_p2_loop")
    for t in range(1, 7): p2_iter(g, t, vm0=(t == 1))
    g.A(f"s_sub_u32 s{S_CNT}, s{S_CNT}, 1"); g.A(f"s_cmp_lg_u32 s{S_CNT}, 0"); g.A("s_cbranch_scc1 L_p2_loop")
    p2_iter(g, 31, do_qk=False)
    g.A("s_waitcnt lgkmcnt(0)")
    g.A("s_barrier")
    stamp(g, o, 4)
    wo = wo_prefetch(g, o)
    for s in range(2):
        for blk in range(4): pv_mfma(g, s, blk, V_P[1])
    g.A(f"v_mov_b32 v{V_T}, v{V_L}"); g.A("s_nop 1")
    g.A(f"v_permlane32_swap_b32 v{V_T}, v{V_L}")
    g.A(f"v_add_f32 v{V_L}, v{V_L}, v{V_T}")
    g.A(f"v_rcp_f32 v{V_L}, v{V_L}")
    L = V_LANE; t0, t1, t2, base = V_TMP, V_TMP+1, V_TMP+2, V_TMP+3
    g.A(f"s_lshl_b32 s{S_T0}, s{S_W}, 5")
    g.A(f"v_and_b32 v{t0}, 31, v{L}"); g.A(f"v_add_u32 v{t0}, s{S_T0}, v{t0}")
    g.A(f"v_cmp_le_u32 vcc, 48, v{t0}")
    g.A(f"v_subrev_u32 v{t1}, 48, v{t0}")
    g.A(f"v_mov_b32 v{t2}, 0")
    g.A(f"v_cndmask_b32 v{t0}, v{t0}, v{t1}, vcc")
    g.A(f"v_mov_b32 v{t1}, 256")
    g.A(f"v_cndmask_b32 v{t2}, v{t2}, v{t1}, vcc")
    g.A(f"v_lshl_add_u32 v{base}, v{t0}, 9, v{t2}")
    g.A(f"v_and_b32 v{t0}, 15, v{t0}"); g.A(f"v_lshl_add_u32 v{base}, v{t0}, 4, v{base}")
    g.A(f"v_lshrrev_b32 v{t0}, 5, v{L}"); g.A(f"v_lshl_add_u32 v{base}, v{t0}, 3, v{base}")
    g.A(f"v_add_u32 v{base}, {OB}, v{base}")
    g.A("s_nop 7")
    main = []
    for blk in range(4):
        for i in range(4):
            def f(blk=blk, i=i):
                a = A_O + 16*blk + 4*i; r = V_S[0] + 4*((blk*4+i) % 4); ad = V_TMP + 4 + ((blk*4+i) % 2)
                for j in range(4): g.A(f"v_accvgpr_read_b32 v{r+j}, a{a+j}")
                g.A(f"v_xor_b32 v{ad}, {(4*blk+i) << 4}, v{base}")
                for j in range(4): g.A(f"v_mul_f32 v{r+j}, v{r+j}, v{V_L}")
                g.A(f"v_cvt_pk_bf16_f32 v{r}, v{r}, v{r+1}"); g.A(f"v_cvt_pk_bf16_f32 v{r+1}, v{r+2}, v{r+3}")
                g.lds(f"ds_write_b64 v{ad}, {vr(r,2)}", "ow")
            main.append(f)
    weave(main, wo)
    g.wait_lg0()
    g.A("s_barrier")

def p2_loader(g, o):
    g.C("==== P2: loader wave 3")
    L = V_LANE; t0, t1 = V_TMP, V_TMP+1
    g.A(f"v_lshrrev_b32 v{t0}, 4, v{L}"); g.A(f"v_and_b32 v{t1}, 15, v{L}")
    for e in range(4):
        d = V_KD + e
        g.A(f"v_add_u32 v{d}, {4*e}, v{t0}"); g.A(f"v_xor_b32 v{d}, v{d}, v{t1}"); g.A(f"v_lshlrev_b32 v{d}, 4, v{d}")
        g.A(f"v_lshl_add_u32 v{d}, v{t0}, 8, v{d}")
    g.A(f"v_lshlrev_b32 v{V_VD}, 2, v{t0}"); g.A(f"v_xor_b32 v{V_VD}, v{V_VD}, v{t1}"); g.A(f"v_lshlrev_b32 v{V_VD}, 4, v{V_VD}")
    g.A(f"v_lshl_add_u32 v{V_VD}, v{t0}, 8, v{V_VD}")
    def tile(kind, t, tag):
        so = S_KOFF if kind == "K" else S_VOFF
        base = kslot(t) if kind == "K" else vslot(t)
        for hf in range(2):
            g.A(f"s_mov_b32 m0, {base + hf*4096}")
            if hf == 1 or True: pass
            for e in range(4):
                if kind == "K": dma(g, V_KD + e, SRD_K, f"s{so}", 1024*e, o.nt_kv, tag)
                else: dma(g, V_VD, SRD_V, f"s{so}", 1024*e, o.nt_kv, tag)
                if e == 0 and False: pass
            g.A(f"s_add_u32 s{so}, s{so}, 4096")
    def tile_safe(kind, t, tag):
        n0 = len(g.L); tile(kind, t, tag)
        out = []
        for l in g.L[n0:]:
            out.append(l)
            if l.startswith("s_mov_b32 m0"): out.append("s_nop 0")
        g.L[n0:] = out
    g.A(f"s_mov_b32 s{S_KOFF}, {4*8192}"); g.A(f"s_mov_b32 s{S_VOFF}, {2*8192}")
    tile_safe("K", 4, "K4"); tile_safe("V", 2, "V2"); tile_safe("K", 5, "K5"); tile_safe("V", 3, "V3")
    def it(t, wait, k=True, v=True):
        g.C(f"loader iteration {t}")
        g.A(f"s_waitcnt vmcnt({wait})"); g.A("s_barrier")
        if k: tile_safe("K", t+6, f"X{t}")
        if v: tile_safe("V", t+4, f"X{t}")
    it(0, 36)
    g.A(f"s_mov_b32 s{S_CNT}, 4")
    g.label("L_ld_loop")
    for t in range(1, 7): it(t, 48)
    g.A(f"s_sub_u32 s{S_CNT}, s{S_CNT}, 1"); g.A(f"s_cmp_lg_u32 s{S_CNT}, 0"); g.A("s_cbranch_scc1 L_ld_loop")
    it(25, 48); it(26, 48, k=False); it(27, 40, k=False)
    it(28, 32, False, False); it(29, 16, False, False); it(30, 8, False, False); it(31, 0, False, False)
    g.vm = []
    g.A("s_barrier")
    stamp(g, o, 4)
    for f in wo_prefetch(g, o): f()
    g.A("s_barrier")

def wo_dma(g, o, i):
    out = []
    slot = i % 4
    for jj in range(8):
        def f(jj=jj):
            if jj == 0:
                g.A(f"s_add_u32 s{S_T2}, s{S_S0}, {i}"); g.A(f"s_and_b32 s{S_T2}, s{S_T2}, 7"); g.A(f"s_lshl_b32 s{S_T2}, s{S_T2}, 15")
            else: g.A(f"s_add_u32 s{S_T2}, s{S_T2}, 4096")
            g.A(f"s_add_u32 m0, s{S_RING}, {slot*8192 + jj*1024}")
            g.A("s_nop 0")
            dma(g, V_WOD + ((jj >> 1) & 1), SRD_WO, f"s{S_T2}", 0, o.pol_w, f"wo{i}")
        out.append(f)
    return out

def wo_prefetch(g, o):
    L = V_LANE; t0, t1, t2 = V_TMP+6, V_TMP+7, V_TMP+8
    g.A(f"s_lshl_b32 s{S_RING}, s{S_W}, 15")
    g.A(f"s_mov_b32 s{S_S0}, s{S_B}" if o.rot else f"s_mov_b32 s{S_S0}, 0")
    g.A(f"v_lshrrev_b32 v{t0}, 4, v{L}"); g.A(f"v_and_b32 v{t1}, 15, v{L}")
    g.A(f"s_lshl_b32 s{S_T0}, s{S_W}, 8")
    for e in range(2):
        d = V_WOD + e
        g.A(f"v_lshlrev_b32 v{d}, 1, v{t0}")
        if e: g.A(f"v_or_b32 v{d}, 8, v{d}")
        g.A(f"v_xor_b32 v{d}, v{d}, v{t1}"); g.A(f"v_lshlrev_b32 v{d}, 4, v{d}")
        g.A(f"v_lshl_add_u32 v{d}, v{t0}, 10, v{d}"); g.A(f"v_add_u32 v{d}, s{S_T0}, v{d}")
    g.vm = []
    return [f for i in range(4) for f in wo_dma(g, o, i)]

def p3(g, o):
    g.C("==== P3: partial output projection")
    L = V_LANE; t0, t1, t2, t3 = V_TMP, V_TMP+1, V_TMP+2, V_TMP+3
    g.vm = [f"wo{i}" for i in range(4) for _ in range(8)]
    stamp(g, o, 5)
    g.A(f"v_lshrrev_b32 v{t0}, 4, v{L}"); g.A(f"v_and_b32 v{t1}, 15, v{L}")
    g.A(f"v_xor_b32 v{t2}, v{t0}, v{t1}"); g.A(f"v_lshlrev_b32 v{t2}, 4, v{t2}")
    g.A(f"v_lshl_add_u32 v{V_OR}, v{t1}, 9, v{t2}"); g.A(f"v_add_u32 v{V_OR}, {OB}, v{V_OR}")
    g.A(f"v_bfe_u32 v{t1}, v{L}, 2, 2")
    g.A(f"v_and_b32 v{t2}, 1, v{t0}"); g.A(f"v_lshl_or_b32 v{t2}, v{t2}, 2, v{t1}"); g.A(f"v_lshlrev_b32 v{t2}, 5, v{t2}")
    g.A(f"v_lshl_add_u32 v{t3}, v{t0}, 3, v{t1}"); g.A(f"v_lshl_add_u32 v{t2}, v{t3}, 8, v{t2}")
    g.A(f"v_and_b32 v{t3}, 3, v{L}"); g.A(f"v_lshl_add_u32 v{t2}, v{t3}, 3, v{t2}")
    g.A(f"v_add_u32 v{t2}, s{S_RING}, v{t2}")
    for cb in range(8): g.A(f"v_xor_b32 v{V_WOR+cb}, {cb << 5}, v{t2}")
    def b_reads(i):
        vt = V_OT0 + i % 2
        g.A(f"s_add_u32 s{S_T0}, s{S_S0}, {i}"); g.A(f"s_and_b32 s{S_T0}, s{S_T0}, 7"); g.A(f"s_lshl_b32 s{S_T0}, s{S_T0}, 6")
        g.A(f"v_xor_b32 v{vt}, s{S_T0}, v{V_OR}")
        for rb in range(3): g.lds(f"ds_read_b128 {ar(A_B3[i%2]+4*rb,4)}, v{vt} offset:{rb*8192}", f"B{i}")
    def a_read(i, cb, u):
        g.lds(f"ds_read_b64_tr_b16 {ar(A_A3+4*cb+2*u,2)}, v{V_WOR+cb} offset:{(i%4)*8192+u*1024}", f"A{i}_{cb}")
    b_reads(0)
    g.wait_vm("wo0")
    for cb in range(8):
        for u in range(2): a_read(0, cb, u)
    for i in range(8):
        nxt = i + 1 < 8
        if nxt:
            g.wait_vm(f"wo{i+1}")
            b_reads(i + 1)
        dm = wo_dma(g, o, i + 4) if i + 4 < 8 else []
        for cb in range(8):
            g.wait_lg([f"A{i}_{cb}", f"B{i}"])
            for rb in range(3):
                acc = vr(V_ACC3 + (cb*3 + rb)*4, 4)
                c = "0" if i == 0 else acc
                g.A(f"v_mfma_f32_16x16x32_bf16 {acc}, {ar(A_A3+4*cb,4)}, {ar(A_B3[i%2]+4*rb,4)}, {c}")
            if nxt and cb >= 1:
                for u in range(2): a_read(i + 1, cb - 1, u)
        if nxt:
            for u in range(2): a_read(i + 1, 7, u)
        if dm:
            for f in dm: f()
    stamp(g, o, 6)
    g.A("s_nop 7")
    g.A(f"v_lshlrev_b32 v{t0}, 4, v{L}")
    g.A(f"s_mul_i32 s{S_T0}, s{S_W}, 12288")
    for rb in range(3):
        if rb: g.A(f"s_add_u32 s{S_T0}, s{S_T0}, 4096")
        for cbp in range(4):
            a0 = V_ACC3 + ((2*cbp)*3 + rb)*4; a1 = V_ACC3 + ((2*cbp+1)*3 + rb)*4
            d = V_S[0] + 4*((rb*4+cbp) % 8)
            g.A(f"v_cvt_pk_bf16_f32 v{d}, v{a0}, v{a0+1}"); g.A(f"v_cvt_pk_bf16_f32 v{d+1}, v{a0+2}, v{a0+3}")
            g.A(f"v_cvt_pk_bf16_f32 v{d+2}, v{a1}, v{a1+1}"); g.A(f"v_cvt_pk_bf16_f32 v{d+3}, v{a1+2}, v{a1+3}")
            pol = f" {o.pol_st}" if o.pol_st else ""
            g.vmem(f"buffer_store_dwordx4 {vr(d,4)}, v{t0}, s[{SRD_P}:{SRD_P+3}], s{S_T0} offen offset:{cbp*1024}{pol}", "st")
    if o.stamps:
        g.wait_vm0()
        stamp(g, o, 7)
        g.A(f"s_cmp_lg_u32 s{S_W}, 0"); g.A("s_cbranch_scc1 L_k1_end")
        g.A(f"s_add_u32 s28, s52, 0x1000000"); g.A("s_addc_u32 s29, s53, 0"); g.A("s_and_b32 s29, s29, 0xffff")
        g.A("s_mov_b32 s30, 0x10000"); g.A("s_mov_b32 s31, 0x20000")
        for k in range(8): g.A(f"v_mov_b32 v{V_S[0]+k}, s{S_STAMP+2*k}")
        g.A(f"s_lshl_b32 s{S_T0}, s2, 5"); g.A(f"v_mov_b32 v{t0}, s{S_T0}")
        g.A(f"v_cmp_eq_u32 vcc, 0, v{L}"); g.A(f"s_and_saveexec_b64 s[{S_SAVE}:{S_SAVE+1}], vcc")
        g.A(f"buffer_store_dwordx4 {vr(V_S[0],4)}, v{t0}, s[28:31], 0 offen")
        g.A(f"buffer_store_dwordx4 {vr(V_S[0]+4,4)}, v{t0}, s[28:31], 0 offen offset:16")
        g.A("s_waitcnt vmcnt(0)")

def k1(g, o):
    header(g, K1)
    setup(g, o)
    p1(g, o)
    g.A(f"s_cmp_eq_u32 s{S_W}, 3"); g.A("s_cbranch_scc1 L_loader")
    vm_save = list(g.vm)
    p2_compute(g, o)
    g.A("s_branch L_p3")
    g.label("L_loader")
    g.vm = vm_save; g.lg = []
    p2_loader(g, o)
    g.label("L_p3")
    g.lg = []
    p3(g, o)
    g.label("L_k1_end")
    g.A("s_endpgm")
    for par in range(2): rescale_sub(g, par)
    for t in [0, 1, 2, 3, 4, 5, 6, 31]: rare_stub(g, t)

def k2(g, o):
    header(g, K2)
    g.A("s_cmp_ge_u32 s2, 256"); g.A("s_cbranch_scc1 L_k2_end")
    g.A("s_load_dwordx2 s[4:5], s[0:1], 96"); g.A("s_load_dwordx2 s[6:7], s[0:1], 80")
    g.A("v_and_b32 v1, 63, v0"); g.A("v_lshrrev_b32 v2, 6, v0")
    g.A("s_lshr_b32 s20, s2, 4")
    g.A("v_readfirstlane_b32 s21, v2")
    g.A("s_and_b32 s22, s2, 15"); g.A("s_mul_i32 s22, s22, 3")
    g.A("s_add_u32 s22, s22, s21")
    g.A("s_mul_i32 s23, s20, 786432")
    g.A("s_lshl_b32 s24, s22, 10"); g.A("s_add_u32 s23, s23, s24")
    g.A("v_lshlrev_b32 v2, 4, v1")
    g.A("s_waitcnt lgkmcnt(0)")
    srd(g, 8, 4, 5, None, 256*49152)
    srd(g, 12, 6, 7, None, 786432)
    for q in range(16):
        g.vmem(f"buffer_load_dwordx4 v[{16+4*q}:{19+4*q}], v2, s[8:11], s23 offen", f"p{q}")
        if q < 15: g.A("s_add_u32 s23, s23, 49152")
    g.A("s_mul_i32 s24, s22, 43"); g.A("s_lshr_b32 s24, s24, 9")
    g.A("s_mul_i32 s25, s24, 12"); g.A("s_sub_u32 s25, s22, s25")
    g.A("s_lshr_b32 s26, s25, 2"); g.A("s_and_b32 s25, s25, 3")
    g.A("s_and_b32 s27, s20, 7"); g.A("s_mul_i32 s27, s27, 98304")
    g.A("s_lshr_b32 s28, s20, 3"); g.A("s_lshl_b32 s28, s28, 10"); g.A("s_add_u32 s27, s27, s28")
    g.A("s_lshl_b32 s28, s26, 15"); g.A("s_add_u32 s27, s27, s28")
    g.A("s_lshl_b32 s28, s24, 8"); g.A("s_add_u32 s27, s27, s28")
    g.A("s_lshl_b32 s28, s25, 6"); g.A("s_add_u32 s27, s27, s28")
    g.A("v_and_b32 v3, 15, v1"); g.A("v_lshrrev_b32 v4, 4, v1")
    g.A("v_lshlrev_b32 v3, 11, v3"); g.A("v_lshl_add_u32 v3, v4, 3, v3")
    for q in range(16):
        g.wait_vm(f"p{q}")
        for j in range(4):
            src = 16 + 4*q + j
            if q == 0:
                g.A(f"v_lshlrev_b32 v{8+2*j}, 16, v{src}"); g.A(f"v_and_b32 v{9+2*j}, 0xffff0000, v{src}")
            else:
                g.A(f"v_lshlrev_b32 v5, 16, v{src}"); g.A(f"v_and_b32 v6, 0xffff0000, v{src}")
                g.A(f"v_add_f32 v{8+2*j}, v{8+2*j}, v5"); g.A(f"v_add_f32 v{9+2*j}, v{9+2*j}, v6")
    for j in range(4): g.A(f"v_cvt_pk_bf16_f32 v{16+j}, v{8+2*j}, v{9+2*j}")
    g.A("buffer_store_dwordx2 v[16:17], v3, s[12:15], s27 offen")
    g.A("buffer_store_dwordx2 v[18:19], v3, s[12:15], s27 offen offset:32")
    g.label("L_k2_end")
    g.A("s_endpgm")

def build(o):
    g = G()
    g.A(f"; @launch kernel={K1} grid=(256,1,1) block=(256,1,1) lds=163840")
    g.A(f"; @launch kernel={K2} grid=(256,1,1) block=(192,1,1) lds=0")
    for i in range(int(o.extra_empty)):
        g.A(f"; @launch kernel={PREFIX}_nop_kernel grid=(256,1,1) block=(64,1,1) lds=0")
    g.A('.amdgcn_target "amdgcn-amd-amdhsa--gfx950"')
    k1(g, o)
    g2 = G()
    k2(g2, o)
    g.L += g2.L
    if int(o.extra_empty):
        header(g, PREFIX + "_nop_kernel"); g.A("s_endpgm")
        descriptor(g, PREFIX + "_nop_kernel", 8, 8, 16)
    descriptor(g, K1, 512, 256)
    descriptor(g, K2, 96, 96, 40)
    return g

if __name__ == "__main__":
    o = Opt()
    for a in sys.argv[2:]:
        k, v = a.split("=", 1)
        setattr(o, k, {"True": True, "False": False}.get(v, v))
    g = build(o)
    probs = check(g.L)
    for p in probs: print("HAZARD", p)
    open(sys.argv[1], "w").write(g.text())
    print("lines", len(g.L))
```

```python
import sys
from asmlib import G, check

PREFIX = "concat_heads__gqa_block_cached__gqa_block_cached__near_ridge"
K1 = PREFIX + "_kernel"
K2 = PREFIX + "_red_kernel"

VB = 0
KB = 65536
XB = 114688
QB = XB
OB = 139264
WQB = 16384
NS = 6
def kslot(i): return KB + (NS - 1 - i % NS) * 8192
def vslot(i): return VB + (i % NS) * 8192

CSCALE = 0.12751743
import math, struct
CSCALE = math.log2(math.e) / math.sqrt(128.0)
def fbits(x): return struct.unpack("<I", struct.pack("<f", x))[0]
THR = float(2 ** 20)

S_W = 3
SRD_X, SRD_WQ, SRD_K, SRD_V, SRD_WO, SRD_P = 4, 8, 12, 16, 20, 24
S_HKV, S_HALF, S_B, S_BR = 54, 55, 56, 57
S_S0 = 58
S_RING = 59
S_T0, S_T1, S_T2, S_T3 = 60, 61, 62, 63
S_CNT = 64
S_KOFF, S_VOFF = 65, 66
S_THR = 67
S_C = 68
S_RET = 70
S_STAMP = 72
S_SAVE = 96

V_LANE = 1
V_XD, V_WD0, V_WD1 = 2, 3, 4
V_XR, V_XT0, V_XT1 = 5, 6, 7
V_WR = 8
V_KE0, V_KE1, V_VE = 12, 13, 14
V_KD = 16
V_VD = 20
V_OR, V_OT0, V_OT1 = 21, 22, 23
V_WOR = 24
V_S = [32, 48]
V_P = [64, 72]
V_NEGM = 80
V_E = 96
V_L, V_TS = 100, 101
V_T = 102
V_KA = 104
V_VA = 112
V_WOD = 116
V_TMP = 118
A_O, A_Q, A_K, A_V = 0, 64, 96, 128
V_A1 = [128, 144]; V_B1 = [160, 172]; V_ACC1 = 184
A_A3 = 160; A_B3 = [192, 204]; V_ACC3 = 128

def vr(b, n=1): return f"v{b}" if n == 1 else f"v[{b}:{b+n-1}]"
def ar(b, n=1): return f"a{b}" if n == 1 else f"a[{b}:{b+n-1}]"
def sr(b, n=1): return f"s{b}" if n == 1 else f"s[{b}:{b+n-1}]"

class Opt:
    nt_kv = "nt"
    pol_w = ""
    pol_x = ""
    pol_st = ""
    stamps = False
    rot = True
    dbg = None
    extra_empty = 0
    dbgstamps = False

def stamp(g, o, idx):
    if o.stamps:
        g.A(f"s_memrealtime s[{S_STAMP+2*idx}:{S_STAMP+2*idx+1}]")
        g.A("s_waitcnt lgkmcnt(0)"); g.lg = []

def header(g, name):
    g.A(".text"); g.A(f".globl {name}"); g.A(".p2align 8"); g.A(f".type {name},@function"); g.label(name)

def descriptor(g, name, vgpr, accum, sgpr=102):
    g.A('.section .rodata,"a"'); g.A(".p2align 6"); g.A(f".amdhsa_kernel {name}")
    g.A(f".amdhsa_next_free_vgpr {vgpr}"); g.A(f".amdhsa_next_free_sgpr {sgpr}"); g.A(f".amdhsa_accum_offset {accum}")
    g.A(".amdhsa_group_segment_fixed_size 0"); g.A(".amdhsa_kernarg_size 104"); g.A(".amdhsa_user_sgpr_count 2")
    g.A(".amdhsa_user_sgpr_kernarg_segment_ptr 1"); g.A(".amdhsa_system_sgpr_workgroup_id_x 1"); g.A(".end_amdhsa_kernel")

def srd(g, d, lo, hi, off_s, nrec):
    if off_s is None:
        g.A(f"s_mov_b32 s{d}, s{lo}"); g.A(f"s_and_b32 s{d+1}, s{hi}, 0xffff")
    else:
        g.A(f"s_add_u32 s{d}, s{lo}, {off_s}"); g.A(f"s_addc_u32 s{d+1}, s{hi}, 0"); g.A(f"s_and_b32 s{d+1}, s{d+1}, 0xffff")
    g.A(f"s_mov_b32 s{d+2}, {nrec}"); g.A(f"s_mov_b32 s{d+3}, 0x20000")

def dma(g, voff, srd_, soff, imm, pol, tag):
    off = f" offset:{imm}" if imm else ""
    pol = f" {pol}" if pol else ""
    g.vmem(f"buffer_load_dwordx4 v{voff}, s[{srd_}:{srd_+3}], {soff} offen{off}{pol} lds", tag)

def setup(g, o):
    g.A("s_cmp_ge_u32 s2, 256"); g.A("s_cbranch_scc1 L_k1_end")
    stamp(g, o, 0)
    g.A("s_load_dwordx16 s[32:47], s[0:1], 0")
    g.A("s_load_dwordx4 s[48:51], s[0:1], 64")
    g.A("s_load_dwordx2 s[52:53], s[0:1], 96")
    g.A(f"v_and_b32 v{V_LANE}, 63, v0")
    g.A("v_lshrrev_b32 v2, 6, v0")
    g.A(f"s_and_b32 s{S_HKV}, s2, 7")
    g.A(f"v_readfirstlane_b32 s{S_W}, v2")
    g.A(f"s_lshr_b32 s{S_T0}, s2, 3")
    g.A(f"s_and_b32 s{S_HALF}, s{S_T0}, 1")
    g.A(f"s_lshr_b32 s{S_B}, s{S_T0}, 1"); g.A(f"s_and_b32 s{S_B}, s{S_B}, 7")
    g.A(f"s_lshr_b32 s{S_BR}, s{S_T0}, 4")
    for i in range(64):
        g.A(f"v_accvgpr_write_b32 a{A_O+i}, 0")
    g.A("s_waitcnt lgkmcnt(0)")
    g.A(f"s_cmp_eq_u32 s{S_BR}, 1")
    for i in range(10):
        g.A(f"s_cselect_b32 s{32+i}, s{42+i}, s{32+i}")
    g.A(f"s_mul_i32 s{S_T0}, s{S_B}, 49152"); srd(g, SRD_X, 32, 33, f"s{S_T0}", 49152)
    g.A(f"s_lshl_b32 s{S_T0}, s{S_B}, 3"); g.A(f"s_add_u32 s{S_T0}, s{S_T0}, s{S_HKV}"); g.A(f"s_lshl_b32 s{S_T0}, s{S_T0}, 18")
    srd(g, SRD_K, 34, 35, f"s{S_T0}", 262144); srd(g, SRD_V, 36, 37, f"s{S_T0}", 262144)
    g.A(f"s_lshl_b32 s{S_T0}, s{S_HKV}, 1"); g.A(f"s_add_u32 s{S_T0}, s{S_T0}, s{S_HALF}")
    g.A(f"s_lshl_b32 s{S_T1}, s{S_T0}, 9")
    srd(g, SRD_WQ, 38, 39, f"s{S_T1}", 0)
    g.A(f"s_sub_u32 s{SRD_WQ+2}, 0x400000, s{S_T1}")
    g.A(f"s_lshl_b32 s{S_T1}, s{S_T0}, 18")
    srd(g, SRD_WO, 40, 41, f"s{S_T1}", 262144)
    g.A(f"s_lshl_b32 s{S_T1}, s{S_BR}, 3"); g.A(f"s_add_u32 s{S_T1}, s{S_T1}, s{S_B}"); g.A(f"s_lshl_b32 s{S_T1}, s{S_T1}, 4")
    g.A(f"s_add_u32 s{S_T1}, s{S_T1}, s{S_T0}"); g.A(f"s_mul_i32 s{S_T1}, s{S_T1}, 49152")
    srd(g, SRD_P, 52, 53, f"s{S_T1}", 49152)
    g.A(f"s_mov_b32 s{S_THR}, {hex(fbits(THR))}")
    g.A(f"s_mov_b32 s{S_C}, {hex(fbits(CSCALE))}")
    if o.rot:
        g.A(f"s_lshl_b32 s{S_S0}, s{S_B}, 1")
    else:
        g.A(f"s_mov_b32 s{S_S0}, 0")

def p1_addresses(g):
    L = V_LANE; t0, t1, t2, t3 = V_TMP, V_TMP+1, V_TMP+2, V_TMP+3
    g.C("q = lane>>4, p = lane&15")
    g.A(f"v_lshrrev_b32 v{t0}, 4, v{L}")
    g.A(f"v_and_b32 v{t1}, 15, v{L}")
    g.A(f"s_lshl_b32 s{S_T0}, s{S_W}, 2")
    g.A(f"v_add_u32 v{t2}, s{S_T0}, v{t0}")
    g.A(f"v_xor_b32 v{t2}, v{t2}, v{t1}")
    g.A(f"v_lshlrev_b32 v{t2}, 4, v{t2}")
    g.A(f"v_lshl_add_u32 v{V_XD}, v{t0}, 10, v{t2}")
    g.A(f"v_xor_b32 v{t2}, v{t0}, v{t1}")
    g.A(f"v_lshlrev_b32 v{t2}, 4, v{t2}")
    g.A(f"v_lshl_add_u32 v{V_XR}, v{t1}, 8, v{t2}")
    g.A(f"v_lshrrev_b32 v{t2}, 3, v{L}")
    g.A(f"v_and_b32 v{t3}, 7, v{L}")
    g.A(f"s_lshl_b32 s{S_T0}, s{S_W}, 7")
    for e in range(2):
        d = V_WD0 + e
        g.A(f"v_and_b32 v{d}, 2, v{t2}")
        if e: g.A(f"v_or_b32 v{d}, 4, v{d}")
        g.A(f"v_xor_b32 v{d}, v{d}, v{t3}")
        g.A(f"v_lshlrev_b32 v{d}, 4, v{d}")
        g.A(f"v_lshl_add_u32 v{d}, v{t2}, 13, v{d}")
        g.A(f"v_add_u32 v{d}, s{S_T0}, v{d}")
    g.A(f"s_lshl_b32 s{S_RING}, s{S_W}, 14"); g.A(f"s_add_u32 s{S_RING}, s{S_RING}, {WQB}")
    r_, cc, sw = V_TMP+4, V_TMP+5, V_TMP+6
    g.A(f"v_bfe_u32 v{r_}, v{L}, 2, 2")
    g.A(f"v_and_b32 v{cc}, 3, v{L}")
    g.A(f"v_and_b32 v{sw}, 2, v{r_}")
    g.A(f"v_and_b32 v{t2}, 1, v{t0}")
    g.A(f"v_lshl_or_b32 v{sw}, v{t2}, 2, v{sw}")
    g.A(f"v_lshrrev_b32 v{t2}, 1, v{cc}")
    g.A(f"v_or_b32 v{sw}, v{sw}, v{t2}")
    g.A(f"v_lshlrev_b32 v{sw}, 4, v{sw}")
    g.A(f"v_and_b32 v{t2}, 1, v{cc}")
    g.A(f"v_lshl_add_u32 v{sw}, v{t2}, 3, v{sw}")
    g.A(f"v_lshl_add_u32 v{t2}, v{t0}, 3, v{r_}")
    g.A(f"v_lshl_add_u32 v{sw}, v{t2}, 7, v{sw}")
    g.A(f"v_add_u32 v{sw}, s{S_RING}, v{sw}")
    for cb in range(4):
        g.A(f"v_xor_b32 v{V_WR+cb}, {cb << 5}, v{sw}")
    g.A(f"s_lshl_b32 s{S_T0}, s{S_W}, 11")
    g.A(f"v_lshlrev_b32 v{t2}, 8, v{t0}")
    g.A(f"v_add_u32 v{t2}, s{S_T0}, v{t2}")
    g.A(f"s_lshl_b32 s{S_T1}, s{S_W}, 3"); g.A(f"s_and_b32 s{S_T1}, s{S_T1}, 15")
    for e in range(2):
        d = V_KE0 + e
        g.A(f"v_add_u32 v{d}, s{S_T1}, v{t0}")
        if e: g.A(f"v_add_u32 v{d}, 4, v{d}")
        g.A(f"v_xor_b32 v{d}, v{d}, v{t1}")
        g.A(f"v_lshl_add_u32 v{d}, v{d}, 4, v{t2}")
    g.A(f"v_lshlrev_b32 v{V_VE}, 2, v{t0}")
    g.A(f"v_xor_b32 v{V_VE}, v{V_VE}, v{t1}")
    g.A(f"v_lshl_add_u32 v{V_VE}, v{V_VE}, 4, v{t2}")

def p1_dma_x(g, o):
    for kq in range(4):
        for i3 in range(3):
            g.A(f"s_lshl_b32 s{S_T0}, s{S_W}, 12"); g.A(f"s_add_u32 s{S_T0}, s{S_T0}, {i3*16384 + kq*256}")
            g.A(f"s_lshl_b32 s{S_T1}, s{S_W}, 10"); g.A(f"s_add_u32 m0, s{S_T1}, {XB + kq*12288 + i3*4096}")
            g.A("s_nop 0")
            dma(g, V_XD, SRD_X, f"s{S_T0}", 0, o.pol_x, "x")

def p1_dma_wq(g, o, i):
    out = []
    slot = i % 4
    def first():
        g.A(f"s_add_u32 s{S_T2}, s{S_S0}, {i}"); g.A(f"s_and_b32 s{S_T2}, s{S_T2}, 15"); g.A(f"s_lshl_b32 s{S_T2}, s{S_T2}, 18")
    for jj in range(4):
        def f(jj=jj):
            if jj == 0: first()
            else: g.A(f"s_add_u32 s{S_T2}, s{S_T2}, 65536")
            g.A(f"s_add_u32 m0, s{S_RING}, {slot*4096 + jj*1024}")
            g.A("s_nop 0")
            dma(g, V_WD0 + (jj & 1), SRD_WQ, f"s{S_T2}", 0, o.pol_w, f"wq{i}")
        out.append(f)
    return out

EARLY = [("K", 0), ("K", 1), ("V", 0), ("K", 2), ("V", 1), ("K", 3)]
def early_kv(g, o, idx):
    kind, t = EARLY[idx]
    out = []
    for e in range(2):
        def f(e=e):
            if e == 0:
                base = kslot(t) if kind == "K" else vslot(t)
                g.A(f"s_lshl_b32 s{S_T3}, s{S_W}, 11"); g.A(f"s_add_u32 m0, s{S_T3}, {base}")
                g.A(f"s_mov_b32 s{S_T3}, {t*8192}")
            if kind == "K": dma(g, V_KE0 + e, SRD_K, f"s{S_T3}", 1024*e, o.nt_kv, f"e{kind}{t}")
            else: dma(g, V_VE, SRD_V, f"s{S_T3}", 1024*e, o.nt_kv, f"e{kind}{t}")
        out.append(f)
    return out

def p1_reads(g, i):
    out = []
    buf = i % 2; slot = i % 4
    vt = V_XT0 + buf
    def addr():
        g.A(f"s_add_u32 s{S_T0}, s{S_S0}, {i}"); g.A(f"s_and_b32 s{S_T0}, s{S_T0}, 15")
        g.A(f"s_and_b32 s{S_T1}, s{S_T0}, 3"); g.A(f"s_lshl_b32 s{S_T1}, s{S_T1}, 6")
        g.A(f"s_lshr_b32 s{S_T0}, s{S_T0}, 2"); g.A(f"s_mul_i32 s{S_T0}, s{S_T0}, 12288"); g.A(f"s_add_u32 s{S_T0}, s{S_T0}, {XB}")
        g.A(f"v_xor_b32 v{vt}, s{S_T1}, v{V_XR}"); g.A(f"v_add_u32 v{vt}, s{S_T0}, v{vt}")
    out.append(addr)
    for rb in range(3):
        out.append(lambda rb=rb: g.lds(f"ds_read_b128 {vr(V_B1[buf]+4*rb,4)}, v{vt} offset:{rb*4096}", f"f{i}"))
    for cb in range(4):
        for u in range(2):
            out.append(lambda cb=cb, u=u: g.lds(
                f"ds_read_b64_tr_b16 {vr(V_A1[buf]+4*cb+2*u,2)}, v{V_WR+cb} offset:{slot*4096+u*512}", f"f{i}"))
    return out

def weave(main, fill):
    n = len(main); m = len(fill); k = 0
    for i, f in enumerate(main):
        f()
        tgt = (i + 1) * m // n
        while k < tgt:
            fill[k](); k += 1

def p1(g, o):
    g.C("==== P1: Q projection")
    p1_addresses(g)
    p1_dma_x(g, o)
    for i in range(3):
        for f in p1_dma_wq(g, o, i): f()
    g.wait_vm("x"); g.A("s_barrier")
    stamp(g, o, 1)
    g.wait_vm("wq0")
    for f in p1_reads(g, 0): f()
    early_q = [f for idx in range(6) for f in early_kv(g, o, idx)]
    for i in range(16):
        buf = i % 2
        fill = []
        if i + 1 < 16:
            g.wait_vm(f"wq{i+1}")
            rd = p1_reads(g, i + 1)
        else:
            rd = []
        for f in rd: f()
        g.wait_lg(f"f{i}")
        if i + 3 < 16: fill = p1_dma_wq(g, o, i + 3)
        else:
            k = (i - 13) * 4
            fill = early_q[k:k+4]
        mf = []
        for cb in range(4):
            for rb in range(3):
                acc = vr(V_ACC1 + (cb*3 + rb)*4, 4)
                c = "0" if i == 0 else acc
                mf.append(lambda acc=acc, c=c, cb=cb, rb=rb: g.A(
                    f"v_mfma_f32_16x16x32_bf16 {acc}, {vr(V_A1[buf]+4*cb,4)}, {vr(V_B1[buf]+4*rb,4)}, {c}"))
        weave(mf, fill)
    stamp(g, o, 2)
    L = V_LANE; t0, t1, t2, base = V_TMP, V_TMP+1, V_TMP+2, V_TMP+3
    g.A(f"v_lshrrev_b32 v{t0}, 4, v{L}"); g.A(f"v_and_b32 v{t1}, 15, v{L}")
    g.A(f"s_and_b32 s{S_T0}, s{S_W}, 1"); g.A(f"s_lshl_b32 s{S_T0}, s{S_T0}, 3")
    g.A(f"v_lshrrev_b32 v{t2}, 1, v{t0}")
    g.A(f"v_xor_b32 v{t2}, v{t2}, v{t1}"); g.A(f"v_xor_b32 v{t2}, s{S_T0}, v{t2}")
    g.A(f"v_lshlrev_b32 v{t2}, 4, v{t2}")
    g.A(f"v_and_b32 v{t0}, 1, v{t0}"); g.A(f"v_lshl_add_u32 v{t2}, v{t0}, 3, v{t2}")
    g.A(f"s_lshr_b32 s{S_T0}, s{S_W}, 1"); g.A(f"s_mul_i32 s{S_T0}, s{S_T0}, {48*256}"); g.A(f"s_add_u32 s{S_T0}, s{S_T0}, {QB}")
    g.A(f"v_lshl_add_u32 v{base}, v{t1}, 8, v{t2}"); g.A(f"v_add_u32 v{base}, s{S_T0}, v{base}")
    g.A("s_barrier")
    for cb in range(4):
        g.A(f"v_xor_b32 v{t0}, {cb << 5}, v{base}")
        for rb in range(3):
            a = V_ACC1 + (cb*3 + rb)*4
            for j in range(4): g.A(f"v_mul_f32 v{a+j}, s{S_C}, v{a+j}")
            g.A(f"v_cvt_pk_bf16_f32 v{a}, v{a}, v{a+1}"); g.A(f"v_cvt_pk_bf16_f32 v{a+1}, v{a+2}, v{a+3}")
            g.lds(f"ds_write_b64 v{t0}, {vr(a,2)} offset:{rb*4096}", "qw")
    g.wait_lg0()
    g.wait_vm(["eK0", "eK1"])
    g.A("s_barrier")
    stamp(g, o, 3)

def qk_mfma(g, s, dst, first_c):
    c = first_c if s == 0 else vr(dst, 16)
    g.A(f"v_mfma_f32_32x32x16_bf16 {vr(dst,16)}, {ar(A_K+4*s,4)}, {ar(A_Q+4*s,4)}, {c}")
def pv_mfma(g, s, blk, p):
    g.A(f"v_mfma_f32_32x32x16_bf16 {ar(A_O+16*blk,16)}, {ar(A_V+(s*4+blk)*4,4)}, {vr(p+4*s,4)}, {ar(A_O+16*blk,16)}")
def k_read(g, s, t):
    g.lds(f"ds_read_b128 {ar(A_K+4*s,4)}, v{V_KA+s} offset:{kslot(t)-KB}", "K")
def v_read(g, s, blk, u, t):
    g.lds(f"ds_read_b64_tr_b16 {ar(A_V+(s*4+blk)*4+2*u,2)}, v{V_VA+blk} offset:{vslot(t)-VB+4096*s+2048*u}", "V")

def softmax_ops(g, S, P):
    slots = [[] for _ in range(17)]
    for i in range(16):
        slots[i].append(lambda i=i: g.A(f"v_exp_f32 v{V_E+i%4}, v{S+i}"))
    for i in range(1, 16):
        if i == 1: slots[2].append(lambda: g.A(f"v_add_f32 v{V_TS}, v{V_E}, v{V_E+1}"))
        else: slots[i+1].append(lambda i=i: g.A(f"v_add_f32 v{V_TS}, v{V_TS}, v{V_E+i%4}"))
    for k in range(8):
        slots[2*k+2].append(lambda k=k: g.A(f"v_cvt_pk_bf16_f32 v{P+k}, v{V_E+(2*k)%4}, v{V_E+(2*k+1)%4}"))
    return slots

def p2_iter(g, t, do_qk=True, do_pv=True, vm0=False):
    par = t % 2
    Scur, Snew, Pcur, Pprev = V_S[par], V_S[1-par], V_P[par], V_P[1-par]
    g.C(f"---- iteration {t}")
    if vm0: g.A("s_waitcnt vmcnt(0)")
    g.A("s_barrier")
    sm = softmax_ops(g, Scur, Pcur)
    extra = [[] for _ in range(17)]
    if do_qk:
        for s in range(8): extra[min(s+1, 16)].append(lambda s=s: k_read(g, s, t+2))
    for s in range(2):
        for blk in range(4):
            m = 8 + 4*s + blk
            sl = min(m + 1, 16) if do_pv else (4*s + blk)
            for u in range(2): extra[sl].append(lambda s=s, blk=blk, u=u: v_read(g, s, blk, u, t))
    if do_qk: g.A(f"s_waitcnt lgkmcnt({15 if do_pv else 0})")
    for m in range(16):
        if m < 8:
            if do_qk: qk_mfma(g, m, Snew, vr(V_NEGM, 16))
        else:
            if m == 8 and do_pv: g.A(f"s_waitcnt lgkmcnt({7 if do_qk else 0})")
            if do_pv: pv_mfma(g, (m-8)//4, (m-8) % 4, Pprev)
        for f in sm[m][:1]: f()
        for f in extra[m]: f()
        for f in sm[m][1:]: f()
    if not extra[16]: g.A("s_nop 0")
    for f in extra[16]: f()
    for f in sm[16]: f()
    g.A(f"v_cmp_lt_f32 vcc, s{S_THR}, v{V_TS}")
    g.A(f"s_cbranch_vccnz L_rare_{t}")
    g.label(f"L_back_{t}")
    g.A(f"v_add_f32 v{V_L}, v{V_L}, v{V_TS}")
    g.lg = []

def rare_stub(g, t):
    g.label(f"L_rare_{t}")
    g.A(f"s_call_b64 s[{S_RET}:{S_RET+1}], L_rescale_{t%2}")
    g.A(f"s_branch L_back_{t}")

def rowmax(g, S, dst, tmp):
    g.A(f"v_max3_f32 v{dst}, v{S}, v{S+1}, v{S+2}")
    for k in range(3, 15, 2): g.A(f"v_max3_f32 v{dst}, v{dst}, v{S+k}, v{S+k+1}")
    g.A(f"v_max_f32 v{dst}, v{dst}, v{S+15}")
    g.A(f"v_mov_b32 v{tmp}, v{dst}"); g.A("s_nop 1")
    g.A(f"v_permlane32_swap_b32 v{tmp}, v{dst}")
    g.A(f"v_max_f32 v{dst}, v{dst}, v{tmp}")

def rescale_sub(g, par):
    Scur, Snew, Pcur = V_S[par], V_S[1-par], V_P[par]
    d, tmp, f = V_T, V_T+1, V_TMP
    g.label(f"L_rescale_{par}")
    g.A("s_nop 15"); g.A("s_nop 15")
    rowmax(g, Scur, d, tmp)
    g.A(f"v_max_f32 v{d}, 0, v{d}")
    for i in range(16):
        g.A(f"v_sub_f32 v{Scur+i}, v{Scur+i}, v{d}")
        g.A(f"v_sub_f32 v{Snew+i}, v{Snew+i}, v{d}")
        g.A(f"v_sub_f32 v{V_NEGM+i}, v{V_NEGM+i}, v{d}")
    g.A(f"v_sub_f32 v{f}, 0, v{d}"); g.A(f"v_exp_f32 v{f}, v{f}"); g.A("s_nop 0")
    g.A(f"v_mul_f32 v{V_L}, v{V_L}, v{f}")
    for i in range(64):
        g.A(f"v_accvgpr_read_b32 v{tmp}, a{A_O+i}"); g.A(f"v_mul_f32 v{tmp}, v{tmp}, v{f}"); g.A(f"v_accvgpr_write_b32 a{A_O+i}, v{tmp}")
    for k in range(8):
        g.A(f"v_exp_f32 v{V_E}, v{Scur+2*k}"); g.A(f"v_exp_f32 v{V_E+1}, v{Scur+2*k+1}"); g.A("s_nop 0")
        if k == 0: g.A(f"v_add_f32 v{V_TS}, v{V_E}, v{V_E+1}")
        else:
            g.A(f"v_add_f32 v{V_TS}, v{V_TS}, v{V_E}"); g.A(f"v_add_f32 v{V_TS}, v{V_TS}, v{V_E+1}")
        g.A(f"v_cvt_pk_bf16_f32 v{Pcur+k}, v{V_E}, v{V_E+1}")
    g.A("s_nop 1")
    g.A(f"s_setpc_b64 s[{S_RET}:{S_RET+1}]")

def p2_addresses(g):
    L = V_LANE; t0, t1, t2, t3 = V_TMP, V_TMP+1, V_TMP+2, V_TMP+3
    g.A(f"v_and_b32 v{t0}, 31, v{L}"); g.A(f"v_lshrrev_b32 v{t1}, 5, v{L}")
    g.A(f"v_and_b32 v{t2}, 15, v{L}"); g.A(f"v_xor_b32 v{t2}, v{t2}, v{t1}")
    g.A(f"v_lshlrev_b32 v{t2}, 4, v{t2}"); g.A(f"v_lshl_add_u32 v{t2}, v{t0}, 8, v{t2}")
    g.A(f"v_add_u32 v{t2}, {KB}, v{t2}")
    for s in range(8): g.A(f"v_xor_b32 v{V_KA+s}, {s << 5}, v{t2}")
    g.A(f"v_bfe_u32 v{t0}, v{L}, 2, 2")
    g.A(f"v_lshl_add_u32 v{t2}, v{t1}, 2, v{t0}"); g.A(f"v_lshlrev_b32 v{t2}, 8, v{t2}")
    g.A(f"v_lshl_add_u32 v{t2}, v{t0}, 6, v{t2}")
    g.A(f"v_bfe_u32 v{t3}, v{L}, 4, 1"); g.A(f"v_lshl_add_u32 v{t2}, v{t3}, 5, v{t2}")
    g.A(f"v_and_b32 v{t3}, 3, v{L}"); g.A(f"v_lshl_add_u32 v{t2}, v{t3}, 3, v{t2}")
    if VB: g.A(f"v_add_u32 v{t2}, {VB}, v{t2}")
    for blk in range(4): g.A(f"v_xor_b32 v{V_VA+blk}, {blk << 6}, v{t2}")

def p2_compute(g, o):
    g.C("==== P2: attention, compute waves 0..2")
    p2_addresses(g)
    g.A(f"s_lshl_b32 s{S_T0}, s{S_W}, 13"); g.A(f"s_add_u32 s{S_T0}, s{S_T0}, {QB-KB}")
    for s in range(8):
        g.A(f"v_add_u32 v{V_TMP+s}, s{S_T0}, v{V_KA+s}")
        g.lds(f"ds_read_b128 {ar(A_Q+4*s,4)}, v{V_TMP+s}", "Q")
    for s in range(8): k_read(g, s, 0)
    g.A(f"v_mov_b32 v{V_L}, 0")
    g.wait_lg0()
    for s in range(8):
        qk_mfma(g, s, V_S[0], "0")
        if s >= 1: k_read(g, s-1, 1)
    k_read(g, 7, 1)
    g.A("s_nop 15")
    rowmax(g, V_S[0], V_T, V_T+1)
    for i in range(16): g.A(f"v_sub_f32 v{V_NEGM+i}, 0, v{V_T}")
    for i in range(16): g.A(f"v_sub_f32 v{V_S[0]+i}, v{V_S[0]+i}, v{V_T}")
    g.A("s_waitcnt vmcnt(4)")
    p2_iter(g, 0, do_pv=False)
    g.A("s_waitcnt lgkmcnt(0)")
    g.A(f"s_mov_b32 s{S_CNT}, 5")
    g.label("L_p2_loop")
    for t in range(1, 7): p2_iter(g, t, vm0=(t == 1))
    g.A(f"s_sub_u32 s{S_CNT}, s{S_CNT}, 1"); g.A(f"s_cmp_lg_u32 s{S_CNT}, 0"); g.A("s_cbranch_scc1 L_p2_loop")
    p2_iter(g, 31, do_qk=False)
    g.A("s_waitcnt lgkmcnt(0)")
    g.A("s_barrier")
    stamp(g, o, 4)
    wo = wo_prefetch(g, o)
    for s in range(2):
        for blk in range(4): pv_mfma(g, s, blk, V_P[1])
    g.A(f"v_mov_b32 v{V_T}, v{V_L}"); g.A("s_nop 1")
    g.A(f"v_permlane32_swap_b32 v{V_T}, v{V_L}")
    g.A(f"v_add_f32 v{V_L}, v{V_L}, v{V_T}")
    g.A(f"v_rcp_f32 v{V_L}, v{V_L}")
    L = V_LANE; t0, t1, t2, base = V_TMP, V_TMP+1, V_TMP+2, V_TMP+3
    g.A(f"s_lshl_b32 s{S_T0}, s{S_W}, 5")
    g.A(f"v_and_b32 v{t0}, 31, v{L}"); g.A(f"v_add_u32 v{t0}, s{S_T0}, v{t0}")
    g.A(f"v_cmp_le_u32 vcc, 48, v{t0}")
    g.A(f"v_subrev_u32 v{t1}, 48, v{t0}")
    g.A(f"v_mov_b32 v{t2}, 0")
    g.A(f"v_cndmask_b32 v{t0}, v{t0}, v{t1}, vcc")
    g.A(f"v_mov_b32 v{t1}, 256")
    g.A(f"v_cndmask_b32 v{t2}, v{t2}, v{t1}, vcc")
    g.A(f"v_lshl_add_u32 v{base}, v{t0}, 9, v{t2}")
    g.A(f"v_and_b32 v{t0}, 15, v{t0}"); g.A(f"v_lshl_add_u32 v{base}, v{t0}, 4, v{base}")
    g.A(f"v_lshrrev_b32 v{t0}, 5, v{L}"); g.A(f"v_lshl_add_u32 v{base}, v{t0}, 3, v{base}")
    g.A(f"v_add_u32 v{base}, {OB}, v{base}")
    g.A("s_nop 7")
    main = []
    for blk in range(4):
        for i in range(4):
            def f(blk=blk, i=i):
                a = A_O + 16*blk + 4*i; r = V_S[0] + 4*((blk*4+i) % 4); ad = V_TMP + 4 + ((blk*4+i) % 2)
                for j in range(4): g.A(f"v_accvgpr_read_b32 v{r+j}, a{a+j}")
                g.A(f"v_xor_b32 v{ad}, {(4*blk+i) << 4}, v{base}")
                for j in range(4): g.A(f"v_mul_f32 v{r+j}, v{r+j}, v{V_L}")
                g.A(f"v_cvt_pk_bf16_f32 v{r}, v{r}, v{r+1}"); g.A(f"v_cvt_pk_bf16_f32 v{r+1}, v{r+2}, v{r+3}")
                g.lds(f"ds_write_b64 v{ad}, {vr(r,2)}", "ow")
            main.append(f)
    weave(main, wo)
    g.wait_lg0()
    g.A("s_barrier")

def p2_loader(g, o):
    g.C("==== P2: loader wave 3")
    L = V_LANE; t0, t1 = V_TMP, V_TMP+1
    g.A(f"v_lshrrev_b32 v{t0}, 4, v{L}"); g.A(f"v_and_b32 v{t1}, 15, v{L}")
    for e in range(4):
        d = V_KD + e
        g.A(f"v_add_u32 v{d}, {4*e}, v{t0}"); g.A(f"v_xor_b32 v{d}, v{d}, v{t1}"); g.A(f"v_lshlrev_b32 v{d}, 4, v{d}")
        g.A(f"v_lshl_add_u32 v{d}, v{t0}, 8, v{d}")
    g.A(f"v_lshlrev_b32 v{V_VD}, 2, v{t0}"); g.A(f"v_xor_b32 v{V_VD}, v{V_VD}, v{t1}"); g.A(f"v_lshlrev_b32 v{V_VD}, 4, v{V_VD}")
    g.A(f"v_lshl_add_u32 v{V_VD}, v{t0}, 8, v{V_VD}")
    def tile(kind, t, tag):
        so = S_KOFF if kind == "K" else S_VOFF
        base = kslot(t) if kind == "K" else vslot(t)
        for hf in range(2):
            g.A(f"s_mov_b32 m0, {base + hf*4096}")
            if hf == 1 or True: pass
            for e in range(4):
                if kind == "K": dma(g, V_KD + e, SRD_K, f"s{so}", 1024*e, o.nt_kv, tag)
                else: dma(g, V_VD, SRD_V, f"s{so}", 1024*e, o.nt_kv, tag)
                if e == 0 and False: pass
            g.A(f"s_add_u32 s{so}, s{so}, 4096")
    def tile_safe(kind, t, tag):
        n0 = len(g.L); tile(kind, t, tag)
        out = []
        for l in g.L[n0:]:
            out.append(l)
            if l.startswith("s_mov_b32 m0"): out.append("s_nop 0")
        g.L[n0:] = out
    g.A(f"s_mov_b32 s{S_KOFF}, {4*8192}"); g.A(f"s_mov_b32 s{S_VOFF}, {2*8192}")
    tile_safe("K", 4, "K4"); tile_safe("V", 2, "V2"); tile_safe("K", 5, "K5"); tile_safe("V", 3, "V3")
    def it(t, wait, k=True, v=True):
        g.C(f"loader iteration {t}")
        g.A(f"s_waitcnt vmcnt({wait})"); g.A("s_barrier")
        if k: tile_safe("K", t+6, f"X{t}")
        if v: tile_safe("V", t+4, f"X{t}")
    it(0, 36)
    g.A(f"s_mov_b32 s{S_CNT}, 4")
    g.label("L_ld_loop")
    for t in range(1, 7): it(t, 48)
    g.A(f"s_sub_u32 s{S_CNT}, s{S_CNT}, 1"); g.A(f"s_cmp_lg_u32 s{S_CNT}, 0"); g.A("s_cbranch_scc1 L_ld_loop")
    it(25, 48); it(26, 48, k=False); it(27, 40, k=False)
    it(28, 32, False, False); it(29, 16, False, False); it(30, 8, False, False); it(31, 0, False, False)
    g.vm = []
    g.A("s_barrier")
    stamp(g, o, 4)
    for f in wo_prefetch(g, o): f()
    g.A("s_barrier")

def wo_dma(g, o, i):
    out = []
    slot = i % 4
    for jj in range(8):
        def f(jj=jj):
            if jj == 0:
                g.A(f"s_add_u32 s{S_T2}, s{S_S0}, {i}"); g.A(f"s_and_b32 s{S_T2}, s{S_T2}, 7"); g.A(f"s_lshl_b32 s{S_T2}, s{S_T2}, 15")
            else: g.A(f"s_add_u32 s{S_T2}, s{S_T2}, 4096")
            g.A(f"s_add_u32 m0, s{S_RING}, {slot*8192 + jj*1024}")
            g.A("s_nop 0")
            dma(g, V_WOD + ((jj >> 1) & 1), SRD_WO, f"s{S_T2}", 0, o.pol_w, f"wo{i}")
        out.append(f)
    return out

def wo_prefetch(g, o):
    L = V_LANE; t0, t1, t2 = V_TMP+6, V_TMP+7, V_TMP+8
    g.A(f"s_lshl_b32 s{S_RING}, s{S_W}, 15")
    g.A(f"s_mov_b32 s{S_S0}, s{S_B}" if o.rot else f"s_mov_b32 s{S_S0}, 0")
    g.A(f"v_lshrrev_b32 v{t0}, 4, v{L}"); g.A(f"v_and_b32 v{t1}, 15, v{L}")
    g.A(f"s_lshl_b32 s{S_T0}, s{S_W}, 8")
    for e in range(2):
        d = V_WOD + e
        g.A(f"v_lshlrev_b32 v{d}, 1, v{t0}")
        if e: g.A(f"v_or_b32 v{d}, 8, v{d}")
        g.A(f"v_xor_b32 v{d}, v{d}, v{t1}"); g.A(f"v_lshlrev_b32 v{d}, 4, v{d}")
        g.A(f"v_lshl_add_u32 v{d}, v{t0}, 10, v{d}"); g.A(f"v_add_u32 v{d}, s{S_T0}, v{d}")
    g.vm = []
    return [f for i in range(4) for f in wo_dma(g, o, i)]

def p3(g, o):
    g.C("==== P3: partial output projection")
    L = V_LANE; t0, t1, t2, t3 = V_TMP, V_TMP+1, V_TMP+2, V_TMP+3
    g.vm = [f"wo{i}" for i in range(4) for _ in range(8)]
    stamp(g, o, 5)
    g.A(f"v_lshrrev_b32 v{t0}, 4, v{L}"); g.A(f"v_and_b32 v{t1}, 15, v{L}")
    g.A(f"v_xor_b32 v{t2}, v{t0}, v{t1}"); g.A(f"v_lshlrev_b32 v{t2}, 4, v{t2}")
    g.A(f"v_lshl_add_u32 v{V_OR}, v{t1}, 9, v{t2}"); g.A(f"v_add_u32 v{V_OR}, {OB}, v{V_OR}")
    g.A(f"v_bfe_u32 v{t1}, v{L}, 2, 2")
    g.A(f"v_and_b32 v{t2}, 1, v{t0}"); g.A(f"v_lshl_or_b32 v{t2}, v{t2}, 2, v{t1}"); g.A(f"v_lshlrev_b32 v{t2}, 5, v{t2}")
    g.A(f"v_lshl_add_u32 v{t3}, v{t0}, 3, v{t1}"); g.A(f"v_lshl_add_u32 v{t2}, v{t3}, 8, v{t2}")
    g.A(f"v_and_b32 v{t3}, 3, v{L}"); g.A(f"v_lshl_add_u32 v{t2}, v{t3}, 3, v{t2}")
    g.A(f"v_add_u32 v{t2}, s{S_RING}, v{t2}")
    for cb in range(8): g.A(f"v_xor_b32 v{V_WOR+cb}, {cb << 5}, v{t2}")
    def b_reads(i):
        vt = V_OT0 + i % 2
        g.A(f"s_add_u32 s{S_T0}, s{S_S0}, {i}"); g.A(f"s_and_b32 s{S_T0}, s{S_T0}, 7"); g.A(f"s_lshl_b32 s{S_T0}, s{S_T0}, 6")
        g.A(f"v_xor_b32 v{vt}, s{S_T0}, v{V_OR}")
        for rb in range(3): g.lds(f"ds_read_b128 {ar(A_B3[i%2]+4*rb,4)}, v{vt} offset:{rb*8192}", f"B{i}")
    def a_read(i, cb, u):
        g.lds(f"ds_read_b64_tr_b16 {ar(A_A3+4*cb+2*u,2)}, v{V_WOR+cb} offset:{(i%4)*8192+u*1024}", f"A{i}_{cb}")
    b_reads(0)
    g.wait_vm("wo0")
    for cb in range(8):
        for u in range(2): a_read(0, cb, u)
    for i in range(8):
        nxt = i + 1 < 8
        if nxt:
            g.wait_vm(f"wo{i+1}")
            b_reads(i + 1)
        dm = wo_dma(g, o, i + 4) if i + 4 < 8 else []
        for cb in range(8):
            g.wait_lg([f"A{i}_{cb}", f"B{i}"])
            for rb in range(3):
                acc = vr(V_ACC3 + (cb*3 + rb)*4, 4)
                c = "0" if i == 0 else acc
                g.A(f"v_mfma_f32_16x16x32_bf16 {acc}, {ar(A_A3+4*cb,4)}, {ar(A_B3[i%2]+4*rb,4)}, {c}")
            if nxt and cb >= 1:
                for u in range(2): a_read(i + 1, cb - 1, u)
        if nxt:
            for u in range(2): a_read(i + 1, 7, u)
        if dm:
            for f in dm: f()
    stamp(g, o, 6)
    g.A("s_nop 7")
    g.A(f"v_lshlrev_b32 v{t0}, 4, v{L}")
    g.A(f"s_mul_i32 s{S_T0}, s{S_W}, 12288")
    for rb in range(3):
        if rb: g.A(f"s_add_u32 s{S_T0}, s{S_T0}, 4096")
        for cbp in range(4):
            a0 = V_ACC3 + ((2*cbp)*3 + rb)*4; a1 = V_ACC3 + ((2*cbp+1)*3 + rb)*4
            d = V_S[0] + 4*((rb*4+cbp) % 8)
            g.A(f"v_cvt_pk_bf16_f32 v{d}, v{a0}, v{a0+1}"); g.A(f"v_cvt_pk_bf16_f32 v{d+1}, v{a0+2}, v{a0+3}")
            g.A(f"v_cvt_pk_bf16_f32 v{d+2}, v{a1}, v{a1+1}"); g.A(f"v_cvt_pk_bf16_f32 v{d+3}, v{a1+2}, v{a1+3}")
            pol = f" {o.pol_st}" if o.pol_st else ""
            g.vmem(f"buffer_store_dwordx4 {vr(d,4)}, v{t0}, s[{SRD_P}:{SRD_P+3}], s{S_T0} offen offset:{cbp*1024}{pol}", "st")
    if o.stamps:
        g.wait_vm0()
        stamp(g, o, 7)
        g.A(f"s_cmp_lg_u32 s{S_W}, 0"); g.A("s_cbranch_scc1 L_k1_end")
        if o.dbgstamps:
            g.A("s_load_dwordx2 s[28:29], s[0:1], 88"); g.A("s_waitcnt lgkmcnt(0)")
            g.A("s_and_b32 s29, s29, 0xffff"); g.A("s_mov_b32 s30, 256"); g.A("s_mov_b32 s31, 0x20000")
            g.A(f"v_cmp_eq_u32 vcc, 0, v{L}"); g.A(f"s_and_saveexec_b64 s[{S_SAVE}:{S_SAVE+1}], vcc")
            g.A(f"s_not_b32 s{S_T0}, s{S_STAMP}"); g.A(f"v_mov_b32 v{V_S[0]}, s{S_T0}"); g.A(f"v_mov_b32 v{t0}, 0")
            g.A(f"buffer_atomic_umax v{V_S[0]}, v{t0}, s[28:31], 0 offen")
            g.A(f"v_mov_b32 v{V_S[0]+1}, s{S_STAMP+14}")
            g.A(f"buffer_atomic_umax v{V_S[0]+1}, v{t0}, s[28:31], 0 offen offset:4")
            for k in range(1, 8):
                g.A(f"s_sub_u32 s{S_T0}, s{S_STAMP+2*k}, s{S_STAMP}"); g.A(f"v_mov_b32 v{V_S[0]+1+k}, s{S_T0}")
                g.A(f"buffer_atomic_umax v{V_S[0]+1+k}, v{t0}, s[28:31], 0 offen offset:{4+4*k}")
            g.A("s_waitcnt vmcnt(0)")
            g.A("s_branch L_k1_end")
        g.A(f"s_add_u32 s28, s52, 0x1000000"); g.A("s_addc_u32 s29, s53, 0"); g.A("s_and_b32 s29, s29, 0xffff")
        g.A("s_mov_b32 s30, 0x10000"); g.A("s_mov_b32 s31, 0x20000")
        for k in range(8): g.A(f"v_mov_b32 v{V_S[0]+k}, s{S_STAMP+2*k}")
        g.A(f"s_lshl_b32 s{S_T0}, s2, 5"); g.A(f"v_mov_b32 v{t0}, s{S_T0}")
        g.A(f"v_cmp_eq_u32 vcc, 0, v{L}"); g.A(f"s_and_saveexec_b64 s[{S_SAVE}:{S_SAVE+1}], vcc")
        g.A(f"buffer_store_dwordx4 {vr(V_S[0],4)}, v{t0}, s[28:31], 0 offen")
        g.A(f"buffer_store_dwordx4 {vr(V_S[0]+4,4)}, v{t0}, s[28:31], 0 offen offset:16")
        g.A("s_waitcnt vmcnt(0)")

def k1(g, o):
    header(g, K1)
    setup(g, o)
    p1(g, o)
    g.A(f"s_cmp_eq_u32 s{S_W}, 3"); g.A("s_cbranch_scc1 L_loader")
    vm_save = list(g.vm)
    p2_compute(g, o)
    g.A("s_branch L_p3")
    g.label("L_loader")
    g.vm = vm_save; g.lg = []
    p2_loader(g, o)
    g.label("L_p3")
    g.lg = []
    p3(g, o)
    g.label("L_k1_end")
    g.A("s_endpgm")
    for par in range(2): rescale_sub(g, par)
    for t in [0, 1, 2, 3, 4, 5, 6, 31]: rare_stub(g, t)

def k2(g, o):
    header(g, K2)
    g.A("s_cmp_ge_u32 s2, 256"); g.A("s_cbranch_scc1 L_k2_end")
    g.A("s_load_dwordx2 s[4:5], s[0:1], 96"); g.A("s_load_dwordx2 s[6:7], s[0:1], 80")
    g.A("v_and_b32 v1, 63, v0"); g.A("v_lshrrev_b32 v2, 6, v0")
    g.A("s_lshr_b32 s20, s2, 4")
    g.A("v_readfirstlane_b32 s21, v2")
    g.A("s_and_b32 s22, s2, 15"); g.A("s_mul_i32 s22, s22, 3")
    g.A("s_add_u32 s22, s22, s21")
    g.A("s_mul_i32 s23, s20, 786432")
    g.A("s_lshl_b32 s24, s22, 10"); g.A("s_add_u32 s23, s23, s24")
    g.A("v_lshlrev_b32 v2, 4, v1")
    g.A("s_waitcnt lgkmcnt(0)")
    srd(g, 8, 4, 5, None, 256*49152)
    srd(g, 12, 6, 7, None, 786432)
    for q in range(16):
        g.vmem(f"buffer_load_dwordx4 v[{16+4*q}:{19+4*q}], v2, s[8:11], s23 offen", f"p{q}")
        if q < 15: g.A("s_add_u32 s23, s23, 49152")
    g.A("s_mul_i32 s24, s22, 43"); g.A("s_lshr_b32 s24, s24, 9")
    g.A("s_mul_i32 s25, s24, 12"); g.A("s_sub_u32 s25, s22, s25")
    g.A("s_lshr_b32 s26, s25, 2"); g.A("s_and_b32 s25, s25, 3")
    g.A("s_and_b32 s27, s20, 7"); g.A("s_mul_i32 s27, s27, 98304")
    g.A("s_lshr_b32 s28, s20, 3"); g.A("s_lshl_b32 s28, s28, 10"); g.A("s_add_u32 s27, s27, s28")
    g.A("s_lshl_b32 s28, s26, 15"); g.A("s_add_u32 s27, s27, s28")
    g.A("s_lshl_b32 s28, s24, 8"); g.A("s_add_u32 s27, s27, s28")
    g.A("s_lshl_b32 s28, s25, 6"); g.A("s_add_u32 s27, s27, s28")
    g.A("v_and_b32 v3, 15, v1"); g.A("v_lshrrev_b32 v4, 4, v1")
    g.A("v_lshlrev_b32 v3, 11, v3"); g.A("v_lshl_add_u32 v3, v4, 3, v3")
    for q in range(16):
        g.wait_vm(f"p{q}")
        for j in range(4):
            src = 16 + 4*q + j
            if q == 0:
                g.A(f"v_lshlrev_b32 v{8+2*j}, 16, v{src}"); g.A(f"v_and_b32 v{9+2*j}, 0xffff0000, v{src}")
            else:
                g.A(f"v_lshlrev_b32 v5, 16, v{src}"); g.A(f"v_and_b32 v6, 0xffff0000, v{src}")
                g.A(f"v_add_f32 v{8+2*j}, v{8+2*j}, v5"); g.A(f"v_add_f32 v{9+2*j}, v{9+2*j}, v6")
    for j in range(4): g.A(f"v_cvt_pk_bf16_f32 v{16+j}, v{8+2*j}, v{9+2*j}")
    g.A("buffer_store_dwordx2 v[16:17], v3, s[12:15], s27 offen")
    g.A("buffer_store_dwordx2 v[18:19], v3, s[12:15], s27 offen offset:32")
    g.label("L_k2_end")
    g.A("s_endpgm")

def build(o):
    g = G()
    g.A(f"; @launch kernel={K1} grid=(256,1,1) block=(256,1,1) lds=163840")
    g.A(f"; @launch kernel={K2} grid=(256,1,1) block=(192,1,1) lds=0")
    for i in range(int(o.extra_empty)):
        g.A(f"; @launch kernel={PREFIX}_nop_kernel grid=(256,1,1) block=(64,1,1) lds=0")
    g.A('.amdgcn_target "amdgcn-amd-amdhsa--gfx950"')
    k1(g, o)
    g2 = G()
    k2(g2, o)
    g.L += g2.L
    if int(o.extra_empty):
        header(g, PREFIX + "_nop_kernel"); g.A("s_endpgm")
        descriptor(g, PREFIX + "_nop_kernel", 8, 8, 16)
    descriptor(g, K1, 512, 256)
    descriptor(g, K2, 96, 96, 40)
    return g

if __name__ == "__main__":
    o = Opt()
    for a in sys.argv[2:]:
        k, v = a.split("=", 1)
        setattr(o, k, {"True": True, "False": False}.get(v, v))
    g = build(o)
    probs = check(g.L)
    for p in probs: print("HAZARD", p)
    open(sys.argv[1], "w").write(g.text())
    print("lines", len(g.L))
```

```python
def schedule(do_qk=True, do_pv=True, cap_lo=24, cap_hi=24, ntemp=8, costs=None, bar_gap=0, early=True):
    c = dict(E=8, A=4, C=4, K=4, V=4, X=4)
    if costs: c.update(costs)
    gaps = [[] for _ in range(16)]
    load = [0]*16
    cap = [cap_lo]*8 + [cap_hi]*8
    def put(gp, item):
        gaps[gp].append(item); load[gp] += c[item[0]]
    put(bar_gap, ("X", "bar"))
    put(7, ("X", "w2"))
    put(15, ("X", "w1"))
    if do_qk:
        for s in range(8): put(max(s, bar_gap if s == 0 else s), ("K", s))
    for j in range(8):
        for u in range(2): put(8 + j if do_pv else max(j, bar_gap), ("V", j, u))
    epos = {}; apos = {}; cpos = {}
    nextE = 0; nextA = 1; nextC = 0
    done_chk = False
    for gp in range(16):
        progress = True
        while progress:
            progress = False
            room = cap[gp] - load[gp]
            if nextA < 16 and nextA in epos and (epos[nextA] < gp or (epos[nextA] == gp and gaps[gp][-1][0] != "E")) and room >= c["A"] \
               and (nextA - 1 in epos) and (epos[nextA-1] <= gp):
                ok = epos[nextA] < gp or gaps[gp][-1][0] != "E"
                if ok:
                    put(gp, ("A", nextA)); apos[nextA] = gp; nextA += 1; progress = True; continue
            if nextC < 8 and (2*nextC+1) in epos and (epos[2*nextC+1] < gp or gaps[gp][-1][0] != "E") and room >= c["C"]:
                put(gp, ("C", nextC)); cpos[nextC] = gp; nextC += 1; progress = True; continue
            if nextE < 16 and room >= c["E"]:
                old = nextE - ntemp
                free = old < 0 or ((old in apos or old == 0 and 1 in apos) and (old // 2) in cpos)
                if free:
                    put(gp, ("E", nextE)); epos[nextE] = gp; nextE += 1; progress = True; continue
    left = []
    for i in range(nextE, 16): left.append(("E", i))
    for i in range(nextA, 16): left.append(("A", i))
    for i in range(nextC, 8): left.append(("C", i))
    return gaps, left, load

if __name__ == "__main__":
    g, left, load = schedule()
    for i, x in enumerate(g): print(i, load[i], x)
    print("left", left)
```

```python
import sys, math, struct
from asmlib import G, check
from sched import schedule

PREFIX = "concat_heads__gqa_block_cached__gqa_block_cached__near_ridge"
K1 = PREFIX + "_kernel"
K2 = PREFIX + "_red_kernel"

VB = 0
KB = 65536
XB = 114688
QB = XB
OB = 139264
WQB = 16384
NS = 6
def kslot(i): return KB + (NS - 1 - i % NS) * 8192
def vslot(i): return VB + (i % NS) * 8192
WO_ADDR = [[49152, 57344, 114688, 122880],
           [131072, kslot(26), kslot(27), kslot(28)],
           [vslot(26), kslot(29), vslot(27), kslot(30)],
           [vslot(28), kslot(31), vslot(29), vslot(30)]]

CSCALE = math.log2(math.e) / math.sqrt(128.0)
def fbits(x): return struct.unpack("<I", struct.pack("<f", x))[0]
THR = float(2 ** 20)

S_W = 3
SRD_X, SRD_WQ, SRD_K, SRD_V, SRD_WO, SRD_P = 4, 8, 12, 16, 20, 24
S_HKV, S_HALF, S_B, S_BR = 54, 55, 56, 57
S_S0 = 58
S_RING = 59
S_T0, S_T1, S_T2, S_T3 = 60, 61, 62, 63
S_CNT = 64
S_KOFF, S_VOFF = 65, 66
S_THR, S_C = 67, 68
S_LD2K = 69
S_RET = 70
S_STAMP = 72
S_WOA = 88
S_BB, S_HP = 92, 93
S_SAVE = 96

ACC_OFF = 112
V_LANE = 1
V_XR, V_XT = 2, 3
V_WR = 5
V_ACC1 = 32
V_S = [32, 48]; V_P = [64, 72]; V_NEGM = 80
V_E = 2
V_L, V_TS = 6, 7
V_T = 8
V_KA = 12
V_VA = 20
V_TMP = 24
V_Q_HI = 96
A_O, A_K, A_V, A_Q = 0, 64, 96, 128
A_A1 = [64, 80]; A_B1 = [96, 108]
V_WOR = 2
V_OR, V_OT = 10, 11
V_ACC3 = 16
A_A3 = 0; A_B3 = [32, 44]
V_FT = 24
V_XD = 2; V_WD = 4; V_KE0, V_KE1, V_VE = 8, 9, 10; V_WOD = 12; V_LT = 16

def vr(b, n=1): return f"v{b}" if n == 1 else f"v[{b}:{b+n-1}]"
def ar(b, n=1): return f"a{b}" if n == 1 else f"a[{b}:{b+n-1}]"
def qreg(s): return ar(A_Q + 4*s, 4) if s < 4 else vr(V_Q_HI + 4*(s-4), 4)

class Opt:
    nt_kv = "nt"; pol_w = ""; pol_x = ""; pol_st = "sc0 sc1"
    stamps = False; rot = True; fused = False; extra_empty = 0
    roles = "37"; cap_lo = 24; cap_hi = 24; x_nobar = False; x_nok = False; x_nov = False; x_novalu = False; x_nomfma = False; x_nodma = False

def stamp(g, o, idx):
    if o.stamps:
        g.A("s_memrealtime s[98:99]"); g.A("s_memtime s[100:101]")
        g.A("s_waitcnt lgkmcnt(0)"); g.lg = []
        g.A(f"s_mov_b32 s{S_STAMP+idx}, s98"); g.A(f"s_mov_b32 s{S_STAMP+8+idx}, s100")

def header(g, name):
    g.A(".text"); g.A(f".globl {name}"); g.A(".p2align 8"); g.A(f".type {name},@function"); g.label(name)

def descriptor(g, name, vgpr, accum, sgpr=102):
    g.A('.section .rodata,"a"'); g.A(".p2align 6"); g.A(f".amdhsa_kernel {name}")
    g.A(f".amdhsa_next_free_vgpr {vgpr}"); g.A(f".amdhsa_next_free_sgpr {sgpr}"); g.A(f".amdhsa_accum_offset {accum}")
    g.A(".amdhsa_group_segment_fixed_size 0"); g.A(".amdhsa_kernarg_size 104"); g.A(".amdhsa_user_sgpr_count 2")
    g.A(".amdhsa_user_sgpr_kernarg_segment_ptr 1"); g.A(".amdhsa_system_sgpr_workgroup_id_x 1"); g.A(".end_amdhsa_kernel")

def srd(g, d, lo, hi, off_s, nrec):
    if off_s is None:
        g.A(f"s_mov_b32 s{d}, s{lo}"); g.A(f"s_and_b32 s{d+1}, s{hi}, 0xffff")
    else:
        g.A(f"s_add_u32 s{d}, s{lo}, {off_s}"); g.A(f"s_addc_u32 s{d+1}, s{hi}, 0"); g.A(f"s_and_b32 s{d+1}, s{d+1}, 0xffff")
    g.A(f"s_mov_b32 s{d+2}, {nrec}"); g.A(f"s_mov_b32 s{d+3}, 0x20000")

def dma(g, voff, srd_, soff, imm, pol, tag):
    off = f" offset:{imm}" if imm else ""
    pol = f" {pol}" if pol else ""
    g.vmem(f"buffer_load_dwordx4 v{voff}, s[{srd_}:{srd_+3}], {soff} offen{off}{pol} lds", tag)

def weave(main, fill):
    n = len(main); m = len(fill); k = 0
    for i, f in enumerate(main):
        f()
        tgt = (i + 1) * m // n
        while k < tgt:
            fill[k](); k += 1

def select_by_wave(g, dst, vals):
    g.A(f"s_mov_b32 s{dst}, {vals[0]}")
    for k in range(1, len(vals)):
        g.A(f"s_cmp_eq_u32 s{S_W}, {k}"); g.A(f"s_cselect_b32 s{dst}, {vals[k]}, s{dst}")

def setup(g, o):
    g.A("s_cmp_ge_u32 s2, 256"); g.A("s_cbranch_scc1 L_k1_end")
    stamp(g, o, 0)
    g.A("s_load_dwordx16 s[32:47], s[0:1], 0")
    g.A("s_load_dwordx4 s[48:51], s[0:1], 64")
    g.A("s_load_dwordx2 s[52:53], s[0:1], 96")
    g.A(f"v_and_b32 v{V_LANE}, 63, v0")
    g.A("v_lshrrev_b32 v2, 6, v0")
    g.A(f"s_and_b32 s{S_HKV}, s2, 7")
    g.A(f"v_readfirstlane_b32 s{S_W}, v2")
    g.A(f"s_lshr_b32 s{S_T0}, s2, 3")
    g.A(f"s_and_b32 s{S_HALF}, s{S_T0}, 1")
    g.A(f"s_lshr_b32 s{S_B}, s{S_T0}, 1"); g.A(f"s_and_b32 s{S_B}, s{S_B}, 7")
    g.A(f"s_lshr_b32 s{S_BR}, s{S_T0}, 4")
    g.A(f"s_lshl_b32 s{S_HP}, s{S_HKV}, 1"); g.A(f"s_add_u32 s{S_HP}, s{S_HP}, s{S_HALF}")
    g.A(f"s_lshl_b32 s{S_BB}, s{S_BR}, 3"); g.A(f"s_add_u32 s{S_BB}, s{S_BB}, s{S_B}")
    g.A(f"s_mov_b32 s{S_THR}, {hex(fbits(THR))}")
    g.A(f"s_mov_b32 s{S_C}, {hex(fbits(CSCALE))}")
    if o.rot: g.A(f"s_lshl_b32 s{S_S0}, s{S_B}, 1")
    else: g.A(f"s_mov_b32 s{S_S0}, 0")
    g.A("s_waitcnt lgkmcnt(0)")
    g.A(f"s_cmp_eq_u32 s{S_BR}, 1")
    for i in range(10):
        g.A(f"s_cselect_b32 s{32+i}, s{42+i}, s{32+i}")
    g.A(f"s_mul_i32 s{S_T0}, s{S_B}, 49152"); srd(g, SRD_X, 32, 33, f"s{S_T0}", 49152)
    g.A(f"s_lshl_b32 s{S_T1}, s{S_HP}, 9")
    srd(g, SRD_WQ, 38, 39, f"s{S_T1}", 0)
    g.A(f"s_sub_u32 s{SRD_WQ+2}, 0x400000, s{S_T1}")
    g.A(f"s_lshl_b32 s{S_T0}, s{S_B}, 3"); g.A(f"s_add_u32 s{S_T0}, s{S_T0}, s{S_HKV}"); g.A(f"s_lshl_b32 s{S_T0}, s{S_T0}, 18")
    srd(g, SRD_K, 34, 35, f"s{S_T0}", 262144); srd(g, SRD_V, 36, 37, f"s{S_T0}", 262144)
    g.A(f"s_lshl_b32 s{S_T1}, s{S_HP}, 18")
    srd(g, SRD_WO, 40, 41, f"s{S_T1}", 262144)
    g.A(f"s_lshl_b32 s{S_T1}, s{S_BB}, 4"); g.A(f"s_add_u32 s{S_T1}, s{S_T1}, s{S_HP}"); g.A(f"s_mul_i32 s{S_T1}, s{S_T1}, 49152")
    srd(g, SRD_P, 52, 53, f"s{S_T1}", 49152)

EARLY = [("K", 0), ("K", 1), ("V", 0), ("K", 2), ("V", 1), ("K", 3)]

def full_tile_regs(g, kind):
    L = V_LANE; t0, t1 = V_FT+4, V_FT+5
    g.A(f"v_lshrrev_b32 v{t0}, 4, v{L}"); g.A(f"v_and_b32 v{t1}, 15, v{L}")
    for e in range(4 if kind == "K" else 1):
        d = V_FT + e
        if kind == "K": g.A(f"v_add_u32 v{d}, {4*e}, v{t0}")
        else: g.A(f"v_lshlrev_b32 v{d}, 2, v{t0}")
        g.A(f"v_xor_b32 v{d}, v{d}, v{t1}"); g.A(f"v_lshlrev_b32 v{d}, 4, v{d}"); g.A(f"v_lshl_add_u32 v{d}, v{t0}, 8, v{d}")

def full_tile(g, o, kind, t, tag):
    so = S_KOFF if kind == "K" else S_VOFF
    base = kslot(t) if kind == "K" else vslot(t)
    for hf in range(2):
        g.A(f"s_mov_b32 m0, {base + hf*4096}"); g.A("s_nop 0")
        for e in range(4):
            dma(g, V_FT + (e if kind == "K" else 0), SRD_K if kind == "K" else SRD_V, f"s{so}", 1024*e, o.nt_kv, tag)
        g.A(f"s_add_u32 s{so}, s{so}, 4096")

def loader(g, o):
    g.C("================ loader waves")
    L = V_LANE; t0, t1, t2, t3 = V_LT, V_LT+1, V_LT+2, V_LT+3
    g.A(f"s_sub_u32 s{S_W}, s{S_W}, 4")
    g.A(f"v_lshrrev_b32 v{t0}, 4, v{L}"); g.A(f"v_and_b32 v{t1}, 15, v{L}")
    g.A(f"s_lshl_b32 s{S_T0}, s{S_W}, 2")
    g.A(f"v_add_u32 v{t2}, s{S_T0}, v{t0}"); g.A(f"v_xor_b32 v{t2}, v{t2}, v{t1}"); g.A(f"v_lshlrev_b32 v{t2}, 4, v{t2}")
    g.A(f"v_lshl_add_u32 v{V_XD}, v{t0}, 10, v{t2}")
    g.A(f"s_lshl_b32 s{S_T2}, s{S_W}, 12"); g.A(f"s_lshl_b32 s{S_T3}, s{S_W}, 10")
    def x_piece(kq, i3):
        g.A(f"s_add_u32 m0, s{S_T3}, {XB + kq*12288 + i3*4096}")
        g.A(f"s_add_u32 s{S_T0}, s{S_T2}, {i3*16384 + kq*256}")
        dma(g, V_XD, SRD_X, f"s{S_T0}", 0, o.pol_x, "x")
    for kq in range(4):
        for i3 in range(3): x_piece(kq, i3)
    g.A(f"v_lshrrev_b32 v{t2}, 3, v{L}"); g.A(f"v_and_b32 v{t3}, 7, v{L}")
    g.A(f"s_lshl_b32 s{S_T0}, s{S_W}, 7")
    for jj in range(4):
        d = V_WD + jj
        g.A(f"v_and_b32 v{d}, 2, v{t2}")
        if jj & 1: g.A(f"v_or_b32 v{d}, 4, v{d}")
        g.A(f"v_xor_b32 v{d}, v{d}, v{t3}"); g.A(f"v_lshlrev_b32 v{d}, 4, v{d}")
        g.A(f"v_lshl_add_u32 v{d}, v{t2}, 13, v{d}")
        g.A(f"v_add_u32 v{d}, s{S_T0}, v{d}")
        if jj: g.A(f"v_add_u32 v{d}, {jj*64512}, v{d}")
    g.A(f"s_lshl_b32 s{S_RING}, s{S_W}, 14"); g.A(f"s_add_u32 s{S_RING}, s{S_RING}, {WQB}")
    def wq_step(i):
        g.A(f"s_add_u32 s{S_T2}, s{S_S0}, {i}"); g.A(f"s_and_b32 s{S_T2}, s{S_T2}, 15")
        g.A(f"s_add_u32 m0, s{S_RING}, {(i%4)*4096}")
        g.A(f"s_lshl_b32 s{S_T2}, s{S_T2}, 18")
        for jj in range(4): dma(g, V_WD + jj, SRD_WQ, f"s{S_T2}", 1024*jj, o.pol_w, f"wq{i}")
    for i in range(3): wq_step(i)
    g.A(f"s_lshl_b32 s{S_LD2K}, s{S_W}, 11")
    g.A(f"v_lshlrev_b32 v{t2}, 8, v{t0}"); g.A(f"v_add_u32 v{t2}, s{S_LD2K}, v{t2}")
    g.A(f"s_lshl_b32 s{S_T1}, s{S_W}, 3"); g.A(f"s_and_b32 s{S_T1}, s{S_T1}, 15")
    for e in range(2):
        d = V_KE0 + e
        g.A(f"v_add_u32 v{d}, s{S_T1}, v{t0}")
        if e: g.A(f"v_add_u32 v{d}, 4, v{d}")
        g.A(f"v_xor_b32 v{d}, v{d}, v{t1}"); g.A(f"v_lshl_add_u32 v{d}, v{d}, 4, v{t2}")
    g.A(f"v_lshlrev_b32 v{V_VE}, 2, v{t0}"); g.A(f"v_xor_b32 v{V_VE}, v{V_VE}, v{t1}")
    g.A(f"v_lshl_add_u32 v{V_VE}, v{V_VE}, 4, v{t2}")
    g.A(f"s_lshl_b32 s{S_T0}, s{S_W}, 8")
    for jj in range(4):
        d = V_WOD + jj
        g.A(f"v_lshlrev_b32 v{d}, 1, v{t0}")
        if jj >> 1: g.A(f"v_or_b32 v{d}, 8, v{d}")
        g.A(f"v_xor_b32 v{d}, v{d}, v{t1}"); g.A(f"v_lshlrev_b32 v{d}, 4, v{d}")
        g.A(f"v_lshl_add_u32 v{d}, v{t0}, 10, v{d}"); g.A(f"v_add_u32 v{d}, s{S_T0}, v{d}")
        if jj: g.A(f"v_add_u32 v{d}, {jj*3072}, v{d}")
    for s in range(4): select_by_wave(g, S_WOA + s, [WO_ADDR[s][w] for w in range(4)])
    g.A(f"s_mov_b32 s{S_KOFF}, 0"); g.A(f"s_mov_b32 s{S_VOFF}, 0")
    def kv(kind, t, tag):
        so = S_KOFF if kind == "K" else S_VOFF
        g.A(f"s_add_u32 m0, s{S_LD2K}, {kslot(t) if kind == 'K' else vslot(t)}")
        g.A("s_nop 0")
        if kind == "K":
            dma(g, V_KE0, SRD_K, f"s{so}", 0, o.nt_kv, tag); dma(g, V_KE1, SRD_K, f"s{so}", 1024, o.nt_kv, tag)
        else:
            dma(g, V_VE, SRD_V, f"s{so}", 0, o.nt_kv, tag); dma(g, V_VE, SRD_V, f"s{so}", 1024, o.nt_kv, tag)
        g.A(f"s_add_u32 s{so}, s{so}, 8192")
    def wo_step(i):
        g.A(f"s_add_u32 s{S_T2}, s{S_B if o.rot else S_CNT}, {i}"); g.A(f"s_and_b32 s{S_T2}, s{S_T2}, 7")
        g.A(f"s_mov_b32 m0, s{S_WOA + i % 4}")
        g.A(f"s_lshl_b32 s{S_T2}, s{S_T2}, 15")
        for jj in range(4): dma(g, V_WOD + jj, SRD_WO, f"s{S_T2}", 1024*jj, o.pol_w, f"wo{i}")
        g.A(f"s_add_u32 m0, s{S_WOA + i % 4}, 4096"); g.A(f"s_add_u32 s{S_T2}, s{S_T2}, 16384")
        for jj in range(4): dma(g, V_WOD + jj, SRD_WO, f"s{S_T2}", 1024*jj, o.pol_w, f"wo{i}")
    for i in range(16):
        if i == 0: g.wait_vm(["x", "wq0", "wq1"])
        elif i + 1 < 16: g.wait_vm(f"wq{i+1}")
        g.A("s_barrier")
        if i + 3 < 16: wq_step(i + 3)
        else:
            for kind, t in EARLY[(i-13)*2:(i-13)*2+2]: kv(kind, t, f"{kind}{t}")
    g.A("s_barrier")
    g.wait_vm(["K0", "K1"]); g.A("s_barrier")
    def tail_p3():
        g.A("s_barrier")
        wo_step(3)
        g.wait_vm(["wo0", "wo1"]); g.A("s_barrier")
        for i in range(1, 8):
            if i + 1 < 8: g.wait_vm(f"wo{i+1}")
            g.A("s_barrier")
            if i + 3 < 8: wo_step(i + 3)
        if o.fused: g.A("s_branch L_tail")
        else: g.A("s_endpgm")
    if o.roles == "all4":
        for kind, t in [("K", 4), ("V", 2), ("K", 5), ("V", 3)]: kv(kind, t, f"{kind}{t}")
        def it(t, wait=None, k=True, v=True):
            g.C(f"loader iteration {t}")
            if wait is not None: g.A(f"s_waitcnt vmcnt({wait})")
            else: g.wait_vm([f"K{t+2}", f"V{t}"])
            g.A("s_barrier")
            if o.x_nodma and t < 24: return
            if k: kv("K", t+6, f"K{t+6}")
            if v: kv("V", t+4, f"V{t+4}")
        g.A(f"s_mov_b32 s{S_CNT}, 4")
        g.label("L_ld_loop")
        for t in range(6): it(t, 12)
        g.A(f"s_sub_u32 s{S_CNT}, s{S_CNT}, 1"); g.A(f"s_cmp_lg_u32 s{S_CNT}, 0"); g.A("s_cbranch_scc1 L_ld_loop")
        g.vm = []
        for t in range(20, 24): g.vm += [f"K{t+6}"]*2 + [f"V{t+4}"]*2
        it(24); it(25); it(26, k=False); it(27, k=False)
        wo_step(0)
        it(28, k=False, v=False); wo_step(1)
        it(29, k=False, v=False)
        it(30, k=False, v=False); wo_step(2)
        it(31, k=False, v=False)
        tail_p3()
        return
    g.A(f"s_cmp_eq_u32 s{S_W}, 3"); g.A("s_cbranch_scc1 L_vloader")
    vm_early = list(g.vm)
    g.wait_vm(["V0", "K2"]); g.A("s_barrier")
    g.wait_vm(["V1", "K3"]); g.A("s_barrier")
    g.A(f"s_mov_b32 s{S_CNT}, 26")
    g.label("L_ld_idle")
    g.A("s_barrier")
    g.A(f"s_sub_u32 s{S_CNT}, s{S_CNT}, 1"); g.A(f"s_cmp_lg_u32 s{S_CNT}, 0"); g.A("s_cbranch_scc1 L_ld_idle")
    def drain(vtags):
        wo_step(0)
        for t in range(28, 32):
            if vtags: g.wait_vm(f"V{t}")
            g.A("s_barrier")
            if t == 28: wo_step(1)
            if t == 30: wo_step(2)
        tail_p3()
    drain(False)
    g.label("L_vloader")
    g.vm = vm_early
    full_tile_regs(g, "V")
    g.A(f"s_mov_b32 s{S_VOFF}, {2*8192}")
    full_tile(g, o, "V", 2, "V2"); full_tile(g, o, "V", 3, "V3")
    g.wait_vm(["V0", "K2"])
    g.A(f"s_mov_b32 s{S_CNT}, 4")
    g.label("L_vld_loop")
    for t in range(6):
        g.A("s_waitcnt vmcnt(24)"); g.A("s_barrier")
        if not o.x_nodma: full_tile(g, o, "V", t+4, f"V{t+4}")
    g.A(f"s_sub_u32 s{S_CNT}, s{S_CNT}, 1"); g.A(f"s_cmp_lg_u32 s{S_CNT}, 0"); g.A("s_cbranch_scc1 L_vld_loop")
    g.vm = []
    for t in range(24, 28): g.vm += [f"V{t}"]*8
    for t in range(24, 28):
        g.wait_vm(f"V{t}"); g.A("s_barrier"); full_tile(g, o, "V", t+4, f"V{t+4}")
    drain(True)
    return

def p1_compute(g, o):
    g.C("==== P1: Q projection")
    L = V_LANE; t0, t1, t2 = V_TMP, V_TMP+1, V_TMP+2
    for i in range(64): g.A(f"v_accvgpr_write_b32 a{A_O+i}, 0")
    g.A(f"v_lshrrev_b32 v{t0}, 4, v{L}"); g.A(f"v_and_b32 v{t1}, 15, v{L}")
    g.A(f"v_xor_b32 v{t2}, v{t0}, v{t1}"); g.A(f"v_lshlrev_b32 v{t2}, 4, v{t2}")
    g.A(f"v_lshl_add_u32 v{V_XR}, v{t1}, 8, v{t2}")
    g.A(f"s_lshl_b32 s{S_RING}, s{S_W}, 14"); g.A(f"s_add_u32 s{S_RING}, s{S_RING}, {WQB}")
    r_, cc, sw = V_TMP+4, V_TMP+5, V_TMP+6
    g.A(f"v_bfe_u32 v{r_}, v{L}, 2, 2"); g.A(f"v_and_b32 v{cc}, 3, v{L}")
    g.A(f"v_and_b32 v{sw}, 2, v{r_}"); g.A(f"v_and_b32 v{t2}, 1, v{t0}")
    g.A(f"v_lshl_or_b32 v{sw}, v{t2}, 2, v{sw}")
    g.A(f"v_lshrrev_b32 v{t2}, 1, v{cc}"); g.A(f"v_or_b32 v{sw}, v{sw}, v{t2}"); g.A(f"v_lshlrev_b32 v{sw}, 4, v{sw}")
    g.A(f"v_and_b32 v{t2}, 1, v{cc}"); g.A(f"v_lshl_add_u32 v{sw}, v{t2}, 3, v{sw}")
    g.A(f"v_lshl_add_u32 v{t2}, v{t0}, 3, v{r_}"); g.A(f"v_lshl_add_u32 v{sw}, v{t2}, 7, v{sw}")
    g.A(f"v_add_u32 v{sw}, s{S_RING}, v{sw}")
    for cb in range(4): g.A(f"v_xor_b32 v{V_WR+cb}, {cb << 5}, v{sw}")
    def reads(i):
        out = []; buf = i % 2; slot = i % 4; vt = V_XT + buf
        def addr():
            g.A(f"s_add_u32 s{S_T0}, s{S_S0}, {i}"); g.A(f"s_and_b32 s{S_T0}, s{S_T0}, 15")
            g.A(f"s_and_b32 s{S_T1}, s{S_T0}, 3"); g.A(f"s_lshl_b32 s{S_T1}, s{S_T1}, 6")
            g.A(f"s_lshr_b32 s{S_T0}, s{S_T0}, 2"); g.A(f"s_mul_i32 s{S_T0}, s{S_T0}, 12288"); g.A(f"s_add_u32 s{S_T0}, s{S_T0}, {XB}")
            g.A(f"v_xor_b32 v{vt}, s{S_T1}, v{V_XR}"); g.A(f"v_add_u32 v{vt}, s{S_T0}, v{vt}")
        out.append(addr)
        for cb in range(4):
            for u in range(2):
                out.append(lambda cb=cb, u=u: g.lds(
                    f"ds_read_b64_tr_b16 {ar(A_A1[buf]+4*cb+2*u,2)}, v{V_WR+cb} offset:{slot*4096+u*512}", f"f{i}"))
        for rb in range(3):
            out.append(lambda rb=rb: g.lds(f"ds_read_b128 {ar(A_B1[buf]+4*rb,4)}, v{vt} offset:{rb*4096}", f"f{i}"))
        return out
    for i in range(16):
        buf = i % 2
        g.A("s_barrier")
        if i == 0:
            stamp(g, o, 1)
            for f in reads(0): f()
        g.wait_lg(f"f{i}")
        mf = []
        for cb in range(4):
            for rb in range(3):
                acc = vr(V_ACC1 + (cb*3 + rb)*4, 4)
                c = "0" if i == 0 else acc
                mf.append(lambda acc=acc, c=c, cb=cb, rb=rb: g.A(
                    f"v_mfma_f32_16x16x32_bf16 {acc}, {ar(A_A1[buf]+4*cb,4)}, {ar(A_B1[buf]+4*rb,4)}, {c}"))
        weave(mf, reads(i + 1) if i + 1 < 16 else [])
    stamp(g, o, 2)
    base = V_TMP+3
    g.A(f"s_and_b32 s{S_T0}, s{S_W}, 1"); g.A(f"s_lshl_b32 s{S_T0}, s{S_T0}, 3")
    g.A(f"v_lshrrev_b32 v{t2}, 1, v{t0}")
    g.A(f"v_xor_b32 v{t2}, v{t2}, v{t1}"); g.A(f"v_xor_b32 v{t2}, s{S_T0}, v{t2}"); g.A(f"v_lshlrev_b32 v{t2}, 4, v{t2}")
    g.A(f"v_and_b32 v{t0}, 1, v{t0}"); g.A(f"v_lshl_add_u32 v{t2}, v{t0}, 3, v{t2}")
    g.A(f"s_lshr_b32 s{S_T0}, s{S_W}, 1"); g.A(f"s_mul_i32 s{S_T0}, s{S_T0}, {48*256}"); g.A(f"s_add_u32 s{S_T0}, s{S_T0}, {QB}")
    g.A(f"v_lshl_add_u32 v{base}, v{t1}, 8, v{t2}"); g.A(f"v_add_u32 v{base}, s{S_T0}, v{base}")
    g.A("s_barrier")
    for cb in range(4):
        g.A(f"v_xor_b32 v{t0}, {cb << 5}, v{base}")
        for rb in range(3):
            a = V_ACC1 + (cb*3 + rb)*4
            for j in range(4): g.A(f"v_mul_f32 v{a+j}, s{S_C}, v{a+j}")
            g.A(f"v_cvt_pk_bf16_f32 v{a}, v{a}, v{a+1}"); g.A(f"v_cvt_pk_bf16_f32 v{a+1}, v{a+2}, v{a+3}")
            g.lds(f"ds_write_b64 v{t0}, {vr(a,2)} offset:{rb*4096}", "qw")
    g.wait_lg0()
    g.A("s_barrier")
    stamp(g, o, 3)

def qk_mfma(g, s, dst, first_c):
    c = first_c if s == 0 else vr(dst, 16)
    g.A(f"v_mfma_f32_32x32x16_bf16 {vr(dst,16)}, {ar(A_K+4*s,4)}, {qreg(s)}, {c}")
def pv_mfma(g, s, blk, p):
    g.A(f"v_mfma_f32_32x32x16_bf16 {ar(A_O+16*blk,16)}, {ar(A_V+(s*4+blk)*4,4)}, {vr(p+4*s,4)}, {ar(A_O+16*blk,16)}")
def k_read(g, s, t):
    g.lds(f"ds_read_b128 {ar(A_K+4*s,4)}, v{V_KA+s} offset:{kslot(t)-KB}", "K")
def v_read(g, s, blk, u, t):
    g.lds(f"ds_read_b64_tr_b16 {ar(A_V+(s*4+blk)*4+2*u,2)}, v{V_VA+blk} offset:{vslot(t)-VB+4096*s+2048*u}", "V")

NTEMP = 8
V_ET = V_TMP
def p2_iter(g, t, do_qk=True, do_pv=True):
    o = OPT
    par = t % 2
    Scur, Snew, Pcur, Pprev = V_S[par], V_S[1-par], V_P[par], V_P[1-par]
    g.C(f"---- iteration {t}")
    gaps, left, load = schedule(do_qk, do_pv, cap_lo=int(o.cap_lo), cap_hi=int(o.cap_hi), ntemp=NTEMP)
    assert not left, left
    last_a = max(i for i, gp in enumerate(gaps) if ("A", 15) in gp)
    cmp_gap = min(last_a + 1, 15); br_gap = min(cmp_gap + 1, 15)
    e = lambda i: V_ET + i % NTEMP
    def emit(it):
        k = it[0]
        if k == "E":
            if not o.x_novalu: g.A(f"v_exp_f32 v{e(it[1])}, v{Scur+it[1]}")
        elif k == "A":
            if o.x_novalu: return
            if it[1] == 1: g.A(f"v_add_f32 v{V_TS}, v{e(0)}, v{e(1)}")
            else: g.A(f"v_add_f32 v{V_TS}, v{V_TS}, v{e(it[1])}")
        elif k == "C":
            if not o.x_novalu: g.A(f"v_cvt_pk_bf16_f32 v{Pcur+it[1]}, v{e(2*it[1])}, v{e(2*it[1]+1)}")
        elif k == "K":
            if not o.x_nok: k_read(g, it[1], t+2)
        elif k == "V":
            if not o.x_nov: v_read(g, it[1]//4, it[1] % 4, it[2], t)
    for m in range(16):
        if m < 8 and do_qk and not o.x_nomfma: qk_mfma(g, m, Snew, vr(V_NEGM, 16))
        elif m >= 8 and do_pv and not o.x_nomfma: pv_mfma(g, (m-8)//4, (m-8) % 4, Pprev)
        else: g.A("s_nop 0")
        items = gaps[m]
        if ("X", "bar") in items and not o.x_nobar: g.A("s_barrier")
        if m == cmp_gap: g.A(f"v_cmp_lt_f32 vcc, s{S_THR}, v{V_TS}")
        for it in items:
            if it[0] != "X": emit(it)
        if m == br_gap:
            g.A(f"s_cbranch_vccnz L_rare_{t}")
            g.label(f"L_back_{t}")
            g.A(f"v_add_f32 v{V_L}, v{V_L}, v{V_TS}")
        if m == 7 and do_pv: g.A(f"s_waitcnt lgkmcnt({8 if do_qk else 0})")
        if m == 15: g.A(f"s_waitcnt lgkmcnt({15 if do_pv else 0})")
    g.lg = []

def rare_stub(g, t):
    g.label(f"L_rare_{t}")
    g.A(f"s_call_b64 s[{S_RET}:{S_RET+1}], L_rescale_{t%2}")
    g.A(f"s_branch L_back_{t}")

def rowmax(g, S, dst, tmp):
    g.A(f"v_max3_f32 v{dst}, v{S}, v{S+1}, v{S+2}")
    for k in range(3, 15, 2): g.A(f"v_max3_f32 v{dst}, v{dst}, v{S+k}, v{S+k+1}")
    g.A(f"v_max_f32 v{dst}, v{dst}, v{S+15}")
    g.A(f"v_mov_b32 v{tmp}, v{dst}"); g.A("s_nop 1")
    g.A(f"v_permlane32_swap_b32 v{tmp}, v{dst}")
    g.A(f"v_max_f32 v{dst}, v{dst}, v{tmp}")

def rescale_sub(g, par):
    Scur, Snew, Pcur = V_S[par], V_S[1-par], V_P[par]
    d, tmp, f = V_T, V_T+1, 10
    g.label(f"L_rescale_{par}")
    g.A("s_nop 15"); g.A("s_nop 15")
    rowmax(g, Scur, d, tmp)
    g.A(f"v_max_f32 v{d}, 0, v{d}")
    for i in range(16):
        g.A(f"v_sub_f32 v{Scur+i}, v{Scur+i}, v{d}")
        g.A(f"v_sub_f32 v{Snew+i}, v{Snew+i}, v{d}")
        g.A(f"v_sub_f32 v{V_NEGM+i}, v{V_NEGM+i}, v{d}")
    g.A(f"v_sub_f32 v{f}, 0, v{d}"); g.A(f"v_exp_f32 v{f}, v{f}"); g.A("s_nop 0")
    g.A(f"v_mul_f32 v{V_L}, v{V_L}, v{f}")
    for i in range(64):
        g.A(f"v_accvgpr_read_b32 v{tmp}, a{A_O+i}"); g.A(f"v_mul_f32 v{tmp}, v{tmp}, v{f}"); g.A(f"v_accvgpr_write_b32 a{A_O+i}, v{tmp}")
    for k in range(8):
        g.A(f"v_exp_f32 v{V_E}, v{Scur+2*k}"); g.A(f"v_exp_f32 v{V_E+1}, v{Scur+2*k+1}"); g.A("s_nop 0")
        if k == 0: g.A(f"v_add_f32 v{V_TS}, v{V_E}, v{V_E+1}")
        else:
            g.A(f"v_add_f32 v{V_TS}, v{V_TS}, v{V_E}"); g.A(f"v_add_f32 v{V_TS}, v{V_TS}, v{V_E+1}")
        g.A(f"v_cvt_pk_bf16_f32 v{Pcur+k}, v{V_E}, v{V_E+1}")
    g.A("s_nop 1")
    g.A(f"s_setpc_b64 s[{S_RET}:{S_RET+1}]")

def p2_compute(g, o):
    g.C("==== P2: attention, compute waves 0..2")
    L = V_LANE; t0, t1, t2, t3 = V_TMP, V_TMP+1, V_TMP+2, V_TMP+3
    g.A(f"v_and_b32 v{t0}, 31, v{L}"); g.A(f"v_lshrrev_b32 v{t1}, 5, v{L}")
    g.A(f"v_and_b32 v{t2}, 15, v{L}"); g.A(f"v_xor_b32 v{t2}, v{t2}, v{t1}")
    g.A(f"v_lshlrev_b32 v{t2}, 4, v{t2}"); g.A(f"v_lshl_add_u32 v{t2}, v{t0}, 8, v{t2}")
    g.A(f"v_add_u32 v{t2}, {KB}, v{t2}")
    for s in range(8): g.A(f"v_xor_b32 v{V_KA+s}, {s << 5}, v{t2}")
    g.A(f"s_lshl_b32 s{S_T0}, s{S_W}, 13"); g.A(f"s_add_u32 s{S_T0}, s{S_T0}, {QB-KB}")
    for s in range(8):
        g.A(f"v_add_u32 v{V_S[1]+s}, s{S_T0}, v{V_KA+s}")
        g.lds(f"ds_read_b128 {qreg(s)}, v{V_S[1]+s}", "Q")
    for s in range(8): k_read(g, s, 0)
    g.A(f"v_bfe_u32 v{t0}, v{L}, 2, 2")
    g.A(f"v_lshl_add_u32 v{t2}, v{t1}, 2, v{t0}"); g.A(f"v_lshlrev_b32 v{t2}, 8, v{t2}")
    g.A(f"v_lshl_add_u32 v{t2}, v{t0}, 6, v{t2}")
    g.A(f"v_bfe_u32 v{t3}, v{L}, 4, 1"); g.A(f"v_lshl_add_u32 v{t2}, v{t3}, 5, v{t2}")
    g.A(f"v_and_b32 v{t3}, 3, v{L}"); g.A(f"v_lshl_add_u32 v{t2}, v{t3}, 3, v{t2}")
    for blk in range(4): g.A(f"v_xor_b32 v{V_VA+blk}, {blk << 6}, v{t2}")
    g.A(f"v_mov_b32 v{V_L}, 0")
    g.wait_lg0()
    for s in range(8):
        qk_mfma(g, s, V_S[0], "0")
        if s >= 1: k_read(g, s-1, 1)
    k_read(g, 7, 1)
    g.A("s_nop 15")
    rowmax(g, V_S[0], V_T, V_T+1)
    for i in range(16): g.A(f"v_sub_f32 v{V_NEGM+i}, 0, v{V_T}")
    for i in range(16): g.A(f"v_sub_f32 v{V_S[0]+i}, v{V_S[0]+i}, v{V_T}")
    g.A("s_waitcnt lgkmcnt(0)")
    p2_iter(g, 0, do_pv=False)
    g.A(f"s_mov_b32 s{S_CNT}, 5")
    g.label("L_p2_loop")
    for t in range(1, 7): p2_iter(g, t)
    g.A(f"s_sub_u32 s{S_CNT}, s{S_CNT}, 1"); g.A(f"s_cmp_lg_u32 s{S_CNT}, 0"); g.A("s_cbranch_scc1 L_p2_loop")
    p2_iter(g, 31, do_qk=False)
    g.A("s_waitcnt lgkmcnt(0)")
    g.A("s_barrier")
    stamp(g, o, 4)
    for s in range(2):
        for blk in range(4): pv_mfma(g, s, blk, V_P[1])
    g.A(f"v_mov_b32 v{V_T}, v{V_L}"); g.A("s_nop 1")
    g.A(f"v_permlane32_swap_b32 v{V_T}, v{V_L}")
    g.A(f"v_add_f32 v{V_L}, v{V_L}, v{V_T}")
    g.A(f"v_rcp_f32 v{V_L}, v{V_L}")
    base = V_TMP+3
    g.A(f"s_lshl_b32 s{S_T0}, s{S_W}, 5")
    g.A(f"v_and_b32 v{t0}, 31, v{L}"); g.A(f"v_add_u32 v{t0}, s{S_T0}, v{t0}")
    g.A(f"v_cmp_le_u32 vcc, 48, v{t0}")
    g.A(f"v_subrev_u32 v{t1}, 48, v{t0}")
    g.A(f"v_mov_b32 v{t2}, 0")
    g.A(f"v_cndmask_b32 v{t0}, v{t0}, v{t1}, vcc")
    g.A(f"v_mov_b32 v{t1}, 256")
    g.A(f"v_cndmask_b32 v{t2}, v{t2}, v{t1}, vcc")
    g.A(f"v_lshl_add_u32 v{base}, v{t0}, 9, v{t2}")
    g.A(f"v_and_b32 v{t0}, 15, v{t0}"); g.A(f"v_lshl_add_u32 v{base}, v{t0}, 4, v{base}")
    g.A(f"v_lshrrev_b32 v{t0}, 5, v{L}"); g.A(f"v_lshl_add_u32 v{base}, v{t0}, 3, v{base}")
    g.A(f"v_add_u32 v{base}, {OB}, v{base}")
    for blk in range(4):
        for i in range(4):
            a = A_O + 16*blk + 4*i; r = V_S[0] + 4*((blk*4+i) % 4); ad = V_TMP + 4 + ((blk*4+i) % 2)
            for j in range(4): g.A(f"v_accvgpr_read_b32 v{r+j}, a{a+j}")
            g.A(f"v_xor_b32 v{ad}, {(4*blk+i) << 4}, v{base}")
            for j in range(4): g.A(f"v_mul_f32 v{r+j}, v{r+j}, v{V_L}")
            g.A(f"v_cvt_pk_bf16_f32 v{r}, v{r}, v{r+1}"); g.A(f"v_cvt_pk_bf16_f32 v{r+1}, v{r+2}, v{r+3}")
            g.lds(f"ds_write_b64 v{ad}, {vr(r,2)}", "ow")
    g.wait_lg0()

def p2_idle(g, o):
    if o.roles == "all4":
        g.C("==== P2: wave 3 only keeps the barrier count")
        g.A(f"s_mov_b32 s{S_CNT}, 33")
        g.label("L_idle_loop")
        g.A("s_barrier")
        g.A(f"s_sub_u32 s{S_CNT}, s{S_CNT}, 1"); g.A(f"s_cmp_lg_u32 s{S_CNT}, 0"); g.A("s_cbranch_scc1 L_idle_loop")
        return
    g.C("==== P2: wave 3 streams K")
    g.vm = []
    full_tile_regs(g, "K")
    g.A(f"s_mov_b32 s{S_KOFF}, {4*8192}")
    full_tile(g, o, "K", 4, "K4"); full_tile(g, o, "K", 5, "K5")
    g.A(f"s_mov_b32 s{S_CNT}, 4")
    g.label("L_kld_loop")
    for t in range(6):
        g.A("s_waitcnt vmcnt(24)"); g.A("s_barrier")
        if not o.x_nodma: full_tile(g, o, "K", t+6, f"K{t+6}")
    g.A(f"s_sub_u32 s{S_CNT}, s{S_CNT}, 1"); g.A(f"s_cmp_lg_u32 s{S_CNT}, 0"); g.A("s_cbranch_scc1 L_kld_loop")
    g.vm = []
    for t in range(26, 30): g.vm += [f"K{t}"]*8
    for t in range(24, 32):
        if t + 2 < 32: g.wait_vm(f"K{t+2}")
        g.A("s_barrier")
        if t + 6 < 32: full_tile(g, o, "K", t+6, f"K{t+6}")
    g.A("s_barrier")

def p3_compute(g, o):
    g.C("==== P3: partial output projection")
    L = V_LANE; t0, t1, t2, t3 = V_ACC3, V_ACC3+1, V_ACC3+2, V_ACC3+3
    for s in range(4): select_by_wave(g, S_WOA + s, [WO_ADDR[s][w] for w in range(4)])
    g.A(f"v_lshrrev_b32 v{t0}, 4, v{L}"); g.A(f"v_and_b32 v{t1}, 15, v{L}")
    g.A(f"v_xor_b32 v{t2}, v{t0}, v{t1}"); g.A(f"v_lshlrev_b32 v{t2}, 4, v{t2}")
    g.A(f"v_lshl_add_u32 v{V_OR}, v{t1}, 9, v{t2}"); g.A(f"v_add_u32 v{V_OR}, {OB}, v{V_OR}")
    g.A(f"v_bfe_u32 v{t1}, v{L}, 2, 2")
    g.A(f"v_and_b32 v{t2}, 1, v{t0}"); g.A(f"v_lshl_or_b32 v{t2}, v{t2}, 2, v{t1}"); g.A(f"v_lshlrev_b32 v{t2}, 5, v{t2}")
    g.A(f"v_lshl_add_u32 v{t3}, v{t0}, 3, v{t1}"); g.A(f"v_lshl_add_u32 v{t2}, v{t3}, 8, v{t2}")
    g.A(f"v_and_b32 v{t3}, 3, v{L}"); g.A(f"v_lshl_add_u32 v{t2}, v{t3}, 3, v{t2}")
    g.A(f"v_add_u32 v{t2}, s{S_WOA}, v{t2}")
    for cb in range(8): g.A(f"v_xor_b32 v{V_WOR+cb}, {cb << 5}, v{t2}")
    g.A("s_barrier")
    stamp(g, o, 5)
    srot = S_B if o.rot else S_CNT
    if not o.rot: g.A(f"s_mov_b32 s{S_CNT}, 0")
    def b_reads(i):
        vt = V_OT + i % 2
        g.A(f"s_add_u32 s{S_T0}, s{srot}, {i}"); g.A(f"s_and_b32 s{S_T0}, s{S_T0}, 7"); g.A(f"s_lshl_b32 s{S_T0}, s{S_T0}, 6")
        g.A(f"v_xor_b32 v{vt}, s{S_T0}, v{V_OR}")
        for rb in range(3): g.lds(f"ds_read_b128 {ar(A_B3[i%2]+4*rb,4)}, v{vt} offset:{rb*8192}", f"B{i}")
    def a_read(i, cb, u):
        g.lds(f"ds_read_b64_tr_b16 {ar(A_A3+4*cb+2*u,2)}, v{V_WOR+cb} offset:{u*1024}", f"A{i}_{cb}")
    def a_move(i, cb):
        g.A(f"v_add_u32 v{V_WOR+cb}, s{S_T1}, v{V_WOR+cb}")
    b_reads(0)
    for cb in range(8):
        for u in range(2): a_read(0, cb, u)
    for i in range(8):
        nxt = i + 1 < 8
        if i > 0: g.A("s_barrier")
        if nxt:
            g.A(f"s_sub_u32 s{S_T1}, s{S_WOA + (i+1) % 4}, s{S_WOA + i % 4}")
            b_reads(i + 1)
        for cb in range(8):
            g.wait_lg([f"A{i}_{cb}", f"B{i}"])
            for rb in range(3):
                acc = vr(V_ACC3 + (cb*3 + rb)*4, 4)
                c = "0" if i == 0 else acc
                g.A(f"v_mfma_f32_16x16x32_bf16 {acc}, {ar(A_A3+4*cb,4)}, {ar(A_B3[i%2]+4*rb,4)}, {c}")
                if nxt and rb == 0: a_move(i + 1, cb)
                if nxt and cb >= 1 and rb >= 1: a_read(i + 1, cb - 1, rb - 1)
        if nxt:
            for u in range(2): a_read(i + 1, 7, u)
    stamp(g, o, 6)
    g.A("s_nop 7")
    t0 = 13
    g.A(f"v_lshlrev_b32 v{t0}, 4, v{L}")
    g.A(f"s_mul_i32 s{S_T0}, s{S_W}, 12288")
    for rb in range(3):
        if rb: g.A(f"s_add_u32 s{S_T0}, s{S_T0}, 4096")
        for cbp in range(4):
            a0 = V_ACC3 + ((2*cbp)*3 + rb)*4; a1 = V_ACC3 + ((2*cbp+1)*3 + rb)*4
            d = 4 + 4*((rb*4+cbp) % 2)
            g.A(f"v_cvt_pk_bf16_f32 v{d}, v{a0}, v{a0+1}"); g.A(f"v_cvt_pk_bf16_f32 v{d+1}, v{a0+2}, v{a0+3}")
            g.A(f"v_cvt_pk_bf16_f32 v{d+2}, v{a1}, v{a1+1}"); g.A(f"v_cvt_pk_bf16_f32 v{d+3}, v{a1+2}, v{a1+3}")
            pol = f" {o.pol_st}" if o.pol_st else ""
            g.vmem(f"buffer_store_dwordx4 {vr(d,4)}, v{t0}, s[{SRD_P}:{SRD_P+3}], s{S_T0} offen offset:{cbp*1024}{pol}", "st")
    if o.stamps:
        g.wait_vm0()
        stamp(g, o, 7)
        g.A(f"s_cmp_lg_u32 s{S_W}, 0"); g.A("s_cbranch_scc1 L_after_stamps")
        g.A(f"s_add_u32 s28, s52, 0x1000000"); g.A("s_addc_u32 s29, s53, 0"); g.A("s_and_b32 s29, s29, 0xffff")
        g.A("s_mov_b32 s30, 0x10000"); g.A("s_mov_b32 s31, 0x20000")
        for k in range(16): g.A(f"v_mov_b32 v{16+k}, s{S_STAMP+k}")
        g.A(f"s_lshl_b32 s{S_T0}, s2, 6"); g.A(f"v_mov_b32 v{t0}, s{S_T0}")
        g.A(f"v_cmp_eq_u32 vcc, 0, v{L}"); g.A(f"s_and_saveexec_b64 s[{S_SAVE}:{S_SAVE+1}], vcc")
        for k in range(4): g.A(f"buffer_store_dwordx4 v[{16+4*k}:{19+4*k}], v{t0}, s[28:31], 0 offen offset:{16*k}")
        g.A(f"s_mov_b64 exec, s[{S_SAVE}:{S_SAVE+1}]")
        g.A("s_waitcnt vmcnt(0)")
        g.label("L_after_stamps")

def k1(g, o):
    header(g, K1)
    setup(g, o)
    g.A(f"s_cmp_ge_u32 s{S_W}, 4"); g.A("s_cbranch_scc1 L_loader")
    p1_compute(g, o)
    g.A(f"s_cmp_eq_u32 s{S_W}, 3"); g.A("s_cbranch_scc1 L_idle")
    p2_compute(g, o)
    g.A("s_branch L_p3")
    g.label("L_idle")
    p2_idle(g, o)
    g.label("L_p3")
    g.lg = []; g.vm = []
    p3_compute(g, o)
    g.label("L_k1_end")
    g.A("s_endpgm")
    g.label("L_loader")
    g.lg = []; g.vm = []
    loader(g, o)
    for par in range(2): rescale_sub(g, par)
    for t in [0, 1, 2, 3, 4, 5, 6, 31]: rare_stub(g, t)

def k2(g, o):
    header(g, K2)
    g.A("s_cmp_ge_u32 s2, 256"); g.A("s_cbranch_scc1 L_k2_end")
    g.A("s_load_dwordx2 s[4:5], s[0:1], 96"); g.A("s_load_dwordx2 s[6:7], s[0:1], 80")
    g.A("v_and_b32 v1, 63, v0"); g.A("v_lshrrev_b32 v2, 6, v0")
    g.A("s_lshr_b32 s20, s2, 4")
    g.A("v_readfirstlane_b32 s21, v2")
    g.A("s_and_b32 s22, s2, 15"); g.A("s_mul_i32 s22, s22, 3")
    g.A("s_add_u32 s22, s22, s21")
    g.A("s_mul_i32 s23, s20, 786432")
    g.A("s_lshl_b32 s24, s22, 10"); g.A("s_add_u32 s23, s23, s24")
    g.A("v_lshlrev_b32 v2, 4, v1")
    g.A("s_waitcnt lgkmcnt(0)")
    srd(g, 8, 4, 5, None, 256*49152)
    srd(g, 12, 6, 7, None, 786432)
    for q in range(16):
        g.vmem(f"buffer_load_dwordx4 v[{16+4*q}:{19+4*q}], v2, s[8:11], s23 offen", f"p{q}")
        if q < 15: g.A("s_add_u32 s23, s23, 49152")
    g.A("s_mul_i32 s24, s22, 43"); g.A("s_lshr_b32 s24, s24, 9")
    g.A("s_mul_i32 s25, s24, 12"); g.A("s_sub_u32 s25, s22, s25")
    g.A("s_lshr_b32 s26, s25, 2"); g.A("s_and_b32 s25, s25, 3")
    g.A("s_and_b32 s27, s20, 7"); g.A("s_mul_i32 s27, s27, 98304")
    g.A("s_lshr_b32 s28, s20, 3"); g.A("s_lshl_b32 s28, s28, 10"); g.A("s_add_u32 s27, s27, s28")
    g.A("s_lshl_b32 s28, s26, 15"); g.A("s_add_u32 s27, s27, s28")
    g.A("s_lshl_b32 s28, s24, 8"); g.A("s_add_u32 s27, s27, s28")
    g.A("s_lshl_b32 s28, s25, 6"); g.A("s_add_u32 s27, s27, s28")
    g.A("v_and_b32 v3, 15, v1"); g.A("v_lshrrev_b32 v4, 4, v1")
    g.A("v_lshlrev_b32 v3, 11, v3"); g.A("v_lshl_add_u32 v3, v4, 3, v3")
    for q in range(16):
        g.wait_vm(f"p{q}")
        for j in range(4):
            src = 16 + 4*q + j
            if q == 0:
                g.A(f"v_lshlrev_b32 v{8+2*j}, 16, v{src}"); g.A(f"v_and_b32 v{9+2*j}, 0xffff0000, v{src}")
            else:
                g.A(f"v_lshlrev_b32 v5, 16, v{src}"); g.A(f"v_and_b32 v6, 0xffff0000, v{src}")
                g.A(f"v_add_f32 v{8+2*j}, v{8+2*j}, v5"); g.A(f"v_add_f32 v{9+2*j}, v{9+2*j}, v6")
    for j in range(4): g.A(f"v_cvt_pk_bf16_f32 v{16+j}, v{8+2*j}, v{9+2*j}")
    g.A("buffer_store_dwordx2 v[16:17], v3, s[12:15], s27 offen")
    g.A("buffer_store_dwordx2 v[18:19], v3, s[12:15], s27 offen offset:32")
    g.label("L_k2_end")
    g.A("s_endpgm")

def build(o):
    g = G()
    g.A(f"; @launch kernel={K1} grid=(256,1,1) block=(512,1,1) lds=163840")
    g.A(f"; @launch kernel={K2} grid=(256,1,1) block=(192,1,1) lds=0")
    g.A('.amdgcn_target "amdgcn-amd-amdhsa--gfx950"')
    k1(g, o)
    g2 = G(); k2(g2, o); g.L += g2.L
    descriptor(g, K1, 256, ACC_OFF)
    descriptor(g, K2, 96, 96, 40)
    return g

OPT = None
if __name__ == "__main__":
    o = Opt(); OPT = o
    for a in sys.argv[2:]:
        k, v = a.split("=", 1)
        setattr(o, k, {"True": True, "False": False}.get(v, v))
    g = build(o)
    probs = check(g.L)
    for p in probs[:5]: print("HAZARD", p)
    open(sys.argv[1], "w").write(g.text())
    print("lines", len(g.L))
```

```python
import sys, math, struct
from asmlib import G, check
from sched import schedule

PREFIX = "concat_heads__gqa_block_cached__gqa_block_cached__near_ridge"
K1 = PREFIX + "_kernel"
K2 = PREFIX + "_red_kernel"

VB = 0
KB = 65536
XB = 114688
QB = XB
OB = 139264
WQB = 16384
NS = 6
def kslot(i): return KB + (NS - 1 - i % NS) * 8192
def vslot(i): return VB + (i % NS) * 8192
WO_ADDR = [[49152, 57344, 114688, 122880],
           [131072, kslot(26), kslot(27), kslot(28)],
           [vslot(26), kslot(29), vslot(27), kslot(30)],
           [vslot(28), kslot(31), vslot(29), vslot(30)]]

CSCALE = math.log2(math.e) / math.sqrt(128.0)
def fbits(x): return struct.unpack("<I", struct.pack("<f", x))[0]
THR = float(2 ** 20)

S_W = 3
SRD_X, SRD_WQ, SRD_K, SRD_V, SRD_WO, SRD_P = 4, 8, 12, 16, 20, 24
S_HKV, S_HALF, S_B, S_BR = 54, 55, 56, 57
S_S0 = 58
S_RING = 59
S_T0, S_T1, S_T2, S_T3 = 60, 61, 62, 63
S_CNT = 64
S_KOFF, S_VOFF = 65, 66
S_THR, S_C = 67, 68
S_LD2K = 69
S_RET = 70
S_STAMP = 72
S_WOA = 88
S_BB, S_HP = 92, 93
S_FIRST = 94
FLAGB = 14 << 20
S_SAVE = 96

ACC_OFF = 112
V_LANE = 1
V_XR, V_XT = 2, 3
V_WR = 5
V_ACC1 = 32
V_S = [32, 48]; V_P = [64, 72]; V_NEGM = 80
V_E = 2
V_L, V_TS = 6, 7
V_T = 8
V_KA = 12
V_VA = 20
V_TMP = 24
V_Q_HI = 96
A_O, A_K, A_V, A_Q = 0, 64, 96, 128
A_A1 = [64, 80]; A_B1 = [96, 108]
V_WOR = 2
V_OR, V_OT = 10, 11
V_ACC3 = 16
A_A3 = 0; A_B3 = [32, 44]
V_FT = 24
V_XD = 2; V_WD = 4; V_KE0, V_KE1, V_VE = 8, 9, 10; V_WOD = 12; V_LT = 16

def vr(b, n=1): return f"v{b}" if n == 1 else f"v[{b}:{b+n-1}]"
def ar(b, n=1): return f"a{b}" if n == 1 else f"a[{b}:{b+n-1}]"
def qreg(s): return ar(A_Q + 4*s, 4) if s < 4 else vr(V_Q_HI + 4*(s-4), 4)

class Opt:
    nt_kv = "nt"; pol_w = ""; pol_x = ""; pol_st = "sc0 sc1"
    stamps = False; rot = True; fused = False; extra_empty = 0
    roles = "37"; sleep = 1; dbgwg = 37; cap_lo = 24; cap_hi = 24; x_nobar = False; x_nok = False; x_nov = False; x_novalu = False; x_nomfma = False; x_nodma = False

def stamp(g, o, idx):
    if o.stamps:
        g.A("s_memrealtime s[98:99]"); g.A("s_memtime s[100:101]")
        g.A("s_waitcnt lgkmcnt(0)"); g.lg = []
        g.A(f"s_mov_b32 s{S_STAMP+idx}, s98"); g.A(f"s_mov_b32 s{S_STAMP+8+idx}, s100")

def header(g, name):
    g.A(".text"); g.A(f".globl {name}"); g.A(".p2align 8"); g.A(f".type {name},@function"); g.label(name)

def descriptor(g, name, vgpr, accum, sgpr=102):
    g.A('.section .rodata,"a"'); g.A(".p2align 6"); g.A(f".amdhsa_kernel {name}")
    g.A(f".amdhsa_next_free_vgpr {vgpr}"); g.A(f".amdhsa_next_free_sgpr {sgpr}"); g.A(f".amdhsa_accum_offset {accum}")
    g.A(".amdhsa_group_segment_fixed_size 0"); g.A(".amdhsa_kernarg_size 104"); g.A(".amdhsa_user_sgpr_count 2")
    g.A(".amdhsa_user_sgpr_kernarg_segment_ptr 1"); g.A(".amdhsa_system_sgpr_workgroup_id_x 1"); g.A(".end_amdhsa_kernel")

def srd(g, d, lo, hi, off_s, nrec):
    if off_s is None:
        g.A(f"s_mov_b32 s{d}, s{lo}"); g.A(f"s_and_b32 s{d+1}, s{hi}, 0xffff")
    else:
        g.A(f"s_add_u32 s{d}, s{lo}, {off_s}"); g.A(f"s_addc_u32 s{d+1}, s{hi}, 0"); g.A(f"s_and_b32 s{d+1}, s{d+1}, 0xffff")
    g.A(f"s_mov_b32 s{d+2}, {nrec}"); g.A(f"s_mov_b32 s{d+3}, 0x20000")

def dma(g, voff, srd_, soff, imm, pol, tag):
    off = f" offset:{imm}" if imm else ""
    pol = f" {pol}" if pol else ""
    g.vmem(f"buffer_load_dwordx4 v{voff}, s[{srd_}:{srd_+3}], {soff} offen{off}{pol} lds", tag)

def weave(main, fill):
    n = len(main); m = len(fill); k = 0
    for i, f in enumerate(main):
        f()
        tgt = (i + 1) * m // n
        while k < tgt:
            fill[k](); k += 1

def select_by_wave(g, dst, vals):
    g.A(f"s_mov_b32 s{dst}, {vals[0]}")
    for k in range(1, len(vals)):
        g.A(f"s_cmp_eq_u32 s{S_W}, {k}"); g.A(f"s_cselect_b32 s{dst}, {vals[k]}, s{dst}")

def setup(g, o):
    g.A("s_cmp_ge_u32 s2, 256"); g.A("s_cbranch_scc1 L_k1_end")
    stamp(g, o, 0)
    g.A("s_load_dwordx16 s[32:47], s[0:1], 0")
    g.A("s_load_dwordx4 s[48:51], s[0:1], 64")
    g.A("s_load_dwordx2 s[52:53], s[0:1], 96")
    if o.fused: g.A("s_load_dwordx4 s[28:31], s[0:1], 80")
    g.A(f"v_and_b32 v{V_LANE}, 63, v0")
    g.A("v_lshrrev_b32 v2, 6, v0")
    g.A(f"s_and_b32 s{S_HKV}, s2, 7")
    g.A(f"v_readfirstlane_b32 s{S_W}, v2")
    g.A(f"s_lshr_b32 s{S_T0}, s2, 3")
    g.A(f"s_and_b32 s{S_HALF}, s{S_T0}, 1")
    g.A(f"s_lshr_b32 s{S_B}, s{S_T0}, 1"); g.A(f"s_and_b32 s{S_B}, s{S_B}, 7")
    g.A(f"s_lshr_b32 s{S_BR}, s{S_T0}, 4")
    g.A(f"s_lshl_b32 s{S_HP}, s{S_HKV}, 1"); g.A(f"s_add_u32 s{S_HP}, s{S_HP}, s{S_HALF}")
    g.A(f"s_lshl_b32 s{S_BB}, s{S_BR}, 3"); g.A(f"s_add_u32 s{S_BB}, s{S_BB}, s{S_B}")
    g.A(f"s_mov_b32 s{S_THR}, {hex(fbits(THR))}")
    g.A(f"s_mov_b32 s{S_C}, {hex(fbits(CSCALE))}")
    if o.rot: g.A(f"s_lshl_b32 s{S_S0}, s{S_B}, 1")
    else: g.A(f"s_mov_b32 s{S_S0}, 0")
    g.A("s_waitcnt lgkmcnt(0)")
    g.A(f"s_cmp_eq_u32 s{S_BR}, 1")
    for i in range(10):
        g.A(f"s_cselect_b32 s{32+i}, s{42+i}, s{32+i}")
    g.A(f"s_mul_i32 s{S_T0}, s{S_B}, 49152"); srd(g, SRD_X, 32, 33, f"s{S_T0}", 49152)
    g.A(f"s_lshl_b32 s{S_T1}, s{S_HP}, 9")
    srd(g, SRD_WQ, 38, 39, f"s{S_T1}", 0)
    g.A(f"s_sub_u32 s{SRD_WQ+2}, 0x400000, s{S_T1}")
    g.A(f"s_lshl_b32 s{S_T0}, s{S_B}, 3"); g.A(f"s_add_u32 s{S_T0}, s{S_T0}, s{S_HKV}"); g.A(f"s_lshl_b32 s{S_T0}, s{S_T0}, 18")
    srd(g, SRD_K, 34, 35, f"s{S_T0}", 262144); srd(g, SRD_V, 36, 37, f"s{S_T0}", 262144)
    g.A(f"s_lshl_b32 s{S_T1}, s{S_HP}, 18")
    srd(g, SRD_WO, 40, 41, f"s{S_T1}", 262144)
    g.A(f"s_lshl_b32 s{S_T1}, s{S_BB}, 4"); g.A(f"s_add_u32 s{S_T1}, s{S_T1}, s{S_HP}"); g.A(f"s_mul_i32 s{S_T1}, s{S_T1}, 49152")
    srd(g, SRD_P, 52, 53, f"s{S_T1}", 49152)
    if o.fused:
        g.A("s_mov_b32 s34, s28"); g.A("s_mov_b32 s35, s29")
        g.A("s_mov_b32 s32, s30"); g.A("s_mov_b32 s33, s31")

EARLY = [("K", 0), ("K", 1), ("V", 0), ("K", 2), ("V", 1), ("K", 3)]

def full_tile_regs(g, kind):
    L = V_LANE; t0, t1 = V_FT+4, V_FT+5
    g.A(f"v_lshrrev_b32 v{t0}, 4, v{L}"); g.A(f"v_and_b32 v{t1}, 15, v{L}")
    for e in range(4 if kind == "K" else 1):
        d = V_FT + e
        if kind == "K": g.A(f"v_add_u32 v{d}, {4*e}, v{t0}")
        else: g.A(f"v_lshlrev_b32 v{d}, 2, v{t0}")
        g.A(f"v_xor_b32 v{d}, v{d}, v{t1}"); g.A(f"v_lshlrev_b32 v{d}, 4, v{d}"); g.A(f"v_lshl_add_u32 v{d}, v{t0}, 8, v{d}")

def full_tile(g, o, kind, t, tag):
    so = S_KOFF if kind == "K" else S_VOFF
    base = kslot(t) if kind == "K" else vslot(t)
    for hf in range(2):
        g.A(f"s_mov_b32 m0, {base + hf*4096}"); g.A("s_nop 0")
        for e in range(4):
            dma(g, V_FT + (e if kind == "K" else 0), SRD_K if kind == "K" else SRD_V, f"s{so}", 1024*e, o.nt_kv, tag)
        g.A(f"s_add_u32 s{so}, s{so}, 4096")

def loader(g, o):
    g.C("================ loader waves")
    L = V_LANE; t0, t1, t2, t3 = V_LT, V_LT+1, V_LT+2, V_LT+3
    g.A(f"s_sub_u32 s{S_W}, s{S_W}, 4")
    g.A(f"v_lshrrev_b32 v{t0}, 4, v{L}"); g.A(f"v_and_b32 v{t1}, 15, v{L}")
    g.A(f"s_lshl_b32 s{S_T0}, s{S_W}, 2")
    g.A(f"v_add_u32 v{t2}, s{S_T0}, v{t0}"); g.A(f"v_xor_b32 v{t2}, v{t2}, v{t1}"); g.A(f"v_lshlrev_b32 v{t2}, 4, v{t2}")
    g.A(f"v_lshl_add_u32 v{V_XD}, v{t0}, 10, v{t2}")
    g.A(f"s_lshl_b32 s{S_T2}, s{S_W}, 12"); g.A(f"s_lshl_b32 s{S_T3}, s{S_W}, 10")
    def x_piece(kq, i3):
        g.A(f"s_add_u32 m0, s{S_T3}, {XB + kq*12288 + i3*4096}")
        g.A(f"s_add_u32 s{S_T0}, s{S_T2}, {i3*16384 + kq*256}")
        dma(g, V_XD, SRD_X, f"s{S_T0}", 0, o.pol_x, "x")
    for kq in range(4):
        for i3 in range(3): x_piece(kq, i3)
    g.A(f"v_lshrrev_b32 v{t2}, 3, v{L}"); g.A(f"v_and_b32 v{t3}, 7, v{L}")
    g.A(f"s_lshl_b32 s{S_T0}, s{S_W}, 7")
    for jj in range(4):
        d = V_WD + jj
        g.A(f"v_and_b32 v{d}, 2, v{t2}")
        if jj & 1: g.A(f"v_or_b32 v{d}, 4, v{d}")
        g.A(f"v_xor_b32 v{d}, v{d}, v{t3}"); g.A(f"v_lshlrev_b32 v{d}, 4, v{d}")
        g.A(f"v_lshl_add_u32 v{d}, v{t2}, 13, v{d}")
        g.A(f"v_add_u32 v{d}, s{S_T0}, v{d}")
        if jj: g.A(f"v_add_u32 v{d}, {jj*64512}, v{d}")
    g.A(f"s_lshl_b32 s{S_RING}, s{S_W}, 14"); g.A(f"s_add_u32 s{S_RING}, s{S_RING}, {WQB}")
    def wq_step(i):
        g.A(f"s_add_u32 s{S_T2}, s{S_S0}, {i}"); g.A(f"s_and_b32 s{S_T2}, s{S_T2}, 15")
        g.A(f"s_add_u32 m0, s{S_RING}, {(i%4)*4096}")
        g.A(f"s_lshl_b32 s{S_T2}, s{S_T2}, 18")
        for jj in range(4): dma(g, V_WD + jj, SRD_WQ, f"s{S_T2}", 1024*jj, o.pol_w, f"wq{i}")
    for i in range(3): wq_step(i)
    g.A(f"s_lshl_b32 s{S_LD2K}, s{S_W}, 11")
    g.A(f"v_lshlrev_b32 v{t2}, 8, v{t0}"); g.A(f"v_add_u32 v{t2}, s{S_LD2K}, v{t2}")
    g.A(f"s_lshl_b32 s{S_T1}, s{S_W}, 3"); g.A(f"s_and_b32 s{S_T1}, s{S_T1}, 15")
    for e in range(2):
        d = V_KE0 + e
        g.A(f"v_add_u32 v{d}, s{S_T1}, v{t0}")
        if e: g.A(f"v_add_u32 v{d}, 4, v{d}")
        g.A(f"v_xor_b32 v{d}, v{d}, v{t1}"); g.A(f"v_lshl_add_u32 v{d}, v{d}, 4, v{t2}")
    g.A(f"v_lshlrev_b32 v{V_VE}, 2, v{t0}"); g.A(f"v_xor_b32 v{V_VE}, v{V_VE}, v{t1}")
    g.A(f"v_lshl_add_u32 v{V_VE}, v{V_VE}, 4, v{t2}")
    g.A(f"s_lshl_b32 s{S_T0}, s{S_W}, 8")
    for jj in range(4):
        d = V_WOD + jj
        g.A(f"v_lshlrev_b32 v{d}, 1, v{t0}")
        if jj >> 1: g.A(f"v_or_b32 v{d}, 8, v{d}")
        g.A(f"v_xor_b32 v{d}, v{d}, v{t1}"); g.A(f"v_lshlrev_b32 v{d}, 4, v{d}")
        g.A(f"v_lshl_add_u32 v{d}, v{t0}, 10, v{d}"); g.A(f"v_add_u32 v{d}, s{S_T0}, v{d}")
        if jj: g.A(f"v_add_u32 v{d}, {jj*3072}, v{d}")
    for s in range(4): select_by_wave(g, S_WOA + s, [WO_ADDR[s][w] for w in range(4)])
    g.A(f"s_mov_b32 s{S_KOFF}, 0"); g.A(f"s_mov_b32 s{S_VOFF}, 0")
    def kv(kind, t, tag):
        so = S_KOFF if kind == "K" else S_VOFF
        g.A(f"s_add_u32 m0, s{S_LD2K}, {kslot(t) if kind == 'K' else vslot(t)}")
        g.A("s_nop 0")
        if kind == "K":
            dma(g, V_KE0, SRD_K, f"s{so}", 0, o.nt_kv, tag); dma(g, V_KE1, SRD_K, f"s{so}", 1024, o.nt_kv, tag)
        else:
            dma(g, V_VE, SRD_V, f"s{so}", 0, o.nt_kv, tag); dma(g, V_VE, SRD_V, f"s{so}", 1024, o.nt_kv, tag)
        g.A(f"s_add_u32 s{so}, s{so}, 8192")
    def wo_step(i):
        g.A(f"s_add_u32 s{S_T2}, s{S_B if o.rot else S_CNT}, {i}"); g.A(f"s_and_b32 s{S_T2}, s{S_T2}, 7")
        g.A(f"s_mov_b32 m0, s{S_WOA + i % 4}")
        g.A(f"s_lshl_b32 s{S_T2}, s{S_T2}, 15")
        for jj in range(4): dma(g, V_WOD + jj, SRD_WO, f"s{S_T2}", 1024*jj, o.pol_w, f"wo{i}")
        g.A(f"s_add_u32 m0, s{S_WOA + i % 4}, 4096"); g.A(f"s_add_u32 s{S_T2}, s{S_T2}, 16384")
        for jj in range(4): dma(g, V_WOD + jj, SRD_WO, f"s{S_T2}", 1024*jj, o.pol_w, f"wo{i}")
    for i in range(16):
        if i == 0: g.wait_vm(["x", "wq0", "wq1"])
        elif i + 1 < 16: g.wait_vm(f"wq{i+1}")
        g.A("s_barrier")
        if i + 3 < 16: wq_step(i + 3)
        else:
            for kind, t in EARLY[(i-13)*2:(i-13)*2+2]: kv(kind, t, f"{kind}{t}")
    g.A("s_barrier")
    g.wait_vm(["K0", "K1"]); g.A("s_barrier")
    def tail_p3():
        g.A("s_barrier")
        wo_step(3)
        g.wait_vm(["wo0", "wo1"]); g.A("s_barrier")
        for i in range(1, 8):
            if i + 1 < 8: g.wait_vm(f"wo{i+1}")
            g.A("s_barrier")
            if i + 3 < 8: wo_step(i + 3)
        if o.fused: g.A("s_branch L_ld_tail")
        else: g.A("s_endpgm")
    if o.roles == "all4":
        for kind, t in [("K", 4), ("V", 2), ("K", 5), ("V", 3)]: kv(kind, t, f"{kind}{t}")
        def it(t, wait=None, k=True, v=True):
            g.C(f"loader iteration {t}")
            if wait is not None: g.A(f"s_waitcnt vmcnt({wait})")
            else: g.wait_vm([f"K{t+2}", f"V{t}"])
            g.A("s_barrier")
            if o.x_nodma and t < 24: return
            if k: kv("K", t+6, f"K{t+6}")
            if v: kv("V", t+4, f"V{t+4}")
        g.A(f"s_mov_b32 s{S_CNT}, 4")
        g.label("L_ld_loop")
        for t in range(6): it(t, 12)
        g.A(f"s_sub_u32 s{S_CNT}, s{S_CNT}, 1"); g.A(f"s_cmp_lg_u32 s{S_CNT}, 0"); g.A("s_cbranch_scc1 L_ld_loop")
        g.vm = []
        for t in range(20, 24): g.vm += [f"K{t+6}"]*2 + [f"V{t+4}"]*2
        it(24); it(25); it(26, k=False); it(27, k=False)
        wo_step(0)
        it(28, k=False, v=False); wo_step(1)
        it(29, k=False, v=False)
        it(30, k=False, v=False); wo_step(2)
        it(31, k=False, v=False)
        tail_p3()
        return
    g.A(f"s_cmp_eq_u32 s{S_W}, 3"); g.A("s_cbranch_scc1 L_vloader")
    vm_early = list(g.vm)
    g.wait_vm(["V0", "K2"]); g.A("s_barrier")
    g.wait_vm(["V1", "K3"]); g.A("s_barrier")
    def idle(n, lab):
        g.A(f"s_mov_b32 s{S_CNT}, {n}")
        g.label(lab)
        g.A("s_barrier")
        g.A(f"s_sub_u32 s{S_CNT}, s{S_CNT}, 1"); g.A(f"s_cmp_lg_u32 s{S_CNT}, 0"); g.A(f"s_cbranch_scc1 {lab}")
    if not o.fused:
        idle(26, "L_ld_idle")
    else:
        V_FA, V_FD, V_RA, V_RD = 20, 21, 22, 23
        srd(g, 28, 32, 33, None, 256)
        srd(g, 36, 52, 53, None, FLAGB + 256*128)
        g.A(f"s_lshl_b32 s{S_T0}, s{S_BB}, 11"); g.A(f"s_add_u32 s{S_T0}, s{S_T0}, {FLAGB}")
        g.A(f"v_and_b32 v{V_FA}, 15, v{V_LANE}"); g.A(f"v_lshlrev_b32 v{V_FA}, 7, v{V_FA}"); g.A(f"v_add_u32 v{V_FA}, s{S_T0}, v{V_FA}")
        g.A(f"s_lshl_b32 s{S_T0}, s{S_BB}, 2"); g.A(f"v_mov_b32 v{V_RA}, s{S_T0}")
        g.A(f"s_or_b32 s{S_FIRST}, s{S_W}, s{S_HP}")
        g.A(f"s_cmp_lg_u32 s{S_FIRST}, 0"); g.A("s_cbranch_scc1 L_fl1")
        g.A(f"v_mov_b32 v{V_FD}, 0")
        g.A("s_mov_b64 exec, 0xffff")
        g.A(f"buffer_store_dword v{V_FD}, v{V_FA}, s[36:39], 0 offen sc1")
        g.A("s_mov_b64 exec, -1")
        g.label("L_fl1")
        idle(8, "L_ld_idle1")
        g.A(f"s_cmp_lg_u32 s{S_FIRST}, 0"); g.A("s_cbranch_scc1 L_fl2")
        g.A("s_waitcnt vmcnt(0)")
        g.A(f"v_mov_b32 v{V_FD}, 1")
        g.A("s_mov_b64 exec, 1")
        g.A(f"buffer_store_dword v{V_FD}, v{V_RA}, s[28:31], 0 offen sc1")
        g.A("s_mov_b64 exec, -1")
        g.label("L_fl2")
        idle(10, "L_ld_idle2")
        g.A(f"s_cmp_lg_u32 s{S_W}, 0"); g.A("s_cbranch_scc1 L_fl3")
        g.A(f"buffer_load_dword v{V_RD}, v{V_RA}, s[28:31], 0 offen sc1")
        g.label("L_fl3")
        idle(8, "L_ld_idle3")
        g.A("s_waitcnt vmcnt(0)")
    def drain(vtags):
        wo_step(0)
        for t in range(28, 32):
            if vtags: g.wait_vm(f"V{t}")
            g.A("s_barrier")
            if t == 28: wo_step(1)
            if t == 30: wo_step(2)
        tail_p3()
    drain(False)
    g.label("L_vloader")
    g.vm = vm_early
    full_tile_regs(g, "V")
    g.A(f"s_mov_b32 s{S_VOFF}, {2*8192}")
    full_tile(g, o, "V", 2, "V2"); full_tile(g, o, "V", 3, "V3")
    g.wait_vm(["V0", "K2"])
    g.A(f"s_mov_b32 s{S_CNT}, 4")
    g.label("L_vld_loop")
    for t in range(6):
        g.A("s_waitcnt vmcnt(24)"); g.A("s_barrier")
        if not o.x_nodma: full_tile(g, o, "V", t+4, f"V{t+4}")
    g.A(f"s_sub_u32 s{S_CNT}, s{S_CNT}, 1"); g.A(f"s_cmp_lg_u32 s{S_CNT}, 0"); g.A("s_cbranch_scc1 L_vld_loop")
    g.vm = []
    for t in range(24, 28): g.vm += [f"V{t}"]*8
    for t in range(24, 28):
        g.wait_vm(f"V{t}"); g.A("s_barrier"); full_tile(g, o, "V", t+4, f"V{t+4}")
    drain(True)
    return

def loader_tail(g, o):
    V_FA, V_FD, V_RA, V_RD = 20, 21, 22, 23
    g.label("L_ld_tail")
    g.A(f"s_cmp_lg_u32 s{S_W}, 0"); g.A("s_cbranch_scc1 L_ld_tail1")
    g.A(f"s_mov_b32 s{S_CNT}, 0")
    g.label("L_rdy")
    g.A(f"v_readfirstlane_b32 s{S_T1}, v{V_RD}")
    g.A(f"s_add_u32 s{S_CNT}, s{S_CNT}, 1")
    g.A(f"s_cmp_lg_u32 s{S_T1}, 0"); g.A("s_cbranch_scc1 L_ld_tail1")
    g.A(f"s_cmp_ge_u32 s{S_CNT}, 0x40000"); g.A("s_cbranch_scc1 L_ld_tail1")
    g.A(f"buffer_load_dword v{V_RD}, v{V_RA}, s[28:31], 0 offen sc1")
    g.A("s_waitcnt vmcnt(0)")
    g.A("s_branch L_rdy")
    g.label("L_ld_tail1")
    g.A("s_barrier")
    g.A(f"s_cmp_lg_u32 s{S_W}, 0"); g.A("s_cbranch_scc1 L_ld_tail2")
    g.A(f"s_lshl_b32 s{S_T0}, s{S_BB}, 4"); g.A(f"s_add_u32 s{S_T0}, s{S_T0}, s{S_HP}"); g.A(f"s_lshl_b32 s{S_T0}, s{S_T0}, 7")
    g.A(f"s_add_u32 s{S_T0}, s{S_T0}, {FLAGB}")
    g.A(f"v_mov_b32 v2, s{S_T0}"); g.A("v_mov_b32 v3, 1")
    g.A("s_mov_b64 exec, 1")
    g.A("buffer_store_dword v3, v2, s[36:39], 0 offen sc1")
    g.A("s_mov_b64 exec, 0xffff")
    g.A(f"s_mov_b32 s{S_CNT}, 0")
    g.label("L_poll")
    g.A(f"buffer_load_dword v4, v{V_FA}, s[36:39], 0 offen sc1")
    g.A(f"s_add_u32 s{S_CNT}, s{S_CNT}, 1")
    g.A("s_waitcnt vmcnt(0)")
    g.A("v_cmp_eq_u32 vcc, 1, v4")
    g.A("s_cmp_eq_u64 vcc, exec"); g.A("s_cbranch_scc1 L_poll_done")
    g.A(f"s_cmp_ge_u32 s{S_CNT}, 0x40000"); g.A("s_cbranch_scc1 L_poll_done")
    if int(o.sleep): g.A(f"s_sleep {int(o.sleep)}")
    g.A("s_branch L_poll")
    g.label("L_poll_done")
    g.A("s_mov_b64 exec, -1")
    g.label("L_ld_tail2")
    g.A("s_barrier")
    g.A("s_endpgm")

def compute_tail(g, o):
    L = V_LANE
    g.C("==== reduction of the 16 partial slabs of this (branch, batch)")
    R, T = S_T2, S_T3
    g.A(f"s_mul_i32 s{R}, s{S_HP}, 3"); g.A(f"s_add_u32 s{R}, s{R}, s{S_W}")
    srd(g, 4, 52, 53, None, 256*49152)
    srd(g, 8, 34, 35, None, 786432)
    g.A(f"s_mul_i32 s12, s{S_BB}, 786432"); g.A(f"s_lshl_b32 s{T}, s{R}, 10"); g.A(f"s_add_u32 s12, s12, s{T}")
    g.A(f"s_mul_i32 s13, s{R}, 43"); g.A("s_lshr_b32 s13, s13, 9")
    g.A("s_mul_i32 s14, s13, 12"); g.A(f"s_sub_u32 s14, s{R}, s14")
    g.A("s_lshr_b32 s15, s14, 2"); g.A("s_and_b32 s14, s14, 3")
    g.A(f"s_mul_i32 s16, s{S_B}, 98304")
    g.A(f"s_lshl_b32 s17, s{S_BR}, 10"); g.A("s_add_u32 s16, s16, s17")
    g.A("s_lshl_b32 s17, s15, 15"); g.A("s_add_u32 s16, s16, s17")
    g.A("s_lshl_b32 s17, s13, 8"); g.A("s_add_u32 s16, s16, s17")
    g.A("s_lshl_b32 s17, s14, 6"); g.A("s_add_u32 s16, s16, s17")
    g.A(f"v_lshlrev_b32 v2, 4, v{L}")
    g.A(f"v_and_b32 v3, 15, v{L}"); g.A(f"v_lshrrev_b32 v4, 4, v{L}")
    g.A("v_lshlrev_b32 v3, 11, v3"); g.A("v_lshl_add_u32 v3, v4, 3, v3")
    g.A("s_waitcnt vmcnt(0)"); g.vm = []
    g.A("s_barrier")
    g.A("s_barrier")
    stamp(g, o, 7)
    g.A(f"s_cmp_ge_u32 s{S_W}, 3"); g.A("s_cbranch_scc1 L_red_done")
    for q in range(16):
        g.vmem(f"buffer_load_dwordx4 v[{16+4*q}:{19+4*q}], v2, s[4:7], s12 offen sc1", f"p{q}")
        if q < 15: g.A("s_add_u32 s12, s12, 49152")
    for q in range(16):
        g.wait_vm(f"p{q}")
        for j in range(4):
            src = 16 + 4*q + j
            if q == 0:
                g.A(f"v_lshlrev_b32 v{8+2*j}, 16, v{src}"); g.A(f"v_and_b32 v{9+2*j}, 0xffff0000, v{src}")
            else:
                g.A(f"v_lshlrev_b32 v5, 16, v{src}"); g.A(f"v_and_b32 v6, 0xffff0000, v{src}")
                g.A(f"v_add_f32 v{8+2*j}, v{8+2*j}, v5"); g.A(f"v_add_f32 v{9+2*j}, v{9+2*j}, v6")
    for j in range(4): g.A(f"v_cvt_pk_bf16_f32 v{16+j}, v{8+2*j}, v{9+2*j}")
    g.A("buffer_store_dwordx2 v[16:17], v3, s[8:11], s16 offen")
    g.A("buffer_store_dwordx2 v[18:19], v3, s[8:11], s16 offen offset:32")
    g.label("L_red_done")

def p1_compute(g, o):
    g.C("==== P1: Q projection")
    L = V_LANE; t0, t1, t2 = V_TMP, V_TMP+1, V_TMP+2
    for i in range(64): g.A(f"v_accvgpr_write_b32 a{A_O+i}, 0")
    g.A(f"v_lshrrev_b32 v{t0}, 4, v{L}"); g.A(f"v_and_b32 v{t1}, 15, v{L}")
    g.A(f"v_xor_b32 v{t2}, v{t0}, v{t1}"); g.A(f"v_lshlrev_b32 v{t2}, 4, v{t2}")
    g.A(f"v_lshl_add_u32 v{V_XR}, v{t1}, 8, v{t2}")
    g.A(f"s_lshl_b32 s{S_RING}, s{S_W}, 14"); g.A(f"s_add_u32 s{S_RING}, s{S_RING}, {WQB}")
    r_, cc, sw = V_TMP+4, V_TMP+5, V_TMP+6
    g.A(f"v_bfe_u32 v{r_}, v{L}, 2, 2"); g.A(f"v_and_b32 v{cc}, 3, v{L}")
    g.A(f"v_and_b32 v{sw}, 2, v{r_}"); g.A(f"v_and_b32 v{t2}, 1, v{t0}")
    g.A(f"v_lshl_or_b32 v{sw}, v{t2}, 2, v{sw}")
    g.A(f"v_lshrrev_b32 v{t2}, 1, v{cc}"); g.A(f"v_or_b32 v{sw}, v{sw}, v{t2}"); g.A(f"v_lshlrev_b32 v{sw}, 4, v{sw}")
    g.A(f"v_and_b32 v{t2}, 1, v{cc}"); g.A(f"v_lshl_add_u32 v{sw}, v{t2}, 3, v{sw}")
    g.A(f"v_lshl_add_u32 v{t2}, v{t0}, 3, v{r_}"); g.A(f"v_lshl_add_u32 v{sw}, v{t2}, 7, v{sw}")
    g.A(f"v_add_u32 v{sw}, s{S_RING}, v{sw}")
    for cb in range(4): g.A(f"v_xor_b32 v{V_WR+cb}, {cb << 5}, v{sw}")
    def reads(i):
        out = []; buf = i % 2; slot = i % 4; vt = V_XT + buf
        def addr():
            g.A(f"s_add_u32 s{S_T0}, s{S_S0}, {i}"); g.A(f"s_and_b32 s{S_T0}, s{S_T0}, 15")
            g.A(f"s_and_b32 s{S_T1}, s{S_T0}, 3"); g.A(f"s_lshl_b32 s{S_T1}, s{S_T1}, 6")
            g.A(f"s_lshr_b32 s{S_T0}, s{S_T0}, 2"); g.A(f"s_mul_i32 s{S_T0}, s{S_T0}, 12288"); g.A(f"s_add_u32 s{S_T0}, s{S_T0}, {XB}")
            g.A(f"v_xor_b32 v{vt}, s{S_T1}, v{V_XR}"); g.A(f"v_add_u32 v{vt}, s{S_T0}, v{vt}")
        out.append(addr)
        for cb in range(4):
            for u in range(2):
                out.append(lambda cb=cb, u=u: g.lds(
                    f"ds_read_b64_tr_b16 {ar(A_A1[buf]+4*cb+2*u,2)}, v{V_WR+cb} offset:{slot*4096+u*512}", f"f{i}"))
        for rb in range(3):
            out.append(lambda rb=rb: g.lds(f"ds_read_b128 {ar(A_B1[buf]+4*rb,4)}, v{vt} offset:{rb*4096}", f"f{i}"))
        return out
    for i in range(16):
        buf = i % 2
        g.A("s_barrier")
        if i == 0:
            stamp(g, o, 1)
            for f in reads(0): f()
        g.wait_lg(f"f{i}")
        mf = []
        for cb in range(4):
            for rb in range(3):
                acc = vr(V_ACC1 + (cb*3 + rb)*4, 4)
                c = "0" if i == 0 else acc
                mf.append(lambda acc=acc, c=c, cb=cb, rb=rb: g.A(
                    f"v_mfma_f32_16x16x32_bf16 {acc}, {ar(A_A1[buf]+4*cb,4)}, {ar(A_B1[buf]+4*rb,4)}, {c}"))
        weave(mf, reads(i + 1) if i + 1 < 16 else [])
    stamp(g, o, 2)
    base = V_TMP+3
    g.A(f"s_and_b32 s{S_T0}, s{S_W}, 1"); g.A(f"s_lshl_b32 s{S_T0}, s{S_T0}, 3")
    g.A(f"v_lshrrev_b32 v{t2}, 1, v{t0}")
    g.A(f"v_xor_b32 v{t2}, v{t2}, v{t1}"); g.A(f"v_xor_b32 v{t2}, s{S_T0}, v{t2}"); g.A(f"v_lshlrev_b32 v{t2}, 4, v{t2}")
    g.A(f"v_and_b32 v{t0}, 1, v{t0}"); g.A(f"v_lshl_add_u32 v{t2}, v{t0}, 3, v{t2}")
    g.A(f"s_lshr_b32 s{S_T0}, s{S_W}, 1"); g.A(f"s_mul_i32 s{S_T0}, s{S_T0}, {48*256}"); g.A(f"s_add_u32 s{S_T0}, s{S_T0}, {QB}")
    g.A(f"v_lshl_add_u32 v{base}, v{t1}, 8, v{t2}"); g.A(f"v_add_u32 v{base}, s{S_T0}, v{base}")
    g.A("s_barrier")
    for cb in range(4):
        g.A(f"v_xor_b32 v{t0}, {cb << 5}, v{base}")
        for rb in range(3):
            a = V_ACC1 + (cb*3 + rb)*4
            for j in range(4): g.A(f"v_mul_f32 v{a+j}, s{S_C}, v{a+j}")
            g.A(f"v_cvt_pk_bf16_f32 v{a}, v{a}, v{a+1}"); g.A(f"v_cvt_pk_bf16_f32 v{a+1}, v{a+2}, v{a+3}")
            g.lds(f"ds_write_b64 v{t0}, {vr(a,2)} offset:{rb*4096}", "qw")
    g.wait_lg0()
    g.A("s_barrier")
    stamp(g, o, 3)

def qk_mfma(g, s, dst, first_c):
    c = first_c if s == 0 else vr(dst, 16)
    g.A(f"v_mfma_f32_32x32x16_bf16 {vr(dst,16)}, {ar(A_K+4*s,4)}, {qreg(s)}, {c}")
def pv_mfma(g, s, blk, p):
    g.A(f"v_mfma_f32_32x32x16_bf16 {ar(A_O+16*blk,16)}, {ar(A_V+(s*4+blk)*4,4)}, {vr(p+4*s,4)}, {ar(A_O+16*blk,16)}")
def k_read(g, s, t):
    g.lds(f"ds_read_b128 {ar(A_K+4*s,4)}, v{V_KA+s} offset:{kslot(t)-KB}", "K")
def v_read(g, s, blk, u, t):
    g.lds(f"ds_read_b64_tr_b16 {ar(A_V+(s*4+blk)*4+2*u,2)}, v{V_VA+blk} offset:{vslot(t)-VB+4096*s+2048*u}", "V")

NTEMP = 8
V_ET = V_TMP
def p2_iter(g, t, do_qk=True, do_pv=True):
    o = OPT
    par = t % 2
    Scur, Snew, Pcur, Pprev = V_S[par], V_S[1-par], V_P[par], V_P[1-par]
    g.C(f"---- iteration {t}")
    gaps, left, load = schedule(do_qk, do_pv, cap_lo=int(o.cap_lo), cap_hi=int(o.cap_hi), ntemp=NTEMP)
    assert not left, left
    last_a = max(i for i, gp in enumerate(gaps) if ("A", 15) in gp)
    cmp_gap = min(last_a + 1, 15); br_gap = min(cmp_gap + 1, 15)
    e = lambda i: V_ET + i % NTEMP
    def emit(it):
        k = it[0]
        if k == "E":
            if not o.x_novalu: g.A(f"v_exp_f32 v{e(it[1])}, v{Scur+it[1]}")
        elif k == "A":
            if o.x_novalu: return
            if it[1] == 1: g.A(f"v_add_f32 v{V_TS}, v{e(0)}, v{e(1)}")
            else: g.A(f"v_add_f32 v{V_TS}, v{V_TS}, v{e(it[1])}")
        elif k == "C":
            if not o.x_novalu: g.A(f"v_cvt_pk_bf16_f32 v{Pcur+it[1]}, v{e(2*it[1])}, v{e(2*it[1]+1)}")
        elif k == "K":
            if not o.x_nok: k_read(g, it[1], t+2)
        elif k == "V":
            if not o.x_nov: v_read(g, it[1]//4, it[1] % 4, it[2], t)
    for m in range(16):
        if m < 8 and do_qk and not o.x_nomfma: qk_mfma(g, m, Snew, vr(V_NEGM, 16))
        elif m >= 8 and do_pv and not o.x_nomfma: pv_mfma(g, (m-8)//4, (m-8) % 4, Pprev)
        else: g.A("s_nop 0")
        items = gaps[m]
        if ("X", "bar") in items and not o.x_nobar: g.A("s_barrier")
        if m == cmp_gap: g.A(f"v_cmp_lt_f32 vcc, s{S_THR}, v{V_TS}")
        for it in items:
            if it[0] != "X": emit(it)
        if m == br_gap:
            g.A(f"s_cbranch_vccnz L_rare_{t}")
            g.label(f"L_back_{t}")
            g.A(f"v_add_f32 v{V_L}, v{V_L}, v{V_TS}")
        if m == 7 and do_pv: g.A(f"s_waitcnt lgkmcnt({8 if do_qk else 0})")
        if m == 15: g.A(f"s_waitcnt lgkmcnt({15 if do_pv else 0})")
    g.lg = []

def rare_stub(g, t):
    g.label(f"L_rare_{t}")
    g.A(f"s_call_b64 s[{S_RET}:{S_RET+1}], L_rescale_{t%2}")
    g.A(f"s_branch L_back_{t}")

def rowmax(g, S, dst, tmp):
    g.A(f"v_max3_f32 v{dst}, v{S}, v{S+1}, v{S+2}")
    for k in range(3, 15, 2): g.A(f"v_max3_f32 v{dst}, v{dst}, v{S+k}, v{S+k+1}")
    g.A(f"v_max_f32 v{dst}, v{dst}, v{S+15}")
    g.A(f"v_mov_b32 v{tmp}, v{dst}"); g.A("s_nop 1")
    g.A(f"v_permlane32_swap_b32 v{tmp}, v{dst}")
    g.A(f"v_max_f32 v{dst}, v{dst}, v{tmp}")

def rescale_sub(g, par):
    Scur, Snew, Pcur = V_S[par], V_S[1-par], V_P[par]
    d, tmp, f = V_T, V_T+1, 10
    g.label(f"L_rescale_{par}")
    g.A("s_nop 15"); g.A("s_nop 15")
    rowmax(g, Scur, d, tmp)
    g.A(f"v_max_f32 v{d}, 0, v{d}")
    for i in range(16):
        g.A(f"v_sub_f32 v{Scur+i}, v{Scur+i}, v{d}")
        g.A(f"v_sub_f32 v{Snew+i}, v{Snew+i}, v{d}")
        g.A(f"v_sub_f32 v{V_NEGM+i}, v{V_NEGM+i}, v{d}")
    g.A(f"v_sub_f32 v{f}, 0, v{d}"); g.A(f"v_exp_f32 v{f}, v{f}"); g.A("s_nop 0")
    g.A(f"v_mul_f32 v{V_L}, v{V_L}, v{f}")
    for i in range(64):
        g.A(f"v_accvgpr_read_b32 v{tmp}, a{A_O+i}"); g.A(f"v_mul_f32 v{tmp}, v{tmp}, v{f}"); g.A(f"v_accvgpr_write_b32 a{A_O+i}, v{tmp}")
    for k in range(8):
        g.A(f"v_exp_f32 v{V_E}, v{Scur+2*k}"); g.A(f"v_exp_f32 v{V_E+1}, v{Scur+2*k+1}"); g.A("s_nop 0")
        if k == 0: g.A(f"v_add_f32 v{V_TS}, v{V_E}, v{V_E+1}")
        else:
            g.A(f"v_add_f32 v{V_TS}, v{V_TS}, v{V_E}"); g.A(f"v_add_f32 v{V_TS}, v{V_TS}, v{V_E+1}")
        g.A(f"v_cvt_pk_bf16_f32 v{Pcur+k}, v{V_E}, v{V_E+1}")
    g.A("s_nop 1")
    g.A(f"s_setpc_b64 s[{S_RET}:{S_RET+1}]")

def p2_compute(g, o):
    g.C("==== P2: attention, compute waves 0..2")
    L = V_LANE; t0, t1, t2, t3 = V_TMP, V_TMP+1, V_TMP+2, V_TMP+3
    g.A(f"v_and_b32 v{t0}, 31, v{L}"); g.A(f"v_lshrrev_b32 v{t1}, 5, v{L}")
    g.A(f"v_and_b32 v{t2}, 15, v{L}"); g.A(f"v_xor_b32 v{t2}, v{t2}, v{t1}")
    g.A(f"v_lshlrev_b32 v{t2}, 4, v{t2}"); g.A(f"v_lshl_add_u32 v{t2}, v{t0}, 8, v{t2}")
    g.A(f"v_add_u32 v{t2}, {KB}, v{t2}")
    for s in range(8): g.A(f"v_xor_b32 v{V_KA+s}, {s << 5}, v{t2}")
    g.A(f"s_lshl_b32 s{S_T0}, s{S_W}, 13"); g.A(f"s_add_u32 s{S_T0}, s{S_T0}, {QB-KB}")
    for s in range(8):
        g.A(f"v_add_u32 v{V_S[1]+s}, s{S_T0}, v{V_KA+s}")
        g.lds(f"ds_read_b128 {qreg(s)}, v{V_S[1]+s}", "Q")
    for s in range(8): k_read(g, s, 0)
    g.A(f"v_bfe_u32 v{t0}, v{L}, 2, 2")
    g.A(f"v_lshl_add_u32 v{t2}, v{t1}, 2, v{t0}"); g.A(f"v_lshlrev_b32 v{t2}, 8, v{t2}")
    g.A(f"v_lshl_add_u32 v{t2}, v{t0}, 6, v{t2}")
    g.A(f"v_bfe_u32 v{t3}, v{L}, 4, 1"); g.A(f"v_lshl_add_u32 v{t2}, v{t3}, 5, v{t2}")
    g.A(f"v_and_b32 v{t3}, 3, v{L}"); g.A(f"v_lshl_add_u32 v{t2}, v{t3}, 3, v{t2}")
    for blk in range(4): g.A(f"v_xor_b32 v{V_VA+blk}, {blk << 6}, v{t2}")
    g.A(f"v_mov_b32 v{V_L}, 0")
    g.wait_lg0()
    for s in range(8):
        qk_mfma(g, s, V_S[0], "0")
        if s >= 1: k_read(g, s-1, 1)
    k_read(g, 7, 1)
    g.A("s_nop 15")
    rowmax(g, V_S[0], V_T, V_T+1)
    for i in range(16): g.A(f"v_sub_f32 v{V_NEGM+i}, 0, v{V_T}")
    for i in range(16): g.A(f"v_sub_f32 v{V_S[0]+i}, v{V_S[0]+i}, v{V_T}")
    g.A("s_waitcnt lgkmcnt(0)")
    p2_iter(g, 0, do_pv=False)
    g.A(f"s_mov_b32 s{S_CNT}, 5")
    g.label("L_p2_loop")
    for t in range(1, 7): p2_iter(g, t)
    g.A(f"s_sub_u32 s{S_CNT}, s{S_CNT}, 1"); g.A(f"s_cmp_lg_u32 s{S_CNT}, 0"); g.A("s_cbranch_scc1 L_p2_loop")
    p2_iter(g, 31, do_qk=False)
    g.A("s_waitcnt lgkmcnt(0)")
    g.A("s_barrier")
    stamp(g, o, 4)
    for s in range(2):
        for blk in range(4): pv_mfma(g, s, blk, V_P[1])
    g.A(f"v_mov_b32 v{V_T}, v{V_L}"); g.A("s_nop 1")
    g.A(f"v_permlane32_swap_b32 v{V_T}, v{V_L}")
    g.A(f"v_add_f32 v{V_L}, v{V_L}, v{V_T}")
    g.A(f"v_rcp_f32 v{V_L}, v{V_L}")
    base = V_TMP+3
    g.A(f"s_lshl_b32 s{S_T0}, s{S_W}, 5")
    g.A(f"v_and_b32 v{t0}, 31, v{L}"); g.A(f"v_add_u32 v{t0}, s{S_T0}, v{t0}")
    g.A(f"v_cmp_le_u32 vcc, 48, v{t0}")
    g.A(f"v_subrev_u32 v{t1}, 48, v{t0}")
    g.A(f"v_mov_b32 v{t2}, 0")
    g.A(f"v_cndmask_b32 v{t0}, v{t0}, v{t1}, vcc")
    g.A(f"v_mov_b32 v{t1}, 256")
    g.A(f"v_cndmask_b32 v{t2}, v{t2}, v{t1}, vcc")
    g.A(f"v_lshl_add_u32 v{base}, v{t0}, 9, v{t2}")
    g.A(f"v_and_b32 v{t0}, 15, v{t0}"); g.A(f"v_lshl_add_u32 v{base}, v{t0}, 4, v{base}")
    g.A(f"v_lshrrev_b32 v{t0}, 5, v{L}"); g.A(f"v_lshl_add_u32 v{base}, v{t0}, 3, v{base}")
    g.A(f"v_add_u32 v{base}, {OB}, v{base}")
    for blk in range(4):
        for i in range(4):
            a = A_O + 16*blk + 4*i; r = V_S[0] + 4*((blk*4+i) % 4); ad = V_TMP + 4 + ((blk*4+i) % 2)
            for j in range(4): g.A(f"v_accvgpr_read_b32 v{r+j}, a{a+j}")
            g.A(f"v_xor_b32 v{ad}, {(4*blk+i) << 4}, v{base}")
            for j in range(4): g.A(f"v_mul_f32 v{r+j}, v{r+j}, v{V_L}")
            g.A(f"v_cvt_pk_bf16_f32 v{r}, v{r}, v{r+1}"); g.A(f"v_cvt_pk_bf16_f32 v{r+1}, v{r+2}, v{r+3}")
            g.lds(f"ds_write_b64 v{ad}, {vr(r,2)}", "ow")
    g.wait_lg0()

def p2_idle(g, o):
    if o.roles == "all4":
        g.C("==== P2: wave 3 only keeps the barrier count")
        g.A(f"s_mov_b32 s{S_CNT}, 33")
        g.label("L_idle_loop")
        g.A("s_barrier")
        g.A(f"s_sub_u32 s{S_CNT}, s{S_CNT}, 1"); g.A(f"s_cmp_lg_u32 s{S_CNT}, 0"); g.A("s_cbranch_scc1 L_idle_loop")
        return
    g.C("==== P2: wave 3 streams K")
    g.vm = []
    full_tile_regs(g, "K")
    g.A(f"s_mov_b32 s{S_KOFF}, {4*8192}")
    full_tile(g, o, "K", 4, "K4"); full_tile(g, o, "K", 5, "K5")
    g.A(f"s_mov_b32 s{S_CNT}, 4")
    g.label("L_kld_loop")
    for t in range(6):
        g.A("s_waitcnt vmcnt(24)"); g.A("s_barrier")
        if not o.x_nodma: full_tile(g, o, "K", t+6, f"K{t+6}")
    g.A(f"s_sub_u32 s{S_CNT}, s{S_CNT}, 1"); g.A(f"s_cmp_lg_u32 s{S_CNT}, 0"); g.A("s_cbranch_scc1 L_kld_loop")
    g.vm = []
    for t in range(26, 30): g.vm += [f"K{t}"]*8
    for t in range(24, 32):
        if t + 2 < 32: g.wait_vm(f"K{t+2}")
        g.A("s_barrier")
        if t + 6 < 32: full_tile(g, o, "K", t+6, f"K{t+6}")
    g.A("s_barrier")

def p3_compute(g, o):
    g.C("==== P3: partial output projection")
    L = V_LANE; t0, t1, t2, t3 = V_ACC3, V_ACC3+1, V_ACC3+2, V_ACC3+3
    for s in range(4): select_by_wave(g, S_WOA + s, [WO_ADDR[s][w] for w in range(4)])
    g.A(f"v_lshrrev_b32 v{t0}, 4, v{L}"); g.A(f"v_and_b32 v{t1}, 15, v{L}")
    g.A(f"v_xor_b32 v{t2}, v{t0}, v{t1}"); g.A(f"v_lshlrev_b32 v{t2}, 4, v{t2}")
    g.A(f"v_lshl_add_u32 v{V_OR}, v{t1}, 9, v{t2}"); g.A(f"v_add_u32 v{V_OR}, {OB}, v{V_OR}")
    g.A(f"v_bfe_u32 v{t1}, v{L}, 2, 2")
    g.A(f"v_and_b32 v{t2}, 1, v{t0}"); g.A(f"v_lshl_or_b32 v{t2}, v{t2}, 2, v{t1}"); g.A(f"v_lshlrev_b32 v{t2}, 5, v{t2}")
    g.A(f"v_lshl_add_u32 v{t3}, v{t0}, 3, v{t1}"); g.A(f"v_lshl_add_u32 v{t2}, v{t3}, 8, v{t2}")
    g.A(f"v_and_b32 v{t3}, 3, v{L}"); g.A(f"v_lshl_add_u32 v{t2}, v{t3}, 3, v{t2}")
    g.A(f"v_add_u32 v{t2}, s{S_WOA}, v{t2}")
    for cb in range(8): g.A(f"v_xor_b32 v{V_WOR+cb}, {cb << 5}, v{t2}")
    g.A("s_barrier")
    stamp(g, o, 5)
    srot = S_B if o.rot else S_CNT
    if not o.rot: g.A(f"s_mov_b32 s{S_CNT}, 0")
    def b_reads(i):
        vt = V_OT + i % 2
        g.A(f"s_add_u32 s{S_T0}, s{srot}, {i}"); g.A(f"s_and_b32 s{S_T0}, s{S_T0}, 7"); g.A(f"s_lshl_b32 s{S_T0}, s{S_T0}, 6")
        g.A(f"v_xor_b32 v{vt}, s{S_T0}, v{V_OR}")
        for rb in range(3): g.lds(f"ds_read_b128 {ar(A_B3[i%2]+4*rb,4)}, v{vt} offset:{rb*8192}", f"B{i}")
    def a_read(i, cb, u):
        g.lds(f"ds_read_b64_tr_b16 {ar(A_A3+4*cb+2*u,2)}, v{V_WOR+cb} offset:{u*1024}", f"A{i}_{cb}")
    def a_move(i, cb):
        g.A(f"v_add_u32 v{V_WOR+cb}, s{S_T1}, v{V_WOR+cb}")
    b_reads(0)
    for cb in range(8):
        for u in range(2): a_read(0, cb, u)
    for i in range(8):
        nxt = i + 1 < 8
        if i > 0: g.A("s_barrier")
        if nxt:
            g.A(f"s_sub_u32 s{S_T1}, s{S_WOA + (i+1) % 4}, s{S_WOA + i % 4}")
            b_reads(i + 1)
        for cb in range(8):
            g.wait_lg([f"A{i}_{cb}", f"B{i}"])
            for rb in range(3):
                acc = vr(V_ACC3 + (cb*3 + rb)*4, 4)
                c = "0" if i == 0 else acc
                g.A(f"v_mfma_f32_16x16x32_bf16 {acc}, {ar(A_A3+4*cb,4)}, {ar(A_B3[i%2]+4*rb,4)}, {c}")
                if nxt and rb == 0: a_move(i + 1, cb)
                if nxt and cb >= 1 and rb >= 1: a_read(i + 1, cb - 1, rb - 1)
        if nxt:
            for u in range(2): a_read(i + 1, 7, u)
    stamp(g, o, 6)
    g.A("s_nop 7")
    t0 = 13
    g.A(f"v_lshlrev_b32 v{t0}, 4, v{L}")
    g.A(f"s_mul_i32 s{S_T0}, s{S_W}, 12288")
    for rb in range(3):
        if rb: g.A(f"s_add_u32 s{S_T0}, s{S_T0}, 4096")
        for cbp in range(4):
            a0 = V_ACC3 + ((2*cbp)*3 + rb)*4; a1 = V_ACC3 + ((2*cbp+1)*3 + rb)*4
            d = 4 + 4*((rb*4+cbp) % 2)
            g.A(f"v_cvt_pk_bf16_f32 v{d}, v{a0}, v{a0+1}"); g.A(f"v_cvt_pk_bf16_f32 v{d+1}, v{a0+2}, v{a0+3}")
            g.A(f"v_cvt_pk_bf16_f32 v{d+2}, v{a1}, v{a1+1}"); g.A(f"v_cvt_pk_bf16_f32 v{d+3}, v{a1+2}, v{a1+3}")
            pol = f" {o.pol_st}" if o.pol_st else ""
            g.vmem(f"buffer_store_dwordx4 {vr(d,4)}, v{t0}, s[{SRD_P}:{SRD_P+3}], s{S_T0} offen offset:{cbp*1024}{pol}", "st")
    if o.fused: compute_tail(g, o)
    if o.stamps:
        g.wait_vm0()
        if not o.fused: stamp(g, o, 7)
        if o.stamps == "dbg":
            dbg_stamps(g, o); return
        g.A(f"s_cmp_lg_u32 s{S_W}, 0"); g.A("s_cbranch_scc1 L_after_stamps")
        g.A(f"s_add_u32 s28, s52, 0x1000000"); g.A("s_addc_u32 s29, s53, 0"); g.A("s_and_b32 s29, s29, 0xffff")
        g.A("s_mov_b32 s30, 0x10000"); g.A("s_mov_b32 s31, 0x20000")
        for k in range(16): g.A(f"v_mov_b32 v{16+k}, s{S_STAMP+k}")
        g.A(f"s_lshl_b32 s{S_T0}, s2, 6"); g.A(f"v_mov_b32 v{t0}, s{S_T0}")
        g.A(f"v_cmp_eq_u32 vcc, 0, v{L}"); g.A(f"s_and_saveexec_b64 s[{S_SAVE}:{S_SAVE+1}], vcc")
        for k in range(4): g.A(f"buffer_store_dwordx4 v[{16+4*k}:{19+4*k}], v{t0}, s[28:31], 0 offen offset:{16*k}")
        g.A(f"s_mov_b64 exec, s[{S_SAVE}:{S_SAVE+1}]")
        g.A("s_waitcnt vmcnt(0)")
        g.label("L_after_stamps")

def dbg_stamps(g, o):
    L = V_LANE
    g.A("s_memrealtime s[100:101]"); g.A("s_waitcnt lgkmcnt(0)")
    g.A(f"s_cmp_lg_u32 s{S_W}, 0"); g.A("s_cbranch_scc1 L_after_stamps")
    g.A(f"s_cmp_lg_u32 s2, {int(o.dbgwg)}"); g.A("s_cbranch_scc1 L_after_stamps")
    srd(g, 28, 32, 33, None, 256)
    for k in range(1, 8):
        g.A(f"s_sub_u32 s{S_T0}, s{S_STAMP+k}, s{S_STAMP}"); g.A(f"v_mov_b32 v{16+k-1}, s{S_T0}")
    g.A(f"s_sub_u32 s{S_T0}, s100, s{S_STAMP}"); g.A(f"v_mov_b32 v23, s{S_T0}")
    for k in range(1, 8):
        g.A(f"s_sub_u32 s{S_T0}, s{S_STAMP+8+k}, s{S_STAMP+8}"); g.A(f"v_mov_b32 v{24+k-1}, s{S_T0}")
    g.A("v_mov_b32 v31, 0")
    g.A("v_mov_b32 v13, 4")
    g.A(f"v_cmp_eq_u32 vcc, 0, v{L}"); g.A(f"s_and_saveexec_b64 s[{S_SAVE}:{S_SAVE+1}], vcc")
    for k in range(16):
        if (1 + k) % 4 == 0: continue
        g.A(f"buffer_store_dword v{16+k}, v13, s[28:31], 0 offen offset:{4*k}")
    g.A(f"s_mov_b64 exec, s[{S_SAVE}:{S_SAVE+1}]")
    g.A("s_waitcnt vmcnt(0)")
    g.label("L_after_stamps")

def k1(g, o):
    header(g, K1)
    setup(g, o)
    g.A(f"s_cmp_ge_u32 s{S_W}, 4"); g.A("s_cbranch_scc1 L_loader")
    p1_compute(g, o)
    g.A(f"s_cmp_eq_u32 s{S_W}, 3"); g.A("s_cbranch_scc1 L_idle")
    p2_compute(g, o)
    g.A("s_branch L_p3")
    g.label("L_idle")
    p2_idle(g, o)
    g.label("L_p3")
    g.lg = []; g.vm = []
    p3_compute(g, o)
    g.label("L_k1_end")
    g.A("s_endpgm")
    g.label("L_loader")
    g.lg = []; g.vm = []
    loader(g, o)
    if o.fused: loader_tail(g, o)
    for par in range(2): rescale_sub(g, par)
    for t in [0, 1, 2, 3, 4, 5, 6, 31]: rare_stub(g, t)

def k2(g, o):
    header(g, K2)
    g.A("s_cmp_ge_u32 s2, 256"); g.A("s_cbranch_scc1 L_k2_end")
    g.A("s_load_dwordx2 s[4:5], s[0:1], 96"); g.A("s_load_dwordx2 s[6:7], s[0:1], 80")
    g.A("v_and_b32 v1, 63, v0"); g.A("v_lshrrev_b32 v2, 6, v0")
    g.A("s_lshr_b32 s20, s2, 4")
    g.A("v_readfirstlane_b32 s21, v2")
    g.A("s_and_b32 s22, s2, 15"); g.A("s_mul_i32 s22, s22, 3")
    g.A("s_add_u32 s22, s22, s21")
    g.A("s_mul_i32 s23, s20, 786432")
    g.A("s_lshl_b32 s24, s22, 10"); g.A("s_add_u32 s23, s23, s24")
    g.A("v_lshlrev_b32 v2, 4, v1")
    g.A("s_waitcnt lgkmcnt(0)")
    srd(g, 8, 4, 5, None, 256*49152)
    srd(g, 12, 6, 7, None, 786432)
    for q in range(16):
        g.vmem(f"buffer_load_dwordx4 v[{16+4*q}:{19+4*q}], v2, s[8:11], s23 offen", f"p{q}")
        if q < 15: g.A("s_add_u32 s23, s23, 49152")
    g.A("s_mul_i32 s24, s22, 43"); g.A("s_lshr_b32 s24, s24, 9")
    g.A("s_mul_i32 s25, s24, 12"); g.A("s_sub_u32 s25, s22, s25")
    g.A("s_lshr_b32 s26, s25, 2"); g.A("s_and_b32 s25, s25, 3")
    g.A("s_and_b32 s27, s20, 7"); g.A("s_mul_i32 s27, s27, 98304")
    g.A("s_lshr_b32 s28, s20, 3"); g.A("s_lshl_b32 s28, s28, 10"); g.A("s_add_u32 s27, s27, s28")
    g.A("s_lshl_b32 s28, s26, 15"); g.A("s_add_u32 s27, s27, s28")
    g.A("s_lshl_b32 s28, s24, 8"); g.A("s_add_u32 s27, s27, s28")
    g.A("s_lshl_b32 s28, s25, 6"); g.A("s_add_u32 s27, s27, s28")
    g.A("v_and_b32 v3, 15, v1"); g.A("v_lshrrev_b32 v4, 4, v1")
    g.A("v_lshlrev_b32 v3, 11, v3"); g.A("v_lshl_add_u32 v3, v4, 3, v3")
    for q in range(16):
        g.wait_vm(f"p{q}")
        for j in range(4):
            src = 16 + 4*q + j
            if q == 0:
                g.A(f"v_lshlrev_b32 v{8+2*j}, 16, v{src}"); g.A(f"v_and_b32 v{9+2*j}, 0xffff0000, v{src}")
            else:
                g.A(f"v_lshlrev_b32 v5, 16, v{src}"); g.A(f"v_and_b32 v6, 0xffff0000, v{src}")
                g.A(f"v_add_f32 v{8+2*j}, v{8+2*j}, v5"); g.A(f"v_add_f32 v{9+2*j}, v{9+2*j}, v6")
    for j in range(4): g.A(f"v_cvt_pk_bf16_f32 v{16+j}, v{8+2*j}, v{9+2*j}")
    g.A("buffer_store_dwordx2 v[16:17], v3, s[12:15], s27 offen")
    g.A("buffer_store_dwordx2 v[18:19], v3, s[12:15], s27 offen offset:32")
    g.label("L_k2_end")
    g.A("s_endpgm")

def build(o):
    g = G()
    if o.fused:
        g.A("; @launch grid=(256,1,1) block=(512,1,1) lds=163840")
    else:
        g.A(f"; @launch kernel={K1} grid=(256,1,1) block=(512,1,1) lds=163840")
        g.A(f"; @launch kernel={K2} grid=(256,1,1) block=(192,1,1) lds=0")
    g.A('.amdgcn_target "amdgcn-amd-amdhsa--gfx950"')
    k1(g, o)
    if not o.fused:
        g2 = G(); k2(g2, o); g.L += g2.L
    descriptor(g, K1, 256, ACC_OFF)
    if not o.fused: descriptor(g, K2, 96, 96, 40)
    return g

OPT = None
if __name__ == "__main__":
    o = Opt(); OPT = o
    for a in sys.argv[2:]:
        k, v = a.split("=", 1)
        setattr(o, k, {"True": True, "False": False}.get(v, v))
    g = build(o)
    probs = check(g.L)
    for p in probs[:5]: print("HAZARD", p)
    open(sys.argv[1], "w").write(g.text())
    print("lines", len(g.L))
```

```python
import sys, math, struct
from asmlib import G, check
from sched import schedule

PREFIX = "concat_heads__gqa_block_cached__gqa_block_cached__near_ridge"
K1 = PREFIX + "_kernel"

VB = 0
KB = 65536
XB = 114688
QB = XB
OB = 139264
WQB = 16384
NS = 6
def kslot(i): return KB + (NS - 1 - i % NS) * 8192
def vslot(i): return VB + (i % NS) * 8192
WO_ADDR = [[49152, 57344, 114688, 122880],
           [131072, kslot(26), kslot(27), kslot(28)],
           [vslot(26), kslot(29), vslot(27), kslot(30)],
           [vslot(28), kslot(31), vslot(29), vslot(30)]]
FLAGB = 14 << 20

CSCALE = math.log2(math.e) / math.sqrt(128.0)
def fbits(x): return struct.unpack("<I", struct.pack("<f", x))[0]
THR_HI = float(2 ** 20)
THR_LO = float(2 ** -20)

S_W = 3
SRD_X, SRD_WQ, SRD_K, SRD_V, SRD_WO, SRD_P = 4, 8, 12, 16, 20, 24
S_DBG, S_OUT, S_WS = 94, 96, 52
S_HKV, S_HALF, S_B, S_BR = 54, 55, 56, 57
S_S0, S_RING = 58, 59
S_T0, S_T1, S_T2, S_T3 = 60, 61, 62, 63
S_CNT = 64
S_KOFF, S_VOFF = 65, 66
S_THR = 67
S_C = 68
S_RET = 70
S_STAMP = 72
S_WOA = 88
S_BB, S_HP = 92, 93
S_LD2K, S_FIRST, S_THRLO, S_WOROT = 28, 29, 30, 31
S_XM, S_XO = 98, 99
SRD_DBG, SRD_FL = 32, 36

ACC_OFF = 160
V_LANE = 1
V_XR, V_XT = 2, 3
V_WR = 5
V_ACC1 = 32
V_E = 2; NTEMP = 8
V_L, V_TS, V_T, V_F = 10, 11, 12, 14
V_KA, V_VA = 16, 24
V_TMP = 28
V_S = [32, 48]; V_P = [64, 72]; V_NEGM = 80; V_O = 96
A_Q, A_K, A_V = 0, 32, 64
A_A1 = [0, 16]; A_B1 = [32, 44]
V_OR, V_OT = 10, 11
V_ACC3 = 16
V_WOR = 112
A_A3 = 0; A_B3 = [32, 44]
V_XD = 2; V_WD = 4; V_KE0, V_KE1, V_VE = 8, 9, 10; V_WOD = 12; V_LT = 16
V_FA, V_FD, V_RA, V_RD = 20, 21, 22, 23
V_FT = 24

def vr(b, n=1): return f"v{b}" if n == 1 else f"v[{b}:{b+n-1}]"
def ar(b, n=1): return f"a{b}" if n == 1 else f"a[{b}:{b+n-1}]"

class Opt:
    nt_kv = "nt"; pol_w = ""; pol_x = ""; pol_st = "sc1"
    stamps = False; rot = True; sleep = 1; dbgwg = 37
    cap_lo = 24; cap_hi = 24
    pretouch = False; m0init = False; prio = 0; thr = 20
    x_nok = False; x_nov = False; x_novalu = False; x_nomfma = False; x_nodma = False
OPT = None

def stamp(g, o, idx):
    if o.stamps:
        g.A("s_memrealtime s[100:101]"); g.A("s_waitcnt lgkmcnt(0)"); g.A(f"s_mov_b32 s{S_STAMP+idx}, s100")
        g.A("s_memtime s[100:101]"); g.A("s_waitcnt lgkmcnt(0)"); g.A(f"s_mov_b32 s{S_STAMP+8+idx}, s100")
        g.lg = []

def header(g, name):
    g.A(".text"); g.A(f".globl {name}"); g.A(".p2align 8"); g.A(f".type {name},@function"); g.label(name)

def descriptor(g, name, vgpr, accum, sgpr=102):
    g.A('.section .rodata,"a"'); g.A(".p2align 6"); g.A(f".amdhsa_kernel {name}")
    g.A(f".amdhsa_next_free_vgpr {vgpr}"); g.A(f".amdhsa_next_free_sgpr {sgpr}"); g.A(f".amdhsa_accum_offset {accum}")
    g.A(".amdhsa_group_segment_fixed_size 0"); g.A(".amdhsa_kernarg_size 104"); g.A(".amdhsa_user_sgpr_count 2")
    g.A(".amdhsa_user_sgpr_kernarg_segment_ptr 1"); g.A(".amdhsa_system_sgpr_workgroup_id_x 1"); g.A(".end_amdhsa_kernel")

def srd(g, d, lo, hi, off_s, nrec):
    if off_s is None:
        g.A(f"s_mov_b32 s{d}, s{lo}"); g.A(f"s_and_b32 s{d+1}, s{hi}, 0xffff")
    else:
        g.A(f"s_add_u32 s{d}, s{lo}, {off_s}"); g.A(f"s_addc_u32 s{d+1}, s{hi}, 0"); g.A(f"s_and_b32 s{d+1}, s{d+1}, 0xffff")
    g.A(f"s_mov_b32 s{d+2}, {nrec}"); g.A(f"s_mov_b32 s{d+3}, 0x20000")

def dma(g, voff, srd_, soff, imm, pol, tag):
    off = f" offset:{imm}" if imm else ""
    pol = f" {pol}" if pol else ""
    g.vmem(f"buffer_load_dwordx4 v{voff}, s[{srd_}:{srd_+3}], {soff} offen{off}{pol} lds", tag)

def weave(main, fill):
    n = len(main); m = len(fill); k = 0
    for i, f in enumerate(main):
        f()
        tgt = (i + 1) * m // n
        while k < tgt:
            fill[k](); k += 1

def select_by_wave(g, dst, vals):
    g.A(f"s_mov_b32 s{dst}, {vals[0]}")
    for k in range(1, len(vals)):
        g.A(f"s_cmp_eq_u32 s{S_W}, {k}"); g.A(f"s_cselect_b32 s{dst}, {vals[k]}, s{dst}")

def entry(g, o):
    g.A("s_cmp_ge_u32 s2, 256"); g.A("s_cbranch_scc1 L_end")
    stamp(g, o, 0)
    g.A("s_load_dwordx16 s[32:47], s[0:1], 0")
    g.A("s_load_dwordx4 s[48:51], s[0:1], 64")
    g.A(f"s_load_dwordx2 s[{S_WS}:{S_WS+1}], s[0:1], 96")
    g.A(f"s_load_dwordx2 s[{S_OUT}:{S_OUT+1}], s[0:1], 80")
    g.A(f"s_load_dwordx2 s[{S_DBG}:{S_DBG+1}], s[0:1], 88")
    g.A(f"v_and_b32 v{V_LANE}, 63, v0")
    g.A("v_lshrrev_b32 v2, 6, v0")
    g.A(f"s_and_b32 s{S_HKV}, s2, 7")
    g.A(f"v_readfirstlane_b32 s{S_W}, v2")
    g.A(f"s_lshr_b32 s{S_T0}, s2, 3")
    g.A(f"s_and_b32 s{S_HALF}, s{S_T0}, 1")
    g.A(f"s_lshr_b32 s{S_B}, s{S_T0}, 1"); g.A(f"s_and_b32 s{S_B}, s{S_B}, 7")
    g.A(f"s_lshr_b32 s{S_BR}, s{S_T0}, 4")
    g.A(f"s_lshl_b32 s{S_HP}, s{S_HKV}, 1"); g.A(f"s_add_u32 s{S_HP}, s{S_HP}, s{S_HALF}")
    g.A(f"s_lshl_b32 s{S_BB}, s{S_BR}, 3"); g.A(f"s_add_u32 s{S_BB}, s{S_BB}, s{S_B}")
    if o.rot:
        g.A(f"s_lshl_b32 s{S_S0}, s{S_B}, 1"); g.A(f"s_lshl_b32 s{S_T0}, s{S_HALF}, 3")
        g.A(f"s_add_u32 s{S_S0}, s{S_S0}, s{S_T0}"); g.A(f"s_and_b32 s{S_S0}, s{S_S0}, 15")
        g.A(f"s_mov_b32 s{S_WOROT}, s{S_B}")
    else:
        g.A(f"s_mov_b32 s{S_S0}, 0"); g.A(f"s_mov_b32 s{S_WOROT}, 0")

def select_branch(g, idx):
    g.A(f"s_cmp_eq_u32 s{S_BR}, 1")
    for i in idx: g.A(f"s_cselect_b32 s{32+i}, s{42+i}, s{32+i}")

def srd_kv(g, which):
    g.A(f"s_lshl_b32 s{S_T0}, s{S_B}, 3"); g.A(f"s_add_u32 s{S_T0}, s{S_T0}, s{S_HKV}"); g.A(f"s_lshl_b32 s{S_T0}, s{S_T0}, 18")
    if "K" in which: srd(g, SRD_K, 34, 35, f"s{S_T0}", 262144)
    if "V" in which: srd(g, SRD_V, 36, 37, f"s{S_T0}", 262144)

EARLY = [("K", 0), ("K", 1), ("V", 0), ("K", 2), ("V", 1), ("K", 3)]

def full_tile_regs(g, kind):
    L = V_LANE; t0, t1 = V_FT+4, V_FT+5
    g.A(f"v_lshrrev_b32 v{t0}, 4, v{L}"); g.A(f"v_and_b32 v{t1}, 15, v{L}")
    for e in range(4 if kind == "K" else 1):
        d = V_FT + e
        if kind == "K": g.A(f"v_add_u32 v{d}, {4*e}, v{t0}")
        else: g.A(f"v_lshlrev_b32 v{d}, 2, v{t0}")
        g.A(f"v_xor_b32 v{d}, v{d}, v{t1}"); g.A(f"v_lshlrev_b32 v{d}, 4, v{d}"); g.A(f"v_lshl_add_u32 v{d}, v{t0}, 8, v{d}")

def full_tile(g, o, kind, t, tag):
    so = S_KOFF if kind == "K" else S_VOFF
    base = kslot(t) if kind == "K" else vslot(t)
    for hf in range(2):
        g.A(f"s_mov_b32 m0, {base + hf*4096}"); g.A("s_nop 0")
        for e in range(4):
            dma(g, V_FT + (e if kind == "K" else 0), SRD_K if kind == "K" else SRD_V, f"s{so}", 1024*e, o.nt_kv, tag)
        g.A(f"s_add_u32 s{so}, s{so}, 4096")

def loader(g, o):
    g.C("================ loader waves")
    L = V_LANE; t0, t1, t2, t3 = V_LT, V_LT+1, V_LT+2, V_LT+3
    g.A(f"s_sub_u32 s{S_W}, s{S_W}, 4")
    g.A(f"v_lshrrev_b32 v{t0}, 4, v{L}"); g.A(f"v_and_b32 v{t1}, 15, v{L}")
    g.A(f"s_lshl_b32 s{S_T0}, s{S_W}, 2")
    g.A(f"v_add_u32 v{t2}, s{S_T0}, v{t0}"); g.A(f"v_xor_b32 v{t2}, v{t2}, v{t1}"); g.A(f"v_lshlrev_b32 v{t2}, 4, v{t2}")
    g.A(f"v_lshl_add_u32 v{V_XD}, v{t0}, 10, v{t2}")
    g.A(f"v_lshrrev_b32 v{t2}, 3, v{L}"); g.A(f"v_and_b32 v{t3}, 7, v{L}")
    g.A(f"s_lshl_b32 s{S_T0}, s{S_W}, 7")
    for jj in range(4):
        d = V_WD + jj
        g.A(f"v_and_b32 v{d}, 2, v{t2}")
        if jj & 1: g.A(f"v_or_b32 v{d}, 4, v{d}")
        g.A(f"v_xor_b32 v{d}, v{d}, v{t3}"); g.A(f"v_lshlrev_b32 v{d}, 4, v{d}")
        g.A(f"v_lshl_add_u32 v{d}, v{t2}, 13, v{d}")
        g.A(f"v_add_u32 v{d}, s{S_T0}, v{d}")
        if jj: g.A(f"v_add_u32 v{d}, {jj*64512}, v{d}")
    g.A(f"s_lshl_b32 s{S_RING}, s{S_W}, 14"); g.A(f"s_add_u32 s{S_RING}, s{S_RING}, {WQB}")
    def x_prep(j):
        g.A(f"s_lshr_b32 s{S_T0}, s{S_S0}, 2"); g.A(f"s_add_u32 s{S_T0}, s{S_T0}, {j}"); g.A(f"s_and_b32 s{S_T0}, s{S_T0}, 3")
        g.A(f"s_mul_i32 s{S_XM}, s{S_T0}, 12288"); g.A(f"s_lshl_b32 s{S_T1}, s{S_W}, 10"); g.A(f"s_add_u32 s{S_XM}, s{S_XM}, s{S_T1}")
        g.A(f"s_lshl_b32 s{S_XO}, s{S_T0}, 8"); g.A(f"s_lshl_b32 s{S_T1}, s{S_W}, 12"); g.A(f"s_add_u32 s{S_XO}, s{S_XO}, s{S_T1}")
    def x_issue(j):
        for i3 in range(3):
            g.A(f"s_add_u32 m0, s{S_XM}, {XB + i3*4096}")
            g.A(f"s_add_u32 s{S_T0}, s{S_XO}, {i3*16384}")
            dma(g, V_XD, SRD_X, f"s{S_T0}", 0, o.pol_x, f"x{j}")
    def wq_step(i):
        g.A(f"s_add_u32 s{S_T2}, s{S_S0}, {i}"); g.A(f"s_and_b32 s{S_T2}, s{S_T2}, 15")
        g.A(f"s_add_u32 m0, s{S_RING}, {(i%4)*4096}")
        g.A(f"s_lshl_b32 s{S_T2}, s{S_T2}, 18")
        for jj in range(4): dma(g, V_WD + jj, SRD_WQ, f"s{S_T2}", 1024*jj, o.pol_w, f"wq{i}")
    x_prep(0)
    g.A("s_waitcnt lgkmcnt(0)")
    stamp(g, o, 1)
    select_branch(g, [0, 1, 6, 7])
    g.A(f"s_mul_i32 s{S_T0}, s{S_B}, 49152"); srd(g, SRD_X, 32, 33, f"s{S_T0}", 49152)
    x_issue(0)
    g.A(f"s_lshl_b32 s{S_T1}, s{S_HP}, 9")
    srd(g, SRD_WQ, 38, 39, f"s{S_T1}", 0)
    g.A(f"s_sub_u32 s{SRD_WQ+2}, 0x400000, s{S_T1}")
    wq_step(0); wq_step(1)
    x_prep(1); x_issue(1)
    wq_step(2)
    stamp(g, o, 2)
    select_branch(g, [2, 3, 4, 5, 8, 9])
    srd_kv(g, "KV")
    g.A(f"s_lshl_b32 s{S_T1}, s{S_HP}, 18")
    srd(g, SRD_WO, 40, 41, f"s{S_T1}", 262144)
    if o.pretouch:
        g.A(f"s_lshl_b32 s{S_T1}, s{S_BB}, 4"); g.A(f"s_add_u32 s{S_T1}, s{S_T1}, s{S_HP}"); g.A(f"s_mul_i32 s{S_T1}, s{S_T1}, 49152")
        g.A(f"s_add_u32 s44, s{S_WS}, s{S_T1}"); g.A(f"s_addc_u32 s45, s{S_WS+1}, 0")
        for r in (SRD_K, SRD_V, SRD_WO, 44, S_OUT, S_DBG):
            g.A(f"s_load_dword s46, s[{r}:{r+1}], 0")
        g.A(f"s_add_u32 s44, s{S_WS}, {FLAGB}"); g.A(f"s_addc_u32 s45, s{S_WS+1}, 0")
        g.A("s_load_dword s46, s[44:45], 0")
    g.A(f"s_lshl_b32 s{S_LD2K}, s{S_W}, 11")
    g.A(f"v_lshlrev_b32 v{t2}, 8, v{t0}"); g.A(f"v_add_u32 v{t2}, s{S_LD2K}, v{t2}")
    g.A(f"s_lshl_b32 s{S_T1}, s{S_W}, 3"); g.A(f"s_and_b32 s{S_T1}, s{S_T1}, 15")
    for e in range(2):
        d = V_KE0 + e
        g.A(f"v_add_u32 v{d}, s{S_T1}, v{t0}")
        if e: g.A(f"v_add_u32 v{d}, 4, v{d}")
        g.A(f"v_xor_b32 v{d}, v{d}, v{t1}"); g.A(f"v_lshl_add_u32 v{d}, v{d}, 4, v{t2}")
    g.A(f"v_lshlrev_b32 v{V_VE}, 2, v{t0}"); g.A(f"v_xor_b32 v{V_VE}, v{V_VE}, v{t1}")
    g.A(f"v_lshl_add_u32 v{V_VE}, v{V_VE}, 4, v{t2}")
    g.A(f"s_lshl_b32 s{S_T0}, s{S_W}, 8")
    for jj in range(4):
        d = V_WOD + jj
        g.A(f"v_lshlrev_b32 v{d}, 1, v{t0}")
        if jj >> 1: g.A(f"v_or_b32 v{d}, 8, v{d}")
        g.A(f"v_xor_b32 v{d}, v{d}, v{t1}"); g.A(f"v_lshlrev_b32 v{d}, 4, v{d}")
        g.A(f"v_lshl_add_u32 v{d}, v{t0}, 10, v{d}"); g.A(f"v_add_u32 v{d}, s{S_T0}, v{d}")
        if jj: g.A(f"v_add_u32 v{d}, {jj*3072}, v{d}")
    for s in range(4): select_by_wave(g, S_WOA + s, [WO_ADDR[s][w] for w in range(4)])
    g.A(f"s_mov_b32 s{S_KOFF}, 0"); g.A(f"s_mov_b32 s{S_VOFF}, 0")
    if o.pretouch: g.A("s_waitcnt lgkmcnt(0)")
    def kv(kind, t, tag):
        so = S_KOFF if kind == "K" else S_VOFF
        g.A(f"s_add_u32 m0, s{S_LD2K}, {kslot(t) if kind == 'K' else vslot(t)}")
        g.A("s_nop 0")
        if kind == "K":
            dma(g, V_KE0, SRD_K, f"s{so}", 0, o.nt_kv, tag); dma(g, V_KE1, SRD_K, f"s{so}", 1024, o.nt_kv, tag)
        else:
            dma(g, V_VE, SRD_V, f"s{so}", 0, o.nt_kv, tag); dma(g, V_VE, SRD_V, f"s{so}", 1024, o.nt_kv, tag)
        g.A(f"s_add_u32 s{so}, s{so}, 8192")
    def wo_step(i):
        g.A(f"s_add_u32 s{S_T2}, s{S_WOROT}, {i}"); g.A(f"s_and_b32 s{S_T2}, s{S_T2}, 7")
        g.A(f"s_mov_b32 m0, s{S_WOA + i % 4}")
        g.A(f"s_lshl_b32 s{S_T2}, s{S_T2}, 15")
        for jj in range(4): dma(g, V_WOD + jj, SRD_WO, f"s{S_T2}", 1024*jj, o.pol_w, f"wo{i}")
        g.A(f"s_add_u32 m0, s{S_WOA + i % 4}, 4096"); g.A(f"s_add_u32 s{S_T2}, s{S_T2}, 16384")
        for jj in range(4): dma(g, V_WOD + jj, SRD_WO, f"s{S_T2}", 1024*jj, o.pol_w, f"wo{i}")
    need_x = {0: "x0", 1: "x1", 5: "x2", 9: "x3"}
    for i in range(16):
        tags = []
        if i == 0: tags += ["wq0", "wq1"]
        elif i + 1 < 16: tags.append(f"wq{i+1}")
        if i in need_x: tags.append(need_x[i])
        if tags: g.wait_vm(tags)
        if i == 0: stamp(g, o, 3)
        g.A("s_barrier")
        if i + 3 < 16: wq_step(i + 3)
        else:
            for kind, t in EARLY[(i-13)*2:(i-13)*2+2]: kv(kind, t, f"{kind}{t}")
        if i == 0: x_prep(2); x_issue(2)
        if i == 3: x_prep(3); x_issue(3)
    g.A("s_barrier")
    g.wait_vm(["K0", "K1"]); g.A("s_barrier")
    stamp(g, o, 4)
    def tail_p3():
        g.A("s_barrier")
        wo_step(3)
        g.wait_vm(["wo0", "wo1"]); g.A("s_barrier")
        for i in range(1, 8):
            if i + 1 < 8: g.wait_vm(f"wo{i+1}")
            g.A("s_barrier")
            if i + 3 < 8: wo_step(i + 3)
        g.A("s_branch L_ld_tail")
    def idle(n, lab):
        g.A(f"s_mov_b32 s{S_CNT}, {n}")
        g.label(lab)
        g.A("s_barrier")
        g.A(f"s_sub_u32 s{S_CNT}, s{S_CNT}, 1"); g.A(f"s_cmp_lg_u32 s{S_CNT}, 0"); g.A(f"s_cbranch_scc1 {lab}")
    def drain(vtags):
        wo_step(0)
        for t in range(28, 32):
            if vtags: g.wait_vm(f"V{t}")
            g.A("s_barrier")
            if t == 28: wo_step(1)
            if t == 30: wo_step(2)
        tail_p3()
    g.A(f"s_cmp_eq_u32 s{S_W}, 3"); g.A("s_cbranch_scc1 L_vloader")
    vm_early = list(g.vm)
    g.wait_vm(["V0", "K2"]); g.A("s_barrier")
    g.wait_vm(["V1", "K3"]); g.A("s_barrier")
    srd(g, SRD_DBG, S_DBG, S_DBG+1, None, 256)
    srd(g, SRD_FL, S_WS, S_WS+1, None, FLAGB + 256*128)
    g.A(f"s_lshl_b32 s{S_T0}, s{S_BB}, 11"); g.A(f"s_add_u32 s{S_T0}, s{S_T0}, {FLAGB}")
    g.A(f"v_and_b32 v{V_FA}, 15, v{V_LANE}"); g.A(f"v_lshlrev_b32 v{V_FA}, 7, v{V_FA}"); g.A(f"v_add_u32 v{V_FA}, s{S_T0}, v{V_FA}")
    g.A(f"s_lshl_b32 s{S_T0}, s{S_BB}, 2"); g.A(f"v_mov_b32 v{V_RA}, s{S_T0}")
    g.A(f"s_or_b32 s{S_FIRST}, s{S_W}, s{S_HP}")
    g.A(f"s_cmp_lg_u32 s{S_FIRST}, 0"); g.A("s_cbranch_scc1 L_fl1")
    g.A(f"v_mov_b32 v{V_FD}, 0")
    g.A("s_mov_b64 exec, 0xffff")
    g.A(f"buffer_store_dword v{V_FD}, v{V_FA}, s[{SRD_FL}:{SRD_FL+3}], 0 offen sc1")
    g.A("s_mov_b64 exec, -1")
    g.label("L_fl1")
    idle(8, "L_ld_idle1")
    g.A(f"s_cmp_lg_u32 s{S_FIRST}, 0"); g.A("s_cbranch_scc1 L_fl2")
    g.A("s_waitcnt vmcnt(0)")
    g.A(f"v_mov_b32 v{V_FD}, 1")
    g.A("s_mov_b64 exec, 1")
    g.A(f"buffer_store_dword v{V_FD}, v{V_RA}, s[{SRD_DBG}:{SRD_DBG+3}], 0 offen sc1")
    g.A("s_mov_b64 exec, -1")
    g.label("L_fl2")
    idle(10, "L_ld_idle2")
    g.A(f"s_cmp_lg_u32 s{S_W}, 0"); g.A("s_cbranch_scc1 L_fl3")
    g.A(f"buffer_load_dword v{V_RD}, v{V_RA}, s[{SRD_DBG}:{SRD_DBG+3}], 0 offen sc1")
    g.label("L_fl3")
    idle(8, "L_ld_idle3")
    g.A("s_waitcnt vmcnt(0)"); g.vm = []
    drain(False)
    g.label("L_vloader")
    g.vm = vm_early
    full_tile_regs(g, "V")
    g.A(f"s_mov_b32 s{S_VOFF}, {2*8192}")
    full_tile(g, o, "V", 2, "V2"); full_tile(g, o, "V", 3, "V3")
    g.wait_vm(["V0", "K2"])
    g.A(f"s_mov_b32 s{S_CNT}, 4")
    g.label("L_vld_loop")
    for t in range(6):
        g.A("s_waitcnt vmcnt(24)"); g.A("s_barrier")
        if not o.x_nodma: full_tile(g, o, "V", t+4, f"V{t+4}")
    g.A(f"s_sub_u32 s{S_CNT}, s{S_CNT}, 1"); g.A(f"s_cmp_lg_u32 s{S_CNT}, 0"); g.A("s_cbranch_scc1 L_vld_loop")
    g.vm = []
    for t in range(24, 28): g.vm += [f"V{t}"]*8
    for t in range(24, 28):
        g.wait_vm(f"V{t}"); g.A("s_barrier"); full_tile(g, o, "V", t+4, f"V{t+4}")
    drain(True)

def loader_tail(g, o):
    g.label("L_ld_tail")
    g.A(f"s_cmp_lg_u32 s{S_W}, 0"); g.A("s_cbranch_scc1 L_ld_tail1")
    g.A(f"s_mov_b32 s{S_CNT}, 0")
    g.label("L_rdy")
    g.A(f"v_readfirstlane_b32 s{S_T1}, v{V_RD}")
    g.A(f"s_add_u32 s{S_CNT}, s{S_CNT}, 1")
    g.A(f"s_cmp_lg_u32 s{S_T1}, 0"); g.A("s_cbranch_scc1 L_ld_tail1")
    g.A(f"s_cmp_ge_u32 s{S_CNT}, 0x40000"); g.A("s_cbranch_scc1 L_ld_tail1")
    g.A(f"buffer_load_dword v{V_RD}, v{V_RA}, s[{SRD_DBG}:{SRD_DBG+3}], 0 offen sc1")
    g.A("s_waitcnt vmcnt(0)")
    g.A("s_branch L_rdy")
    g.label("L_ld_tail1")
    g.A(f"s_lshl_b32 s{S_T0}, s{S_BB}, 4"); g.A(f"s_add_u32 s{S_T0}, s{S_T0}, s{S_HP}"); g.A(f"s_lshl_b32 s{S_T0}, s{S_T0}, 7")
    g.A(f"s_add_u32 s{S_T0}, s{S_T0}, {FLAGB}")
    g.A(f"v_mov_b32 v2, s{S_T0}"); g.A("v_mov_b32 v3, 1")
    g.A("s_barrier")
    g.A(f"s_cmp_lg_u32 s{S_W}, 0"); g.A("s_cbranch_scc1 L_ld_tail2")
    g.A("s_mov_b64 exec, 1")
    g.A(f"buffer_store_dword v3, v2, s[{SRD_FL}:{SRD_FL+3}], 0 offen sc1")
    g.A("s_mov_b64 exec, 0xffff")
    g.A(f"s_mov_b32 s{S_CNT}, 0")
    g.label("L_poll")
    g.A(f"buffer_load_dword v4, v{V_FA}, s[{SRD_FL}:{SRD_FL+3}], 0 offen sc1")
    g.A(f"s_add_u32 s{S_CNT}, s{S_CNT}, 1")
    g.A("s_waitcnt vmcnt(0)")
    g.A("v_cmp_eq_u32 vcc, 1, v4")
    g.A("s_cmp_eq_u64 vcc, exec"); g.A("s_cbranch_scc1 L_poll_done")
    g.A(f"s_cmp_ge_u32 s{S_CNT}, 0x40000"); g.A("s_cbranch_scc1 L_poll_done")
    if int(o.sleep): g.A(f"s_sleep {int(o.sleep)}")
    g.A("s_branch L_poll")
    g.label("L_poll_done")
    g.A("s_mov_b64 exec, -1")
    g.label("L_ld_tail2")
    g.A("s_barrier")
    if o.stamps is True:
        stamp(g, o, 7)
        g.A(f"s_cmp_lg_u32 s{S_W}, 0"); g.A("s_cbranch_scc1 L_ld_end")
        dump_stamps(g, 0x1010000)
        g.label("L_ld_end")
    g.A("s_endpgm")

def dump_stamps(g, base):
    g.A(f"s_add_u32 s40, s{S_WS}, {base}"); g.A(f"s_addc_u32 s41, s{S_WS+1}, 0"); g.A("s_and_b32 s41, s41, 0xffff")
    g.A("s_mov_b32 s42, 0x10000"); g.A("s_mov_b32 s43, 0x20000")
    for k in range(16): g.A(f"v_mov_b32 v{16+k}, s{S_STAMP+k}")
    g.A(f"s_lshl_b32 s{S_T0}, s2, 6"); g.A(f"v_mov_b32 v13, s{S_T0}")
    g.A("s_mov_b64 exec, 1")
    for k in range(4): g.A(f"buffer_store_dwordx4 v[{16+4*k}:{19+4*k}], v13, s[40:43], 0 offen offset:{16*k}")
    g.A("s_waitcnt vmcnt(0)")
    g.A("s_mov_b64 exec, -1")

def p1_compute(g, o):
    g.C("==== P1: Q projection")
    L = V_LANE; t0, t1, t2 = V_TMP, V_TMP+1, V_TMP+2
    g.A(f"s_mov_b32 s{S_THR}, {hex(fbits(float(2.0 ** float(o.thr))))}"); g.A(f"s_mov_b32 s{S_THRLO}, {hex(fbits(THR_LO))}")
    g.A(f"s_mov_b32 s{S_C}, {hex(fbits(CSCALE))}"); g.A(f"s_mov_b32 s{S_C+1}, {hex(fbits(CSCALE))}")
    for i in range(64): g.A(f"v_mov_b32 v{V_O+i}, 0")
    g.A(f"v_lshrrev_b32 v{t0}, 4, v{L}"); g.A(f"v_and_b32 v{t1}, 15, v{L}")
    g.A(f"v_xor_b32 v{t2}, v{t0}, v{t1}"); g.A(f"v_lshlrev_b32 v{t2}, 4, v{t2}")
    g.A(f"v_lshl_add_u32 v{V_XR}, v{t1}, 8, v{t2}")
    g.A(f"s_lshl_b32 s{S_RING}, s{S_W}, 14"); g.A(f"s_add_u32 s{S_RING}, s{S_RING}, {WQB}")
    r_, cc, sw = 12, 13, 14
    g.A(f"v_bfe_u32 v{r_}, v{L}, 2, 2"); g.A(f"v_and_b32 v{cc}, 3, v{L}")
    g.A(f"v_and_b32 v{sw}, 2, v{r_}"); g.A(f"v_and_b32 v{t2}, 1, v{t0}")
    g.A(f"v_lshl_or_b32 v{sw}, v{t2}, 2, v{sw}")
    g.A(f"v_lshrrev_b32 v{t2}, 1, v{cc}"); g.A(f"v_or_b32 v{sw}, v{sw}, v{t2}"); g.A(f"v_lshlrev_b32 v{sw}, 4, v{sw}")
    g.A(f"v_and_b32 v{t2}, 1, v{cc}"); g.A(f"v_lshl_add_u32 v{sw}, v{t2}, 3, v{sw}")
    g.A(f"v_lshl_add_u32 v{t2}, v{t0}, 3, v{r_}"); g.A(f"v_lshl_add_u32 v{sw}, v{t2}, 7, v{sw}")
    g.A(f"v_add_u32 v{sw}, s{S_RING}, v{sw}")
    for cb in range(4): g.A(f"v_xor_b32 v{V_WR+cb}, {cb << 5}, v{sw}")
    V_QW = 16
    g.A(f"s_and_b32 s{S_T0}, s{S_W}, 1"); g.A(f"s_lshl_b32 s{S_T0}, s{S_T0}, 3")
    g.A(f"v_lshrrev_b32 v{t2}, 1, v{t0}")
    g.A(f"v_xor_b32 v{t2}, v{t2}, v{t1}"); g.A(f"v_xor_b32 v{t2}, s{S_T0}, v{t2}"); g.A(f"v_lshlrev_b32 v{t2}, 4, v{t2}")
    g.A(f"v_and_b32 v{t0}, 1, v{t0}"); g.A(f"v_lshl_add_u32 v{t2}, v{t0}, 3, v{t2}")
    g.A(f"s_lshr_b32 s{S_T0}, s{S_W}, 1"); g.A(f"s_mul_i32 s{S_T0}, s{S_T0}, {48*256}"); g.A(f"s_add_u32 s{S_T0}, s{S_T0}, {QB}")
    g.A(f"v_lshl_add_u32 v{t2}, v{t1}, 8, v{t2}"); g.A(f"v_add_u32 v{t2}, s{S_T0}, v{t2}")
    for cb in range(4): g.A(f"v_xor_b32 v{V_QW+cb}, {cb << 5}, v{t2}")
    g.A("s_waitcnt lgkmcnt(0)")
    g.A(f"s_lshl_b32 s{S_T1}, s{S_BB}, 4"); g.A(f"s_add_u32 s{S_T1}, s{S_T1}, s{S_HP}"); g.A(f"s_mul_i32 s{S_T1}, s{S_T1}, 49152")
    srd(g, SRD_P, S_WS, S_WS+1, f"s{S_T1}", 49152)
    select_branch(g, [2, 3])
    srd_kv(g, "K")
    def reads(i):
        out = []; buf = i % 2; slot = i % 4; vt = V_XT + buf
        def addr():
            g.A(f"s_add_u32 s{S_T0}, s{S_S0}, {i}"); g.A(f"s_and_b32 s{S_T0}, s{S_T0}, 15")
            g.A(f"s_and_b32 s{S_T1}, s{S_T0}, 3"); g.A(f"s_lshl_b32 s{S_T1}, s{S_T1}, 6")
            g.A(f"s_lshr_b32 s{S_T0}, s{S_T0}, 2"); g.A(f"s_mul_i32 s{S_T0}, s{S_T0}, 12288"); g.A(f"s_add_u32 s{S_T0}, s{S_T0}, {XB}")
            g.A(f"v_xor_b32 v{vt}, s{S_T1}, v{V_XR}"); g.A(f"v_add_u32 v{vt}, s{S_T0}, v{vt}")
        out.append(addr)
        for cb in range(4):
            for u in range(2):
                out.append(lambda cb=cb, u=u: g.lds(
                    f"ds_read_b64_tr_b16 {ar(A_A1[buf]+4*cb+2*u,2)}, v{V_WR+cb} offset:{slot*4096+u*512}", f"f{i}"))
        for rb in range(3):
            out.append(lambda rb=rb: g.lds(f"ds_read_b128 {ar(A_B1[buf]+4*rb,4)}, v{vt} offset:{rb*4096}", f"f{i}"))
        return out
    r0 = reads(0); r0[0]()
    for i in range(16):
        buf = i % 2
        g.A("s_barrier")
        if i == 0:
            stamp(g, o, 1)
            for f in r0[1:]: f()
        g.wait_lg(f"f{i}")
        mf = []
        for cb in range(4):
            for rb in range(3):
                acc = vr(V_ACC1 + (cb*3 + rb)*4, 4)
                c = "0" if i == 0 else acc
                mf.append(lambda acc=acc, c=c, cb=cb, rb=rb: g.A(
                    f"v_mfma_f32_16x16x32_bf16 {acc}, {ar(A_A1[buf]+4*cb,4)}, {ar(A_B1[buf]+4*rb,4)}, {c}"))
        weave(mf, reads(i + 1) if i + 1 < 16 else [])
    stamp(g, o, 2)
    g.A("s_barrier")
    for cb in range(4):
        for rb in range(3):
            a = V_ACC1 + (cb*3 + rb)*4
            g.A(f"v_pk_mul_f32 {vr(a,2)}, {vr(a,2)}, s[{S_C}:{S_C+1}]"); g.A(f"v_pk_mul_f32 {vr(a+2,2)}, {vr(a+2,2)}, s[{S_C}:{S_C+1}]")
            g.A(f"v_cvt_pk_bf16_f32 v{a}, v{a}, v{a+1}"); g.A(f"v_cvt_pk_bf16_f32 v{a+1}, v{a+2}, v{a+3}")
            g.lds(f"ds_write_b64 v{V_QW+cb}, {vr(a,2)} offset:{rb*4096}", "qw")

def p2_addresses(g):
    L = V_LANE; t0, t1, t2, t3 = V_TMP, V_TMP+1, V_TMP+2, V_TMP+3
    g.A(f"v_and_b32 v{t0}, 31, v{L}"); g.A(f"v_lshrrev_b32 v{t1}, 5, v{L}")
    g.A(f"v_and_b32 v{t2}, 15, v{L}"); g.A(f"v_xor_b32 v{t2}, v{t2}, v{t1}")
    g.A(f"v_lshlrev_b32 v{t2}, 4, v{t2}"); g.A(f"v_lshl_add_u32 v{t2}, v{t0}, 8, v{t2}")
    g.A(f"v_add_u32 v{t2}, {KB}, v{t2}")
    for s in range(8): g.A(f"v_xor_b32 v{V_KA+s}, {s << 5}, v{t2}")
    g.A(f"v_bfe_u32 v{t0}, v{L}, 2, 2")
    g.A(f"v_lshl_add_u32 v{t2}, v{t1}, 2, v{t0}"); g.A(f"v_lshlrev_b32 v{t2}, 8, v{t2}")
    g.A(f"v_lshl_add_u32 v{t2}, v{t0}, 6, v{t2}")
    g.A(f"v_bfe_u32 v{t3}, v{L}, 4, 1"); g.A(f"v_lshl_add_u32 v{t2}, v{t3}, 5, v{t2}")
    g.A(f"v_and_b32 v{t3}, 3, v{L}"); g.A(f"v_lshl_add_u32 v{t2}, v{t3}, 3, v{t2}")
    for blk in range(4): g.A(f"v_xor_b32 v{V_VA+blk}, {blk << 6}, v{t2}")
    g.A(f"s_lshl_b32 s{S_T0}, s{S_W}, 13"); g.A(f"s_add_u32 s{S_T0}, s{S_T0}, {QB-KB}")
    for s in range(8): g.A(f"v_add_u32 v{V_NEGM+s}, s{S_T0}, v{V_KA+s}")
    g.A(f"v_mov_b32 v{V_L}, 0")

def qk_mfma(g, s, dst, first_c):
    c = first_c if s == 0 else vr(dst, 16)
    g.A(f"v_mfma_f32_32x32x16_bf16 {vr(dst,16)}, {ar(A_K+4*s,4)}, {ar(A_Q+4*s,4)}, {c}")
def pv_mfma(g, s, blk, p):
    g.A(f"v_mfma_f32_32x32x16_bf16 {vr(V_O+16*blk,16)}, {ar(A_V+(s*4+blk)*4,4)}, {vr(p+4*s,4)}, {vr(V_O+16*blk,16)}")
def k_read(g, s, t):
    g.lds(f"ds_read_b128 {ar(A_K+4*s,4)}, v{V_KA+s} offset:{kslot(t)-KB}", "K")
def v_read(g, s, blk, u, t):
    g.lds(f"ds_read_b64_tr_b16 {ar(A_V+(s*4+blk)*4+2*u,2)}, v{V_VA+blk} offset:{vslot(t)-VB+4096*s+2048*u}", "V")

def p2_iter(g, t, do_qk=True, do_pv=True):
    o = OPT
    par = t % 2
    Scur, Snew, Pcur, Pprev = V_S[par], V_S[1-par], V_P[par], V_P[1-par]
    g.C(f"---- iteration {t}")
    gaps, left, load = schedule(do_qk, do_pv, cap_lo=int(o.cap_lo), cap_hi=int(o.cap_hi), ntemp=NTEMP)
    assert not left, left
    last_a = max(i for i, gp in enumerate(gaps) if ("A", 15) in gp)
    cmp_gap = min(last_a + 1, 15); br_gap = 15
    first = (t == 0 and o.m0init)
    e = lambda i: V_E + i % NTEMP
    def emit(it):
        k = it[0]
        if k == "E":
            if not o.x_novalu: g.A(f"v_exp_f32 v{e(it[1])}, v{Scur+it[1]}")
        elif k == "A":
            if o.x_novalu: return
            if it[1] == 1: g.A(f"v_add_f32 v{V_TS}, v{e(0)}, v{e(1)}")
            else: g.A(f"v_add_f32 v{V_TS}, v{V_TS}, v{e(it[1])}")
        elif k == "C":
            if not o.x_novalu: g.A(f"v_cvt_pk_bf16_f32 v{Pcur+it[1]}, v{e(2*it[1])}, v{e(2*it[1]+1)}")
        elif k == "K":
            if not o.x_nok: k_read(g, it[1], t+2)
        elif k == "V":
            if not o.x_nov: v_read(g, it[1]//4, it[1] % 4, it[2], t)
    for m in range(16):
        if m < 8 and do_qk and not o.x_nomfma: qk_mfma(g, m, Snew, vr(V_NEGM, 16))
        elif m >= 8 and do_pv and not o.x_nomfma: pv_mfma(g, (m-8)//4, (m-8) % 4, Pprev)
        else: g.A("s_nop 0")
        items = gaps[m]
        if ("X", "bar") in items: g.A("s_barrier")
        if m == cmp_gap:
            g.A(f"v_cmp_lt_f32 vcc, s{S_THR}, v{V_TS}")
            if first: g.A(f"v_cmp_gt_f32 s[{S_RET}:{S_RET+1}], s{S_THRLO}, v{V_TS}")
        for it in items:
            if it[0] != "X": emit(it)
        if m == br_gap:
            if first: g.A(f"s_or_b64 vcc, vcc, s[{S_RET}:{S_RET+1}]")
            g.A(f"s_cbranch_vccnz L_rare_{t}")
            g.label(f"L_back_{t}")
            g.A(f"v_add_f32 v{V_L}, v{V_L}, v{V_TS}")
        if m == 7 and do_pv: g.A(f"s_waitcnt lgkmcnt({8 if do_qk else 0})")
        if m == 15: g.A(f"s_waitcnt lgkmcnt({15 if do_pv else 0})")
    g.lg = []

def rare_stub(g, t):
    g.label(f"L_rare_{t}")
    sub = "L_rescale_first" if (t == 0 and OPT.m0init) else f"L_rescale_{t%2}"
    g.A(f"s_call_b64 s[{S_RET}:{S_RET+1}], {sub}")
    g.A(f"s_branch L_back_{t}")

def rowmax(g, S, dst, tmp):
    g.A(f"v_max3_f32 v{dst}, v{S}, v{S+1}, v{S+2}")
    for k in range(3, 15, 2): g.A(f"v_max3_f32 v{dst}, v{dst}, v{S+k}, v{S+k+1}")
    g.A(f"v_max_f32 v{dst}, v{dst}, v{S+15}")
    g.A(f"v_mov_b32 v{tmp}, v{dst}"); g.A("s_nop 1")
    g.A(f"v_permlane32_swap_b32 v{tmp}, v{dst}")
    g.A(f"v_max_f32 v{dst}, v{dst}, v{tmp}")

def rescale_sub(g, par, first=False):
    Scur, Snew, Pcur = V_S[par], V_S[1-par], V_P[par]
    d, tmp, f = V_T, V_T+1, V_F
    g.label("L_rescale_first" if first else f"L_rescale_{par}")
    g.A("s_nop 15"); g.A("s_nop 15")
    rowmax(g, Scur, d, tmp)
    if not first: g.A(f"v_max_f32 v{d}, 0, v{d}")
    for i in range(16):
        g.A(f"v_sub_f32 v{Scur+i}, v{Scur+i}, v{d}")
        g.A(f"v_sub_f32 v{Snew+i}, v{Snew+i}, v{d}")
        g.A(f"v_sub_f32 v{V_NEGM+i}, v{V_NEGM+i}, v{d}")
    if not first:
        g.A(f"v_sub_f32 v{f}, 0, v{d}"); g.A(f"v_exp_f32 v{f}, v{f}"); g.A("s_nop 0")
        g.A(f"v_mul_f32 v{V_L}, v{V_L}, v{f}")
        for i in range(64): g.A(f"v_mul_f32 v{V_O+i}, v{V_O+i}, v{f}")
    for k in range(8):
        g.A(f"v_exp_f32 v{V_E}, v{Scur+2*k}"); g.A(f"v_exp_f32 v{V_E+1}, v{Scur+2*k+1}"); g.A("s_nop 0")
        if k == 0: g.A(f"v_add_f32 v{V_TS}, v{V_E}, v{V_E+1}")
        else:
            g.A(f"v_add_f32 v{V_TS}, v{V_TS}, v{V_E}"); g.A(f"v_add_f32 v{V_TS}, v{V_TS}, v{V_E+1}")
        g.A(f"v_cvt_pk_bf16_f32 v{Pcur+k}, v{V_E}, v{V_E+1}")
    g.A("s_nop 1")
    g.A(f"s_setpc_b64 s[{S_RET}:{S_RET+1}]")

def p2_compute(g, o):
    g.C("==== P2: attention, compute waves 0..2")
    L = V_LANE; t0, t1, t2 = V_TMP, V_TMP+1, V_TMP+2
    for s in range(8): g.lds(f"ds_read_b128 {ar(A_Q+4*s,4)}, v{V_NEGM+s}", "Q")
    for s in range(8): k_read(g, s, 0)
    if o.m0init:
        for i in range(16): g.A(f"v_mov_b32 v{V_NEGM+i}, 0")
    g.wait_lg0()
    for s in range(8):
        qk_mfma(g, s, V_S[0], "0")
        k_read(g, s, 1)
    if not o.m0init:
        g.A("s_nop 15")
        rowmax(g, V_S[0], V_T, V_T+1)
        for i in range(16): g.A(f"v_sub_f32 v{V_NEGM+i}, 0, v{V_T}")
        for i in range(16): g.A(f"v_sub_f32 v{V_S[0]+i}, v{V_S[0]+i}, v{V_T}")
    else:
        g.A("s_nop 7")
    g.A("s_waitcnt lgkmcnt(0)")
    p2_iter(g, 0, do_pv=False)
    g.A(f"s_mov_b32 s{S_CNT}, 5")
    g.label("L_p2_loop")
    for t in range(1, 7): p2_iter(g, t)
    g.A(f"s_sub_u32 s{S_CNT}, s{S_CNT}, 1"); g.A(f"s_cmp_lg_u32 s{S_CNT}, 0"); g.A("s_cbranch_scc1 L_p2_loop")
    p2_iter(g, 31, do_qk=False)
    g.A("s_waitcnt lgkmcnt(0)")
    g.A("s_barrier")
    stamp(g, o, 4)
    base = V_TMP+3; AD = V_S[0]
    addr = []
    addr.append(lambda: g.A(f"s_lshl_b32 s{S_T0}, s{S_W}, 5"))
    addr.append(lambda: (g.A(f"v_and_b32 v{t0}, 31, v{L}"), g.A(f"v_add_u32 v{t0}, s{S_T0}, v{t0}")))
    addr.append(lambda: (g.A(f"v_cmp_le_u32 vcc, 48, v{t0}"), g.A(f"v_subrev_u32 v{t1}, 48, v{t0}"), g.A(f"v_mov_b32 v{t2}, 0")))
    addr.append(lambda: (g.A(f"v_cndmask_b32 v{t0}, v{t0}, v{t1}, vcc"), g.A(f"v_mov_b32 v{t1}, 256")))
    addr.append(lambda: (g.A(f"v_cndmask_b32 v{t2}, v{t2}, v{t1}, vcc"), g.A(f"v_lshl_add_u32 v{base}, v{t0}, 9, v{t2}")))
    addr.append(lambda: (g.A(f"v_and_b32 v{t0}, 15, v{t0}"), g.A(f"v_lshl_add_u32 v{base}, v{t0}, 4, v{base}")))
    addr.append(lambda: (g.A(f"v_lshrrev_b32 v{t0}, 5, v{L}"), g.A(f"v_lshl_add_u32 v{base}, v{t0}, 3, v{base}")))
    addr.append(lambda: g.A(f"v_add_u32 v{base}, {OB}, v{base}"))
    k = 0
    for s in range(2):
        for blk in range(4):
            pv_mfma(g, s, blk, V_P[1]); addr[k](); k += 1
    g.A(f"v_mov_b32 v{V_T}, v{V_L}")
    for j in range(16): g.A(f"v_xor_b32 v{AD+j}, {j << 4}, v{base}")
    g.A(f"v_permlane32_swap_b32 v{V_T}, v{V_L}")
    g.A(f"v_add_f32 v{V_L}, v{V_L}, v{V_T}")
    g.A(f"v_rcp_f32 v{V_T}, v{V_L}"); g.A("s_nop 0"); g.A(f"v_mov_b32 v{V_T+1}, v{V_T}")
    for blk in range(4):
        for i in range(4):
            a = V_O + 16*blk + 4*i
            g.A(f"v_pk_mul_f32 {vr(a,2)}, {vr(a,2)}, {vr(V_T,2)}"); g.A(f"v_pk_mul_f32 {vr(a+2,2)}, {vr(a+2,2)}, {vr(V_T,2)}")
            g.A(f"v_cvt_pk_bf16_f32 v{a}, v{a}, v{a+1}"); g.A(f"v_cvt_pk_bf16_f32 v{a+1}, v{a+2}, v{a+3}")
            g.lds(f"ds_write_b64 v{AD+4*blk+i}, {vr(a,2)}", "ow")

def p2_kloader(g, o):
    g.C("==== P2: wave 3 streams K")
    g.vm = []
    full_tile_regs(g, "K")
    g.A(f"s_mov_b32 s{S_KOFF}, {4*8192}")
    full_tile(g, o, "K", 4, "K4"); full_tile(g, o, "K", 5, "K5")
    g.A(f"s_mov_b32 s{S_CNT}, 4")
    g.label("L_kld_loop")
    for t in range(6):
        g.A("s_waitcnt vmcnt(24)"); g.A("s_barrier")
        if not o.x_nodma: full_tile(g, o, "K", t+6, f"K{t+6}")
    g.A(f"s_sub_u32 s{S_CNT}, s{S_CNT}, 1"); g.A(f"s_cmp_lg_u32 s{S_CNT}, 0"); g.A("s_cbranch_scc1 L_kld_loop")
    g.vm = []
    for t in range(26, 30): g.vm += [f"K{t}"]*8
    for t in range(24, 32):
        if t + 2 < 32: g.wait_vm(f"K{t+2}")
        g.A("s_barrier")
        if t + 6 < 32: full_tile(g, o, "K", t+6, f"K{t+6}")
    g.A("s_barrier")

def p3_compute(g, o):
    g.C("==== P3: partial output projection")
    L = V_LANE; t0, t1, t2, t3 = 12, 13, 14, 15
    for s in range(4): select_by_wave(g, S_WOA + s, [WO_ADDR[s][w] for w in range(4)])
    g.A(f"v_lshrrev_b32 v{t0}, 4, v{L}"); g.A(f"v_and_b32 v{t1}, 15, v{L}")
    g.A(f"v_xor_b32 v{t2}, v{t0}, v{t1}"); g.A(f"v_lshlrev_b32 v{t2}, 4, v{t2}")
    g.A(f"v_lshl_add_u32 v{V_OR}, v{t1}, 9, v{t2}"); g.A(f"v_add_u32 v{V_OR}, {OB}, v{V_OR}")
    g.A(f"v_bfe_u32 v{t1}, v{L}, 2, 2")
    g.A(f"v_and_b32 v{t2}, 1, v{t0}"); g.A(f"v_lshl_or_b32 v{t2}, v{t2}, 2, v{t1}"); g.A(f"v_lshlrev_b32 v{t2}, 5, v{t2}")
    g.A(f"v_lshl_add_u32 v{t3}, v{t0}, 3, v{t1}"); g.A(f"v_lshl_add_u32 v{t2}, v{t3}, 8, v{t2}")
    g.A(f"v_and_b32 v{t3}, 3, v{L}"); g.A(f"v_lshl_add_u32 v{t2}, v{t3}, 3, v{t2}")
    g.wait_lg0()
    for cb in range(8): g.A(f"v_xor_b32 v{2+cb}, {cb << 5}, v{t2}")
    for s in range(4):
        for cb in range(8): g.A(f"v_add_u32 v{V_WOR+8*s+cb}, s{S_WOA+s}, v{2+cb}")
    g.A("s_barrier")
    stamp(g, o, 5)
    V_ST = 13
    g.A(f"v_lshlrev_b32 v{V_ST}, 4, v{L}")
    g.A(f"s_mul_i32 s{S_T3}, s{S_W}, 12288")
    def b_reads(i):
        vt = V_OT + i % 2
        g.A(f"s_add_u32 s{S_T0}, s{S_WOROT}, {i}"); g.A(f"s_and_b32 s{S_T0}, s{S_T0}, 7"); g.A(f"s_lshl_b32 s{S_T0}, s{S_T0}, 6")
        g.A(f"v_xor_b32 v{vt}, s{S_T0}, v{V_OR}")
        for rb in range(3): g.lds(f"ds_read_b128 {ar(A_B3[i%2]+4*rb,4)}, v{vt} offset:{rb*8192}", f"B{i}")
    def a_read(i, cb, u):
        g.lds(f"ds_read_b64_tr_b16 {ar(A_A3+4*cb+2*u,2)}, v{V_WOR+8*(i%4)+cb} offset:{u*1024}", f"A{i}_{cb}")
    def store_pair(cbp):
        for rb in range(3):
            a0 = V_ACC3 + ((2*cbp)*3 + rb)*4; a1 = V_ACC3 + ((2*cbp+1)*3 + rb)*4
            d = 2 + 4*((cbp*3+rb) % 2)
            g.A(f"v_cvt_pk_bf16_f32 v{d}, v{a0}, v{a0+1}"); g.A(f"v_cvt_pk_bf16_f32 v{d+1}, v{a0+2}, v{a0+3}")
            g.A(f"v_cvt_pk_bf16_f32 v{d+2}, v{a1}, v{a1+1}"); g.A(f"v_cvt_pk_bf16_f32 v{d+3}, v{a1+2}, v{a1+3}")
            pol = f" {o.pol_st}" if o.pol_st else ""
            g.A(f"s_add_u32 s{S_T2}, s{S_T3}, {rb*4096}")
            g.vmem(f"buffer_store_dwordx4 {vr(d,4)}, v{V_ST}, s[{SRD_P}:{SRD_P+3}], s{S_T2} offen offset:{cbp*1024}{pol}", "st")
    b_reads(0)
    for cb in range(8):
        for u in range(2): a_read(0, cb, u)
    for i in range(8):
        nxt = i + 1 < 8
        if i > 0: g.A("s_barrier")
        if nxt: b_reads(i + 1)
        for cb in range(8):
            if cb % 2 == 0: g.wait_lg([f"A{i}_{cb}", f"A{i}_{cb+1}", f"B{i}"])
            for rb in range(3):
                acc = vr(V_ACC3 + (cb*3 + rb)*4, 4)
                c = "0" if i == 0 else acc
                g.A(f"v_mfma_f32_16x16x32_bf16 {acc}, {ar(A_A3+4*cb,4)}, {ar(A_B3[i%2]+4*rb,4)}, {c}")
                if nxt and cb >= 1 and rb >= 1: a_read(i + 1, cb - 1, rb - 1)
            if not nxt and cb in (3, 5, 7): store_pair((cb - 3) // 2)
        if nxt:
            for u in range(2): a_read(i + 1, 7, u)
    stamp(g, o, 6)
    g.A("s_nop 3")
    store_pair(3)

def compute_tail(g, o):
    L = V_LANE
    g.C("==== reduction of the 16 partial slabs of this (branch, batch)")
    R, T = S_T2, S_T3
    g.A(f"s_mul_i32 s{R}, s{S_HP}, 3"); g.A(f"s_add_u32 s{R}, s{R}, s{S_W}")
    srd(g, 4, S_WS, S_WS+1, None, 256*49152)
    srd(g, 8, S_OUT, S_OUT+1, None, 786432)
    g.A(f"s_mul_i32 s12, s{S_BB}, 786432"); g.A(f"s_lshl_b32 s{T}, s{R}, 10"); g.A(f"s_add_u32 s12, s12, s{T}")
    g.A(f"s_mul_i32 s13, s{R}, 43"); g.A("s_lshr_b32 s13, s13, 9")
    g.A("s_mul_i32 s14, s13, 12"); g.A(f"s_sub_u32 s14, s{R}, s14")
    g.A("s_lshr_b32 s15, s14, 2"); g.A("s_and_b32 s14, s14, 3")
    g.A(f"s_mul_i32 s16, s{S_B}, 98304")
    g.A(f"s_lshl_b32 s17, s{S_BR}, 10"); g.A("s_add_u32 s16, s16, s17")
    g.A("s_lshl_b32 s17, s15, 15"); g.A("s_add_u32 s16, s16, s17")
    g.A("s_lshl_b32 s17, s13, 8"); g.A("s_add_u32 s16, s16, s17")
    g.A("s_lshl_b32 s17, s14, 6"); g.A("s_add_u32 s16, s16, s17")
    g.A(f"v_lshlrev_b32 v12, 4, v{L}")
    g.A(f"v_and_b32 v13, 15, v{L}"); g.A(f"v_lshrrev_b32 v14, 4, v{L}")
    g.A("v_lshlrev_b32 v13, 11, v13"); g.A("v_lshl_add_u32 v13, v14, 3, v13")
    g.A("s_waitcnt vmcnt(0)"); g.vm = []
    g.A("s_barrier")
    g.A("s_barrier")
    stamp(g, o, 7)
    g.A(f"s_cmp_ge_u32 s{S_W}, 3"); g.A("s_cbranch_scc1 L_red_done")
    for q in range(16):
        g.vmem(f"buffer_load_dwordx4 v[{16+4*q}:{19+4*q}], v12, s[4:7], s12 offen sc1", f"p{q}")
        if q < 15: g.A("s_add_u32 s12, s12, 49152")
    for q in range(16):
        g.wait_vm(f"p{q}")
        for j in range(4):
            src = 16 + 4*q + j
            if q == 0:
                g.A(f"v_lshlrev_b32 v{2+2*j}, 16, v{src}"); g.A(f"v_and_b32 v{3+2*j}, 0xffff0000, v{src}")
            else:
                g.A(f"v_lshlrev_b32 v10, 16, v{src}"); g.A(f"v_and_b32 v11, 0xffff0000, v{src}")
                g.A(f"v_add_f32 v{2+2*j}, v{2+2*j}, v10"); g.A(f"v_add_f32 v{3+2*j}, v{3+2*j}, v11")
    for j in range(4): g.A(f"v_cvt_pk_bf16_f32 v{16+j}, v{2+2*j}, v{3+2*j}")
    g.A("buffer_store_dwordx2 v[16:17], v13, s[8:11], s16 offen")
    g.A("buffer_store_dwordx2 v[18:19], v13, s[8:11], s16 offen offset:32")
    g.label("L_red_done")
    if o.stamps is True:
        g.A(f"s_cmp_lg_u32 s{S_W}, 0"); g.A("s_cbranch_scc1 L_end")
        g.A("s_waitcnt vmcnt(0)")
        dump_stamps(g, 0x1000000)
    elif o.stamps == "dbg":
        dbg_stamps(g, o)

def dbg_stamps(g, o):
    g.A("s_waitcnt vmcnt(0)")
    g.A("s_memrealtime s[100:101]"); g.A("s_waitcnt lgkmcnt(0)")
    g.A(f"s_cmp_lg_u32 s{S_W}, 0"); g.A("s_cbranch_scc1 L_end")
    g.A(f"s_cmp_lg_u32 s2, {int(o.dbgwg)}"); g.A("s_cbranch_scc1 L_end")
    srd(g, 40, S_DBG, S_DBG+1, None, 256)
    for k in range(1, 8):
        g.A(f"s_sub_u32 s{S_T0}, s{S_STAMP+k}, s{S_STAMP}"); g.A(f"v_mov_b32 v{16+k-1}, s{S_T0}")
    g.A(f"s_sub_u32 s{S_T0}, s100, s{S_STAMP}"); g.A(f"v_mov_b32 v23, s{S_T0}")
    for k in range(1, 8):
        g.A(f"s_sub_u32 s{S_T0}, s{S_STAMP+8+k}, s{S_STAMP+8}"); g.A(f"v_mov_b32 v{24+k-1}, s{S_T0}")
    g.A("v_mov_b32 v31, 0"); g.A("v_mov_b32 v13, 0")
    g.A("s_mov_b64 exec, 1")
    for k in range(4): g.A(f"buffer_store_dwordx4 v[{16+4*k}:{19+4*k}], v13, s[40:43], 0 offen offset:{16*k}")
    g.A("s_waitcnt vmcnt(0)")

def k1(g, o):
    header(g, K1)
    entry(g, o)
    g.A(f"s_cmp_ge_u32 s{S_W}, 4"); g.A("s_cbranch_scc1 L_loader")
    if int(o.prio): g.A(f"s_setprio {int(o.prio)}")
    p1_compute(g, o)
    g.A(f"s_cmp_eq_u32 s{S_W}, 3"); g.A("s_cbranch_scc1 L_wave3")
    p2_addresses(g)
    g.wait_lg0()
    g.A("s_barrier")
    stamp(g, o, 3)
    p2_compute(g, o)
    g.A("s_branch L_p3")
    g.label("L_wave3")
    g.A("s_waitcnt lgkmcnt(0)"); g.lg = []
    g.A("s_barrier")
    p2_kloader(g, o)
    g.label("L_p3")
    g.vm = []
    p3_compute(g, o)
    compute_tail(g, o)
    g.label("L_end")
    g.A("s_endpgm")
    g.label("L_loader")
    g.lg = []; g.vm = []
    loader(g, o)
    loader_tail(g, o)
    for par in range(2): rescale_sub(g, par)
    if o.m0init: rescale_sub(g, 0, first=True)
    for t in [0, 1, 2, 3, 4, 5, 6, 31]: rare_stub(g, t)

def build(o):
    g = G()
    g.A("; @launch grid=(256,1,1) block=(512,1,1) lds=163840")
    g.A('.amdgcn_target "amdgcn-amd-amdhsa--gfx950"')
    k1(g, o)
    descriptor(g, K1, 256, ACC_OFF)
    return g

if __name__ == "__main__":
    o = Opt(); OPT = o
    for a in sys.argv[2:]:
        k, v = a.split("=", 1)
        setattr(o, k, {"True": True, "False": False}.get(v, v))
    g = build(o)
    probs = check(g.L)
    for p in probs[:8]: print("HAZARD", p)
    open(sys.argv[1], "w").write(g.text())
    print("lines", len(g.L))
```

```python
import sys, math, struct
from asmlib import G, check
from sched import schedule

PREFIX = "concat_heads__gqa_block_cached__gqa_block_cached__near_ridge"
K1 = PREFIX + "_kernel"

VB = 0
KB = 65536
XB = 114688
QB = XB
OB = 139264
WQB = 16384
NS = 6
def kslot(i): return KB + (NS - 1 - i % NS) * 8192
def vslot(i): return VB + (i % NS) * 8192
WO_ADDR = [[49152, 57344, 114688, 122880],
           [131072, kslot(26), kslot(27), kslot(28)],
           [vslot(26), kslot(29), vslot(27), kslot(30)],
           [vslot(28), kslot(31), vslot(29), vslot(30)]]
FLAGB = 14 << 20

CSCALE = math.log2(math.e) / math.sqrt(128.0)
def fbits(x): return struct.unpack("<I", struct.pack("<f", x))[0]
THR_HI = float(2 ** 20)
THR_LO = float(2 ** -20)

S_W = 3
SRD_X, SRD_WQ, SRD_K, SRD_V, SRD_WO, SRD_P = 4, 8, 12, 16, 20, 24
S_DBG, S_OUT, S_WS = 94, 96, 52
S_HKV, S_HALF, S_B, S_BR = 54, 55, 56, 57
S_S0, S_RING = 58, 59
S_T0, S_T1, S_T2, S_T3 = 60, 61, 62, 63
S_CNT = 64
S_KOFF, S_VOFF = 65, 66
S_THR = 67
S_C = 68
S_RET = 70
S_STAMP = 72
S_WOA = 88
S_BB, S_HP = 92, 93
S_LD2K, S_FIRST, S_THRLO, S_WOROT = 28, 29, 30, 31
S_XM, S_XO = 98, 99
SRD_DBG, SRD_FL = 32, 36

ACC_OFF = 160
V_LANE = 1
V_XR, V_XT = 2, 3
V_WR = 5
V_ACC1 = 32
V_E = 2; NTEMP = 8
V_L, V_TS, V_T, V_F = 10, 11, 12, 14
V_KA, V_VA = 16, 24
V_TMP = 28
V_S = [32, 48]; V_P = [64, 72]; V_NEGM = 80; V_O = 96
A_Q, A_K, A_V = 0, 32, 64
A_A1 = [0, 16]; A_B1 = [32, 44]
V_OR, V_OT = 10, 11
V_ACC3 = 16
V_WOR = 112
A_A3 = [0, 16]; A_B3 = [32, 44]
V_STG = 32
V_XD = 2; V_WD = 4; V_KE0, V_KE1, V_VE = 8, 9, 10; V_WOD = 12; V_LT = 16
V_FA, V_FD, V_RA, V_RD = 20, 21, 22, 23
V_FT = 24

def vr(b, n=1): return f"v{b}" if n == 1 else f"v[{b}:{b+n-1}]"
def ar(b, n=1): return f"a{b}" if n == 1 else f"a[{b}:{b+n-1}]"

class Opt:
    nt_kv = "nt"; pol_w = ""; pol_x = ""; pol_st = "sc1"
    stamps = False; rot = True; sleep = 1; dbgwg = 37
    cap_lo = 24; cap_hi = 24
    dot2 = True; code_pf = False; wo_pf = True; stage = False; front = 9; kv_pol1 = None; first_nt = True; nt_x = 0; nt_wq = 2; nt_wo = 1; pretouch = False; m0init = False; prio = 0; thr = 20
    x_now = False; x_nost = False; x_nok = False; x_nov = False; x_novalu = False; x_nomfma = False; x_nodma = False
OPT = None

def stamp(g, o, idx):
    if o.stamps:
        g.A("s_memrealtime s[100:101]"); g.A("s_waitcnt lgkmcnt(0)"); g.A(f"s_mov_b32 s{S_STAMP+idx}, s100")
        cyc = {0: 12, 3: 13, 4: 14, 8: 15}
        if idx in cyc:
            g.A("s_memtime s[100:101]"); g.A("s_waitcnt lgkmcnt(0)"); g.A(f"s_mov_b32 s{S_STAMP+cyc[idx]}, s100")
        g.lg = []

def header(g, name):
    g.A(".text"); g.A(f".globl {name}"); g.A(".p2align 8"); g.A(f".type {name},@function"); g.label(name)

def descriptor(g, name, vgpr, accum, sgpr=102):
    g.A('.section .rodata,"a"'); g.A(".p2align 6"); g.A(f".amdhsa_kernel {name}")
    g.A(f".amdhsa_next_free_vgpr {vgpr}"); g.A(f".amdhsa_next_free_sgpr {sgpr}"); g.A(f".amdhsa_accum_offset {accum}")
    g.A(".amdhsa_group_segment_fixed_size 0"); g.A(".amdhsa_kernarg_size 104"); g.A(".amdhsa_user_sgpr_count 2")
    g.A(".amdhsa_user_sgpr_kernarg_segment_ptr 1"); g.A(".amdhsa_system_sgpr_workgroup_id_x 1"); g.A(".end_amdhsa_kernel")

def srd(g, d, lo, hi, off_s, nrec):
    if off_s is None:
        g.A(f"s_mov_b32 s{d}, s{lo}"); g.A(f"s_and_b32 s{d+1}, s{hi}, 0xffff")
    else:
        g.A(f"s_add_u32 s{d}, s{lo}, {off_s}"); g.A(f"s_addc_u32 s{d+1}, s{hi}, 0"); g.A(f"s_and_b32 s{d+1}, s{d+1}, 0xffff")
    g.A(f"s_mov_b32 s{d+2}, {nrec}"); g.A(f"s_mov_b32 s{d+3}, 0x20000")

def dma(g, voff, srd_, soff, imm, pol, tag):
    off = f" offset:{imm}" if imm else ""
    pol = f" {pol}" if pol else ""
    g.vmem(f"buffer_load_dwordx4 v{voff}, s[{srd_}:{srd_+3}], {soff} offen{off}{pol} lds", tag)

_lab = [0]
def dma_group(g, o, items, tag):
    if o.kv_pol1 is None:
        for it in items: dma(g, *it, o.nt_kv, tag)
        return
    _lab[0] += 1; n = _lab[0]
    g.A(f"s_cmp_eq_u32 s{S_HALF}, 1"); g.A(f"s_cbranch_scc1 L_kvp{n}")
    vm = list(g.vm)
    for it in items: dma(g, *it, o.nt_kv, tag)
    g.A(f"s_branch L_kvq{n}")
    g.label(f"L_kvp{n}")
    g.vm = vm
    for it in items: dma(g, *it, o.kv_pol1, tag)
    g.label(f"L_kvq{n}")

def weave(main, fill):
    n = len(main); m = len(fill); k = 0
    for i, f in enumerate(main):
        f()
        tgt = (i + 1) * m // n
        while k < tgt:
            fill[k](); k += 1

def gemm_step(g, n, mfma, fill, front=9, after=None, addr=None):
    k = 0; m = len(fill)
    for i in range(12):
        cb = i // 3
        if i % 3 == 0: g.wait_lg([f"f{n}B", f"f{n}A{cb}"])
        mfma(cb, i % 3)
        tgt = min(m, -(-(i + 1) * m // front))
        while k < tgt:
            fill[k](); k += 1
        if addr and i == 9: addr()
        if after and i in after: after[i]()

def select_by_wave(g, dst, vals):
    g.A(f"s_mov_b32 s{dst}, {vals[0]}")
    for k in range(1, len(vals)):
        g.A(f"s_cmp_eq_u32 s{S_W}, {k}"); g.A(f"s_cselect_b32 s{dst}, {vals[k]}, s{dst}")

def entry(g, o):
    g.A("s_cmp_ge_u32 s2, 256"); g.A("s_cbranch_scc1 L_end")
    stamp(g, o, 0)
    g.A("s_load_dwordx16 s[32:47], s[0:1], 0")
    g.A("s_load_dwordx4 s[48:51], s[0:1], 64")
    g.A(f"s_load_dwordx2 s[{S_WS}:{S_WS+1}], s[0:1], 96")
    g.A(f"s_load_dwordx2 s[{S_OUT}:{S_OUT+1}], s[0:1], 80")
    g.A(f"s_load_dwordx2 s[{S_DBG}:{S_DBG+1}], s[0:1], 88")
    g.A(f"v_and_b32 v{V_LANE}, 63, v0")
    g.A("v_lshrrev_b32 v2, 6, v0")
    g.A(f"s_and_b32 s{S_HKV}, s2, 7")
    g.A(f"v_readfirstlane_b32 s{S_W}, v2")
    g.A(f"s_lshr_b32 s{S_T0}, s2, 3")
    g.A(f"s_and_b32 s{S_HALF}, s{S_T0}, 1")
    g.A(f"s_lshr_b32 s{S_B}, s{S_T0}, 1"); g.A(f"s_and_b32 s{S_B}, s{S_B}, 7")
    g.A(f"s_lshr_b32 s{S_BR}, s{S_T0}, 4")
    g.A(f"s_lshl_b32 s{S_HP}, s{S_HKV}, 1"); g.A(f"s_add_u32 s{S_HP}, s{S_HP}, s{S_HALF}")
    g.A(f"s_lshl_b32 s{S_BB}, s{S_BR}, 3"); g.A(f"s_add_u32 s{S_BB}, s{S_BB}, s{S_B}")
    if o.rot:
        g.A(f"s_lshl_b32 s{S_S0}, s{S_B}, 1"); g.A(f"s_lshl_b32 s{S_T0}, s{S_HALF}, 3")
        g.A(f"s_add_u32 s{S_S0}, s{S_S0}, s{S_T0}"); g.A(f"s_and_b32 s{S_S0}, s{S_S0}, 15")
        g.A(f"s_mov_b32 s{S_WOROT}, s{S_B}")
    else:
        g.A(f"s_mov_b32 s{S_S0}, 0"); g.A(f"s_mov_b32 s{S_WOROT}, 0")

def select_branch(g, idx):
    g.A(f"s_cmp_eq_u32 s{S_BR}, 1")
    for i in idx: g.A(f"s_cselect_b32 s{32+i}, s{42+i}, s{32+i}")

def srd_kv(g, which):
    g.A(f"s_lshl_b32 s{S_T0}, s{S_B}, 3"); g.A(f"s_add_u32 s{S_T0}, s{S_T0}, s{S_HKV}"); g.A(f"s_lshl_b32 s{S_T0}, s{S_T0}, 18")
    if "K" in which: srd(g, SRD_K, 34, 35, f"s{S_T0}", 262144)
    if "V" in which: srd(g, SRD_V, 36, 37, f"s{S_T0}", 262144)

EARLY = [("K", 0), ("K", 1), ("V", 0), ("K", 2), ("V", 1), ("K", 3)]

def full_tile_regs(g, kind):
    L = V_LANE; t0, t1 = V_FT+4, V_FT+5
    g.A(f"v_lshrrev_b32 v{t0}, 4, v{L}"); g.A(f"v_and_b32 v{t1}, 15, v{L}")
    for e in range(4 if kind == "K" else 1):
        d = V_FT + e
        if kind == "K": g.A(f"v_add_u32 v{d}, {4*e}, v{t0}")
        else: g.A(f"v_lshlrev_b32 v{d}, 2, v{t0}")
        g.A(f"v_xor_b32 v{d}, v{d}, v{t1}"); g.A(f"v_lshlrev_b32 v{d}, 4, v{d}"); g.A(f"v_lshl_add_u32 v{d}, v{t0}, 8, v{d}")

def full_tile(g, o, kind, t, tag):
    so = S_KOFF if kind == "K" else S_VOFF
    base = kslot(t) if kind == "K" else vslot(t)
    for hf in range(2):
        g.A(f"s_mov_b32 m0, {base + hf*4096}"); g.A("s_nop 0")
        dma_group(g, o, [(V_FT + (e if kind == "K" else 0), SRD_K if kind == "K" else SRD_V, f"s{so}", 1024*e) for e in range(4)], tag)
        g.A(f"s_add_u32 s{so}, s{so}, 4096")

def loader(g, o):
    g.C("================ loader waves")
    L = V_LANE; t0, t1, t2, t3 = V_LT, V_LT+1, V_LT+2, V_LT+3
    g.A(f"s_sub_u32 s{S_W}, s{S_W}, 4")
    g.A(f"v_lshrrev_b32 v{t0}, 4, v{L}"); g.A(f"v_and_b32 v{t1}, 15, v{L}")
    g.A(f"s_lshl_b32 s{S_T0}, s{S_W}, 2")
    g.A(f"v_add_u32 v{t2}, s{S_T0}, v{t0}"); g.A(f"v_xor_b32 v{t2}, v{t2}, v{t1}"); g.A(f"v_lshlrev_b32 v{t2}, 4, v{t2}")
    g.A(f"v_lshl_add_u32 v{V_XD}, v{t0}, 10, v{t2}")
    g.A(f"v_lshrrev_b32 v{t2}, 3, v{L}"); g.A(f"v_and_b32 v{t3}, 7, v{L}")
    g.A(f"s_lshl_b32 s{S_T0}, s{S_W}, 7")
    for jj in range(4):
        d = V_WD + jj
        g.A(f"v_and_b32 v{d}, 2, v{t2}")
        if jj & 1: g.A(f"v_or_b32 v{d}, 4, v{d}")
        g.A(f"v_xor_b32 v{d}, v{d}, v{t3}"); g.A(f"v_lshlrev_b32 v{d}, 4, v{d}")
        g.A(f"v_lshl_add_u32 v{d}, v{t2}, 13, v{d}")
        g.A(f"v_add_u32 v{d}, s{S_T0}, v{d}")
        if jj: g.A(f"v_add_u32 v{d}, {jj*64512}, v{d}")
    g.A(f"s_lshl_b32 s{S_RING}, s{S_W}, 14"); g.A(f"s_add_u32 s{S_RING}, s{S_RING}, {WQB}")
    def x_prep(j):
        g.A(f"s_lshr_b32 s{S_T0}, s{S_S0}, 2"); g.A(f"s_add_u32 s{S_T0}, s{S_T0}, {j}"); g.A(f"s_and_b32 s{S_T0}, s{S_T0}, 3")
        g.A(f"s_mul_i32 s{S_XM}, s{S_T0}, 12288"); g.A(f"s_lshl_b32 s{S_T1}, s{S_W}, 10"); g.A(f"s_add_u32 s{S_XM}, s{S_XM}, s{S_T1}")
        g.A(f"s_lshl_b32 s{S_XO}, s{S_T0}, 8"); g.A(f"s_lshl_b32 s{S_T1}, s{S_W}, 12"); g.A(f"s_add_u32 s{S_XO}, s{S_XO}, s{S_T1}")
    def x_issue(j):
        for i3 in range(3):
            g.A(f"s_add_u32 m0, s{S_XM}, {XB + i3*4096}")
            g.A(f"s_add_u32 s{S_T0}, s{S_XO}, {i3*16384}")
            dma(g, V_XD, SRD_X, f"s{S_T0}", 0, "nt" if (o.first_nt and j < int(o.nt_x)) else o.pol_x, f"x{j}")
    def wq_step(i):
        g.A(f"s_add_u32 s{S_T2}, s{S_S0}, {i}"); g.A(f"s_and_b32 s{S_T2}, s{S_T2}, 15")
        g.A(f"s_add_u32 m0, s{S_RING}, {(i%4)*4096}")
        g.A(f"s_lshl_b32 s{S_T2}, s{S_T2}, 18")
        pol = "nt" if (o.first_nt and i < int(o.nt_wq)) else o.pol_w
        for jj in range(4): dma(g, V_WD + jj, SRD_WQ, f"s{S_T2}", 1024*jj, pol, f"wq{i}")
    x_prep(0)
    g.A("s_waitcnt lgkmcnt(0)")
    stamp(g, o, 1)
    select_branch(g, [0, 1, 6, 7])
    g.A(f"s_mul_i32 s{S_T0}, s{S_B}, 49152"); srd(g, SRD_X, 32, 33, f"s{S_T0}", 49152)
    x_issue(0)
    g.A(f"s_lshl_b32 s{S_T1}, s{S_HP}, 9")
    srd(g, SRD_WQ, 38, 39, f"s{S_T1}", 0)
    g.A(f"s_sub_u32 s{SRD_WQ+2}, 0x400000, s{S_T1}")
    wq_step(0); wq_step(1)
    x_prep(1); x_issue(1)
    wq_step(2)
    stamp(g, o, 2)
    if o.code_pf:
        g.A(f"s_cmp_lg_u32 s{S_W}, 1"); g.A("s_cbranch_scc1 L_cpf")
        g.A("s_getpc_b64 s[98:99]"); g.label("L_pc")
        g.A(f"s_sub_u32 s98, s98, L_pc-{K1}"); g.A("s_subb_u32 s99, s99, 0")
        g.A(f"s_lshr_b32 s{S_T3}, s2, 3"); g.A(f"s_lshl_b32 s{S_T3}, s{S_T3}, 10")
        g.A(f"v_lshl_add_u32 v{t2}, v{L}, 4, s{S_T3}")
        g.A(f"v_min_u32 v{t2}, L_code_end-{K1}-16, v{t2}")
        g.A(f"global_load_dwordx4 v[32:35], v{t2}, s[98:99]")
        g.label("L_cpf")
    select_branch(g, [2, 3, 4, 5, 8, 9])
    srd_kv(g, "KV")
    g.A(f"s_lshl_b32 s{S_T1}, s{S_HP}, 18")
    srd(g, SRD_WO, 40, 41, f"s{S_T1}", 262144)
    if o.pretouch:
        g.A(f"s_lshl_b32 s{S_T1}, s{S_BB}, 4"); g.A(f"s_add_u32 s{S_T1}, s{S_T1}, s{S_HP}"); g.A(f"s_mul_i32 s{S_T1}, s{S_T1}, 49152")
        g.A(f"s_add_u32 s44, s{S_WS}, s{S_T1}"); g.A(f"s_addc_u32 s45, s{S_WS+1}, 0")
        for r in (SRD_K, SRD_V, SRD_WO, 44, S_OUT, S_DBG):
            g.A(f"s_load_dword s46, s[{r}:{r+1}], 0")
        g.A(f"s_add_u32 s44, s{S_WS}, {FLAGB}"); g.A(f"s_addc_u32 s45, s{S_WS+1}, 0")
        g.A("s_load_dword s46, s[44:45], 0")
    g.A(f"s_lshl_b32 s{S_LD2K}, s{S_W}, 11")
    g.A(f"v_lshlrev_b32 v{t2}, 8, v{t0}"); g.A(f"v_add_u32 v{t2}, s{S_LD2K}, v{t2}")
    g.A(f"s_lshl_b32 s{S_T1}, s{S_W}, 3"); g.A(f"s_and_b32 s{S_T1}, s{S_T1}, 15")
    for e in range(2):
        d = V_KE0 + e
        g.A(f"v_add_u32 v{d}, s{S_T1}, v{t0}")
        if e: g.A(f"v_add_u32 v{d}, 4, v{d}")
        g.A(f"v_xor_b32 v{d}, v{d}, v{t1}"); g.A(f"v_lshl_add_u32 v{d}, v{d}, 4, v{t2}")
    g.A(f"v_lshlrev_b32 v{V_VE}, 2, v{t0}"); g.A(f"v_xor_b32 v{V_VE}, v{V_VE}, v{t1}")
    g.A(f"v_lshl_add_u32 v{V_VE}, v{V_VE}, 4, v{t2}")
    g.A(f"v_lshrrev_b32 v{t2}, 3, v{L}"); g.A(f"v_and_b32 v{t3}, 7, v{L}")
    g.A(f"s_lshl_b32 s{S_T0}, s{S_W}, 8")
    for jj in range(4):
        d = V_WOD + jj
        g.A(f"v_and_b32 v{d}, 2, v{t2}")
        if jj & 1: g.A(f"v_or_b32 v{d}, 4, v{d}")
        g.A(f"v_xor_b32 v{d}, v{d}, v{t3}"); g.A(f"v_lshlrev_b32 v{d}, 4, v{d}")
        g.A(f"v_lshl_add_u32 v{d}, v{t2}, 10, v{d}")
        g.A(f"v_add_u32 v{d}, s{S_T0}, v{d}")
        if jj: g.A(f"v_add_u32 v{d}, {jj*7168}, v{d}")
    for s in range(4): select_by_wave(g, S_WOA + s, [WO_ADDR[s][w] for w in range(4)])
    g.A(f"s_mov_b32 s{S_KOFF}, 0"); g.A(f"s_mov_b32 s{S_VOFF}, 0")
    if o.pretouch: g.A("s_waitcnt lgkmcnt(0)")
    def kv(kind, t, tag):
        so = S_KOFF if kind == "K" else S_VOFF
        g.A(f"s_add_u32 m0, s{S_LD2K}, {kslot(t) if kind == 'K' else vslot(t)}")
        g.A("s_nop 0")
        if kind == "K": dma_group(g, o, [(V_KE0, SRD_K, f"s{so}", 0), (V_KE1, SRD_K, f"s{so}", 1024)], tag)
        else: dma_group(g, o, [(V_VE, SRD_V, f"s{so}", 0), (V_VE, SRD_V, f"s{so}", 1024)], tag)
        g.A(f"s_add_u32 s{so}, s{so}, 8192")
    def wo_dma(d):
        out = []
        for hb in range(2):
            def head(hb=hb):
                g.A(f"s_add_u32 m0, s{S_WOA + d % 4}, {hb*4096}")
                if hb == 0:
                    g.A(f"s_add_u32 s{S_T2}, s{S_WOROT}, {d}"); g.A(f"s_and_b32 s{S_T2}, s{S_T2}, 7"); g.A(f"s_lshl_b32 s{S_T2}, s{S_T2}, 15")
                else: g.A(f"s_add_u32 s{S_T2}, s{S_T2}, 128")
            pol = "nt" if (o.first_nt and d < int(o.nt_wo)) else o.pol_w
            for jj in range(4):
                def f(jj=jj, head=head, pol=pol):
                    if jj == 0: head()
                    dma(g, V_WOD + jj, SRD_WO, f"s{S_T2}", 1024*jj, pol, f"wo{d}")
                out.append(f)
        return out
    def wo_step(d):
        for f in wo_dma(d): f()
    need_x = {0: "x0", 1: "x1", 5: "x2", 9: "x3"}
    for i in range(16):
        tags = []
        if i == 0: tags += ["wq0", "wq1"]
        elif i + 1 < 16: tags.append(f"wq{i+1}")
        if i in need_x: tags.append(need_x[i])
        if tags: g.wait_vm(tags)
        if i == 0: stamp(g, o, 3)
        g.A("s_barrier")
        if i + 3 < 16: wq_step(i + 3)
        else:
            for kind, t in EARLY[(i-13)*2:(i-13)*2+2]: kv(kind, t, f"{kind}{t}")
        if i == 0: x_prep(2); x_issue(2)
        if i == 3: x_prep(3); x_issue(3)
    g.A("s_barrier")
    g.wait_vm(["K0", "K1"]); g.A("s_barrier")
    stamp(g, o, 4)
    def tail_p3():
        g.label("L_ld_p3")
        g.vm = [f"wo{d}" for d in range(3) for _ in range(8)]
        ready_check()
        g.A("s_barrier")
        wo_step(3)
        p3_compute(g, o, True, wo_dma)
        g.A("s_branch L_ld_end")
    def ready_check():
        g.A(f"s_cmp_lg_u32 s{S_W}, 0"); g.A("s_cbranch_scc1 L_rdy_done")
        g.A(f"s_mov_b32 s{S_CNT}, 0")
        g.label("L_rdy")
        g.A(f"v_readfirstlane_b32 s{S_T1}, v{V_RD}")
        g.A(f"s_add_u32 s{S_CNT}, s{S_CNT}, 1")
        g.A(f"s_cmp_lg_u32 s{S_T1}, 0"); g.A("s_cbranch_scc1 L_rdy_done")
        g.A(f"s_cmp_ge_u32 s{S_CNT}, 0x40000"); g.A("s_cbranch_scc1 L_rdy_done")
        g.A(f"buffer_load_dword v{V_RD}, v{V_RA}, s[{SRD_DBG}:{SRD_DBG+3}], 0 offen sc1")
        g.A("s_waitcnt vmcnt(0)")
        g.A("s_branch L_rdy")
        g.label("L_rdy_done")
    def idle(n, lab):
        g.A(f"s_mov_b32 s{S_CNT}, {n}")
        g.label(lab)
        g.A("s_barrier")
        g.A(f"s_sub_u32 s{S_CNT}, s{S_CNT}, 1"); g.A(f"s_cmp_lg_u32 s{S_CNT}, 0"); g.A(f"s_cbranch_scc1 {lab}")
    def drain(vtags):
        wo_step(0)
        for t in range(28, 32):
            if vtags: g.wait_vm(f"V{t}")
            g.A("s_barrier")
            if t == 28: wo_step(1)
            if t == 30: wo_step(2)
        if vtags: g.A("s_branch L_ld_p3")
        else: tail_p3()
    g.A(f"s_cmp_eq_u32 s{S_W}, 3"); g.A("s_cbranch_scc1 L_vloader")
    vm_early = list(g.vm)
    g.wait_vm(["V0", "K2"]); g.A("s_barrier")
    g.wait_vm(["V1", "K3"]); g.A("s_barrier")
    srd(g, SRD_DBG, S_DBG, S_DBG+1, None, 256)
    srd(g, SRD_FL, S_WS, S_WS+1, None, FLAGB + 2048*128)
    g.A(f"s_lshl_b32 s{S_T0}, s{S_BB}, 14"); g.A(f"s_add_u32 s{S_T0}, s{S_T0}, {FLAGB}")
    g.A(f"v_lshlrev_b32 v{V_FA}, 7, v{V_LANE}"); g.A(f"v_add_u32 v{V_FA}, s{S_T0}, v{V_FA}")
    g.A(f"s_lshl_b32 s{S_T0}, s{S_BB}, 2"); g.A(f"v_mov_b32 v{V_RA}, s{S_T0}")
    g.A(f"s_or_b32 s{S_FIRST}, s{S_W}, s{S_HP}")
    g.A(f"s_cmp_lg_u32 s{S_FIRST}, 0"); g.A("s_cbranch_scc1 L_fl1")
    g.A(f"v_mov_b32 v{V_FD}, 0"); g.A(f"s_movk_i32 s{S_T0}, 0x2000")
    g.A(f"buffer_store_dword v{V_FD}, v{V_FA}, s[{SRD_FL}:{SRD_FL+3}], 0 offen sc1")
    g.A(f"buffer_store_dword v{V_FD}, v{V_FA}, s[{SRD_FL}:{SRD_FL+3}], s{S_T0} offen sc1")
    g.label("L_fl1")
    idle(8, "L_ld_idle1")
    g.A(f"s_cmp_lg_u32 s{S_FIRST}, 0"); g.A("s_cbranch_scc1 L_fl2")
    g.A("s_waitcnt vmcnt(0)")
    g.A(f"v_mov_b32 v{V_FD}, 1")
    g.A("s_mov_b64 exec, 1")
    g.A(f"buffer_store_dword v{V_FD}, v{V_RA}, s[{SRD_DBG}:{SRD_DBG+3}], 0 offen sc1")
    g.A("s_mov_b64 exec, -1")
    g.label("L_fl2")
    idle(10, "L_ld_idle2")
    g.A(f"s_cmp_lg_u32 s{S_W}, 0"); g.A("s_cbranch_scc1 L_fl3")
    g.A(f"buffer_load_dword v{V_RD}, v{V_RA}, s[{SRD_DBG}:{SRD_DBG+3}], 0 offen sc1")
    g.label("L_fl3")
    idle(8, "L_ld_idle3")
    g.A("s_waitcnt vmcnt(0)"); g.vm = []
    drain(False)
    g.label("L_vloader")
    g.vm = vm_early
    full_tile_regs(g, "V")
    g.A(f"s_mov_b32 s{S_VOFF}, {2*8192}")
    full_tile(g, o, "V", 2, "V2"); full_tile(g, o, "V", 3, "V3")
    g.wait_vm(["V0", "K2"])
    g.A(f"s_mov_b32 s{S_CNT}, 4")
    g.label("L_vld_loop")
    for t in range(6):
        g.A("s_waitcnt vmcnt(24)"); g.A("s_barrier")
        if not o.x_nodma: full_tile(g, o, "V", t+4, f"V{t+4}")
    g.A(f"s_sub_u32 s{S_CNT}, s{S_CNT}, 1"); g.A(f"s_cmp_lg_u32 s{S_CNT}, 0"); g.A("s_cbranch_scc1 L_vld_loop")
    g.vm = []
    for t in range(24, 28): g.vm += [f"V{t}"]*8
    for t in range(24, 28):
        g.wait_vm(f"V{t}"); g.A("s_barrier"); full_tile(g, o, "V", t+4, f"V{t+4}")
    drain(True)

def set_flag(g, hb):
    srd(g, SRD_FL, S_WS, S_WS+1, None, FLAGB + 2048*128)
    g.A(f"s_lshl_b32 s18, s{S_BB}, 14"); g.A(f"s_add_u32 s18, s18, {FLAGB}")
    g.A(f"s_lshl_b32 s19, s{S_HP}, 3"); g.A(f"s_add_u32 s19, s19, s{S_W}")
    if hb: g.A("s_add_u32 s19, s19, 4")
    g.A("s_lshl_b32 s19, s19, 7"); g.A("s_add_u32 s19, s19, s18")
    g.A("v_mov_b32 v24, s19"); g.A("v_mov_b32 v25, 1")
    g.A("s_waitcnt vmcnt(0)"); g.vm = []
    g.A("s_mov_b64 exec, 1")
    g.A(f"buffer_store_dword v25, v24, s[{SRD_FL}:{SRD_FL+3}], 0 offen sc1")
    g.A("s_mov_b64 exec, -1")

def loader_tail(g, o):
    g.label("L_ld_end")
    set_flag(g, 1)
    if o.stamps is True:
        stamp(g, o, 7)
        g.A(f"s_cmp_lg_u32 s{S_W}, 0"); g.A("s_cbranch_scc1 L_ld_end2")
        dump_stamps(g, 0x1010000)
        g.label("L_ld_end2")
    g.A("s_endpgm")

def dump_stamps(g, base):
    g.A(f"s_add_u32 s40, s{S_WS}, {base}"); g.A(f"s_addc_u32 s41, s{S_WS+1}, 0"); g.A("s_and_b32 s41, s41, 0xffff")
    g.A("s_mov_b32 s42, 0x10000"); g.A("s_mov_b32 s43, 0x20000")
    for k in range(16): g.A(f"v_mov_b32 v{16+k}, s{S_STAMP+k}")
    g.A(f"s_lshl_b32 s{S_T0}, s2, 6"); g.A(f"v_mov_b32 v13, s{S_T0}")
    g.A("s_mov_b64 exec, 1")
    for k in range(4): g.A(f"buffer_store_dwordx4 v[{16+4*k}:{19+4*k}], v13, s[40:43], 0 offen offset:{16*k}")
    g.A("s_waitcnt vmcnt(0)")
    g.A("s_mov_b64 exec, -1")

def p1_compute(g, o):
    g.C("==== P1: Q projection")
    L = V_LANE; t0, t1, t2 = V_TMP, V_TMP+1, V_TMP+2
    g.A(f"s_mov_b32 s{S_THR}, {hex(fbits(float(2.0 ** float(o.thr))))}"); g.A(f"s_mov_b32 s{S_THRLO}, {hex(fbits(THR_LO))}")
    g.A(f"s_mov_b32 s{S_C}, {hex(fbits(CSCALE))}"); g.A(f"s_mov_b32 s{S_C+1}, {hex(fbits(CSCALE))}")
    for i in range(64): g.A(f"v_mov_b32 v{V_O+i}, 0")
    g.A(f"v_lshrrev_b32 v{t0}, 4, v{L}"); g.A(f"v_and_b32 v{t1}, 15, v{L}")
    g.A(f"v_xor_b32 v{t2}, v{t0}, v{t1}"); g.A(f"v_lshlrev_b32 v{t2}, 4, v{t2}")
    g.A(f"v_lshl_add_u32 v{V_XR}, v{t1}, 8, v{t2}")
    g.A(f"s_lshl_b32 s{S_RING}, s{S_W}, 14"); g.A(f"s_add_u32 s{S_RING}, s{S_RING}, {WQB}")
    r_, cc, sw = 12, 13, 14
    g.A(f"v_bfe_u32 v{r_}, v{L}, 2, 2"); g.A(f"v_and_b32 v{cc}, 3, v{L}")
    g.A(f"v_and_b32 v{sw}, 2, v{r_}"); g.A(f"v_and_b32 v{t2}, 1, v{t0}")
    g.A(f"v_lshl_or_b32 v{sw}, v{t2}, 2, v{sw}")
    g.A(f"v_lshrrev_b32 v{t2}, 1, v{cc}"); g.A(f"v_or_b32 v{sw}, v{sw}, v{t2}"); g.A(f"v_lshlrev_b32 v{sw}, 4, v{sw}")
    g.A(f"v_and_b32 v{t2}, 1, v{cc}"); g.A(f"v_lshl_add_u32 v{sw}, v{t2}, 3, v{sw}")
    g.A(f"v_lshl_add_u32 v{t2}, v{t0}, 3, v{r_}"); g.A(f"v_lshl_add_u32 v{sw}, v{t2}, 7, v{sw}")
    g.A(f"v_add_u32 v{sw}, s{S_RING}, v{sw}")
    for cb in range(4): g.A(f"v_xor_b32 v{V_WR+cb}, {cb << 5}, v{sw}")
    V_QW = 16
    g.A(f"s_and_b32 s{S_T0}, s{S_W}, 1"); g.A(f"s_lshl_b32 s{S_T0}, s{S_T0}, 3")
    g.A(f"v_lshrrev_b32 v{t2}, 1, v{t0}")
    g.A(f"v_xor_b32 v{t2}, v{t2}, v{t1}"); g.A(f"v_xor_b32 v{t2}, s{S_T0}, v{t2}"); g.A(f"v_lshlrev_b32 v{t2}, 4, v{t2}")
    g.A(f"v_and_b32 v{t0}, 1, v{t0}"); g.A(f"v_lshl_add_u32 v{t2}, v{t0}, 3, v{t2}")
    g.A(f"s_lshr_b32 s{S_T0}, s{S_W}, 1"); g.A(f"s_mul_i32 s{S_T0}, s{S_T0}, {48*256}"); g.A(f"s_add_u32 s{S_T0}, s{S_T0}, {QB}")
    g.A(f"v_lshl_add_u32 v{t2}, v{t1}, 8, v{t2}"); g.A(f"v_add_u32 v{t2}, s{S_T0}, v{t2}")
    for cb in range(4): g.A(f"v_xor_b32 v{V_QW+cb}, {cb << 5}, v{t2}")
    g.A("s_waitcnt lgkmcnt(0)")
    g.A(f"s_lshl_b32 s{S_T1}, s{S_BB}, 4"); g.A(f"s_add_u32 s{S_T1}, s{S_T1}, s{S_HP}"); g.A(f"s_mul_i32 s{S_T1}, s{S_T1}, 49152")
    srd(g, SRD_P, S_WS, S_WS+1, f"s{S_T1}", 49152)
    select_branch(g, [2, 3])
    srd_kv(g, "K")
    def reads(i):
        out = []; buf = i % 2; slot = i % 4; vt = V_XT + buf
        def addr():
            g.A(f"s_add_u32 s{S_T0}, s{S_S0}, {i}"); g.A(f"s_and_b32 s{S_T0}, s{S_T0}, 15")
            g.A(f"s_and_b32 s{S_T1}, s{S_T0}, 3"); g.A(f"s_lshl_b32 s{S_T1}, s{S_T1}, 6")
            g.A(f"s_lshr_b32 s{S_T0}, s{S_T0}, 2"); g.A(f"s_mul_i32 s{S_T0}, s{S_T0}, 12288"); g.A(f"s_add_u32 s{S_T0}, s{S_T0}, {XB}")
            g.A(f"v_xor_b32 v{vt}, s{S_T1}, v{V_XR}"); g.A(f"v_add_u32 v{vt}, s{S_T0}, v{vt}")
        out.append(addr)
        for rb in range(3):
            out.append(lambda rb=rb: g.lds(f"ds_read_b128 {ar(A_B1[buf]+4*rb,4)}, v{vt} offset:{rb*4096}", f"f{i}B"))
        for cb in range(4):
            for u in range(2):
                out.append(lambda cb=cb, u=u: g.lds(
                    f"ds_read_b64_tr_b16 {ar(A_A1[buf]+4*cb+2*u,2)}, v{V_WR+cb} offset:{slot*4096+u*512}", f"f{i}A{cb}"))
        return out
    r0 = reads(0); r0[0](); reads(1)[0]()
    for i in range(16):
        buf = i % 2
        g.A("s_barrier")
        if i == 0:
            stamp(g, o, 1)
            for f in r0[1:]: f()
        def mf(cb, rb, i=i, buf=buf):
            a = vr(V_ACC1 + (cb*3 + rb)*4, 4)
            g.A(f"v_mfma_f32_16x16x32_bf16 {a}, {ar(A_A1[buf]+4*cb,4)}, {ar(A_B1[buf]+4*rb,4)}, {'0' if i == 0 else a}")
        gemm_step(g, i, mf, reads(i + 1)[1:] if i + 1 < 16 else [], int(o.front), None, reads(i + 2)[0] if i + 2 < 16 else None)
    stamp(g, o, 2)
    g.A("s_barrier")
    for cb in range(4):
        for rb in range(3):
            a = V_ACC1 + (cb*3 + rb)*4
            g.A(f"v_pk_mul_f32 {vr(a,2)}, {vr(a,2)}, s[{S_C}:{S_C+1}]"); g.A(f"v_pk_mul_f32 {vr(a+2,2)}, {vr(a+2,2)}, s[{S_C}:{S_C+1}]")
            g.A(f"v_cvt_pk_bf16_f32 v{a}, v{a}, v{a+1}"); g.A(f"v_cvt_pk_bf16_f32 v{a+1}, v{a+2}, v{a+3}")
            g.lds(f"ds_write_b64 v{V_QW+cb}, {vr(a,2)} offset:{rb*4096}", "qw")

def p2_addresses(g):
    L = V_LANE; t0, t1, t2, t3 = V_TMP, V_TMP+1, V_TMP+2, V_TMP+3
    g.A(f"v_and_b32 v{t0}, 31, v{L}"); g.A(f"v_lshrrev_b32 v{t1}, 5, v{L}")
    g.A(f"v_and_b32 v{t2}, 15, v{L}"); g.A(f"v_xor_b32 v{t2}, v{t2}, v{t1}")
    g.A(f"v_lshlrev_b32 v{t2}, 4, v{t2}"); g.A(f"v_lshl_add_u32 v{t2}, v{t0}, 8, v{t2}")
    g.A(f"v_add_u32 v{t2}, {KB}, v{t2}")
    for s in range(8): g.A(f"v_xor_b32 v{V_KA+s}, {s << 5}, v{t2}")
    g.A(f"v_bfe_u32 v{t0}, v{L}, 2, 2")
    g.A(f"v_lshl_add_u32 v{t2}, v{t1}, 2, v{t0}"); g.A(f"v_lshlrev_b32 v{t2}, 8, v{t2}")
    g.A(f"v_lshl_add_u32 v{t2}, v{t0}, 6, v{t2}")
    g.A(f"v_bfe_u32 v{t3}, v{L}, 4, 1"); g.A(f"v_lshl_add_u32 v{t2}, v{t3}, 5, v{t2}")
    g.A(f"v_and_b32 v{t3}, 3, v{L}"); g.A(f"v_lshl_add_u32 v{t2}, v{t3}, 3, v{t2}")
    for blk in range(4): g.A(f"v_xor_b32 v{V_VA+blk}, {blk << 6}, v{t2}")
    g.A(f"s_lshl_b32 s{S_T0}, s{S_W}, 13"); g.A(f"s_add_u32 s{S_T0}, s{S_T0}, {QB-KB}")
    for s in range(8): g.A(f"v_add_u32 v{V_NEGM+s}, s{S_T0}, v{V_KA+s}")
    g.A(f"v_mov_b32 v{V_L}, 0")

def qk_mfma(g, s, dst, first_c):
    c = first_c if s == 0 else vr(dst, 16)
    g.A(f"v_mfma_f32_32x32x16_bf16 {vr(dst,16)}, {ar(A_K+4*s,4)}, {ar(A_Q+4*s,4)}, {c}")
def pv_mfma(g, s, blk, p):
    g.A(f"v_mfma_f32_32x32x16_bf16 {vr(V_O+16*blk,16)}, {ar(A_V+(s*4+blk)*4,4)}, {vr(p+4*s,4)}, {vr(V_O+16*blk,16)}")
def k_read(g, s, t):
    g.lds(f"ds_read_b128 {ar(A_K+4*s,4)}, v{V_KA+s} offset:{kslot(t)-KB}", "K")
def v_read(g, s, blk, u, t):
    g.lds(f"ds_read_b64_tr_b16 {ar(A_V+(s*4+blk)*4+2*u,2)}, v{V_VA+blk} offset:{vslot(t)-VB+4096*s+2048*u}", "V")

def p2_iter(g, t, do_qk=True, do_pv=True):
    o = OPT
    par = t % 2
    Scur, Snew, Pcur, Pprev = V_S[par], V_S[1-par], V_P[par], V_P[1-par]
    g.C(f"---- iteration {t}")
    gaps, left, load = schedule(do_qk, do_pv, cap_lo=int(o.cap_lo), cap_hi=int(o.cap_hi), ntemp=NTEMP)
    assert not left, left
    last_a = max(i for i, gp in enumerate(gaps) if ("A", 15) in gp)
    cmp_gap = min(last_a + 1, 15); br_gap = 15
    first = (t == 0 and o.m0init)
    e = lambda i: V_E + i % NTEMP
    def emit(it):
        k = it[0]
        if k == "E":
            if not o.x_novalu: g.A(f"v_exp_f32 v{e(it[1])}, v{Scur+it[1]}")
        elif k == "A":
            if o.x_novalu: return
            if it[1] == 1: g.A(f"v_add_f32 v{V_TS}, v{e(0)}, v{e(1)}")
            else: g.A(f"v_add_f32 v{V_TS}, v{V_TS}, v{e(it[1])}")
        elif k == "C":
            if not o.x_novalu: g.A(f"v_cvt_pk_bf16_f32 v{Pcur+it[1]}, v{e(2*it[1])}, v{e(2*it[1]+1)}")
        elif k == "K":
            if not o.x_nok: k_read(g, it[1], t+2)
        elif k == "V":
            if not o.x_nov: v_read(g, it[1]//4, it[1] % 4, it[2], t)
    for m in range(16):
        if m < 8 and do_qk and not o.x_nomfma: qk_mfma(g, m, Snew, vr(V_NEGM, 16))
        elif m >= 8 and do_pv and not o.x_nomfma: pv_mfma(g, (m-8)//4, (m-8) % 4, Pprev)
        else: g.A("s_nop 0")
        items = gaps[m]
        if ("X", "bar") in items: g.A("s_barrier")
        if m == cmp_gap:
            g.A(f"v_cmp_lt_f32 vcc, s{S_THR}, v{V_TS}")
            if first: g.A(f"v_cmp_gt_f32 s[{S_RET}:{S_RET+1}], s{S_THRLO}, v{V_TS}")
        for it in items:
            if it[0] != "X": emit(it)
        if m == br_gap:
            if first: g.A(f"s_or_b64 vcc, vcc, s[{S_RET}:{S_RET+1}]")
            g.A(f"s_cbranch_vccnz L_rare_{t}")
            g.label(f"L_back_{t}")
            g.A(f"v_add_f32 v{V_L}, v{V_L}, v{V_TS}")
        if m == 7 and do_pv: g.A(f"s_waitcnt lgkmcnt({8 if do_qk else 0})")
        if m == 15: g.A(f"s_waitcnt lgkmcnt({15 if do_pv else 0})")
    g.lg = []

def rare_stub(g, t):
    g.label(f"L_rare_{t}")
    sub = "L_rescale_first" if (t == 0 and OPT.m0init) else f"L_rescale_{t%2}"
    g.A(f"s_call_b64 s[{S_RET}:{S_RET+1}], {sub}")
    g.A(f"s_branch L_back_{t}")

def rowmax(g, S, dst, tmp):
    g.A(f"v_max3_f32 v{dst}, v{S}, v{S+1}, v{S+2}")
    for k in range(3, 15, 2): g.A(f"v_max3_f32 v{dst}, v{dst}, v{S+k}, v{S+k+1}")
    g.A(f"v_max_f32 v{dst}, v{dst}, v{S+15}")
    g.A(f"v_mov_b32 v{tmp}, v{dst}"); g.A("s_nop 1")
    g.A(f"v_permlane32_swap_b32 v{tmp}, v{dst}")
    g.A(f"v_max_f32 v{dst}, v{dst}, v{tmp}")

def rescale_sub(g, par, first=False):
    Scur, Snew, Pcur = V_S[par], V_S[1-par], V_P[par]
    d, tmp, f = V_T, V_T+1, V_F
    g.label("L_rescale_first" if first else f"L_rescale_{par}")
    g.A("s_nop 15"); g.A("s_nop 15")
    rowmax(g, Scur, d, tmp)
    if not first: g.A(f"v_max_f32 v{d}, 0, v{d}")
    for i in range(16):
        g.A(f"v_sub_f32 v{Scur+i}, v{Scur+i}, v{d}")
        g.A(f"v_sub_f32 v{Snew+i}, v{Snew+i}, v{d}")
        g.A(f"v_sub_f32 v{V_NEGM+i}, v{V_NEGM+i}, v{d}")
    if not first:
        g.A(f"v_sub_f32 v{f}, 0, v{d}"); g.A(f"v_exp_f32 v{f}, v{f}"); g.A("s_nop 0")
        g.A(f"v_mul_f32 v{V_L}, v{V_L}, v{f}")
        for i in range(64): g.A(f"v_mul_f32 v{V_O+i}, v{V_O+i}, v{f}")
    for k in range(8):
        g.A(f"v_exp_f32 v{V_E}, v{Scur+2*k}"); g.A(f"v_exp_f32 v{V_E+1}, v{Scur+2*k+1}"); g.A("s_nop 0")
        if k == 0: g.A(f"v_add_f32 v{V_TS}, v{V_E}, v{V_E+1}")
        else:
            g.A(f"v_add_f32 v{V_TS}, v{V_TS}, v{V_E}"); g.A(f"v_add_f32 v{V_TS}, v{V_TS}, v{V_E+1}")
        g.A(f"v_cvt_pk_bf16_f32 v{Pcur+k}, v{V_E}, v{V_E+1}")
    g.A("s_nop 1")
    g.A(f"s_setpc_b64 s[{S_RET}:{S_RET+1}]")

def p2_compute(g, o):
    g.C("==== P2: attention, compute waves 0..2")
    L = V_LANE; t0, t1, t2 = V_TMP, V_TMP+1, V_TMP+2
    for s in range(8): g.lds(f"ds_read_b128 {ar(A_Q+4*s,4)}, v{V_NEGM+s}", "Q")
    for s in range(8): k_read(g, s, 0)
    if o.m0init:
        for i in range(16): g.A(f"v_mov_b32 v{V_NEGM+i}, 0")
    g.wait_lg0()
    for s in range(8):
        qk_mfma(g, s, V_S[0], "0")
        k_read(g, s, 1)
    if not o.m0init:
        g.A("s_nop 15")
        rowmax(g, V_S[0], V_T, V_T+1)
        for i in range(16): g.A(f"v_sub_f32 v{V_NEGM+i}, 0, v{V_T}")
        for i in range(16): g.A(f"v_sub_f32 v{V_S[0]+i}, v{V_S[0]+i}, v{V_T}")
    else:
        g.A("s_nop 7")
    g.A("s_waitcnt lgkmcnt(0)")
    p2_iter(g, 0, do_pv=False)
    g.A(f"s_mov_b32 s{S_CNT}, 5")
    g.label("L_p2_loop")
    for t in range(1, 7): p2_iter(g, t)
    g.A(f"s_sub_u32 s{S_CNT}, s{S_CNT}, 1"); g.A(f"s_cmp_lg_u32 s{S_CNT}, 0"); g.A("s_cbranch_scc1 L_p2_loop")
    p2_iter(g, 31, do_qk=False)
    g.A("s_waitcnt lgkmcnt(0)")
    g.A("s_barrier")
    stamp(g, o, 4)
    base = V_TMP+3; AD = V_S[0]
    addr = []
    addr.append(lambda: g.A(f"s_lshl_b32 s{S_T0}, s{S_W}, 5"))
    addr.append(lambda: (g.A(f"v_and_b32 v{t0}, 31, v{L}"), g.A(f"v_add_u32 v{t0}, s{S_T0}, v{t0}")))
    addr.append(lambda: (g.A(f"v_cmp_le_u32 vcc, 48, v{t0}"), g.A(f"v_subrev_u32 v{t1}, 48, v{t0}"), g.A(f"v_mov_b32 v{t2}, 0")))
    addr.append(lambda: (g.A(f"v_cndmask_b32 v{t0}, v{t0}, v{t1}, vcc"), g.A(f"v_mov_b32 v{t1}, 256")))
    addr.append(lambda: (g.A(f"v_cndmask_b32 v{t2}, v{t2}, v{t1}, vcc"), g.A(f"v_lshl_add_u32 v{base}, v{t0}, 9, v{t2}")))
    addr.append(lambda: (g.A(f"v_and_b32 v{t0}, 15, v{t0}"), g.A(f"v_lshl_add_u32 v{base}, v{t0}, 4, v{base}")))
    addr.append(lambda: (g.A(f"v_lshrrev_b32 v{t0}, 5, v{L}"), g.A(f"v_lshl_add_u32 v{base}, v{t0}, 3, v{base}")))
    addr.append(lambda: g.A(f"v_add_u32 v{base}, {OB}, v{base}"))
    k = 0
    for s in range(2):
        for blk in range(4):
            pv_mfma(g, s, blk, V_P[1]); addr[k](); k += 1
    g.A(f"v_mov_b32 v{V_T}, v{V_L}")
    for j in range(16): g.A(f"v_xor_b32 v{AD+j}, {j << 4}, v{base}")
    g.A(f"v_permlane32_swap_b32 v{V_T}, v{V_L}")
    g.A(f"v_add_f32 v{V_L}, v{V_L}, v{V_T}")
    g.A(f"v_rcp_f32 v{V_T}, v{V_L}"); g.A("s_nop 0"); g.A(f"v_mov_b32 v{V_T+1}, v{V_T}")
    for blk in range(4):
        for i in range(4):
            a = V_O + 16*blk + 4*i
            g.A(f"v_pk_mul_f32 {vr(a,2)}, {vr(a,2)}, {vr(V_T,2)}"); g.A(f"v_pk_mul_f32 {vr(a+2,2)}, {vr(a+2,2)}, {vr(V_T,2)}")
            g.A(f"v_cvt_pk_bf16_f32 v{a}, v{a}, v{a+1}"); g.A(f"v_cvt_pk_bf16_f32 v{a+1}, v{a+2}, v{a+3}")
            g.lds(f"ds_write_b64 v{AD+4*blk+i}, {vr(a,2)}", "ow")

def p2_kloader(g, o):
    g.C("==== P2: wave 3 streams K")
    g.vm = []
    full_tile_regs(g, "K")
    g.A(f"s_mov_b32 s{S_KOFF}, {4*8192}")
    full_tile(g, o, "K", 4, "K4"); full_tile(g, o, "K", 5, "K5")
    g.A(f"s_mov_b32 s{S_CNT}, 4")
    g.label("L_kld_loop")
    for t in range(6):
        g.A("s_waitcnt vmcnt(24)"); g.A("s_barrier")
        if not o.x_nodma: full_tile(g, o, "K", t+6, f"K{t+6}")
    g.A(f"s_sub_u32 s{S_CNT}, s{S_CNT}, 1"); g.A(f"s_cmp_lg_u32 s{S_CNT}, 0"); g.A("s_cbranch_scc1 L_kld_loop")
    g.vm = []
    for t in range(26, 30): g.vm += [f"K{t}"]*8
    for t in range(24, 32):
        if t + 2 < 32: g.wait_vm(f"K{t+2}")
        g.A("s_barrier")
        if t + 6 < 32: full_tile(g, o, "K", t+6, f"K{t+6}")
    g.A("s_barrier")

def p3_compute(g, o, ldr=False, wo_dma=None):
    hb = 1 if ldr else 0
    g.C(f"==== P3: partial output projection, column half {hb}")
    L = V_LANE; t0, t1, t2, t3 = 24, 25, 26, 27
    P_OR, P_OT, P_ST, P_CV = 20, 21, 23, 24
    P_ACC, P_A = 64, [128, 144]
    if not ldr:
        for s in range(4): select_by_wave(g, S_WOA + s, [WO_ADDR[s][w] for w in range(4)])
    else:
        g.A(f"s_lshl_b32 s{S_T1}, s{S_BB}, 4"); g.A(f"s_add_u32 s{S_T1}, s{S_T1}, s{S_HP}"); g.A(f"s_mul_i32 s{S_T1}, s{S_T1}, 49152")
        srd(g, SRD_P, S_WS, S_WS+1, f"s{S_T1}", 49152)
    g.A(f"v_lshrrev_b32 v{t0}, 4, v{L}"); g.A(f"v_and_b32 v{t1}, 15, v{L}")
    g.A(f"v_xor_b32 v{t2}, v{t0}, v{t1}"); g.A(f"v_lshlrev_b32 v{t2}, 4, v{t2}")
    g.A(f"v_lshl_add_u32 v{P_OR}, v{t1}, 9, v{t2}"); g.A(f"v_add_u32 v{P_OR}, {OB}, v{P_OR}")
    r_, cc, sw = 28, 29, 30
    g.A(f"v_bfe_u32 v{r_}, v{L}, 2, 2"); g.A(f"v_and_b32 v{cc}, 3, v{L}")
    g.A(f"v_and_b32 v{sw}, 2, v{r_}"); g.A(f"v_and_b32 v{t2}, 1, v{t0}")
    g.A(f"v_lshl_or_b32 v{sw}, v{t2}, 2, v{sw}")
    g.A(f"v_lshrrev_b32 v{t2}, 1, v{cc}"); g.A(f"v_or_b32 v{sw}, v{sw}, v{t2}"); g.A(f"v_lshlrev_b32 v{sw}, 4, v{sw}")
    g.A(f"v_and_b32 v{t2}, 1, v{cc}"); g.A(f"v_lshl_add_u32 v{sw}, v{t2}, 3, v{sw}")
    g.A(f"v_lshl_add_u32 v{t2}, v{t0}, 3, v{r_}"); g.A(f"v_lshl_add_u32 v{sw}, v{t2}, 7, v{sw}")
    if hb: g.A(f"v_add_u32 v{sw}, 4096, v{sw}")
    for cb in range(4): g.A(f"v_xor_b32 v{t0+cb}, {cb << 5}, v{sw}")
    def b_addr(j):
        g.A(f"s_add_u32 s{S_T0}, s{S_WOROT}, {j}"); g.A(f"s_and_b32 s{S_T0}, s{S_T0}, 7"); g.A(f"s_lshl_b32 s{S_T0}, s{S_T0}, 6")
        g.A(f"v_xor_b32 v{P_OT + j % 2}, s{S_T0}, v{P_OR}")
    b_addr(0); b_addr(1)
    g.A(f"v_lshlrev_b32 v{P_ST}, 4, v{L}")
    g.A(f"s_mul_i32 s{S_T3}, s{S_W}, 12288")
    if not ldr: g.wait_lg0()
    for d in range(4):
        for cb in range(4): g.A(f"v_add_u32 v{V_WOR+4*d+cb}, s{S_WOA+d}, v{t0+cb}")
    def reads(n):
        out = []; buf = n % 2; d = n % 4
        for rb in range(3):
            out.append(lambda rb=rb: g.lds(f"ds_read_b128 {ar(12*n+4*rb,4)}, v{P_OT + n % 2} offset:{rb*8192}", f"f{n}B"))
        for cb in range(4):
            for u in range(2):
                out.append(lambda cb=cb, u=u: g.lds(
                    f"ds_read_b64_tr_b16 {vr(P_A[buf]+4*cb+2*u,2)}, v{V_WOR+4*d+cb} offset:{u*512}", f"f{n}A{cb}"))
        return out
    def acc(cb, rb): return P_ACC + (cb*3 + rb)*4
    def store_frag(c, rb):
        cbp = 2*hb + c
        a0, a1 = acc(2*c, rb), acc(2*c+1, rb)
        d = P_CV + 4*((c*3+rb) % 2)
        g.A(f"v_cvt_pk_bf16_f32 v{d}, v{a0}, v{a0+1}"); g.A(f"v_cvt_pk_bf16_f32 v{d+1}, v{a0+2}, v{a0+3}")
        g.A(f"v_cvt_pk_bf16_f32 v{d+2}, v{a1}, v{a1+1}"); g.A(f"v_cvt_pk_bf16_f32 v{d+3}, v{a1+2}, v{a1+3}")
        pol = f" {o.pol_st}" if o.pol_st else ""
        g.A(f"s_add_u32 s{S_T1}, s{S_T3}, {rb*4096}")
        g.vmem(f"buffer_store_dwordx4 {vr(d,4)}, v{P_ST}, s[{SRD_P}:{SRD_P+3}], s{S_T1} offen offset:{cbp*1024}{pol}", "st")
    if ldr: g.wait_vm(["wo0", "wo1"])
    g.A("s_barrier")
    if not ldr: stamp(g, o, 5)
    for f in reads(0): f()
    for n in range(8):
        if n > 0:
            if ldr:
                if n + 1 < 8: g.wait_vm(f"wo{n+1}")
            g.A("s_barrier")
        def mf(cb, rb, n=n):
            a = vr(acc(cb, rb), 4)
            g.A(f"v_mfma_f32_16x16x32_bf16 {a}, {vr(P_A[n % 2]+4*cb,4)}, {ar(12*n+4*rb,4)}, {'0' if n == 0 else a}")
        fill = reads(n + 1) if n + 1 < 8 else []
        after = {}
        if ldr and 1 <= n and n + 3 < 8:
            dm = wo_dma(n + 3)
            for k, f in enumerate(dm): after[4 + k] = f
        if n == 7: after = {9: lambda: store_frag(0, 0), 10: lambda: store_frag(0, 1), 11: lambda: store_frag(0, 2)}
        gemm_step(g, n, mf, fill, int(o.front), after, (lambda n=n: b_addr(n + 2)) if n + 2 < 8 else None)
    if not ldr: stamp(g, o, 6)
    g.A("s_nop 7")
    for rb in range(3): store_frag(1, rb)

def compute_tail(g, o):
    L = V_LANE
    g.C("==== hand-off and reduction of the 16 partial slabs of this (branch, batch)")
    R, T = S_T2, S_T3
    g.A(f"s_mul_i32 s{R}, s{S_HP}, 3"); g.A(f"s_add_u32 s{R}, s{R}, s{S_W}")
    srd(g, 4, S_WS, S_WS+1, None, 256*49152)
    srd(g, 8, S_OUT, S_OUT+1, None, 786432)
    g.A(f"s_mul_i32 s12, s{S_BB}, 786432"); g.A(f"s_lshl_b32 s{T}, s{R}, 10"); g.A(f"s_add_u32 s12, s12, s{T}")
    g.A(f"s_mul_i32 s13, s{R}, 43"); g.A("s_lshr_b32 s13, s13, 9")
    g.A("s_mul_i32 s14, s13, 12"); g.A(f"s_sub_u32 s14, s{R}, s14")
    g.A("s_lshr_b32 s15, s14, 2"); g.A("s_and_b32 s14, s14, 3")
    g.A(f"s_mul_i32 s16, s{S_B}, 98304")
    g.A(f"s_lshl_b32 s17, s{S_BR}, 10"); g.A("s_add_u32 s16, s16, s17")
    g.A("s_lshl_b32 s17, s15, 15"); g.A("s_add_u32 s16, s16, s17")
    g.A("s_lshl_b32 s17, s13, 8"); g.A("s_add_u32 s16, s16, s17")
    g.A("s_lshl_b32 s17, s14, 6"); g.A("s_add_u32 s16, s16, s17")
    g.A(f"v_lshlrev_b32 v12, 4, v{L}")
    g.A(f"v_and_b32 v13, 15, v{L}"); g.A(f"v_lshrrev_b32 v14, 4, v{L}")
    g.A("v_lshlrev_b32 v13, 11, v13"); g.A("v_lshl_add_u32 v13, v14, 3, v13")
    g.A(f"s_lshl_b32 s20, s{S_BB}, 14"); g.A(f"s_add_u32 s20, s20, {FLAGB}")
    g.A("s_lshr_b32 s21, s14, 1"); g.A("s_lshl_b32 s21, s21, 2"); g.A("s_add_u32 s21, s21, s13"); g.A("s_lshl_b32 s21, s21, 7")
    g.A("s_add_u32 s20, s20, s21")
    g.A(f"v_and_b32 v15, 15, v{L}"); g.A("v_lshlrev_b32 v15, 10, v15"); g.A("v_add_u32 v15, s20, v15")
    set_flag(g, 0)
    g.A(f"s_cmp_ge_u32 s{S_W}, 3"); g.A("s_cbranch_scc1 L_red_done")
    g.A("s_mov_b64 exec, 0xffff")
    g.A(f"s_mov_b32 s{S_CNT}, 0")
    g.label("L_poll")
    g.A(f"buffer_load_dword v10, v15, s[{SRD_FL}:{SRD_FL+3}], 0 offen sc1")
    g.A(f"s_add_u32 s{S_CNT}, s{S_CNT}, 1")
    g.A("s_waitcnt vmcnt(0)")
    g.A("v_cmp_eq_u32 vcc, 1, v10")
    g.A("s_cmp_eq_u64 vcc, exec"); g.A("s_cbranch_scc1 L_poll_done")
    g.A(f"s_cmp_ge_u32 s{S_CNT}, 0x40000"); g.A("s_cbranch_scc1 L_poll_done")
    if int(o.sleep): g.A(f"s_sleep {int(o.sleep)}")
    g.A("s_branch L_poll")
    g.label("L_poll_done")
    g.A("s_mov_b64 exec, -1")
    stamp(g, o, 7)
    for q in range(16):
        g.vmem(f"buffer_load_dwordx4 v[{16+4*q}:{19+4*q}], v12, s[4:7], s12 offen sc1", f"p{q}")
        if q < 15: g.A("s_add_u32 s12, s12, 49152")
    if o.dot2:
        g.A("s_mov_b32 s22, 0x00003f80"); g.A("s_mov_b32 s23, 0x3f800000")
        for j in range(8): g.A(f"v_mov_b32 v{2+j}, 0")
        for q in range(16):
            g.wait_vm(f"p{q}")
            for j in range(4):
                g.A(f"v_dot2c_f32_bf16 v{2+2*j}, s22, v{16+4*q+j}"); g.A(f"v_dot2c_f32_bf16 v{3+2*j}, s23, v{16+4*q+j}")
    else:
        for q in range(16):
            g.wait_vm(f"p{q}")
            for j in range(4):
                src = 16 + 4*q + j
                if q == 0:
                    g.A(f"v_lshlrev_b32 v{2+2*j}, 16, v{src}"); g.A(f"v_and_b32 v{3+2*j}, 0xffff0000, v{src}")
                else:
                    g.A(f"v_lshlrev_b32 v10, 16, v{src}"); g.A(f"v_and_b32 v11, 0xffff0000, v{src}")
                    g.A(f"v_add_f32 v{2+2*j}, v{2+2*j}, v10"); g.A(f"v_add_f32 v{3+2*j}, v{3+2*j}, v11")
    for j in range(4): g.A(f"v_cvt_pk_bf16_f32 v{16+j}, v{2+2*j}, v{3+2*j}")
    g.A("buffer_store_dwordx2 v[16:17], v13, s[8:11], s16 offen")
    g.A("buffer_store_dwordx2 v[18:19], v13, s[8:11], s16 offen offset:32")
    g.label("L_red_done")
    if o.stamps is True:
        g.A(f"s_cmp_lg_u32 s{S_W}, 0"); g.A("s_cbranch_scc1 L_end")
        g.A("s_waitcnt vmcnt(0)")
        stamp(g, o, 8)
        dump_stamps(g, 0x1000000)
    elif o.stamps == "dbg":
        dbg_stamps(g, o)

def dbg_stamps(g, o):
    g.A("s_waitcnt vmcnt(0)")
    stamp(g, o, 8)
    g.A(f"s_cmp_lg_u32 s{S_W}, 0"); g.A("s_cbranch_scc1 L_end")
    g.A(f"s_cmp_lg_u32 s2, {int(o.dbgwg)}"); g.A("s_cbranch_scc1 L_end")
    srd(g, 40, S_DBG, S_DBG+1, None, 256)
    for k in range(12):
        g.A(f"s_sub_u32 s{S_T0}, s{S_STAMP+k}, s{S_STAMP}"); g.A(f"v_mov_b32 v{16+k}, s{S_T0}")
    for k in range(12, 16):
        g.A(f"s_sub_u32 s{S_T0}, s{S_STAMP+k}, s{S_STAMP+12}"); g.A(f"v_mov_b32 v{16+k}, s{S_T0}")
    g.A("v_mov_b32 v13, 0")
    g.A("s_mov_b64 exec, 1")
    for k in range(4): g.A(f"buffer_store_dwordx4 v[{16+4*k}:{19+4*k}], v13, s[40:43], 0 offen offset:{16*k}")
    g.A("s_waitcnt vmcnt(0)")

def k1(g, o):
    header(g, K1)
    entry(g, o)
    g.A(f"s_cmp_ge_u32 s{S_W}, 4"); g.A("s_cbranch_scc1 L_loader")
    if int(o.prio): g.A(f"s_setprio {int(o.prio)}")
    p1_compute(g, o)
    g.A(f"s_cmp_eq_u32 s{S_W}, 3"); g.A("s_cbranch_scc1 L_wave3")
    p2_addresses(g)
    g.wait_lg0()
    g.A("s_barrier")
    stamp(g, o, 3)
    p2_compute(g, o)
    g.A("s_branch L_p3")
    g.label("L_wave3")
    g.A("s_waitcnt lgkmcnt(0)"); g.lg = []
    g.A("s_barrier")
    p2_kloader(g, o)
    g.label("L_p3")
    g.vm = []
    p3_compute(g, o)
    compute_tail(g, o)
    g.label("L_end")
    g.A("s_endpgm")
    g.label("L_loader")
    g.lg = []; g.vm = []
    loader(g, o)
    loader_tail(g, o)
    for par in range(2): rescale_sub(g, par)
    if o.m0init: rescale_sub(g, 0, first=True)
    for t in [0, 1, 2, 3, 4, 5, 6, 31]: rare_stub(g, t)
    g.label("L_code_end")

def build(o):
    g = G()
    g.A("; @launch grid=(256,1,1) block=(512,1,1) lds=163840")
    g.A('.amdgcn_target "amdgcn-amd-amdhsa--gfx950"')
    k1(g, o)
    descriptor(g, K1, 256, ACC_OFF)
    return g

if __name__ == "__main__":
    o = Opt(); OPT = o
    for a in sys.argv[2:]:
        k, v = a.split("=", 1)
        setattr(o, k, {"True": True, "False": False}.get(v, v))
    g = build(o)
    probs = check(g.L)
    for p in probs[:8]: print("HAZARD", p)
    open(sys.argv[1], "w").write(g.text())
    print("lines", len(g.L))
```

```python
import sys, math, struct
from asmlib import G, check
from sched import schedule

PREFIX = "concat_heads__gqa_block_cached__gqa_block_cached__near_ridge"
K1 = PREFIX + "_kernel"

VB = 0
KB = 65536
XB = 114688
QB = XB
OB = 139264
WQB = 16384
NS = 6
def kslot(i): return KB + (NS - 1 - i % NS) * 8192
def vslot(i): return VB + (i % NS) * 8192
WO_ADDR = [[49152, 57344, 114688, 122880],
           [131072, kslot(26), kslot(27), kslot(28)],
           [vslot(26), kslot(29), vslot(27), kslot(30)],
           [vslot(28), kslot(31), vslot(29), vslot(30)]]
FLAGB = 14 << 20

CSCALE = math.log2(math.e) / math.sqrt(128.0)
def fbits(x): return struct.unpack("<I", struct.pack("<f", x))[0]
THR_HI = float(2 ** 20)
THR_LO = float(2 ** -20)

S_W = 3
SRD_X, SRD_WQ, SRD_K, SRD_V, SRD_WO, SRD_P = 4, 8, 12, 16, 20, 24
S_DBG, S_OUT, S_WS = 94, 96, 52
S_HKV, S_HALF, S_B, S_BR = 54, 55, 56, 57
S_S0, S_RING = 58, 59
S_T0, S_T1, S_T2, S_T3 = 60, 61, 62, 63
S_CNT = 64
S_KOFF, S_VOFF = 65, 66
S_THR = 67
S_C = 68
S_RET = 70
S_STAMP = 72
S_WOA = 88
S_BB, S_HP = 92, 93
S_LD2K, S_FIRST, S_THRLO, S_WOROT = 28, 29, 30, 31
S_XM, S_XO = 98, 99
SRD_DBG, SRD_FL = 32, 36

ACC_OFF = 160
V_LANE = 1
V_XR, V_XT = 2, 3
V_WR = 5
V_ACC1 = 32
V_E = 2; NTEMP = 8
V_L, V_TS, V_T, V_F = 10, 11, 12, 14
V_KA, V_VA = 16, 24
V_TMP = 28
V_S = [32, 48]; V_P = [64, 72]; V_NEGM = 80; V_O = 96
A_Q, A_K, A_V = 0, 32, 64
A_A1 = [0, 16]; A_B1 = [32, 44]
V_OR, V_OT = 10, 11
V_ACC3 = 16
V_WOR = 112
A_A3 = 0; A_B3 = [32, 44]
V_XD = 2; V_WD = 4; V_KE0, V_KE1, V_VE = 8, 9, 10; V_WOD = 12; V_LT = 16
V_FA, V_FD, V_RA, V_RD = 20, 21, 22, 23
V_FT = 24

def vr(b, n=1): return f"v{b}" if n == 1 else f"v[{b}:{b+n-1}]"
def ar(b, n=1): return f"a{b}" if n == 1 else f"a[{b}:{b+n-1}]"

class Opt:
    nt_kv = "nt"; pol_w = ""; pol_x = ""; pol_st = "sc1"
    stamps = False; rot = True; sleep = 1; dbgwg = 37
    cap_lo = 24; cap_hi = 24
    kv_pol1 = None; first_nt = True; nt_x = 0; nt_wq = 2; nt_wo = 1; pretouch = False; m0init = False; prio = 0; thr = 20
    x_nok = False; x_nov = False; x_novalu = False; x_nomfma = False; x_nodma = False
OPT = None

def stamp(g, o, idx):
    if o.stamps:
        g.A("s_memrealtime s[100:101]"); g.A("s_waitcnt lgkmcnt(0)"); g.A(f"s_mov_b32 s{S_STAMP+idx}, s100")
        cyc = {0: 12, 3: 13, 4: 14, 8: 15}
        if idx in cyc:
            g.A("s_memtime s[100:101]"); g.A("s_waitcnt lgkmcnt(0)"); g.A(f"s_mov_b32 s{S_STAMP+cyc[idx]}, s100")
        g.lg = []

def header(g, name):
    g.A(".text"); g.A(f".globl {name}"); g.A(".p2align 8"); g.A(f".type {name},@function"); g.label(name)

def descriptor(g, name, vgpr, accum, sgpr=102):
    g.A('.section .rodata,"a"'); g.A(".p2align 6"); g.A(f".amdhsa_kernel {name}")
    g.A(f".amdhsa_next_free_vgpr {vgpr}"); g.A(f".amdhsa_next_free_sgpr {sgpr}"); g.A(f".amdhsa_accum_offset {accum}")
    g.A(".amdhsa_group_segment_fixed_size 0"); g.A(".amdhsa_kernarg_size 104"); g.A(".amdhsa_user_sgpr_count 2")
    g.A(".amdhsa_user_sgpr_kernarg_segment_ptr 1"); g.A(".amdhsa_system_sgpr_workgroup_id_x 1"); g.A(".end_amdhsa_kernel")

def srd(g, d, lo, hi, off_s, nrec):
    if off_s is None:
        g.A(f"s_mov_b32 s{d}, s{lo}"); g.A(f"s_and_b32 s{d+1}, s{hi}, 0xffff")
    else:
        g.A(f"s_add_u32 s{d}, s{lo}, {off_s}"); g.A(f"s_addc_u32 s{d+1}, s{hi}, 0"); g.A(f"s_and_b32 s{d+1}, s{d+1}, 0xffff")
    g.A(f"s_mov_b32 s{d+2}, {nrec}"); g.A(f"s_mov_b32 s{d+3}, 0x20000")

def dma(g, voff, srd_, soff, imm, pol, tag):
    off = f" offset:{imm}" if imm else ""
    pol = f" {pol}" if pol else ""
    g.vmem(f"buffer_load_dwordx4 v{voff}, s[{srd_}:{srd_+3}], {soff} offen{off}{pol} lds", tag)

_lab = [0]
def dma_group(g, o, items, tag):
    if o.kv_pol1 is None:
        for it in items: dma(g, *it, o.nt_kv, tag)
        return
    _lab[0] += 1; n = _lab[0]
    g.A(f"s_cmp_eq_u32 s{S_HALF}, 1"); g.A(f"s_cbranch_scc1 L_kvp{n}")
    vm = list(g.vm)
    for it in items: dma(g, *it, o.nt_kv, tag)
    g.A(f"s_branch L_kvq{n}")
    g.label(f"L_kvp{n}")
    g.vm = vm
    for it in items: dma(g, *it, o.kv_pol1, tag)
    g.label(f"L_kvq{n}")

def weave(main, fill):
    n = len(main); m = len(fill); k = 0
    for i, f in enumerate(main):
        f()
        tgt = (i + 1) * m // n
        while k < tgt:
            fill[k](); k += 1

def select_by_wave(g, dst, vals):
    g.A(f"s_mov_b32 s{dst}, {vals[0]}")
    for k in range(1, len(vals)):
        g.A(f"s_cmp_eq_u32 s{S_W}, {k}"); g.A(f"s_cselect_b32 s{dst}, {vals[k]}, s{dst}")

def entry(g, o):
    g.A("s_cmp_ge_u32 s2, 256"); g.A("s_cbranch_scc1 L_end")
    stamp(g, o, 0)
    g.A("s_load_dwordx16 s[32:47], s[0:1], 0")
    g.A("s_load_dwordx4 s[48:51], s[0:1], 64")
    g.A(f"s_load_dwordx2 s[{S_WS}:{S_WS+1}], s[0:1], 96")
    g.A(f"s_load_dwordx2 s[{S_OUT}:{S_OUT+1}], s[0:1], 80")
    g.A(f"s_load_dwordx2 s[{S_DBG}:{S_DBG+1}], s[0:1], 88")
    g.A(f"v_and_b32 v{V_LANE}, 63, v0")
    g.A("v_lshrrev_b32 v2, 6, v0")
    g.A(f"s_and_b32 s{S_HKV}, s2, 7")
    g.A(f"v_readfirstlane_b32 s{S_W}, v2")
    g.A(f"s_lshr_b32 s{S_T0}, s2, 3")
    g.A(f"s_and_b32 s{S_HALF}, s{S_T0}, 1")
    g.A(f"s_lshr_b32 s{S_B}, s{S_T0}, 1"); g.A(f"s_and_b32 s{S_B}, s{S_B}, 7")
    g.A(f"s_lshr_b32 s{S_BR}, s{S_T0}, 4")
    g.A(f"s_lshl_b32 s{S_HP}, s{S_HKV}, 1"); g.A(f"s_add_u32 s{S_HP}, s{S_HP}, s{S_HALF}")
    g.A(f"s_lshl_b32 s{S_BB}, s{S_BR}, 3"); g.A(f"s_add_u32 s{S_BB}, s{S_BB}, s{S_B}")
    if o.rot:
        g.A(f"s_lshl_b32 s{S_S0}, s{S_B}, 1"); g.A(f"s_lshl_b32 s{S_T0}, s{S_HALF}, 3")
        g.A(f"s_add_u32 s{S_S0}, s{S_S0}, s{S_T0}"); g.A(f"s_and_b32 s{S_S0}, s{S_S0}, 15")
        g.A(f"s_mov_b32 s{S_WOROT}, s{S_B}")
    else:
        g.A(f"s_mov_b32 s{S_S0}, 0"); g.A(f"s_mov_b32 s{S_WOROT}, 0")

def select_branch(g, idx):
    g.A(f"s_cmp_eq_u32 s{S_BR}, 1")
    for i in idx: g.A(f"s_cselect_b32 s{32+i}, s{42+i}, s{32+i}")

def srd_kv(g, which):
    g.A(f"s_lshl_b32 s{S_T0}, s{S_B}, 3"); g.A(f"s_add_u32 s{S_T0}, s{S_T0}, s{S_HKV}"); g.A(f"s_lshl_b32 s{S_T0}, s{S_T0}, 18")
    if "K" in which: srd(g, SRD_K, 34, 35, f"s{S_T0}", 262144)
    if "V" in which: srd(g, SRD_V, 36, 37, f"s{S_T0}", 262144)

EARLY = [("K", 0), ("K", 1), ("V", 0), ("K", 2), ("V", 1), ("K", 3)]

def full_tile_regs(g, kind):
    L = V_LANE; t0, t1 = V_FT+4, V_FT+5
    g.A(f"v_lshrrev_b32 v{t0}, 4, v{L}"); g.A(f"v_and_b32 v{t1}, 15, v{L}")
    for e in range(4 if kind == "K" else 1):
        d = V_FT + e
        if kind == "K": g.A(f"v_add_u32 v{d}, {4*e}, v{t0}")
        else: g.A(f"v_lshlrev_b32 v{d}, 2, v{t0}")
        g.A(f"v_xor_b32 v{d}, v{d}, v{t1}"); g.A(f"v_lshlrev_b32 v{d}, 4, v{d}"); g.A(f"v_lshl_add_u32 v{d}, v{t0}, 8, v{d}")

def full_tile(g, o, kind, t, tag):
    so = S_KOFF if kind == "K" else S_VOFF
    base = kslot(t) if kind == "K" else vslot(t)
    for hf in range(2):
        g.A(f"s_mov_b32 m0, {base + hf*4096}"); g.A("s_nop 0")
        dma_group(g, o, [(V_FT + (e if kind == "K" else 0), SRD_K if kind == "K" else SRD_V, f"s{so}", 1024*e) for e in range(4)], tag)
        g.A(f"s_add_u32 s{so}, s{so}, 4096")

def loader(g, o):
    g.C("================ loader waves")
    L = V_LANE; t0, t1, t2, t3 = V_LT, V_LT+1, V_LT+2, V_LT+3
    g.A(f"s_sub_u32 s{S_W}, s{S_W}, 4")
    g.A(f"v_lshrrev_b32 v{t0}, 4, v{L}"); g.A(f"v_and_b32 v{t1}, 15, v{L}")
    g.A(f"s_lshl_b32 s{S_T0}, s{S_W}, 2")
    g.A(f"v_add_u32 v{t2}, s{S_T0}, v{t0}"); g.A(f"v_xor_b32 v{t2}, v{t2}, v{t1}"); g.A(f"v_lshlrev_b32 v{t2}, 4, v{t2}")
    g.A(f"v_lshl_add_u32 v{V_XD}, v{t0}, 10, v{t2}")
    g.A(f"v_lshrrev_b32 v{t2}, 3, v{L}"); g.A(f"v_and_b32 v{t3}, 7, v{L}")
    g.A(f"s_lshl_b32 s{S_T0}, s{S_W}, 7")
    for jj in range(4):
        d = V_WD + jj
        g.A(f"v_and_b32 v{d}, 2, v{t2}")
        if jj & 1: g.A(f"v_or_b32 v{d}, 4, v{d}")
        g.A(f"v_xor_b32 v{d}, v{d}, v{t3}"); g.A(f"v_lshlrev_b32 v{d}, 4, v{d}")
        g.A(f"v_lshl_add_u32 v{d}, v{t2}, 13, v{d}")
        g.A(f"v_add_u32 v{d}, s{S_T0}, v{d}")
        if jj: g.A(f"v_add_u32 v{d}, {jj*64512}, v{d}")
    g.A(f"s_lshl_b32 s{S_RING}, s{S_W}, 14"); g.A(f"s_add_u32 s{S_RING}, s{S_RING}, {WQB}")
    def x_prep(j):
        g.A(f"s_lshr_b32 s{S_T0}, s{S_S0}, 2"); g.A(f"s_add_u32 s{S_T0}, s{S_T0}, {j}"); g.A(f"s_and_b32 s{S_T0}, s{S_T0}, 3")
        g.A(f"s_mul_i32 s{S_XM}, s{S_T0}, 12288"); g.A(f"s_lshl_b32 s{S_T1}, s{S_W}, 10"); g.A(f"s_add_u32 s{S_XM}, s{S_XM}, s{S_T1}")
        g.A(f"s_lshl_b32 s{S_XO}, s{S_T0}, 8"); g.A(f"s_lshl_b32 s{S_T1}, s{S_W}, 12"); g.A(f"s_add_u32 s{S_XO}, s{S_XO}, s{S_T1}")
    def x_issue(j):
        for i3 in range(3):
            g.A(f"s_add_u32 m0, s{S_XM}, {XB + i3*4096}")
            g.A(f"s_add_u32 s{S_T0}, s{S_XO}, {i3*16384}")
            dma(g, V_XD, SRD_X, f"s{S_T0}", 0, "nt" if (o.first_nt and j < int(o.nt_x)) else o.pol_x, f"x{j}")
    def wq_step(i):
        g.A(f"s_add_u32 s{S_T2}, s{S_S0}, {i}"); g.A(f"s_and_b32 s{S_T2}, s{S_T2}, 15")
        g.A(f"s_add_u32 m0, s{S_RING}, {(i%4)*4096}")
        g.A(f"s_lshl_b32 s{S_T2}, s{S_T2}, 18")
        pol = "nt" if (o.first_nt and i < int(o.nt_wq)) else o.pol_w
        for jj in range(4): dma(g, V_WD + jj, SRD_WQ, f"s{S_T2}", 1024*jj, pol, f"wq{i}")
    x_prep(0)
    g.A("s_waitcnt lgkmcnt(0)")
    stamp(g, o, 1)
    select_branch(g, [0, 1, 6, 7])
    g.A(f"s_mul_i32 s{S_T0}, s{S_B}, 49152"); srd(g, SRD_X, 32, 33, f"s{S_T0}", 49152)
    x_issue(0)
    g.A(f"s_lshl_b32 s{S_T1}, s{S_HP}, 9")
    srd(g, SRD_WQ, 38, 39, f"s{S_T1}", 0)
    g.A(f"s_sub_u32 s{SRD_WQ+2}, 0x400000, s{S_T1}")
    wq_step(0); wq_step(1)
    x_prep(1); x_issue(1)
    wq_step(2)
    stamp(g, o, 2)
    select_branch(g, [2, 3, 4, 5, 8, 9])
    srd_kv(g, "KV")
    g.A(f"s_lshl_b32 s{S_T1}, s{S_HP}, 18")
    srd(g, SRD_WO, 40, 41, f"s{S_T1}", 262144)
    if o.pretouch:
        g.A(f"s_lshl_b32 s{S_T1}, s{S_BB}, 4"); g.A(f"s_add_u32 s{S_T1}, s{S_T1}, s{S_HP}"); g.A(f"s_mul_i32 s{S_T1}, s{S_T1}, 49152")
        g.A(f"s_add_u32 s44, s{S_WS}, s{S_T1}"); g.A(f"s_addc_u32 s45, s{S_WS+1}, 0")
        for r in (SRD_K, SRD_V, SRD_WO, 44, S_OUT, S_DBG):
            g.A(f"s_load_dword s46, s[{r}:{r+1}], 0")
        g.A(f"s_add_u32 s44, s{S_WS}, {FLAGB}"); g.A(f"s_addc_u32 s45, s{S_WS+1}, 0")
        g.A("s_load_dword s46, s[44:45], 0")
    g.A(f"s_lshl_b32 s{S_LD2K}, s{S_W}, 11")
    g.A(f"v_lshlrev_b32 v{t2}, 8, v{t0}"); g.A(f"v_add_u32 v{t2}, s{S_LD2K}, v{t2}")
    g.A(f"s_lshl_b32 s{S_T1}, s{S_W}, 3"); g.A(f"s_and_b32 s{S_T1}, s{S_T1}, 15")
    for e in range(2):
        d = V_KE0 + e
        g.A(f"v_add_u32 v{d}, s{S_T1}, v{t0}")
        if e: g.A(f"v_add_u32 v{d}, 4, v{d}")
        g.A(f"v_xor_b32 v{d}, v{d}, v{t1}"); g.A(f"v_lshl_add_u32 v{d}, v{d}, 4, v{t2}")
    g.A(f"v_lshlrev_b32 v{V_VE}, 2, v{t0}"); g.A(f"v_xor_b32 v{V_VE}, v{V_VE}, v{t1}")
    g.A(f"v_lshl_add_u32 v{V_VE}, v{V_VE}, 4, v{t2}")
    g.A(f"s_lshl_b32 s{S_T0}, s{S_W}, 8")
    for jj in range(4):
        d = V_WOD + jj
        g.A(f"v_lshlrev_b32 v{d}, 1, v{t0}")
        if jj >> 1: g.A(f"v_or_b32 v{d}, 8, v{d}")
        g.A(f"v_xor_b32 v{d}, v{d}, v{t1}"); g.A(f"v_lshlrev_b32 v{d}, 4, v{d}")
        g.A(f"v_lshl_add_u32 v{d}, v{t0}, 10, v{d}"); g.A(f"v_add_u32 v{d}, s{S_T0}, v{d}")
        if jj: g.A(f"v_add_u32 v{d}, {jj*3072}, v{d}")
    for s in range(4): select_by_wave(g, S_WOA + s, [WO_ADDR[s][w] for w in range(4)])
    g.A(f"s_mov_b32 s{S_KOFF}, 0"); g.A(f"s_mov_b32 s{S_VOFF}, 0")
    if o.pretouch: g.A("s_waitcnt lgkmcnt(0)")
    def kv(kind, t, tag):
        so = S_KOFF if kind == "K" else S_VOFF
        g.A(f"s_add_u32 m0, s{S_LD2K}, {kslot(t) if kind == 'K' else vslot(t)}")
        g.A("s_nop 0")
        if kind == "K": dma_group(g, o, [(V_KE0, SRD_K, f"s{so}", 0), (V_KE1, SRD_K, f"s{so}", 1024)], tag)
        else: dma_group(g, o, [(V_VE, SRD_V, f"s{so}", 0), (V_VE, SRD_V, f"s{so}", 1024)], tag)
        g.A(f"s_add_u32 s{so}, s{so}, 8192")
    def wo_step(i):
        g.A(f"s_add_u32 s{S_T2}, s{S_WOROT}, {i}"); g.A(f"s_and_b32 s{S_T2}, s{S_T2}, 7")
        g.A(f"s_mov_b32 m0, s{S_WOA + i % 4}")
        g.A(f"s_lshl_b32 s{S_T2}, s{S_T2}, 15")
        pol = "nt" if (o.first_nt and i < int(o.nt_wo)) else o.pol_w
        for jj in range(4): dma(g, V_WOD + jj, SRD_WO, f"s{S_T2}", 1024*jj, pol, f"wo{i}")
        g.A(f"s_add_u32 m0, s{S_WOA + i % 4}, 4096"); g.A(f"s_add_u32 s{S_T2}, s{S_T2}, 16384")
        for jj in range(4): dma(g, V_WOD + jj, SRD_WO, f"s{S_T2}", 1024*jj, pol, f"wo{i}")
    need_x = {0: "x0", 1: "x1", 5: "x2", 9: "x3"}
    for i in range(16):
        tags = []
        if i == 0: tags += ["wq0", "wq1"]
        elif i + 1 < 16: tags.append(f"wq{i+1}")
        if i in need_x: tags.append(need_x[i])
        if tags: g.wait_vm(tags)
        if i == 0: stamp(g, o, 3)
        g.A("s_barrier")
        if i + 3 < 16: wq_step(i + 3)
        else:
            for kind, t in EARLY[(i-13)*2:(i-13)*2+2]: kv(kind, t, f"{kind}{t}")
        if i == 0: x_prep(2); x_issue(2)
        if i == 3: x_prep(3); x_issue(3)
    g.A("s_barrier")
    g.wait_vm(["K0", "K1"]); g.A("s_barrier")
    stamp(g, o, 4)
    def tail_p3():
        g.A("s_barrier")
        wo_step(3)
        g.wait_vm(["wo0", "wo1"]); g.A("s_barrier")
        for i in range(1, 8):
            if i + 1 < 8: g.wait_vm(f"wo{i+1}")
            g.A("s_barrier")
            if i + 3 < 8: wo_step(i + 3)
        g.A("s_branch L_ld_tail")
    def idle(n, lab):
        g.A(f"s_mov_b32 s{S_CNT}, {n}")
        g.label(lab)
        g.A("s_barrier")
        g.A(f"s_sub_u32 s{S_CNT}, s{S_CNT}, 1"); g.A(f"s_cmp_lg_u32 s{S_CNT}, 0"); g.A(f"s_cbranch_scc1 {lab}")
    def drain(vtags):
        wo_step(0)
        for t in range(28, 32):
            if vtags: g.wait_vm(f"V{t}")
            g.A("s_barrier")
            if t == 28: wo_step(1)
            if t == 30: wo_step(2)
        tail_p3()
    g.A(f"s_cmp_eq_u32 s{S_W}, 3"); g.A("s_cbranch_scc1 L_vloader")
    vm_early = list(g.vm)
    g.wait_vm(["V0", "K2"]); g.A("s_barrier")
    g.wait_vm(["V1", "K3"]); g.A("s_barrier")
    srd(g, SRD_DBG, S_DBG, S_DBG+1, None, 256)
    srd(g, SRD_FL, S_WS, S_WS+1, None, FLAGB + 256*128)
    g.A(f"s_lshl_b32 s{S_T0}, s{S_BB}, 11"); g.A(f"s_add_u32 s{S_T0}, s{S_T0}, {FLAGB}")
    g.A(f"v_and_b32 v{V_FA}, 15, v{V_LANE}"); g.A(f"v_lshlrev_b32 v{V_FA}, 7, v{V_FA}"); g.A(f"v_add_u32 v{V_FA}, s{S_T0}, v{V_FA}")
    g.A(f"s_lshl_b32 s{S_T0}, s{S_BB}, 2"); g.A(f"v_mov_b32 v{V_RA}, s{S_T0}")
    g.A(f"s_or_b32 s{S_FIRST}, s{S_W}, s{S_HP}")
    g.A(f"s_cmp_lg_u32 s{S_FIRST}, 0"); g.A("s_cbranch_scc1 L_fl1")
    g.A(f"v_mov_b32 v{V_FD}, 0")
    g.A("s_mov_b64 exec, 0xffff")
    g.A(f"buffer_store_dword v{V_FD}, v{V_FA}, s[{SRD_FL}:{SRD_FL+3}], 0 offen sc1")
    g.A("s_mov_b64 exec, -1")
    g.label("L_fl1")
    idle(8, "L_ld_idle1")
    g.A(f"s_cmp_lg_u32 s{S_FIRST}, 0"); g.A("s_cbranch_scc1 L_fl2")
    g.A("s_waitcnt vmcnt(0)")
    g.A(f"v_mov_b32 v{V_FD}, 1")
    g.A("s_mov_b64 exec, 1")
    g.A(f"buffer_store_dword v{V_FD}, v{V_RA}, s[{SRD_DBG}:{SRD_DBG+3}], 0 offen sc1")
    g.A("s_mov_b64 exec, -1")
    g.label("L_fl2")
    idle(10, "L_ld_idle2")
    g.A(f"s_cmp_lg_u32 s{S_W}, 0"); g.A("s_cbranch_scc1 L_fl3")
    g.A(f"buffer_load_dword v{V_RD}, v{V_RA}, s[{SRD_DBG}:{SRD_DBG+3}], 0 offen sc1")
    g.label("L_fl3")
    idle(8, "L_ld_idle3")
    g.A("s_waitcnt vmcnt(0)"); g.vm = []
    drain(False)
    g.label("L_vloader")
    g.vm = vm_early
    full_tile_regs(g, "V")
    g.A(f"s_mov_b32 s{S_VOFF}, {2*8192}")
    full_tile(g, o, "V", 2, "V2"); full_tile(g, o, "V", 3, "V3")
    g.wait_vm(["V0", "K2"])
    g.A(f"s_mov_b32 s{S_CNT}, 4")
    g.label("L_vld_loop")
    for t in range(6):
        g.A("s_waitcnt vmcnt(24)"); g.A("s_barrier")
        if not o.x_nodma: full_tile(g, o, "V", t+4, f"V{t+4}")
    g.A(f"s_sub_u32 s{S_CNT}, s{S_CNT}, 1"); g.A(f"s_cmp_lg_u32 s{S_CNT}, 0"); g.A("s_cbranch_scc1 L_vld_loop")
    g.vm = []
    for t in range(24, 28): g.vm += [f"V{t}"]*8
    for t in range(24, 28):
        g.wait_vm(f"V{t}"); g.A("s_barrier"); full_tile(g, o, "V", t+4, f"V{t+4}")
    drain(True)

def loader_tail(g, o):
    g.label("L_ld_tail")
    g.A(f"s_cmp_lg_u32 s{S_W}, 0"); g.A("s_cbranch_scc1 L_ld_tail1")
    g.A(f"s_mov_b32 s{S_CNT}, 0")
    g.label("L_rdy")
    g.A(f"v_readfirstlane_b32 s{S_T1}, v{V_RD}")
    g.A(f"s_add_u32 s{S_CNT}, s{S_CNT}, 1")
    g.A(f"s_cmp_lg_u32 s{S_T1}, 0"); g.A("s_cbranch_scc1 L_ld_tail1")
    g.A(f"s_cmp_ge_u32 s{S_CNT}, 0x40000"); g.A("s_cbranch_scc1 L_ld_tail1")
    g.A(f"buffer_load_dword v{V_RD}, v{V_RA}, s[{SRD_DBG}:{SRD_DBG+3}], 0 offen sc1")
    g.A("s_waitcnt vmcnt(0)")
    g.A("s_branch L_rdy")
    g.label("L_ld_tail1")
    g.A(f"s_lshl_b32 s{S_T0}, s{S_BB}, 4"); g.A(f"s_add_u32 s{S_T0}, s{S_T0}, s{S_HP}"); g.A(f"s_lshl_b32 s{S_T0}, s{S_T0}, 7")
    g.A(f"s_add_u32 s{S_T0}, s{S_T0}, {FLAGB}")
    g.A(f"v_mov_b32 v2, s{S_T0}"); g.A("v_mov_b32 v3, 1")
    g.A("s_barrier")
    g.A(f"s_cmp_lg_u32 s{S_W}, 0"); g.A("s_cbranch_scc1 L_ld_tail2")
    g.A("s_mov_b64 exec, 1")
    g.A(f"buffer_store_dword v3, v2, s[{SRD_FL}:{SRD_FL+3}], 0 offen sc1")
    g.A("s_mov_b64 exec, 0xffff")
    g.A(f"s_mov_b32 s{S_CNT}, 0")
    g.label("L_poll")
    g.A(f"buffer_load_dword v4, v{V_FA}, s[{SRD_FL}:{SRD_FL+3}], 0 offen sc1")
    g.A(f"s_add_u32 s{S_CNT}, s{S_CNT}, 1")
    g.A("s_waitcnt vmcnt(0)")
    g.A("v_cmp_eq_u32 vcc, 1, v4")
    g.A("s_cmp_eq_u64 vcc, exec"); g.A("s_cbranch_scc1 L_poll_done")
    g.A(f"s_cmp_ge_u32 s{S_CNT}, 0x40000"); g.A("s_cbranch_scc1 L_poll_done")
    if int(o.sleep): g.A(f"s_sleep {int(o.sleep)}")
    g.A("s_branch L_poll")
    g.label("L_poll_done")
    g.A("s_mov_b64 exec, -1")
    g.label("L_ld_tail2")
    g.A("s_barrier")
    if o.stamps is True:
        stamp(g, o, 7)
        g.A(f"s_cmp_lg_u32 s{S_W}, 0"); g.A("s_cbranch_scc1 L_ld_end")
        dump_stamps(g, 0x1010000)
        g.label("L_ld_end")
    g.A("s_endpgm")

def dump_stamps(g, base):
    g.A(f"s_add_u32 s40, s{S_WS}, {base}"); g.A(f"s_addc_u32 s41, s{S_WS+1}, 0"); g.A("s_and_b32 s41, s41, 0xffff")
    g.A("s_mov_b32 s42, 0x10000"); g.A("s_mov_b32 s43, 0x20000")
    for k in range(16): g.A(f"v_mov_b32 v{16+k}, s{S_STAMP+k}")
    g.A(f"s_lshl_b32 s{S_T0}, s2, 6"); g.A(f"v_mov_b32 v13, s{S_T0}")
    g.A("s_mov_b64 exec, 1")
    for k in range(4): g.A(f"buffer_store_dwordx4 v[{16+4*k}:{19+4*k}], v13, s[40:43], 0 offen offset:{16*k}")
    g.A("s_waitcnt vmcnt(0)")
    g.A("s_mov_b64 exec, -1")

def p1_compute(g, o):
    g.C("==== P1: Q projection")
    L = V_LANE; t0, t1, t2 = V_TMP, V_TMP+1, V_TMP+2
    g.A(f"s_mov_b32 s{S_THR}, {hex(fbits(float(2.0 ** float(o.thr))))}"); g.A(f"s_mov_b32 s{S_THRLO}, {hex(fbits(THR_LO))}")
    g.A(f"s_mov_b32 s{S_C}, {hex(fbits(CSCALE))}"); g.A(f"s_mov_b32 s{S_C+1}, {hex(fbits(CSCALE))}")
    for i in range(64): g.A(f"v_mov_b32 v{V_O+i}, 0")
    g.A(f"v_lshrrev_b32 v{t0}, 4, v{L}"); g.A(f"v_and_b32 v{t1}, 15, v{L}")
    g.A(f"v_xor_b32 v{t2}, v{t0}, v{t1}"); g.A(f"v_lshlrev_b32 v{t2}, 4, v{t2}")
    g.A(f"v_lshl_add_u32 v{V_XR}, v{t1}, 8, v{t2}")
    g.A(f"s_lshl_b32 s{S_RING}, s{S_W}, 14"); g.A(f"s_add_u32 s{S_RING}, s{S_RING}, {WQB}")
    r_, cc, sw = 12, 13, 14
    g.A(f"v_bfe_u32 v{r_}, v{L}, 2, 2"); g.A(f"v_and_b32 v{cc}, 3, v{L}")
    g.A(f"v_and_b32 v{sw}, 2, v{r_}"); g.A(f"v_and_b32 v{t2}, 1, v{t0}")
    g.A(f"v_lshl_or_b32 v{sw}, v{t2}, 2, v{sw}")
    g.A(f"v_lshrrev_b32 v{t2}, 1, v{cc}"); g.A(f"v_or_b32 v{sw}, v{sw}, v{t2}"); g.A(f"v_lshlrev_b32 v{sw}, 4, v{sw}")
    g.A(f"v_and_b32 v{t2}, 1, v{cc}"); g.A(f"v_lshl_add_u32 v{sw}, v{t2}, 3, v{sw}")
    g.A(f"v_lshl_add_u32 v{t2}, v{t0}, 3, v{r_}"); g.A(f"v_lshl_add_u32 v{sw}, v{t2}, 7, v{sw}")
    g.A(f"v_add_u32 v{sw}, s{S_RING}, v{sw}")
    for cb in range(4): g.A(f"v_xor_b32 v{V_WR+cb}, {cb << 5}, v{sw}")
    V_QW = 16
    g.A(f"s_and_b32 s{S_T0}, s{S_W}, 1"); g.A(f"s_lshl_b32 s{S_T0}, s{S_T0}, 3")
    g.A(f"v_lshrrev_b32 v{t2}, 1, v{t0}")
    g.A(f"v_xor_b32 v{t2}, v{t2}, v{t1}"); g.A(f"v_xor_b32 v{t2}, s{S_T0}, v{t2}"); g.A(f"v_lshlrev_b32 v{t2}, 4, v{t2}")
    g.A(f"v_and_b32 v{t0}, 1, v{t0}"); g.A(f"v_lshl_add_u32 v{t2}, v{t0}, 3, v{t2}")
    g.A(f"s_lshr_b32 s{S_T0}, s{S_W}, 1"); g.A(f"s_mul_i32 s{S_T0}, s{S_T0}, {48*256}"); g.A(f"s_add_u32 s{S_T0}, s{S_T0}, {QB}")
    g.A(f"v_lshl_add_u32 v{t2}, v{t1}, 8, v{t2}"); g.A(f"v_add_u32 v{t2}, s{S_T0}, v{t2}")
    for cb in range(4): g.A(f"v_xor_b32 v{V_QW+cb}, {cb << 5}, v{t2}")
    g.A("s_waitcnt lgkmcnt(0)")
    g.A(f"s_lshl_b32 s{S_T1}, s{S_BB}, 4"); g.A(f"s_add_u32 s{S_T1}, s{S_T1}, s{S_HP}"); g.A(f"s_mul_i32 s{S_T1}, s{S_T1}, 49152")
    srd(g, SRD_P, S_WS, S_WS+1, f"s{S_T1}", 49152)
    select_branch(g, [2, 3])
    srd_kv(g, "K")
    def reads(i):
        out = []; buf = i % 2; slot = i % 4; vt = V_XT + buf
        def addr():
            g.A(f"s_add_u32 s{S_T0}, s{S_S0}, {i}"); g.A(f"s_and_b32 s{S_T0}, s{S_T0}, 15")
            g.A(f"s_and_b32 s{S_T1}, s{S_T0}, 3"); g.A(f"s_lshl_b32 s{S_T1}, s{S_T1}, 6")
            g.A(f"s_lshr_b32 s{S_T0}, s{S_T0}, 2"); g.A(f"s_mul_i32 s{S_T0}, s{S_T0}, 12288"); g.A(f"s_add_u32 s{S_T0}, s{S_T0}, {XB}")
            g.A(f"v_xor_b32 v{vt}, s{S_T1}, v{V_XR}"); g.A(f"v_add_u32 v{vt}, s{S_T0}, v{vt}")
        out.append(addr)
        for cb in range(4):
            for u in range(2):
                out.append(lambda cb=cb, u=u: g.lds(
                    f"ds_read_b64_tr_b16 {ar(A_A1[buf]+4*cb+2*u,2)}, v{V_WR+cb} offset:{slot*4096+u*512}", f"f{i}"))
        for rb in range(3):
            out.append(lambda rb=rb: g.lds(f"ds_read_b128 {ar(A_B1[buf]+4*rb,4)}, v{vt} offset:{rb*4096}", f"f{i}"))
        return out
    r0 = reads(0); r0[0]()
    for i in range(16):
        buf = i % 2
        g.A("s_barrier")
        if i == 0:
            stamp(g, o, 1)
            for f in r0[1:]: f()
        g.wait_lg(f"f{i}")
        mf = []
        for cb in range(4):
            for rb in range(3):
                acc = vr(V_ACC1 + (cb*3 + rb)*4, 4)
                c = "0" if i == 0 else acc
                mf.append(lambda acc=acc, c=c, cb=cb, rb=rb: g.A(
                    f"v_mfma_f32_16x16x32_bf16 {acc}, {ar(A_A1[buf]+4*cb,4)}, {ar(A_B1[buf]+4*rb,4)}, {c}"))
        weave(mf, reads(i + 1) if i + 1 < 16 else [])
    stamp(g, o, 2)
    g.A("s_barrier")
    for cb in range(4):
        for rb in range(3):
            a = V_ACC1 + (cb*3 + rb)*4
            g.A(f"v_pk_mul_f32 {vr(a,2)}, {vr(a,2)}, s[{S_C}:{S_C+1}]"); g.A(f"v_pk_mul_f32 {vr(a+2,2)}, {vr(a+2,2)}, s[{S_C}:{S_C+1}]")
            g.A(f"v_cvt_pk_bf16_f32 v{a}, v{a}, v{a+1}"); g.A(f"v_cvt_pk_bf16_f32 v{a+1}, v{a+2}, v{a+3}")
            g.lds(f"ds_write_b64 v{V_QW+cb}, {vr(a,2)} offset:{rb*4096}", "qw")

def p2_addresses(g):
    L = V_LANE; t0, t1, t2, t3 = V_TMP, V_TMP+1, V_TMP+2, V_TMP+3
    g.A(f"v_and_b32 v{t0}, 31, v{L}"); g.A(f"v_lshrrev_b32 v{t1}, 5, v{L}")
    g.A(f"v_and_b32 v{t2}, 15, v{L}"); g.A(f"v_xor_b32 v{t2}, v{t2}, v{t1}")
    g.A(f"v_lshlrev_b32 v{t2}, 4, v{t2}"); g.A(f"v_lshl_add_u32 v{t2}, v{t0}, 8, v{t2}")
    g.A(f"v_add_u32 v{t2}, {KB}, v{t2}")
    for s in range(8): g.A(f"v_xor_b32 v{V_KA+s}, {s << 5}, v{t2}")
    g.A(f"v_bfe_u32 v{t0}, v{L}, 2, 2")
    g.A(f"v_lshl_add_u32 v{t2}, v{t1}, 2, v{t0}"); g.A(f"v_lshlrev_b32 v{t2}, 8, v{t2}")
    g.A(f"v_lshl_add_u32 v{t2}, v{t0}, 6, v{t2}")
    g.A(f"v_bfe_u32 v{t3}, v{L}, 4, 1"); g.A(f"v_lshl_add_u32 v{t2}, v{t3}, 5, v{t2}")
    g.A(f"v_and_b32 v{t3}, 3, v{L}"); g.A(f"v_lshl_add_u32 v{t2}, v{t3}, 3, v{t2}")
    for blk in range(4): g.A(f"v_xor_b32 v{V_VA+blk}, {blk << 6}, v{t2}")
    g.A(f"s_lshl_b32 s{S_T0}, s{S_W}, 13"); g.A(f"s_add_u32 s{S_T0}, s{S_T0}, {QB-KB}")
    for s in range(8): g.A(f"v_add_u32 v{V_NEGM+s}, s{S_T0}, v{V_KA+s}")
    g.A(f"v_mov_b32 v{V_L}, 0")

def qk_mfma(g, s, dst, first_c):
    c = first_c if s == 0 else vr(dst, 16)
    g.A(f"v_mfma_f32_32x32x16_bf16 {vr(dst,16)}, {ar(A_K+4*s,4)}, {ar(A_Q+4*s,4)}, {c}")
def pv_mfma(g, s, blk, p):
    g.A(f"v_mfma_f32_32x32x16_bf16 {vr(V_O+16*blk,16)}, {ar(A_V+(s*4+blk)*4,4)}, {vr(p+4*s,4)}, {vr(V_O+16*blk,16)}")
def k_read(g, s, t):
    g.lds(f"ds_read_b128 {ar(A_K+4*s,4)}, v{V_KA+s} offset:{kslot(t)-KB}", "K")
def v_read(g, s, blk, u, t):
    g.lds(f"ds_read_b64_tr_b16 {ar(A_V+(s*4+blk)*4+2*u,2)}, v{V_VA+blk} offset:{vslot(t)-VB+4096*s+2048*u}", "V")

def p2_iter(g, t, do_qk=True, do_pv=True):
    o = OPT
    par = t % 2
    Scur, Snew, Pcur, Pprev = V_S[par], V_S[1-par], V_P[par], V_P[1-par]
    g.C(f"---- iteration {t}")
    gaps, left, load = schedule(do_qk, do_pv, cap_lo=int(o.cap_lo), cap_hi=int(o.cap_hi), ntemp=NTEMP)
    assert not left, left
    last_a = max(i for i, gp in enumerate(gaps) if ("A", 15) in gp)
    cmp_gap = min(last_a + 1, 15); br_gap = 15
    first = (t == 0 and o.m0init)
    e = lambda i: V_E + i % NTEMP
    def emit(it):
        k = it[0]
        if k == "E":
            if not o.x_novalu: g.A(f"v_exp_f32 v{e(it[1])}, v{Scur+it[1]}")
        elif k == "A":
            if o.x_novalu: return
            if it[1] == 1: g.A(f"v_add_f32 v{V_TS}, v{e(0)}, v{e(1)}")
            else: g.A(f"v_add_f32 v{V_TS}, v{V_TS}, v{e(it[1])}")
        elif k == "C":
            if not o.x_novalu: g.A(f"v_cvt_pk_bf16_f32 v{Pcur+it[1]}, v{e(2*it[1])}, v{e(2*it[1]+1)}")
        elif k == "K":
            if not o.x_nok: k_read(g, it[1], t+2)
        elif k == "V":
            if not o.x_nov: v_read(g, it[1]//4, it[1] % 4, it[2], t)
    for m in range(16):
        if m < 8 and do_qk and not o.x_nomfma: qk_mfma(g, m, Snew, vr(V_NEGM, 16))
        elif m >= 8 and do_pv and not o.x_nomfma: pv_mfma(g, (m-8)//4, (m-8) % 4, Pprev)
        else: g.A("s_nop 0")
        items = gaps[m]
        if ("X", "bar") in items: g.A("s_barrier")
        if m == cmp_gap:
            g.A(f"v_cmp_lt_f32 vcc, s{S_THR}, v{V_TS}")
            if first: g.A(f"v_cmp_gt_f32 s[{S_RET}:{S_RET+1}], s{S_THRLO}, v{V_TS}")
        for it in items:
            if it[0] != "X": emit(it)
        if m == br_gap:
            if first: g.A(f"s_or_b64 vcc, vcc, s[{S_RET}:{S_RET+1}]")
            g.A(f"s_cbranch_vccnz L_rare_{t}")
            g.label(f"L_back_{t}")
            g.A(f"v_add_f32 v{V_L}, v{V_L}, v{V_TS}")
        if m == 7 and do_pv: g.A(f"s_waitcnt lgkmcnt({8 if do_qk else 0})")
        if m == 15: g.A(f"s_waitcnt lgkmcnt({15 if do_pv else 0})")
    g.lg = []

def rare_stub(g, t):
    g.label(f"L_rare_{t}")
    sub = "L_rescale_first" if (t == 0 and OPT.m0init) else f"L_rescale_{t%2}"
    g.A(f"s_call_b64 s[{S_RET}:{S_RET+1}], {sub}")
    g.A(f"s_branch L_back_{t}")

def rowmax(g, S, dst, tmp):
    g.A(f"v_max3_f32 v{dst}, v{S}, v{S+1}, v{S+2}")
    for k in range(3, 15, 2): g.A(f"v_max3_f32 v{dst}, v{dst}, v{S+k}, v{S+k+1}")
    g.A(f"v_max_f32 v{dst}, v{dst}, v{S+15}")
    g.A(f"v_mov_b32 v{tmp}, v{dst}"); g.A("s_nop 1")
    g.A(f"v_permlane32_swap_b32 v{tmp}, v{dst}")
    g.A(f"v_max_f32 v{dst}, v{dst}, v{tmp}")

def rescale_sub(g, par, first=False):
    Scur, Snew, Pcur = V_S[par], V_S[1-par], V_P[par]
    d, tmp, f = V_T, V_T+1, V_F
    g.label("L_rescale_first" if first else f"L_rescale_{par}")
    g.A("s_nop 15"); g.A("s_nop 15")
    rowmax(g, Scur, d, tmp)
    if not first: g.A(f"v_max_f32 v{d}, 0, v{d}")
    for i in range(16):
        g.A(f"v_sub_f32 v{Scur+i}, v{Scur+i}, v{d}")
        g.A(f"v_sub_f32 v{Snew+i}, v{Snew+i}, v{d}")
        g.A(f"v_sub_f32 v{V_NEGM+i}, v{V_NEGM+i}, v{d}")
    if not first:
        g.A(f"v_sub_f32 v{f}, 0, v{d}"); g.A(f"v_exp_f32 v{f}, v{f}"); g.A("s_nop 0")
        g.A(f"v_mul_f32 v{V_L}, v{V_L}, v{f}")
        for i in range(64): g.A(f"v_mul_f32 v{V_O+i}, v{V_O+i}, v{f}")
    for k in range(8):
        g.A(f"v_exp_f32 v{V_E}, v{Scur+2*k}"); g.A(f"v_exp_f32 v{V_E+1}, v{Scur+2*k+1}"); g.A("s_nop 0")
        if k == 0: g.A(f"v_add_f32 v{V_TS}, v{V_E}, v{V_E+1}")
        else:
            g.A(f"v_add_f32 v{V_TS}, v{V_TS}, v{V_E}"); g.A(f"v_add_f32 v{V_TS}, v{V_TS}, v{V_E+1}")
        g.A(f"v_cvt_pk_bf16_f32 v{Pcur+k}, v{V_E}, v{V_E+1}")
    g.A("s_nop 1")
    g.A(f"s_setpc_b64 s[{S_RET}:{S_RET+1}]")

def p2_compute(g, o):
    g.C("==== P2: attention, compute waves 0..2")
    L = V_LANE; t0, t1, t2 = V_TMP, V_TMP+1, V_TMP+2
    for s in range(8): g.lds(f"ds_read_b128 {ar(A_Q+4*s,4)}, v{V_NEGM+s}", "Q")
    for s in range(8): k_read(g, s, 0)
    if o.m0init:
        for i in range(16): g.A(f"v_mov_b32 v{V_NEGM+i}, 0")
    g.wait_lg0()
    for s in range(8):
        qk_mfma(g, s, V_S[0], "0")
        k_read(g, s, 1)
    if not o.m0init:
        g.A("s_nop 15")
        rowmax(g, V_S[0], V_T, V_T+1)
        for i in range(16): g.A(f"v_sub_f32 v{V_NEGM+i}, 0, v{V_T}")
        for i in range(16): g.A(f"v_sub_f32 v{V_S[0]+i}, v{V_S[0]+i}, v{V_T}")
    else:
        g.A("s_nop 7")
    g.A("s_waitcnt lgkmcnt(0)")
    p2_iter(g, 0, do_pv=False)
    g.A(f"s_mov_b32 s{S_CNT}, 5")
    g.label("L_p2_loop")
    for t in range(1, 7): p2_iter(g, t)
    g.A(f"s_sub_u32 s{S_CNT}, s{S_CNT}, 1"); g.A(f"s_cmp_lg_u32 s{S_CNT}, 0"); g.A("s_cbranch_scc1 L_p2_loop")
    p2_iter(g, 31, do_qk=False)
    g.A("s_waitcnt lgkmcnt(0)")
    g.A("s_barrier")
    stamp(g, o, 4)
    base = V_TMP+3; AD = V_S[0]
    addr = []
    addr.append(lambda: g.A(f"s_lshl_b32 s{S_T0}, s{S_W}, 5"))
    addr.append(lambda: (g.A(f"v_and_b32 v{t0}, 31, v{L}"), g.A(f"v_add_u32 v{t0}, s{S_T0}, v{t0}")))
    addr.append(lambda: (g.A(f"v_cmp_le_u32 vcc, 48, v{t0}"), g.A(f"v_subrev_u32 v{t1}, 48, v{t0}"), g.A(f"v_mov_b32 v{t2}, 0")))
    addr.append(lambda: (g.A(f"v_cndmask_b32 v{t0}, v{t0}, v{t1}, vcc"), g.A(f"v_mov_b32 v{t1}, 256")))
    addr.append(lambda: (g.A(f"v_cndmask_b32 v{t2}, v{t2}, v{t1}, vcc"), g.A(f"v_lshl_add_u32 v{base}, v{t0}, 9, v{t2}")))
    addr.append(lambda: (g.A(f"v_and_b32 v{t0}, 15, v{t0}"), g.A(f"v_lshl_add_u32 v{base}, v{t0}, 4, v{base}")))
    addr.append(lambda: (g.A(f"v_lshrrev_b32 v{t0}, 5, v{L}"), g.A(f"v_lshl_add_u32 v{base}, v{t0}, 3, v{base}")))
    addr.append(lambda: g.A(f"v_add_u32 v{base}, {OB}, v{base}"))
    k = 0
    for s in range(2):
        for blk in range(4):
            pv_mfma(g, s, blk, V_P[1]); addr[k](); k += 1
    g.A(f"v_mov_b32 v{V_T}, v{V_L}")
    for j in range(16): g.A(f"v_xor_b32 v{AD+j}, {j << 4}, v{base}")
    g.A(f"v_permlane32_swap_b32 v{V_T}, v{V_L}")
    g.A(f"v_add_f32 v{V_L}, v{V_L}, v{V_T}")
    g.A(f"v_rcp_f32 v{V_T}, v{V_L}"); g.A("s_nop 0"); g.A(f"v_mov_b32 v{V_T+1}, v{V_T}")
    for blk in range(4):
        for i in range(4):
            a = V_O + 16*blk + 4*i
            g.A(f"v_pk_mul_f32 {vr(a,2)}, {vr(a,2)}, {vr(V_T,2)}"); g.A(f"v_pk_mul_f32 {vr(a+2,2)}, {vr(a+2,2)}, {vr(V_T,2)}")
            g.A(f"v_cvt_pk_bf16_f32 v{a}, v{a}, v{a+1}"); g.A(f"v_cvt_pk_bf16_f32 v{a+1}, v{a+2}, v{a+3}")
            g.lds(f"ds_write_b64 v{AD+4*blk+i}, {vr(a,2)}", "ow")

def p2_kloader(g, o):
    g.C("==== P2: wave 3 streams K")
    g.vm = []
    full_tile_regs(g, "K")
    g.A(f"s_mov_b32 s{S_KOFF}, {4*8192}")
    full_tile(g, o, "K", 4, "K4"); full_tile(g, o, "K", 5, "K5")
    g.A(f"s_mov_b32 s{S_CNT}, 4")
    g.label("L_kld_loop")
    for t in range(6):
        g.A("s_waitcnt vmcnt(24)"); g.A("s_barrier")
        if not o.x_nodma: full_tile(g, o, "K", t+6, f"K{t+6}")
    g.A(f"s_sub_u32 s{S_CNT}, s{S_CNT}, 1"); g.A(f"s_cmp_lg_u32 s{S_CNT}, 0"); g.A("s_cbranch_scc1 L_kld_loop")
    g.vm = []
    for t in range(26, 30): g.vm += [f"K{t}"]*8
    for t in range(24, 32):
        if t + 2 < 32: g.wait_vm(f"K{t+2}")
        g.A("s_barrier")
        if t + 6 < 32: full_tile(g, o, "K", t+6, f"K{t+6}")
    g.A("s_barrier")

def p3_compute(g, o):
    g.C("==== P3: partial output projection")
    L = V_LANE; t0, t1, t2, t3 = 12, 13, 14, 15
    for s in range(4): select_by_wave(g, S_WOA + s, [WO_ADDR[s][w] for w in range(4)])
    g.A(f"v_lshrrev_b32 v{t0}, 4, v{L}"); g.A(f"v_and_b32 v{t1}, 15, v{L}")
    g.A(f"v_xor_b32 v{t2}, v{t0}, v{t1}"); g.A(f"v_lshlrev_b32 v{t2}, 4, v{t2}")
    g.A(f"v_lshl_add_u32 v{V_OR}, v{t1}, 9, v{t2}"); g.A(f"v_add_u32 v{V_OR}, {OB}, v{V_OR}")
    g.A(f"v_bfe_u32 v{t1}, v{L}, 2, 2")
    g.A(f"v_and_b32 v{t2}, 1, v{t0}"); g.A(f"v_lshl_or_b32 v{t2}, v{t2}, 2, v{t1}"); g.A(f"v_lshlrev_b32 v{t2}, 5, v{t2}")
    g.A(f"v_lshl_add_u32 v{t3}, v{t0}, 3, v{t1}"); g.A(f"v_lshl_add_u32 v{t2}, v{t3}, 8, v{t2}")
    g.A(f"v_and_b32 v{t3}, 3, v{L}"); g.A(f"v_lshl_add_u32 v{t2}, v{t3}, 3, v{t2}")
    g.wait_lg0()
    for cb in range(8): g.A(f"v_xor_b32 v{2+cb}, {cb << 5}, v{t2}")
    for s in range(4):
        for cb in range(8): g.A(f"v_add_u32 v{V_WOR+8*s+cb}, s{S_WOA+s}, v{2+cb}")
    g.A("s_barrier")
    stamp(g, o, 5)
    V_ST = 13
    g.A(f"v_lshlrev_b32 v{V_ST}, 4, v{L}")
    g.A(f"s_mul_i32 s{S_T3}, s{S_W}, 12288")
    def b_reads(i):
        vt = V_OT + i % 2
        g.A(f"s_add_u32 s{S_T0}, s{S_WOROT}, {i}"); g.A(f"s_and_b32 s{S_T0}, s{S_T0}, 7"); g.A(f"s_lshl_b32 s{S_T0}, s{S_T0}, 6")
        g.A(f"v_xor_b32 v{vt}, s{S_T0}, v{V_OR}")
        for rb in range(3): g.lds(f"ds_read_b128 {ar(A_B3[i%2]+4*rb,4)}, v{vt} offset:{rb*8192}", f"B{i}")
    def a_read(i, cb, u):
        g.lds(f"ds_read_b64_tr_b16 {ar(A_A3+4*cb+2*u,2)}, v{V_WOR+8*(i%4)+cb} offset:{u*1024}", f"A{i}_{cb}")
    def store_pair(cbp):
        for rb in range(3):
            a0 = V_ACC3 + ((2*cbp)*3 + rb)*4; a1 = V_ACC3 + ((2*cbp+1)*3 + rb)*4
            d = 2 + 4*((cbp*3+rb) % 2)
            g.A(f"v_cvt_pk_bf16_f32 v{d}, v{a0}, v{a0+1}"); g.A(f"v_cvt_pk_bf16_f32 v{d+1}, v{a0+2}, v{a0+3}")
            g.A(f"v_cvt_pk_bf16_f32 v{d+2}, v{a1}, v{a1+1}"); g.A(f"v_cvt_pk_bf16_f32 v{d+3}, v{a1+2}, v{a1+3}")
            pol = f" {o.pol_st}" if o.pol_st else ""
            g.A(f"s_add_u32 s{S_T2}, s{S_T3}, {rb*4096}")
            g.vmem(f"buffer_store_dwordx4 {vr(d,4)}, v{V_ST}, s[{SRD_P}:{SRD_P+3}], s{S_T2} offen offset:{cbp*1024}{pol}", "st")
    b_reads(0)
    for cb in range(8):
        for u in range(2): a_read(0, cb, u)
    for i in range(8):
        nxt = i + 1 < 8
        if i > 0: g.A("s_barrier")
        if nxt: b_reads(i + 1)
        for cb in range(8):
            if cb % 2 == 0: g.wait_lg([f"A{i}_{cb}", f"A{i}_{cb+1}", f"B{i}"])
            for rb in range(3):
                acc = vr(V_ACC3 + (cb*3 + rb)*4, 4)
                c = "0" if i == 0 else acc
                g.A(f"v_mfma_f32_16x16x32_bf16 {acc}, {ar(A_A3+4*cb,4)}, {ar(A_B3[i%2]+4*rb,4)}, {c}")
                if nxt and cb >= 1 and rb >= 1: a_read(i + 1, cb - 1, rb - 1)
            if not nxt and cb in (3, 5, 7): store_pair((cb - 3) // 2)
        if nxt:
            for u in range(2): a_read(i + 1, 7, u)
    stamp(g, o, 6)
    g.A("s_nop 3")
    store_pair(3)

def compute_tail(g, o):
    L = V_LANE
    g.C("==== reduction of the 16 partial slabs of this (branch, batch)")
    R, T = S_T2, S_T3
    g.A(f"s_mul_i32 s{R}, s{S_HP}, 3"); g.A(f"s_add_u32 s{R}, s{R}, s{S_W}")
    srd(g, 4, S_WS, S_WS+1, None, 256*49152)
    srd(g, 8, S_OUT, S_OUT+1, None, 786432)
    g.A(f"s_mul_i32 s12, s{S_BB}, 786432"); g.A(f"s_lshl_b32 s{T}, s{R}, 10"); g.A(f"s_add_u32 s12, s12, s{T}")
    g.A(f"s_mul_i32 s13, s{R}, 43"); g.A("s_lshr_b32 s13, s13, 9")
    g.A("s_mul_i32 s14, s13, 12"); g.A(f"s_sub_u32 s14, s{R}, s14")
    g.A("s_lshr_b32 s15, s14, 2"); g.A("s_and_b32 s14, s14, 3")
    g.A(f"s_mul_i32 s16, s{S_B}, 98304")
    g.A(f"s_lshl_b32 s17, s{S_BR}, 10"); g.A("s_add_u32 s16, s16, s17")
    g.A("s_lshl_b32 s17, s15, 15"); g.A("s_add_u32 s16, s16, s17")
    g.A("s_lshl_b32 s17, s13, 8"); g.A("s_add_u32 s16, s16, s17")
    g.A("s_lshl_b32 s17, s14, 6"); g.A("s_add_u32 s16, s16, s17")
    g.A(f"v_lshlrev_b32 v12, 4, v{L}")
    g.A(f"v_and_b32 v13, 15, v{L}"); g.A(f"v_lshrrev_b32 v14, 4, v{L}")
    g.A("v_lshlrev_b32 v13, 11, v13"); g.A("v_lshl_add_u32 v13, v14, 3, v13")
    g.A("s_waitcnt vmcnt(0)"); g.vm = []
    g.A("s_barrier")
    g.A("s_barrier")
    stamp(g, o, 7)
    g.A(f"s_cmp_ge_u32 s{S_W}, 3"); g.A("s_cbranch_scc1 L_red_done")
    for q in range(16):
        g.vmem(f"buffer_load_dwordx4 v[{16+4*q}:{19+4*q}], v12, s[4:7], s12 offen sc1", f"p{q}")
        if q < 15: g.A("s_add_u32 s12, s12, 49152")
    for q in range(16):
        g.wait_vm(f"p{q}")
        for j in range(4):
            src = 16 + 4*q + j
            if q == 0:
                g.A(f"v_lshlrev_b32 v{2+2*j}, 16, v{src}"); g.A(f"v_and_b32 v{3+2*j}, 0xffff0000, v{src}")
            else:
                g.A(f"v_lshlrev_b32 v10, 16, v{src}"); g.A(f"v_and_b32 v11, 0xffff0000, v{src}")
                g.A(f"v_add_f32 v{2+2*j}, v{2+2*j}, v10"); g.A(f"v_add_f32 v{3+2*j}, v{3+2*j}, v11")
    for j in range(4): g.A(f"v_cvt_pk_bf16_f32 v{16+j}, v{2+2*j}, v{3+2*j}")
    g.A("buffer_store_dwordx2 v[16:17], v13, s[8:11], s16 offen")
    g.A("buffer_store_dwordx2 v[18:19], v13, s[8:11], s16 offen offset:32")
    g.label("L_red_done")
    if o.stamps is True:
        g.A(f"s_cmp_lg_u32 s{S_W}, 0"); g.A("s_cbranch_scc1 L_end")
        g.A("s_waitcnt vmcnt(0)")
        stamp(g, o, 8)
        dump_stamps(g, 0x1000000)
    elif o.stamps == "dbg":
        dbg_stamps(g, o)

def dbg_stamps(g, o):
    g.A("s_waitcnt vmcnt(0)")
    stamp(g, o, 8)
    g.A(f"s_cmp_lg_u32 s{S_W}, 0"); g.A("s_cbranch_scc1 L_end")
    g.A(f"s_cmp_lg_u32 s2, {int(o.dbgwg)}"); g.A("s_cbranch_scc1 L_end")
    srd(g, 40, S_DBG, S_DBG+1, None, 256)
    for k in range(12):
        g.A(f"s_sub_u32 s{S_T0}, s{S_STAMP+k}, s{S_STAMP}"); g.A(f"v_mov_b32 v{16+k}, s{S_T0}")
    for k in range(12, 16):
        g.A(f"s_sub_u32 s{S_T0}, s{S_STAMP+k}, s{S_STAMP+12}"); g.A(f"v_mov_b32 v{16+k}, s{S_T0}")
    g.A("v_mov_b32 v13, 0")
    g.A("s_mov_b64 exec, 1")
    for k in range(4): g.A(f"buffer_store_dwordx4 v[{16+4*k}:{19+4*k}], v13, s[40:43], 0 offen offset:{16*k}")
    g.A("s_waitcnt vmcnt(0)")

def k1(g, o):
    header(g, K1)
    entry(g, o)
    g.A(f"s_cmp_ge_u32 s{S_W}, 4"); g.A("s_cbranch_scc1 L_loader")
    if int(o.prio): g.A(f"s_setprio {int(o.prio)}")
    p1_compute(g, o)
    g.A(f"s_cmp_eq_u32 s{S_W}, 3"); g.A("s_cbranch_scc1 L_wave3")
    p2_addresses(g)
    g.wait_lg0()
    g.A("s_barrier")
    stamp(g, o, 3)
    p2_compute(g, o)
    g.A("s_branch L_p3")
    g.label("L_wave3")
    g.A("s_waitcnt lgkmcnt(0)"); g.lg = []
    g.A("s_barrier")
    p2_kloader(g, o)
    g.label("L_p3")
    g.vm = []
    p3_compute(g, o)
    compute_tail(g, o)
    g.label("L_end")
    g.A("s_endpgm")
    g.label("L_loader")
    g.lg = []; g.vm = []
    loader(g, o)
    loader_tail(g, o)
    for par in range(2): rescale_sub(g, par)
    if o.m0init: rescale_sub(g, 0, first=True)
    for t in [0, 1, 2, 3, 4, 5, 6, 31]: rare_stub(g, t)

def build(o):
    g = G()
    g.A("; @launch grid=(256,1,1) block=(512,1,1) lds=163840")
    g.A('.amdgcn_target "amdgcn-amd-amdhsa--gfx950"')
    k1(g, o)
    descriptor(g, K1, 256, ACC_OFF)
    return g

if __name__ == "__main__":
    o = Opt(); OPT = o
    for a in sys.argv[2:]:
        k, v = a.split("=", 1)
        setattr(o, k, {"True": True, "False": False}.get(v, v))
    g = build(o)
    probs = check(g.L)
    for p in probs[:8]: print("HAZARD", p)
    open(sys.argv[1], "w").write(g.text())
    print("lines", len(g.L))
```

```python
import sys, math, struct
from asmlib import G, check
from sched import schedule

PREFIX = "concat_heads__gqa_block_cached__gqa_block_cached__near_ridge"
K1 = PREFIX + "_kernel"

VB = 0
KB = 65536
XB = 114688
QB = XB
OB = 139264
WQB = 16384
NS = 6
def kslot(i): return KB + (NS - 1 - i % NS) * 8192
def vslot(i): return VB + (i % NS) * 8192
WO_ADDR = [[49152, 57344, 114688, 122880],
           [131072, kslot(26), kslot(27), kslot(28)],
           [vslot(26), kslot(29), vslot(27), kslot(30)],
           [vslot(28), kslot(31), vslot(29), vslot(30)]]
FLAGB = 14 << 20

CSCALE = math.log2(math.e) / math.sqrt(128.0)
def fbits(x): return struct.unpack("<I", struct.pack("<f", x))[0]
THR_HI = float(2 ** 20)
THR_LO = float(2 ** -20)

S_W = 3
SRD_X, SRD_WQ, SRD_K, SRD_V, SRD_WO, SRD_P = 4, 8, 12, 16, 20, 24
S_DBG, S_OUT, S_WS = 94, 96, 52
S_HKV, S_HALF, S_B, S_BR = 54, 55, 56, 57
S_S0, S_RING = 58, 59
S_T0, S_T1, S_T2, S_T3 = 60, 61, 62, 63
S_CNT = 64
S_KOFF, S_VOFF = 65, 66
S_THR = 67
S_C = 68
S_RET = 70
S_STAMP = 72
S_WOA = 88
S_BB, S_HP = 92, 93
S_LD2K, S_FIRST, S_THRLO, S_WOROT = 28, 29, 30, 31
S_XM, S_XO = 98, 99
SRD_DBG, SRD_FL = 32, 36

ACC_OFF = 160
V_LANE = 1
V_XR, V_XT = 2, 3
V_WR = 5
V_ACC1 = 32
V_E = 2; NTEMP = 8
V_L, V_TS, V_T, V_F = 10, 11, 12, 14
V_KA, V_VA = 16, 24
V_TMP = 28
V_S = [32, 48]; V_P = [64, 72]; V_NEGM = 80; V_O = 96
A_Q, A_K, A_V = 0, 32, 64
A_A1 = [0, 16]; A_B1 = [32, 44]
V_OR, V_OT = 10, 11
V_ACC3 = 16
V_WOR = 112
A_A3 = [0, 16]; A_B3 = [32, 44]
V_STG = 32
V_XD = 2; V_WD = 4; V_KE0, V_KE1, V_VE = 8, 9, 10; V_WOD = 12; V_LT = 16
V_FA, V_FD, V_RA, V_RD = 20, 21, 22, 23
V_FT = 24

def vr(b, n=1): return f"v{b}" if n == 1 else f"v[{b}:{b+n-1}]"
def ar(b, n=1): return f"a{b}" if n == 1 else f"a[{b}:{b+n-1}]"

class Opt:
    nt_kv = "nt"; pol_w = ""; pol_x = ""; pol_st = "sc1"
    stamps = False; rot = True; sleep = 1; dbgwg = 37
    cap_lo = 24; cap_hi = 24
    code_pf = False; wo_pf = True; stage = False; front = 9; kv_pol1 = None; first_nt = True; nt_x = 0; nt_wq = 2; nt_wo = 1; pretouch = False; m0init = False; prio = 0; thr = 20
    x_now = False; x_nost = False; x_nok = False; x_nov = False; x_novalu = False; x_nomfma = False; x_nodma = False
OPT = None

def stamp(g, o, idx):
    if o.stamps:
        g.A("s_memrealtime s[100:101]"); g.A("s_waitcnt lgkmcnt(0)"); g.A(f"s_mov_b32 s{S_STAMP+idx}, s100")
        cyc = {0: 12, 3: 13, 4: 14, 8: 15}
        if idx in cyc:
            g.A("s_memtime s[100:101]"); g.A("s_waitcnt lgkmcnt(0)"); g.A(f"s_mov_b32 s{S_STAMP+cyc[idx]}, s100")
        g.lg = []

def header(g, name):
    g.A(".text"); g.A(f".globl {name}"); g.A(".p2align 8"); g.A(f".type {name},@function"); g.label(name)

def descriptor(g, name, vgpr, accum, sgpr=102):
    g.A('.section .rodata,"a"'); g.A(".p2align 6"); g.A(f".amdhsa_kernel {name}")
    g.A(f".amdhsa_next_free_vgpr {vgpr}"); g.A(f".amdhsa_next_free_sgpr {sgpr}"); g.A(f".amdhsa_accum_offset {accum}")
    g.A(".amdhsa_group_segment_fixed_size 0"); g.A(".amdhsa_kernarg_size 104"); g.A(".amdhsa_user_sgpr_count 2")
    g.A(".amdhsa_user_sgpr_kernarg_segment_ptr 1"); g.A(".amdhsa_system_sgpr_workgroup_id_x 1"); g.A(".end_amdhsa_kernel")

def srd(g, d, lo, hi, off_s, nrec):
    if off_s is None:
        g.A(f"s_mov_b32 s{d}, s{lo}"); g.A(f"s_and_b32 s{d+1}, s{hi}, 0xffff")
    else:
        g.A(f"s_add_u32 s{d}, s{lo}, {off_s}"); g.A(f"s_addc_u32 s{d+1}, s{hi}, 0"); g.A(f"s_and_b32 s{d+1}, s{d+1}, 0xffff")
    g.A(f"s_mov_b32 s{d+2}, {nrec}"); g.A(f"s_mov_b32 s{d+3}, 0x20000")

def dma(g, voff, srd_, soff, imm, pol, tag):
    off = f" offset:{imm}" if imm else ""
    pol = f" {pol}" if pol else ""
    g.vmem(f"buffer_load_dwordx4 v{voff}, s[{srd_}:{srd_+3}], {soff} offen{off}{pol} lds", tag)

_lab = [0]
def dma_group(g, o, items, tag):
    if o.kv_pol1 is None:
        for it in items: dma(g, *it, o.nt_kv, tag)
        return
    _lab[0] += 1; n = _lab[0]
    g.A(f"s_cmp_eq_u32 s{S_HALF}, 1"); g.A(f"s_cbranch_scc1 L_kvp{n}")
    vm = list(g.vm)
    for it in items: dma(g, *it, o.nt_kv, tag)
    g.A(f"s_branch L_kvq{n}")
    g.label(f"L_kvp{n}")
    g.vm = vm
    for it in items: dma(g, *it, o.kv_pol1, tag)
    g.label(f"L_kvq{n}")

def weave(main, fill):
    n = len(main); m = len(fill); k = 0
    for i, f in enumerate(main):
        f()
        tgt = (i + 1) * m // n
        while k < tgt:
            fill[k](); k += 1

def gemm_step(g, n, mfma, fill, front=9, after=None, addr=None):
    k = 0; m = len(fill)
    for i in range(12):
        cb = i // 3
        if i % 3 == 0: g.wait_lg([f"f{n}B", f"f{n}A{cb}"])
        mfma(cb, i % 3)
        tgt = min(m, -(-(i + 1) * m // front))
        while k < tgt:
            fill[k](); k += 1
        if addr and i == 9: addr()
        if after and i in after: after[i]()

def select_by_wave(g, dst, vals):
    g.A(f"s_mov_b32 s{dst}, {vals[0]}")
    for k in range(1, len(vals)):
        g.A(f"s_cmp_eq_u32 s{S_W}, {k}"); g.A(f"s_cselect_b32 s{dst}, {vals[k]}, s{dst}")

def entry(g, o):
    g.A("s_cmp_ge_u32 s2, 256"); g.A("s_cbranch_scc1 L_end")
    stamp(g, o, 0)
    g.A("s_load_dwordx16 s[32:47], s[0:1], 0")
    g.A("s_load_dwordx4 s[48:51], s[0:1], 64")
    g.A(f"s_load_dwordx2 s[{S_WS}:{S_WS+1}], s[0:1], 96")
    g.A(f"s_load_dwordx2 s[{S_OUT}:{S_OUT+1}], s[0:1], 80")
    g.A(f"s_load_dwordx2 s[{S_DBG}:{S_DBG+1}], s[0:1], 88")
    g.A(f"v_and_b32 v{V_LANE}, 63, v0")
    g.A("v_lshrrev_b32 v2, 6, v0")
    g.A(f"s_and_b32 s{S_HKV}, s2, 7")
    g.A(f"v_readfirstlane_b32 s{S_W}, v2")
    g.A(f"s_lshr_b32 s{S_T0}, s2, 3")
    g.A(f"s_and_b32 s{S_HALF}, s{S_T0}, 1")
    g.A(f"s_lshr_b32 s{S_B}, s{S_T0}, 1"); g.A(f"s_and_b32 s{S_B}, s{S_B}, 7")
    g.A(f"s_lshr_b32 s{S_BR}, s{S_T0}, 4")
    g.A(f"s_lshl_b32 s{S_HP}, s{S_HKV}, 1"); g.A(f"s_add_u32 s{S_HP}, s{S_HP}, s{S_HALF}")
    g.A(f"s_lshl_b32 s{S_BB}, s{S_BR}, 3"); g.A(f"s_add_u32 s{S_BB}, s{S_BB}, s{S_B}")
    if o.rot:
        g.A(f"s_lshl_b32 s{S_S0}, s{S_B}, 1"); g.A(f"s_lshl_b32 s{S_T0}, s{S_HALF}, 3")
        g.A(f"s_add_u32 s{S_S0}, s{S_S0}, s{S_T0}"); g.A(f"s_and_b32 s{S_S0}, s{S_S0}, 15")
        g.A(f"s_mov_b32 s{S_WOROT}, s{S_B}")
    else:
        g.A(f"s_mov_b32 s{S_S0}, 0"); g.A(f"s_mov_b32 s{S_WOROT}, 0")

def select_branch(g, idx):
    g.A(f"s_cmp_eq_u32 s{S_BR}, 1")
    for i in idx: g.A(f"s_cselect_b32 s{32+i}, s{42+i}, s{32+i}")

def srd_kv(g, which):
    g.A(f"s_lshl_b32 s{S_T0}, s{S_B}, 3"); g.A(f"s_add_u32 s{S_T0}, s{S_T0}, s{S_HKV}"); g.A(f"s_lshl_b32 s{S_T0}, s{S_T0}, 18")
    if "K" in which: srd(g, SRD_K, 34, 35, f"s{S_T0}", 262144)
    if "V" in which: srd(g, SRD_V, 36, 37, f"s{S_T0}", 262144)

EARLY = [("K", 0), ("K", 1), ("V", 0), ("K", 2), ("V", 1), ("K", 3)]

def full_tile_regs(g, kind):
    L = V_LANE; t0, t1 = V_FT+4, V_FT+5
    g.A(f"v_lshrrev_b32 v{t0}, 4, v{L}"); g.A(f"v_and_b32 v{t1}, 15, v{L}")
    for e in range(4 if kind == "K" else 1):
        d = V_FT + e
        if kind == "K": g.A(f"v_add_u32 v{d}, {4*e}, v{t0}")
        else: g.A(f"v_lshlrev_b32 v{d}, 2, v{t0}")
        g.A(f"v_xor_b32 v{d}, v{d}, v{t1}"); g.A(f"v_lshlrev_b32 v{d}, 4, v{d}"); g.A(f"v_lshl_add_u32 v{d}, v{t0}, 8, v{d}")

def full_tile(g, o, kind, t, tag):
    so = S_KOFF if kind == "K" else S_VOFF
    base = kslot(t) if kind == "K" else vslot(t)
    for hf in range(2):
        g.A(f"s_mov_b32 m0, {base + hf*4096}"); g.A("s_nop 0")
        dma_group(g, o, [(V_FT + (e if kind == "K" else 0), SRD_K if kind == "K" else SRD_V, f"s{so}", 1024*e) for e in range(4)], tag)
        g.A(f"s_add_u32 s{so}, s{so}, 4096")

def loader(g, o):
    g.C("================ loader waves")
    L = V_LANE; t0, t1, t2, t3 = V_LT, V_LT+1, V_LT+2, V_LT+3
    g.A(f"s_sub_u32 s{S_W}, s{S_W}, 4")
    g.A(f"v_lshrrev_b32 v{t0}, 4, v{L}"); g.A(f"v_and_b32 v{t1}, 15, v{L}")
    g.A(f"s_lshl_b32 s{S_T0}, s{S_W}, 2")
    g.A(f"v_add_u32 v{t2}, s{S_T0}, v{t0}"); g.A(f"v_xor_b32 v{t2}, v{t2}, v{t1}"); g.A(f"v_lshlrev_b32 v{t2}, 4, v{t2}")
    g.A(f"v_lshl_add_u32 v{V_XD}, v{t0}, 10, v{t2}")
    g.A(f"v_lshrrev_b32 v{t2}, 3, v{L}"); g.A(f"v_and_b32 v{t3}, 7, v{L}")
    g.A(f"s_lshl_b32 s{S_T0}, s{S_W}, 7")
    for jj in range(4):
        d = V_WD + jj
        g.A(f"v_and_b32 v{d}, 2, v{t2}")
        if jj & 1: g.A(f"v_or_b32 v{d}, 4, v{d}")
        g.A(f"v_xor_b32 v{d}, v{d}, v{t3}"); g.A(f"v_lshlrev_b32 v{d}, 4, v{d}")
        g.A(f"v_lshl_add_u32 v{d}, v{t2}, 13, v{d}")
        g.A(f"v_add_u32 v{d}, s{S_T0}, v{d}")
        if jj: g.A(f"v_add_u32 v{d}, {jj*64512}, v{d}")
    g.A(f"s_lshl_b32 s{S_RING}, s{S_W}, 14"); g.A(f"s_add_u32 s{S_RING}, s{S_RING}, {WQB}")
    def x_prep(j):
        g.A(f"s_lshr_b32 s{S_T0}, s{S_S0}, 2"); g.A(f"s_add_u32 s{S_T0}, s{S_T0}, {j}"); g.A(f"s_and_b32 s{S_T0}, s{S_T0}, 3")
        g.A(f"s_mul_i32 s{S_XM}, s{S_T0}, 12288"); g.A(f"s_lshl_b32 s{S_T1}, s{S_W}, 10"); g.A(f"s_add_u32 s{S_XM}, s{S_XM}, s{S_T1}")
        g.A(f"s_lshl_b32 s{S_XO}, s{S_T0}, 8"); g.A(f"s_lshl_b32 s{S_T1}, s{S_W}, 12"); g.A(f"s_add_u32 s{S_XO}, s{S_XO}, s{S_T1}")
    def x_issue(j):
        for i3 in range(3):
            g.A(f"s_add_u32 m0, s{S_XM}, {XB + i3*4096}")
            g.A(f"s_add_u32 s{S_T0}, s{S_XO}, {i3*16384}")
            dma(g, V_XD, SRD_X, f"s{S_T0}", 0, "nt" if (o.first_nt and j < int(o.nt_x)) else o.pol_x, f"x{j}")
    def wq_step(i):
        g.A(f"s_add_u32 s{S_T2}, s{S_S0}, {i}"); g.A(f"s_and_b32 s{S_T2}, s{S_T2}, 15")
        g.A(f"s_add_u32 m0, s{S_RING}, {(i%4)*4096}")
        g.A(f"s_lshl_b32 s{S_T2}, s{S_T2}, 18")
        pol = "nt" if (o.first_nt and i < int(o.nt_wq)) else o.pol_w
        for jj in range(4): dma(g, V_WD + jj, SRD_WQ, f"s{S_T2}", 1024*jj, pol, f"wq{i}")
    x_prep(0)
    g.A("s_waitcnt lgkmcnt(0)")
    stamp(g, o, 1)
    select_branch(g, [0, 1, 6, 7])
    g.A(f"s_mul_i32 s{S_T0}, s{S_B}, 49152"); srd(g, SRD_X, 32, 33, f"s{S_T0}", 49152)
    x_issue(0)
    g.A(f"s_lshl_b32 s{S_T1}, s{S_HP}, 9")
    srd(g, SRD_WQ, 38, 39, f"s{S_T1}", 0)
    g.A(f"s_sub_u32 s{SRD_WQ+2}, 0x400000, s{S_T1}")
    wq_step(0); wq_step(1)
    x_prep(1); x_issue(1)
    wq_step(2)
    stamp(g, o, 2)
    if o.code_pf:
        g.A(f"s_cmp_lg_u32 s{S_W}, 1"); g.A("s_cbranch_scc1 L_cpf")
        g.A("s_getpc_b64 s[98:99]"); g.label("L_pc")
        g.A(f"s_sub_u32 s98, s98, L_pc-{K1}"); g.A("s_subb_u32 s99, s99, 0")
        g.A(f"s_lshr_b32 s{S_T3}, s2, 3"); g.A(f"s_lshl_b32 s{S_T3}, s{S_T3}, 10")
        g.A(f"v_lshl_add_u32 v{t2}, v{L}, 4, s{S_T3}")
        g.A(f"v_min_u32 v{t2}, L_code_end-{K1}-16, v{t2}")
        g.A(f"global_load_dwordx4 v[32:35], v{t2}, s[98:99]")
        g.label("L_cpf")
    select_branch(g, [2, 3, 4, 5, 8, 9])
    srd_kv(g, "KV")
    g.A(f"s_lshl_b32 s{S_T1}, s{S_HP}, 18")
    srd(g, SRD_WO, 40, 41, f"s{S_T1}", 262144)
    if o.pretouch:
        g.A(f"s_lshl_b32 s{S_T1}, s{S_BB}, 4"); g.A(f"s_add_u32 s{S_T1}, s{S_T1}, s{S_HP}"); g.A(f"s_mul_i32 s{S_T1}, s{S_T1}, 49152")
        g.A(f"s_add_u32 s44, s{S_WS}, s{S_T1}"); g.A(f"s_addc_u32 s45, s{S_WS+1}, 0")
        for r in (SRD_K, SRD_V, SRD_WO, 44, S_OUT, S_DBG):
            g.A(f"s_load_dword s46, s[{r}:{r+1}], 0")
        g.A(f"s_add_u32 s44, s{S_WS}, {FLAGB}"); g.A(f"s_addc_u32 s45, s{S_WS+1}, 0")
        g.A("s_load_dword s46, s[44:45], 0")
    g.A(f"s_lshl_b32 s{S_LD2K}, s{S_W}, 11")
    g.A(f"v_lshlrev_b32 v{t2}, 8, v{t0}"); g.A(f"v_add_u32 v{t2}, s{S_LD2K}, v{t2}")
    g.A(f"s_lshl_b32 s{S_T1}, s{S_W}, 3"); g.A(f"s_and_b32 s{S_T1}, s{S_T1}, 15")
    for e in range(2):
        d = V_KE0 + e
        g.A(f"v_add_u32 v{d}, s{S_T1}, v{t0}")
        if e: g.A(f"v_add_u32 v{d}, 4, v{d}")
        g.A(f"v_xor_b32 v{d}, v{d}, v{t1}"); g.A(f"v_lshl_add_u32 v{d}, v{d}, 4, v{t2}")
    g.A(f"v_lshlrev_b32 v{V_VE}, 2, v{t0}"); g.A(f"v_xor_b32 v{V_VE}, v{V_VE}, v{t1}")
    g.A(f"v_lshl_add_u32 v{V_VE}, v{V_VE}, 4, v{t2}")
    g.A(f"v_lshrrev_b32 v{t2}, 3, v{L}"); g.A(f"v_and_b32 v{t3}, 7, v{L}")
    g.A(f"s_lshl_b32 s{S_T0}, s{S_W}, 8")
    for jj in range(4):
        d = V_WOD + jj
        g.A(f"v_and_b32 v{d}, 2, v{t2}")
        if jj & 1: g.A(f"v_or_b32 v{d}, 4, v{d}")
        g.A(f"v_xor_b32 v{d}, v{d}, v{t3}"); g.A(f"v_lshlrev_b32 v{d}, 4, v{d}")
        g.A(f"v_lshl_add_u32 v{d}, v{t2}, 10, v{d}")
        g.A(f"v_add_u32 v{d}, s{S_T0}, v{d}")
        if jj: g.A(f"v_add_u32 v{d}, {jj*7168}, v{d}")
    for s in range(4): select_by_wave(g, S_WOA + s, [WO_ADDR[s][w] for w in range(4)])
    g.A(f"s_mov_b32 s{S_KOFF}, 0"); g.A(f"s_mov_b32 s{S_VOFF}, 0")
    if o.pretouch: g.A("s_waitcnt lgkmcnt(0)")
    def kv(kind, t, tag):
        so = S_KOFF if kind == "K" else S_VOFF
        g.A(f"s_add_u32 m0, s{S_LD2K}, {kslot(t) if kind == 'K' else vslot(t)}")
        g.A("s_nop 0")
        if kind == "K": dma_group(g, o, [(V_KE0, SRD_K, f"s{so}", 0), (V_KE1, SRD_K, f"s{so}", 1024)], tag)
        else: dma_group(g, o, [(V_VE, SRD_V, f"s{so}", 0), (V_VE, SRD_V, f"s{so}", 1024)], tag)
        g.A(f"s_add_u32 s{so}, s{so}, 8192")
    def wo_soff(n):
        g.A(f"s_add_u32 s{S_T2}, s{S_WOROT}, {n % 8}"); g.A(f"s_and_b32 s{S_T2}, s{S_T2}, 7"); g.A(f"s_lshl_b32 s{S_T2}, s{S_T2}, 15")
        if n >= 8: g.A(f"s_add_u32 s{S_T2}, s{S_T2}, 128")
    def wo_step(d):
        for n in (2*d, 2*d+1):
            g.A(f"s_add_u32 m0, s{S_WOA + d % 4}, {(n % 2)*4096}")
            wo_soff(n)
            pol = "nt" if (o.first_nt and (n if o.wo_pf else n % 8) < int(o.nt_wo)) else o.pol_w
            for jj in range(4): dma(g, V_WOD + jj, SRD_WO, f"s{S_T2}", 1024*jj, pol, f"wo{d}")
    def wo_regs(k):
        for n in (8 + 2*k, 9 + 2*k):
            wo_soff(n)
            pol = " nt" if (o.first_nt and n - 8 < int(o.nt_wo)) else (f" {o.pol_w}" if o.pol_w else "")
            for jj in range(4):
                r = V_STG + ((n - 8)*4 + jj)*4
                off = f" offset:{1024*jj}" if jj else ""
                g.vmem(f"buffer_load_dwordx4 {vr(r,4)}, v{V_WOD+jj}, s[{SRD_WO}:{SRD_WO+3}], s{S_T2} offen{off}{pol}", f"wr{k}")
    def wo_write(d):
        g.wait_vm(f"wr{d-4}")
        g.A(f"v_add_u32 v{V_LT+2}, s{S_WOA + d - 4}, v{V_LT+3}")
        for k in range(8):
            if o.x_now: break
            r = V_STG + ((d-4)*8 + k)*4
            g.lds(f"ds_write_b128 v{V_LT+2}, {vr(r,4)} offset:{k*1024}", "ww")
    need_x = {0: "x0", 1: "x1", 5: "x2", 9: "x3"}
    for i in range(16):
        tags = []
        if i == 0: tags += ["wq0", "wq1"]
        elif i + 1 < 16: tags.append(f"wq{i+1}")
        if i in need_x: tags.append(need_x[i])
        if tags: g.wait_vm(tags)
        if i == 0: stamp(g, o, 3)
        g.A("s_barrier")
        if i + 3 < 16: wq_step(i + 3)
        else:
            for kind, t in EARLY[(i-13)*2:(i-13)*2+2]: kv(kind, t, f"{kind}{t}")
        if i == 0: x_prep(2); x_issue(2)
        if i == 3: x_prep(3); x_issue(3)
    g.A("s_barrier")
    g.wait_vm(["K0", "K1"]); g.A("s_barrier")
    stamp(g, o, 4)
    def tail_p3(first):
        g.A("s_barrier")
        wo_step(3)
        if o.stage: wo_regs(2)
        g.A(f"v_lshlrev_b32 v{V_LT+3}, 4, v{V_LANE}")
        g.wait_vm(["wo0", "wo1"]); g.A("s_barrier")
        if o.stage: wo_regs(3)
        for d in range(1, 8):
            if d + 1 < 4 or (not o.stage and d + 1 < 8): g.wait_vm(f"wo{d+1}")
            elif o.stage: g.wait_lg0()
            if d == 7 and first: ready_check()
            g.A("s_barrier")
            if d + 3 < 8:
                if o.stage: wo_write(d + 3)
                else: wo_step(d + 3)
        g.A("s_branch L_ld_end")
    def ready_check():
        g.A(f"s_cmp_lg_u32 s{S_W}, 0"); g.A("s_cbranch_scc1 L_rdy_done")
        g.A(f"s_mov_b32 s{S_CNT}, 0")
        g.label("L_rdy")
        g.A(f"v_readfirstlane_b32 s{S_T1}, v{V_RD}")
        g.A(f"s_add_u32 s{S_CNT}, s{S_CNT}, 1")
        g.A(f"s_cmp_lg_u32 s{S_T1}, 0"); g.A("s_cbranch_scc1 L_rdy_done")
        g.A(f"s_cmp_ge_u32 s{S_CNT}, 0x40000"); g.A("s_cbranch_scc1 L_rdy_done")
        g.A(f"buffer_load_dword v{V_RD}, v{V_RA}, s[{SRD_DBG}:{SRD_DBG+3}], 0 offen sc1")
        g.A("s_waitcnt vmcnt(0)")
        g.A("s_branch L_rdy")
        g.label("L_rdy_done")
    def idle(n, lab):
        g.A(f"s_mov_b32 s{S_CNT}, {n}")
        g.label(lab)
        g.A("s_barrier")
        g.A(f"s_sub_u32 s{S_CNT}, s{S_CNT}, 1"); g.A(f"s_cmp_lg_u32 s{S_CNT}, 0"); g.A(f"s_cbranch_scc1 {lab}")
    def drain(vtags):
        wo_step(0)
        if o.wo_pf:
            g.A(f"v_and_b32 v{V_LT+2}, 31, v{V_LANE}"); g.A(f"v_lshlrev_b32 v{V_LT+2}, 10, v{V_LT+2}")
            g.A(f"s_lshl_b32 s{S_T0}, s{S_W}, 8"); g.A(f"s_add_u32 s{S_T0}, s{S_T0}, 128")
            g.A(f"v_add_u32 v{V_LT+2}, s{S_T0}, v{V_LT+2}")
            g.A(f"s_lshl_b32 s{S_T2}, s{S_WOROT}, 15")
            g.vmem(f"buffer_load_dword v{V_LT+1}, v{V_LT+2}, s[{SRD_WO}:{SRD_WO+3}], s{S_T2} offen nt", "pf")
        for t in range(28, 32):
            if vtags: g.wait_vm(f"V{t}")
            g.A("s_barrier")
            if t == 28: wo_step(1)
            if t == 29 and o.stage: wo_regs(0)
            if t == 30: wo_step(2)
            if t == 31 and o.stage: wo_regs(1)
        tail_p3(not vtags)
    g.A(f"s_cmp_eq_u32 s{S_W}, 3"); g.A("s_cbranch_scc1 L_vloader")
    vm_early = list(g.vm)
    g.wait_vm(["V0", "K2"]); g.A("s_barrier")
    g.wait_vm(["V1", "K3"]); g.A("s_barrier")
    srd(g, SRD_DBG, S_DBG, S_DBG+1, None, 256)
    srd(g, SRD_FL, S_WS, S_WS+1, None, FLAGB + 1024*128)
    g.A(f"s_lshl_b32 s{S_T0}, s{S_BB}, 13"); g.A(f"s_add_u32 s{S_T0}, s{S_T0}, {FLAGB}")
    g.A(f"v_lshlrev_b32 v{V_FA}, 7, v{V_LANE}"); g.A(f"v_add_u32 v{V_FA}, s{S_T0}, v{V_FA}")
    g.A(f"s_lshl_b32 s{S_T0}, s{S_BB}, 2"); g.A(f"v_mov_b32 v{V_RA}, s{S_T0}")
    g.A(f"s_or_b32 s{S_FIRST}, s{S_W}, s{S_HP}")
    g.A(f"s_cmp_lg_u32 s{S_FIRST}, 0"); g.A("s_cbranch_scc1 L_fl1")
    g.A(f"v_mov_b32 v{V_FD}, 0")
    g.A(f"buffer_store_dword v{V_FD}, v{V_FA}, s[{SRD_FL}:{SRD_FL+3}], 0 offen sc1")
    g.label("L_fl1")
    idle(8, "L_ld_idle1")
    g.A(f"s_cmp_lg_u32 s{S_FIRST}, 0"); g.A("s_cbranch_scc1 L_fl2")
    g.A("s_waitcnt vmcnt(0)")
    g.A(f"v_mov_b32 v{V_FD}, 1")
    g.A("s_mov_b64 exec, 1")
    g.A(f"buffer_store_dword v{V_FD}, v{V_RA}, s[{SRD_DBG}:{SRD_DBG+3}], 0 offen sc1")
    g.A("s_mov_b64 exec, -1")
    g.label("L_fl2")
    idle(10, "L_ld_idle2")
    g.A(f"s_cmp_lg_u32 s{S_W}, 0"); g.A("s_cbranch_scc1 L_fl3")
    g.A(f"buffer_load_dword v{V_RD}, v{V_RA}, s[{SRD_DBG}:{SRD_DBG+3}], 0 offen sc1")
    g.label("L_fl3")
    idle(8, "L_ld_idle3")
    g.A("s_waitcnt vmcnt(0)"); g.vm = []
    drain(False)
    g.label("L_vloader")
    g.vm = vm_early
    full_tile_regs(g, "V")
    g.A(f"s_mov_b32 s{S_VOFF}, {2*8192}")
    full_tile(g, o, "V", 2, "V2"); full_tile(g, o, "V", 3, "V3")
    g.wait_vm(["V0", "K2"])
    g.A(f"s_mov_b32 s{S_CNT}, 4")
    g.label("L_vld_loop")
    for t in range(6):
        g.A("s_waitcnt vmcnt(24)"); g.A("s_barrier")
        if not o.x_nodma: full_tile(g, o, "V", t+4, f"V{t+4}")
    g.A(f"s_sub_u32 s{S_CNT}, s{S_CNT}, 1"); g.A(f"s_cmp_lg_u32 s{S_CNT}, 0"); g.A("s_cbranch_scc1 L_vld_loop")
    g.vm = []
    for t in range(24, 28): g.vm += [f"V{t}"]*8
    for t in range(24, 28):
        g.wait_vm(f"V{t}"); g.A("s_barrier"); full_tile(g, o, "V", t+4, f"V{t+4}")
    drain(True)

def loader_tail(g, o):
    g.label("L_ld_end")
    if o.stamps is True:
        stamp(g, o, 7)
        g.A(f"s_cmp_lg_u32 s{S_W}, 0"); g.A("s_cbranch_scc1 L_ld_end2")
        dump_stamps(g, 0x1010000)
        g.label("L_ld_end2")
    g.A("s_endpgm")

def dump_stamps(g, base):
    g.A(f"s_add_u32 s40, s{S_WS}, {base}"); g.A(f"s_addc_u32 s41, s{S_WS+1}, 0"); g.A("s_and_b32 s41, s41, 0xffff")
    g.A("s_mov_b32 s42, 0x10000"); g.A("s_mov_b32 s43, 0x20000")
    for k in range(16): g.A(f"v_mov_b32 v{16+k}, s{S_STAMP+k}")
    g.A(f"s_lshl_b32 s{S_T0}, s2, 6"); g.A(f"v_mov_b32 v13, s{S_T0}")
    g.A("s_mov_b64 exec, 1")
    for k in range(4): g.A(f"buffer_store_dwordx4 v[{16+4*k}:{19+4*k}], v13, s[40:43], 0 offen offset:{16*k}")
    g.A("s_waitcnt vmcnt(0)")
    g.A("s_mov_b64 exec, -1")

def p1_compute(g, o):
    g.C("==== P1: Q projection")
    L = V_LANE; t0, t1, t2 = V_TMP, V_TMP+1, V_TMP+2
    g.A(f"s_mov_b32 s{S_THR}, {hex(fbits(float(2.0 ** float(o.thr))))}"); g.A(f"s_mov_b32 s{S_THRLO}, {hex(fbits(THR_LO))}")
    g.A(f"s_mov_b32 s{S_C}, {hex(fbits(CSCALE))}"); g.A(f"s_mov_b32 s{S_C+1}, {hex(fbits(CSCALE))}")
    for i in range(64): g.A(f"v_mov_b32 v{V_O+i}, 0")
    g.A(f"v_lshrrev_b32 v{t0}, 4, v{L}"); g.A(f"v_and_b32 v{t1}, 15, v{L}")
    g.A(f"v_xor_b32 v{t2}, v{t0}, v{t1}"); g.A(f"v_lshlrev_b32 v{t2}, 4, v{t2}")
    g.A(f"v_lshl_add_u32 v{V_XR}, v{t1}, 8, v{t2}")
    g.A(f"s_lshl_b32 s{S_RING}, s{S_W}, 14"); g.A(f"s_add_u32 s{S_RING}, s{S_RING}, {WQB}")
    r_, cc, sw = 12, 13, 14
    g.A(f"v_bfe_u32 v{r_}, v{L}, 2, 2"); g.A(f"v_and_b32 v{cc}, 3, v{L}")
    g.A(f"v_and_b32 v{sw}, 2, v{r_}"); g.A(f"v_and_b32 v{t2}, 1, v{t0}")
    g.A(f"v_lshl_or_b32 v{sw}, v{t2}, 2, v{sw}")
    g.A(f"v_lshrrev_b32 v{t2}, 1, v{cc}"); g.A(f"v_or_b32 v{sw}, v{sw}, v{t2}"); g.A(f"v_lshlrev_b32 v{sw}, 4, v{sw}")
    g.A(f"v_and_b32 v{t2}, 1, v{cc}"); g.A(f"v_lshl_add_u32 v{sw}, v{t2}, 3, v{sw}")
    g.A(f"v_lshl_add_u32 v{t2}, v{t0}, 3, v{r_}"); g.A(f"v_lshl_add_u32 v{sw}, v{t2}, 7, v{sw}")
    g.A(f"v_add_u32 v{sw}, s{S_RING}, v{sw}")
    for cb in range(4): g.A(f"v_xor_b32 v{V_WR+cb}, {cb << 5}, v{sw}")
    V_QW = 16
    g.A(f"s_and_b32 s{S_T0}, s{S_W}, 1"); g.A(f"s_lshl_b32 s{S_T0}, s{S_T0}, 3")
    g.A(f"v_lshrrev_b32 v{t2}, 1, v{t0}")
    g.A(f"v_xor_b32 v{t2}, v{t2}, v{t1}"); g.A(f"v_xor_b32 v{t2}, s{S_T0}, v{t2}"); g.A(f"v_lshlrev_b32 v{t2}, 4, v{t2}")
    g.A(f"v_and_b32 v{t0}, 1, v{t0}"); g.A(f"v_lshl_add_u32 v{t2}, v{t0}, 3, v{t2}")
    g.A(f"s_lshr_b32 s{S_T0}, s{S_W}, 1"); g.A(f"s_mul_i32 s{S_T0}, s{S_T0}, {48*256}"); g.A(f"s_add_u32 s{S_T0}, s{S_T0}, {QB}")
    g.A(f"v_lshl_add_u32 v{t2}, v{t1}, 8, v{t2}"); g.A(f"v_add_u32 v{t2}, s{S_T0}, v{t2}")
    for cb in range(4): g.A(f"v_xor_b32 v{V_QW+cb}, {cb << 5}, v{t2}")
    g.A("s_waitcnt lgkmcnt(0)")
    g.A(f"s_lshl_b32 s{S_T1}, s{S_BB}, 4"); g.A(f"s_add_u32 s{S_T1}, s{S_T1}, s{S_HP}"); g.A(f"s_mul_i32 s{S_T1}, s{S_T1}, 49152")
    srd(g, SRD_P, S_WS, S_WS+1, f"s{S_T1}", 49152)
    select_branch(g, [2, 3])
    srd_kv(g, "K")
    def reads(i):
        out = []; buf = i % 2; slot = i % 4; vt = V_XT + buf
        def addr():
            g.A(f"s_add_u32 s{S_T0}, s{S_S0}, {i}"); g.A(f"s_and_b32 s{S_T0}, s{S_T0}, 15")
            g.A(f"s_and_b32 s{S_T1}, s{S_T0}, 3"); g.A(f"s_lshl_b32 s{S_T1}, s{S_T1}, 6")
            g.A(f"s_lshr_b32 s{S_T0}, s{S_T0}, 2"); g.A(f"s_mul_i32 s{S_T0}, s{S_T0}, 12288"); g.A(f"s_add_u32 s{S_T0}, s{S_T0}, {XB}")
            g.A(f"v_xor_b32 v{vt}, s{S_T1}, v{V_XR}"); g.A(f"v_add_u32 v{vt}, s{S_T0}, v{vt}")
        out.append(addr)
        for rb in range(3):
            out.append(lambda rb=rb: g.lds(f"ds_read_b128 {ar(A_B1[buf]+4*rb,4)}, v{vt} offset:{rb*4096}", f"f{i}B"))
        for cb in range(4):
            for u in range(2):
                out.append(lambda cb=cb, u=u: g.lds(
                    f"ds_read_b64_tr_b16 {ar(A_A1[buf]+4*cb+2*u,2)}, v{V_WR+cb} offset:{slot*4096+u*512}", f"f{i}A{cb}"))
        return out
    r0 = reads(0); r0[0](); reads(1)[0]()
    for i in range(16):
        buf = i % 2
        g.A("s_barrier")
        if i == 0:
            stamp(g, o, 1)
            for f in r0[1:]: f()
        def mf(cb, rb, i=i, buf=buf):
            a = vr(V_ACC1 + (cb*3 + rb)*4, 4)
            g.A(f"v_mfma_f32_16x16x32_bf16 {a}, {ar(A_A1[buf]+4*cb,4)}, {ar(A_B1[buf]+4*rb,4)}, {'0' if i == 0 else a}")
        gemm_step(g, i, mf, reads(i + 1)[1:] if i + 1 < 16 else [], int(o.front), None, reads(i + 2)[0] if i + 2 < 16 else None)
    stamp(g, o, 2)
    g.A("s_barrier")
    for cb in range(4):
        for rb in range(3):
            a = V_ACC1 + (cb*3 + rb)*4
            g.A(f"v_pk_mul_f32 {vr(a,2)}, {vr(a,2)}, s[{S_C}:{S_C+1}]"); g.A(f"v_pk_mul_f32 {vr(a+2,2)}, {vr(a+2,2)}, s[{S_C}:{S_C+1}]")
            g.A(f"v_cvt_pk_bf16_f32 v{a}, v{a}, v{a+1}"); g.A(f"v_cvt_pk_bf16_f32 v{a+1}, v{a+2}, v{a+3}")
            g.lds(f"ds_write_b64 v{V_QW+cb}, {vr(a,2)} offset:{rb*4096}", "qw")

def p2_addresses(g):
    L = V_LANE; t0, t1, t2, t3 = V_TMP, V_TMP+1, V_TMP+2, V_TMP+3
    g.A(f"v_and_b32 v{t0}, 31, v{L}"); g.A(f"v_lshrrev_b32 v{t1}, 5, v{L}")
    g.A(f"v_and_b32 v{t2}, 15, v{L}"); g.A(f"v_xor_b32 v{t2}, v{t2}, v{t1}")
    g.A(f"v_lshlrev_b32 v{t2}, 4, v{t2}"); g.A(f"v_lshl_add_u32 v{t2}, v{t0}, 8, v{t2}")
    g.A(f"v_add_u32 v{t2}, {KB}, v{t2}")
    for s in range(8): g.A(f"v_xor_b32 v{V_KA+s}, {s << 5}, v{t2}")
    g.A(f"v_bfe_u32 v{t0}, v{L}, 2, 2")
    g.A(f"v_lshl_add_u32 v{t2}, v{t1}, 2, v{t0}"); g.A(f"v_lshlrev_b32 v{t2}, 8, v{t2}")
    g.A(f"v_lshl_add_u32 v{t2}, v{t0}, 6, v{t2}")
    g.A(f"v_bfe_u32 v{t3}, v{L}, 4, 1"); g.A(f"v_lshl_add_u32 v{t2}, v{t3}, 5, v{t2}")
    g.A(f"v_and_b32 v{t3}, 3, v{L}"); g.A(f"v_lshl_add_u32 v{t2}, v{t3}, 3, v{t2}")
    for blk in range(4): g.A(f"v_xor_b32 v{V_VA+blk}, {blk << 6}, v{t2}")
    g.A(f"s_lshl_b32 s{S_T0}, s{S_W}, 13"); g.A(f"s_add_u32 s{S_T0}, s{S_T0}, {QB-KB}")
    for s in range(8): g.A(f"v_add_u32 v{V_NEGM+s}, s{S_T0}, v{V_KA+s}")
    g.A(f"v_mov_b32 v{V_L}, 0")

def qk_mfma(g, s, dst, first_c):
    c = first_c if s == 0 else vr(dst, 16)
    g.A(f"v_mfma_f32_32x32x16_bf16 {vr(dst,16)}, {ar(A_K+4*s,4)}, {ar(A_Q+4*s,4)}, {c}")
def pv_mfma(g, s, blk, p):
    g.A(f"v_mfma_f32_32x32x16_bf16 {vr(V_O+16*blk,16)}, {ar(A_V+(s*4+blk)*4,4)}, {vr(p+4*s,4)}, {vr(V_O+16*blk,16)}")
def k_read(g, s, t):
    g.lds(f"ds_read_b128 {ar(A_K+4*s,4)}, v{V_KA+s} offset:{kslot(t)-KB}", "K")
def v_read(g, s, blk, u, t):
    g.lds(f"ds_read_b64_tr_b16 {ar(A_V+(s*4+blk)*4+2*u,2)}, v{V_VA+blk} offset:{vslot(t)-VB+4096*s+2048*u}", "V")

def p2_iter(g, t, do_qk=True, do_pv=True):
    o = OPT
    par = t % 2
    Scur, Snew, Pcur, Pprev = V_S[par], V_S[1-par], V_P[par], V_P[1-par]
    g.C(f"---- iteration {t}")
    gaps, left, load = schedule(do_qk, do_pv, cap_lo=int(o.cap_lo), cap_hi=int(o.cap_hi), ntemp=NTEMP)
    assert not left, left
    last_a = max(i for i, gp in enumerate(gaps) if ("A", 15) in gp)
    cmp_gap = min(last_a + 1, 15); br_gap = 15
    first = (t == 0 and o.m0init)
    e = lambda i: V_E + i % NTEMP
    def emit(it):
        k = it[0]
        if k == "E":
            if not o.x_novalu: g.A(f"v_exp_f32 v{e(it[1])}, v{Scur+it[1]}")
        elif k == "A":
            if o.x_novalu: return
            if it[1] == 1: g.A(f"v_add_f32 v{V_TS}, v{e(0)}, v{e(1)}")
            else: g.A(f"v_add_f32 v{V_TS}, v{V_TS}, v{e(it[1])}")
        elif k == "C":
            if not o.x_novalu: g.A(f"v_cvt_pk_bf16_f32 v{Pcur+it[1]}, v{e(2*it[1])}, v{e(2*it[1]+1)}")
        elif k == "K":
            if not o.x_nok: k_read(g, it[1], t+2)
        elif k == "V":
            if not o.x_nov: v_read(g, it[1]//4, it[1] % 4, it[2], t)
    for m in range(16):
        if m < 8 and do_qk and not o.x_nomfma: qk_mfma(g, m, Snew, vr(V_NEGM, 16))
        elif m >= 8 and do_pv and not o.x_nomfma: pv_mfma(g, (m-8)//4, (m-8) % 4, Pprev)
        else: g.A("s_nop 0")
        items = gaps[m]
        if ("X", "bar") in items: g.A("s_barrier")
        if m == cmp_gap:
            g.A(f"v_cmp_lt_f32 vcc, s{S_THR}, v{V_TS}")
            if first: g.A(f"v_cmp_gt_f32 s[{S_RET}:{S_RET+1}], s{S_THRLO}, v{V_TS}")
        for it in items:
            if it[0] != "X": emit(it)
        if m == br_gap:
            if first: g.A(f"s_or_b64 vcc, vcc, s[{S_RET}:{S_RET+1}]")
            g.A(f"s_cbranch_vccnz L_rare_{t}")
            g.label(f"L_back_{t}")
            g.A(f"v_add_f32 v{V_L}, v{V_L}, v{V_TS}")
        if m == 7 and do_pv: g.A(f"s_waitcnt lgkmcnt({8 if do_qk else 0})")
        if m == 15: g.A(f"s_waitcnt lgkmcnt({15 if do_pv else 0})")
    g.lg = []

def rare_stub(g, t):
    g.label(f"L_rare_{t}")
    sub = "L_rescale_first" if (t == 0 and OPT.m0init) else f"L_rescale_{t%2}"
    g.A(f"s_call_b64 s[{S_RET}:{S_RET+1}], {sub}")
    g.A(f"s_branch L_back_{t}")

def rowmax(g, S, dst, tmp):
    g.A(f"v_max3_f32 v{dst}, v{S}, v{S+1}, v{S+2}")
    for k in range(3, 15, 2): g.A(f"v_max3_f32 v{dst}, v{dst}, v{S+k}, v{S+k+1}")
    g.A(f"v_max_f32 v{dst}, v{dst}, v{S+15}")
    g.A(f"v_mov_b32 v{tmp}, v{dst}"); g.A("s_nop 1")
    g.A(f"v_permlane32_swap_b32 v{tmp}, v{dst}")
    g.A(f"v_max_f32 v{dst}, v{dst}, v{tmp}")

def rescale_sub(g, par, first=False):
    Scur, Snew, Pcur = V_S[par], V_S[1-par], V_P[par]
    d, tmp, f = V_T, V_T+1, V_F
    g.label("L_rescale_first" if first else f"L_rescale_{par}")
    g.A("s_nop 15"); g.A("s_nop 15")
    rowmax(g, Scur, d, tmp)
    if not first: g.A(f"v_max_f32 v{d}, 0, v{d}")
    for i in range(16):
        g.A(f"v_sub_f32 v{Scur+i}, v{Scur+i}, v{d}")
        g.A(f"v_sub_f32 v{Snew+i}, v{Snew+i}, v{d}")
        g.A(f"v_sub_f32 v{V_NEGM+i}, v{V_NEGM+i}, v{d}")
    if not first:
        g.A(f"v_sub_f32 v{f}, 0, v{d}"); g.A(f"v_exp_f32 v{f}, v{f}"); g.A("s_nop 0")
        g.A(f"v_mul_f32 v{V_L}, v{V_L}, v{f}")
        for i in range(64): g.A(f"v_mul_f32 v{V_O+i}, v{V_O+i}, v{f}")
    for k in range(8):
        g.A(f"v_exp_f32 v{V_E}, v{Scur+2*k}"); g.A(f"v_exp_f32 v{V_E+1}, v{Scur+2*k+1}"); g.A("s_nop 0")
        if k == 0: g.A(f"v_add_f32 v{V_TS}, v{V_E}, v{V_E+1}")
        else:
            g.A(f"v_add_f32 v{V_TS}, v{V_TS}, v{V_E}"); g.A(f"v_add_f32 v{V_TS}, v{V_TS}, v{V_E+1}")
        g.A(f"v_cvt_pk_bf16_f32 v{Pcur+k}, v{V_E}, v{V_E+1}")
    g.A("s_nop 1")
    g.A(f"s_setpc_b64 s[{S_RET}:{S_RET+1}]")

def p2_compute(g, o):
    g.C("==== P2: attention, compute waves 0..2")
    L = V_LANE; t0, t1, t2 = V_TMP, V_TMP+1, V_TMP+2
    for s in range(8): g.lds(f"ds_read_b128 {ar(A_Q+4*s,4)}, v{V_NEGM+s}", "Q")
    for s in range(8): k_read(g, s, 0)
    if o.m0init:
        for i in range(16): g.A(f"v_mov_b32 v{V_NEGM+i}, 0")
    g.wait_lg0()
    for s in range(8):
        qk_mfma(g, s, V_S[0], "0")
        k_read(g, s, 1)
    if not o.m0init:
        g.A("s_nop 15")
        rowmax(g, V_S[0], V_T, V_T+1)
        for i in range(16): g.A(f"v_sub_f32 v{V_NEGM+i}, 0, v{V_T}")
        for i in range(16): g.A(f"v_sub_f32 v{V_S[0]+i}, v{V_S[0]+i}, v{V_T}")
    else:
        g.A("s_nop 7")
    g.A("s_waitcnt lgkmcnt(0)")
    p2_iter(g, 0, do_pv=False)
    g.A(f"s_mov_b32 s{S_CNT}, 5")
    g.label("L_p2_loop")
    for t in range(1, 7): p2_iter(g, t)
    g.A(f"s_sub_u32 s{S_CNT}, s{S_CNT}, 1"); g.A(f"s_cmp_lg_u32 s{S_CNT}, 0"); g.A("s_cbranch_scc1 L_p2_loop")
    p2_iter(g, 31, do_qk=False)
    g.A("s_waitcnt lgkmcnt(0)")
    g.A("s_barrier")
    stamp(g, o, 4)
    base = V_TMP+3; AD = V_S[0]
    addr = []
    addr.append(lambda: g.A(f"s_lshl_b32 s{S_T0}, s{S_W}, 5"))
    addr.append(lambda: (g.A(f"v_and_b32 v{t0}, 31, v{L}"), g.A(f"v_add_u32 v{t0}, s{S_T0}, v{t0}")))
    addr.append(lambda: (g.A(f"v_cmp_le_u32 vcc, 48, v{t0}"), g.A(f"v_subrev_u32 v{t1}, 48, v{t0}"), g.A(f"v_mov_b32 v{t2}, 0")))
    addr.append(lambda: (g.A(f"v_cndmask_b32 v{t0}, v{t0}, v{t1}, vcc"), g.A(f"v_mov_b32 v{t1}, 256")))
    addr.append(lambda: (g.A(f"v_cndmask_b32 v{t2}, v{t2}, v{t1}, vcc"), g.A(f"v_lshl_add_u32 v{base}, v{t0}, 9, v{t2}")))
    addr.append(lambda: (g.A(f"v_and_b32 v{t0}, 15, v{t0}"), g.A(f"v_lshl_add_u32 v{base}, v{t0}, 4, v{base}")))
    addr.append(lambda: (g.A(f"v_lshrrev_b32 v{t0}, 5, v{L}"), g.A(f"v_lshl_add_u32 v{base}, v{t0}, 3, v{base}")))
    addr.append(lambda: g.A(f"v_add_u32 v{base}, {OB}, v{base}"))
    k = 0
    for s in range(2):
        for blk in range(4):
            pv_mfma(g, s, blk, V_P[1]); addr[k](); k += 1
    g.A(f"v_mov_b32 v{V_T}, v{V_L}")
    for j in range(16): g.A(f"v_xor_b32 v{AD+j}, {j << 4}, v{base}")
    g.A(f"v_permlane32_swap_b32 v{V_T}, v{V_L}")
    g.A(f"v_add_f32 v{V_L}, v{V_L}, v{V_T}")
    g.A(f"v_rcp_f32 v{V_T}, v{V_L}"); g.A("s_nop 0"); g.A(f"v_mov_b32 v{V_T+1}, v{V_T}")
    for blk in range(4):
        for i in range(4):
            a = V_O + 16*blk + 4*i
            g.A(f"v_pk_mul_f32 {vr(a,2)}, {vr(a,2)}, {vr(V_T,2)}"); g.A(f"v_pk_mul_f32 {vr(a+2,2)}, {vr(a+2,2)}, {vr(V_T,2)}")
            g.A(f"v_cvt_pk_bf16_f32 v{a}, v{a}, v{a+1}"); g.A(f"v_cvt_pk_bf16_f32 v{a+1}, v{a+2}, v{a+3}")
            g.lds(f"ds_write_b64 v{AD+4*blk+i}, {vr(a,2)}", "ow")

def p2_kloader(g, o):
    g.C("==== P2: wave 3 streams K")
    g.vm = []
    full_tile_regs(g, "K")
    g.A(f"s_mov_b32 s{S_KOFF}, {4*8192}")
    full_tile(g, o, "K", 4, "K4"); full_tile(g, o, "K", 5, "K5")
    g.A(f"s_mov_b32 s{S_CNT}, 4")
    g.label("L_kld_loop")
    for t in range(6):
        g.A("s_waitcnt vmcnt(24)"); g.A("s_barrier")
        if not o.x_nodma: full_tile(g, o, "K", t+6, f"K{t+6}")
    g.A(f"s_sub_u32 s{S_CNT}, s{S_CNT}, 1"); g.A(f"s_cmp_lg_u32 s{S_CNT}, 0"); g.A("s_cbranch_scc1 L_kld_loop")
    g.vm = []
    for t in range(26, 30): g.vm += [f"K{t}"]*8
    for t in range(24, 32):
        if t + 2 < 32: g.wait_vm(f"K{t+2}")
        g.A("s_barrier")
        if t + 6 < 32: full_tile(g, o, "K", t+6, f"K{t+6}")
    g.A("s_barrier")

def p3_compute(g, o):
    g.C("==== P3: partial output projection, two column halves of 8 k-steps")
    L = V_LANE; t0, t1, t2, t3 = 12, 13, 14, 15
    for s in range(4): select_by_wave(g, S_WOA + s, [WO_ADDR[s][w] for w in range(4)])
    g.A(f"v_lshrrev_b32 v{t0}, 4, v{L}"); g.A(f"v_and_b32 v{t1}, 15, v{L}")
    g.A(f"v_xor_b32 v{t2}, v{t0}, v{t1}"); g.A(f"v_lshlrev_b32 v{t2}, 4, v{t2}")
    g.A(f"v_lshl_add_u32 v{V_OR}, v{t1}, 9, v{t2}"); g.A(f"v_add_u32 v{V_OR}, {OB}, v{V_OR}")
    r_, cc, sw = 2, 3, 4
    g.A(f"v_bfe_u32 v{r_}, v{L}, 2, 2"); g.A(f"v_and_b32 v{cc}, 3, v{L}")
    g.A(f"v_and_b32 v{sw}, 2, v{r_}"); g.A(f"v_and_b32 v{t2}, 1, v{t0}")
    g.A(f"v_lshl_or_b32 v{sw}, v{t2}, 2, v{sw}")
    g.A(f"v_lshrrev_b32 v{t2}, 1, v{cc}"); g.A(f"v_or_b32 v{sw}, v{sw}, v{t2}"); g.A(f"v_lshlrev_b32 v{sw}, 4, v{sw}")
    g.A(f"v_and_b32 v{t2}, 1, v{cc}"); g.A(f"v_lshl_add_u32 v{sw}, v{t2}, 3, v{sw}")
    g.A(f"v_lshl_add_u32 v{t2}, v{t0}, 3, v{r_}"); g.A(f"v_lshl_add_u32 v{sw}, v{t2}, 7, v{sw}")
    for cb in range(4): g.A(f"v_xor_b32 v{6+cb}, {cb << 5}, v{sw}")
    g.wait_lg0()
    for d in range(4):
        for cb in range(4): g.A(f"v_add_u32 v{V_WOR+4*d+cb}, s{S_WOA+d}, v{6+cb}")
    V_ST = 13
    g.A(f"v_lshlrev_b32 v{V_ST}, 4, v{L}")
    g.A(f"s_mul_i32 s{S_T3}, s{S_W}, 12288")
    V_A3 = [128, 144]
    def b_addr(j):
        vt = V_OT + j % 2
        g.A(f"s_add_u32 s{S_T0}, s{S_WOROT}, {j}"); g.A(f"s_and_b32 s{S_T0}, s{S_T0}, 7"); g.A(f"s_lshl_b32 s{S_T0}, s{S_T0}, 6")
        g.A(f"v_xor_b32 v{vt}, s{S_T0}, v{V_OR}")
    def reads(n):
        out = []; buf = n % 2; d = (n // 2) % 4
        if n < 8:
            for rb in range(3):
                out.append(lambda rb=rb: g.lds(f"ds_read_b128 {ar(12*n+4*rb,4)}, v{V_OT + n % 2} offset:{rb*8192}", f"f{n}B"))
        for cb in range(4):
            for u in range(2):
                out.append(lambda cb=cb, u=u: g.lds(
                    f"ds_read_b64_tr_b16 {vr(V_A3[buf]+4*cb+2*u,2)}, v{V_WOR+4*d+cb} offset:{(n % 2)*4096+u*512}", f"f{n}A{cb}"))
        return out
    def acc(hb, cb, rb): return V_ACC3 + ((4*hb + cb)*3 + rb)*4
    def store_frag(cbp, rb):
        hb, c0 = cbp // 2, 2*(cbp % 2)
        a0, a1 = acc(hb, c0, rb), acc(hb, c0+1, rb)
        d = 2 + 4*((cbp*3+rb) % 2)
        g.A(f"v_cvt_pk_bf16_f32 v{d}, v{a0}, v{a0+1}"); g.A(f"v_cvt_pk_bf16_f32 v{d+1}, v{a0+2}, v{a0+3}")
        g.A(f"v_cvt_pk_bf16_f32 v{d+2}, v{a1}, v{a1+1}"); g.A(f"v_cvt_pk_bf16_f32 v{d+3}, v{a1+2}, v{a1+3}")
        pol = f" {o.pol_st}" if o.pol_st else ""
        g.A(f"s_add_u32 s{S_T2}, s{S_T3}, {rb*4096}")
        if o.x_nost and cbp < 2: return
        g.vmem(f"buffer_store_dwordx4 {vr(d,4)}, v{V_ST}, s[{SRD_P}:{SRD_P+3}], s{S_T2} offen offset:{cbp*1024}{pol}", "st")
    b_addr(0); b_addr(1)
    g.A("s_barrier")
    stamp(g, o, 5)
    for f in reads(0): f()
    early = [(cbp, rb) for cbp in (0, 1) for rb in range(3)]
    for n in range(16):
        hb, buf = n // 8, n % 2
        if n % 2 == 0 and n > 0: g.A("s_barrier")
        if n in (4, 8, 12): stamp(g, o, 9 + (n - 4)//4)
        def mf(cb, rb, n=n, hb=hb, buf=buf):
            a = vr(acc(hb, cb, rb), 4)
            g.A(f"v_mfma_f32_16x16x32_bf16 {a}, {vr(V_A3[buf]+4*cb,4)}, {ar(12*(n % 8)+4*rb,4)}, {'0' if n % 8 == 0 else a}")
        after = None
        if 9 <= n < 15: after = {10: lambda k=n-9: store_frag(*early[k])}
        if n == 15: after = {9: lambda: store_frag(2, 0), 10: lambda: store_frag(2, 1), 11: lambda: store_frag(2, 2)}
        gemm_step(g, n, mf, reads(n + 1) if n + 1 < 16 else [], int(o.front), after, (lambda n=n: b_addr(n + 2)) if n + 2 < 8 else None)
    stamp(g, o, 6)
    g.A("s_nop 7")
    for rb in range(3): store_frag(3, rb)

def compute_tail(g, o):
    L = V_LANE
    g.C("==== hand-off and reduction of the 16 partial slabs of this (branch, batch)")
    R, T = S_T2, S_T3
    g.A(f"s_mul_i32 s{R}, s{S_HP}, 3"); g.A(f"s_add_u32 s{R}, s{R}, s{S_W}")
    srd(g, 4, S_WS, S_WS+1, None, 256*49152)
    srd(g, 8, S_OUT, S_OUT+1, None, 786432)
    srd(g, SRD_FL, S_WS, S_WS+1, None, FLAGB + 1024*128)
    g.A(f"s_mul_i32 s12, s{S_BB}, 786432"); g.A(f"s_lshl_b32 s{T}, s{R}, 10"); g.A(f"s_add_u32 s12, s12, s{T}")
    g.A(f"s_mul_i32 s13, s{R}, 43"); g.A("s_lshr_b32 s13, s13, 9")
    g.A("s_mul_i32 s14, s13, 12"); g.A(f"s_sub_u32 s14, s{R}, s14")
    g.A("s_lshr_b32 s15, s14, 2"); g.A("s_and_b32 s14, s14, 3")
    g.A(f"s_mul_i32 s16, s{S_B}, 98304")
    g.A(f"s_lshl_b32 s17, s{S_BR}, 10"); g.A("s_add_u32 s16, s16, s17")
    g.A("s_lshl_b32 s17, s15, 15"); g.A("s_add_u32 s16, s16, s17")
    g.A("s_lshl_b32 s17, s13, 8"); g.A("s_add_u32 s16, s16, s17")
    g.A("s_lshl_b32 s17, s14, 6"); g.A("s_add_u32 s16, s16, s17")
    g.A(f"v_lshlrev_b32 v12, 4, v{L}")
    g.A(f"v_and_b32 v13, 15, v{L}"); g.A(f"v_lshrrev_b32 v14, 4, v{L}")
    g.A("v_lshlrev_b32 v13, 11, v13"); g.A("v_lshl_add_u32 v13, v14, 3, v13")
    g.A(f"s_lshl_b32 s18, s{S_BB}, 13"); g.A(f"s_add_u32 s18, s18, {FLAGB}")
    g.A(f"s_lshl_b32 s19, s{S_HP}, 2"); g.A(f"s_add_u32 s19, s19, s{S_W}"); g.A("s_lshl_b32 s19, s19, 7"); g.A("s_add_u32 s19, s19, s18")
    g.A("s_lshl_b32 s20, s13, 7"); g.A("s_add_u32 s20, s20, s18")
    g.A(f"v_and_b32 v15, 15, v{L}"); g.A("v_lshlrev_b32 v15, 9, v15"); g.A("v_add_u32 v15, s20, v15")
    g.A("v_mov_b32 v10, s19"); g.A("v_mov_b32 v11, 1")
    g.A("s_waitcnt vmcnt(0)"); g.vm = []
    g.A("s_mov_b64 exec, 1")
    g.A(f"buffer_store_dword v11, v10, s[{SRD_FL}:{SRD_FL+3}], 0 offen sc1")
    g.A("s_mov_b64 exec, -1")
    g.A(f"s_cmp_ge_u32 s{S_W}, 3"); g.A("s_cbranch_scc1 L_red_done")
    g.A("s_mov_b64 exec, 0xffff")
    g.A(f"s_mov_b32 s{S_CNT}, 0")
    g.label("L_poll")
    g.A(f"buffer_load_dword v10, v15, s[{SRD_FL}:{SRD_FL+3}], 0 offen sc1")
    g.A(f"s_add_u32 s{S_CNT}, s{S_CNT}, 1")
    g.A("s_waitcnt vmcnt(0)")
    g.A("v_cmp_eq_u32 vcc, 1, v10")
    g.A("s_cmp_eq_u64 vcc, exec"); g.A("s_cbranch_scc1 L_poll_done")
    g.A(f"s_cmp_ge_u32 s{S_CNT}, 0x40000"); g.A("s_cbranch_scc1 L_poll_done")
    if int(o.sleep): g.A(f"s_sleep {int(o.sleep)}")
    g.A("s_branch L_poll")
    g.label("L_poll_done")
    g.A("s_mov_b64 exec, -1")
    stamp(g, o, 7)
    for q in range(16):
        g.vmem(f"buffer_load_dwordx4 v[{16+4*q}:{19+4*q}], v12, s[4:7], s12 offen sc1", f"p{q}")
        if q < 15: g.A("s_add_u32 s12, s12, 49152")
    for q in range(16):
        g.wait_vm(f"p{q}")
        for j in range(4):
            src = 16 + 4*q + j
            if q == 0:
                g.A(f"v_lshlrev_b32 v{2+2*j}, 16, v{src}"); g.A(f"v_and_b32 v{3+2*j}, 0xffff0000, v{src}")
            else:
                g.A(f"v_lshlrev_b32 v10, 16, v{src}"); g.A(f"v_and_b32 v11, 0xffff0000, v{src}")
                g.A(f"v_add_f32 v{2+2*j}, v{2+2*j}, v10"); g.A(f"v_add_f32 v{3+2*j}, v{3+2*j}, v11")
    for j in range(4): g.A(f"v_cvt_pk_bf16_f32 v{16+j}, v{2+2*j}, v{3+2*j}")
    g.A("buffer_store_dwordx2 v[16:17], v13, s[8:11], s16 offen")
    g.A("buffer_store_dwordx2 v[18:19], v13, s[8:11], s16 offen offset:32")
    g.label("L_red_done")
    if o.stamps is True:
        g.A(f"s_cmp_lg_u32 s{S_W}, 0"); g.A("s_cbranch_scc1 L_end")
        g.A("s_waitcnt vmcnt(0)")
        stamp(g, o, 8)
        dump_stamps(g, 0x1000000)
    elif o.stamps == "dbg":
        dbg_stamps(g, o)

def dbg_stamps(g, o):
    g.A("s_waitcnt vmcnt(0)")
    stamp(g, o, 8)
    g.A(f"s_cmp_lg_u32 s{S_W}, 0"); g.A("s_cbranch_scc1 L_end")
    g.A(f"s_cmp_lg_u32 s2, {int(o.dbgwg)}"); g.A("s_cbranch_scc1 L_end")
    srd(g, 40, S_DBG, S_DBG+1, None, 256)
    for k in range(12):
        g.A(f"s_sub_u32 s{S_T0}, s{S_STAMP+k}, s{S_STAMP}"); g.A(f"v_mov_b32 v{16+k}, s{S_T0}")
    for k in range(12, 16):
        g.A(f"s_sub_u32 s{S_T0}, s{S_STAMP+k}, s{S_STAMP+12}"); g.A(f"v_mov_b32 v{16+k}, s{S_T0}")
    g.A("v_mov_b32 v13, 0")
    g.A("s_mov_b64 exec, 1")
    for k in range(4): g.A(f"buffer_store_dwordx4 v[{16+4*k}:{19+4*k}], v13, s[40:43], 0 offen offset:{16*k}")
    g.A("s_waitcnt vmcnt(0)")

def k1(g, o):
    header(g, K1)
    entry(g, o)
    g.A(f"s_cmp_ge_u32 s{S_W}, 4"); g.A("s_cbranch_scc1 L_loader")
    if int(o.prio): g.A(f"s_setprio {int(o.prio)}")
    p1_compute(g, o)
    g.A(f"s_cmp_eq_u32 s{S_W}, 3"); g.A("s_cbranch_scc1 L_wave3")
    p2_addresses(g)
    g.wait_lg0()
    g.A("s_barrier")
    stamp(g, o, 3)
    p2_compute(g, o)
    g.A("s_branch L_p3")
    g.label("L_wave3")
    g.A("s_waitcnt lgkmcnt(0)"); g.lg = []
    g.A("s_barrier")
    p2_kloader(g, o)
    g.label("L_p3")
    g.vm = []
    p3_compute(g, o)
    compute_tail(g, o)
    g.label("L_end")
    g.A("s_endpgm")
    g.label("L_loader")
    g.lg = []; g.vm = []
    loader(g, o)
    loader_tail(g, o)
    for par in range(2): rescale_sub(g, par)
    if o.m0init: rescale_sub(g, 0, first=True)
    for t in [0, 1, 2, 3, 4, 5, 6, 31]: rare_stub(g, t)
    g.label("L_code_end")

def build(o):
    g = G()
    g.A("; @launch grid=(256,1,1) block=(512,1,1) lds=163840")
    g.A('.amdgcn_target "amdgcn-amd-amdhsa--gfx950"')
    k1(g, o)
    descriptor(g, K1, 256, ACC_OFF)
    return g

if __name__ == "__main__":
    o = Opt(); OPT = o
    for a in sys.argv[2:]:
        k, v = a.split("=", 1)
        setattr(o, k, {"True": True, "False": False}.get(v, v))
    g = build(o)
    probs = check(g.L)
    for p in probs[:8]: print("HAZARD", p)
    open(sys.argv[1], "w").write(g.text())
    print("lines", len(g.L))
```

```python
import sys, math, struct
from asmlib import G, check
from sched import schedule

PREFIX = "concat_heads__gqa_block_cached__gqa_block_cached__near_ridge"
K1 = PREFIX + "_kernel"

VB = 0
KB = 65536
XB = 114688
QB = XB
OB = 139264
WQB = 16384
NS = 6
def kslot(i): return KB + (NS - 1 - i % NS) * 8192
def vslot(i): return VB + (i % NS) * 8192
WO_ADDR = [[49152, 57344, 114688, 122880],
           [131072, kslot(26), kslot(27), kslot(28)],
           [vslot(26), kslot(29), vslot(27), kslot(30)],
           [vslot(28), kslot(31), vslot(29), vslot(30)]]
FLAGB = 14 << 20

CSCALE = math.log2(math.e) / math.sqrt(128.0)
def fbits(x): return struct.unpack("<I", struct.pack("<f", x))[0]
THR_HI = float(2 ** 20)
THR_LO = float(2 ** -20)

S_W = 3
SRD_X, SRD_WQ, SRD_K, SRD_V, SRD_WO, SRD_P = 4, 8, 12, 16, 20, 24
S_DBG, S_OUT, S_WS = 94, 96, 52
S_HKV, S_HALF, S_B, S_BR = 54, 55, 56, 57
S_S0, S_RING = 58, 59
S_T0, S_T1, S_T2, S_T3 = 60, 61, 62, 63
S_CNT = 64
S_KOFF, S_VOFF = 65, 66
S_THR = 67
S_C = 68
S_RET = 70
S_STAMP = 72
S_WOA = 88
S_BB, S_HP = 92, 93
S_LD2K, S_FIRST, S_THRLO, S_WOROT = 28, 29, 30, 31
S_XM, S_XO = 98, 99
SRD_DBG, SRD_FL = 32, 36

ACC_OFF = 160
V_LANE = 1
V_XR, V_XT = 2, 3
V_WR = 5
V_ACC1 = 32
V_E = 2; NTEMP = 8
V_L, V_TS, V_T, V_F = 10, 11, 12, 14
V_KA, V_VA = 16, 24
V_TMP = 28
V_S = [32, 48]; V_P = [64, 72]; V_NEGM = 80; V_O = 96
A_Q, A_K, A_V = 0, 32, 64
A_A1 = [0, 16]; A_B1 = [32, 44]
V_OR, V_OT = 10, 11
V_ACC3 = 16
V_WOR = 112
A_A3 = [0, 16]; A_B3 = [32, 44]
V_STG = 32
V_XD = 2; V_WD = 4; V_KE0, V_KE1, V_VE = 8, 9, 10; V_WOD = 12; V_LT = 16
V_FA, V_FD, V_RA, V_RD = 20, 21, 22, 23
V_FT = 24

def vr(b, n=1): return f"v{b}" if n == 1 else f"v[{b}:{b+n-1}]"
def ar(b, n=1): return f"a{b}" if n == 1 else f"a[{b}:{b+n-1}]"

class Opt:
    nt_kv = "nt"; pol_w = ""; pol_x = ""; pol_st = "sc1"
    stamps = False; rot = True; sleep = 1; dbgwg = 37
    cap_lo = 24; cap_hi = 24
    pol_out = ""; wq3 = False; dot2 = True; early_ld = False; ld_first = True; code_pf = False; wo_pf = False; stage = False; front = 9; kv_pol1 = None; first_nt = False; nt_x = 0; nt_wq = 2; nt_wo = 1; pretouch = False; m0init = True; prio = 0; thr = 20
    x_now = False; x_nost = False; x_nok = False; x_nov = False; x_novalu = False; x_nomfma = False; x_nodma = False
OPT = None

def stamp(g, o, idx):
    if o.stamps:
        g.A("s_memrealtime s[100:101]"); g.A("s_waitcnt lgkmcnt(0)"); g.A(f"s_mov_b32 s{S_STAMP+idx}, s100")
        cyc = {0: 12, 3: 13, 4: 14, 8: 15}
        if idx in cyc:
            g.A("s_memtime s[100:101]"); g.A("s_waitcnt lgkmcnt(0)"); g.A(f"s_mov_b32 s{S_STAMP+cyc[idx]}, s100")
        g.lg = []

def header(g, name):
    g.A(".text"); g.A(f".globl {name}"); g.A(".p2align 8"); g.A(f".type {name},@function"); g.label(name)

def descriptor(g, name, vgpr, accum, sgpr=102):
    g.A('.section .rodata,"a"'); g.A(".p2align 6"); g.A(f".amdhsa_kernel {name}")
    g.A(f".amdhsa_next_free_vgpr {vgpr}"); g.A(f".amdhsa_next_free_sgpr {sgpr}"); g.A(f".amdhsa_accum_offset {accum}")
    g.A(".amdhsa_group_segment_fixed_size 0"); g.A(".amdhsa_kernarg_size 104"); g.A(".amdhsa_user_sgpr_count 2")
    g.A(".amdhsa_user_sgpr_kernarg_segment_ptr 1"); g.A(".amdhsa_system_sgpr_workgroup_id_x 1"); g.A(".end_amdhsa_kernel")

def srd(g, d, lo, hi, off_s, nrec):
    if off_s is None:
        g.A(f"s_mov_b32 s{d}, s{lo}"); g.A(f"s_and_b32 s{d+1}, s{hi}, 0xffff")
    else:
        g.A(f"s_add_u32 s{d}, s{lo}, {off_s}"); g.A(f"s_addc_u32 s{d+1}, s{hi}, 0"); g.A(f"s_and_b32 s{d+1}, s{d+1}, 0xffff")
    g.A(f"s_mov_b32 s{d+2}, {nrec}"); g.A(f"s_mov_b32 s{d+3}, 0x20000")

def dma(g, voff, srd_, soff, imm, pol, tag):
    off = f" offset:{imm}" if imm else ""
    pol = f" {pol}" if pol else ""
    g.vmem(f"buffer_load_dwordx4 v{voff}, s[{srd_}:{srd_+3}], {soff} offen{off}{pol} lds", tag)

_lab = [0]
def dma_group(g, o, items, tag):
    if o.kv_pol1 is None:
        for it in items: dma(g, *it, o.nt_kv, tag)
        return
    _lab[0] += 1; n = _lab[0]
    g.A(f"s_cmp_eq_u32 s{S_HALF}, 1"); g.A(f"s_cbranch_scc1 L_kvp{n}")
    vm = list(g.vm)
    for it in items: dma(g, *it, o.nt_kv, tag)
    g.A(f"s_branch L_kvq{n}")
    g.label(f"L_kvp{n}")
    g.vm = vm
    for it in items: dma(g, *it, o.kv_pol1, tag)
    g.label(f"L_kvq{n}")

def weave(main, fill):
    n = len(main); m = len(fill); k = 0
    for i, f in enumerate(main):
        f()
        tgt = (i + 1) * m // n
        while k < tgt:
            fill[k](); k += 1

def gemm_step(g, n, mfma, fill, front=9, after=None, addr=None):
    k = 0; m = len(fill)
    for i in range(12):
        cb = i // 3
        if i % 3 == 0: g.wait_lg([f"f{n}B", f"f{n}A{cb}"])
        mfma(cb, i % 3)
        tgt = min(m, -(-(i + 1) * m // front))
        while k < tgt:
            fill[k](); k += 1
        if addr and i == 9: addr()
        if after and i in after: after[i]()

def select_by_wave(g, dst, vals):
    g.A(f"s_mov_b32 s{dst}, {vals[0]}")
    for k in range(1, len(vals)):
        g.A(f"s_cmp_eq_u32 s{S_W}, {k}"); g.A(f"s_cselect_b32 s{dst}, {vals[k]}, s{dst}")

def entry(g, o):
    g.A("s_cmp_ge_u32 s2, 256"); g.A("s_cbranch_scc1 L_end")
    stamp(g, o, 0)
    g.A("s_load_dwordx16 s[32:47], s[0:1], 0")
    g.A("s_load_dwordx4 s[48:51], s[0:1], 64")
    g.A(f"s_load_dwordx2 s[{S_WS}:{S_WS+1}], s[0:1], 96")
    g.A(f"s_load_dwordx2 s[{S_OUT}:{S_OUT+1}], s[0:1], 80")
    g.A(f"s_load_dwordx2 s[{S_DBG}:{S_DBG+1}], s[0:1], 88")
    g.A(f"v_and_b32 v{V_LANE}, 63, v0")
    g.A("v_lshrrev_b32 v2, 6, v0")
    g.A(f"s_and_b32 s{S_HKV}, s2, 7")
    g.A(f"v_readfirstlane_b32 s{S_W}, v2")
    g.A(f"s_lshr_b32 s{S_T0}, s2, 3")
    g.A(f"s_and_b32 s{S_HALF}, s{S_T0}, 1")
    g.A(f"s_lshr_b32 s{S_B}, s{S_T0}, 1"); g.A(f"s_and_b32 s{S_B}, s{S_B}, 7")
    g.A(f"s_lshr_b32 s{S_BR}, s{S_T0}, 4")
    g.A(f"s_lshl_b32 s{S_HP}, s{S_HKV}, 1"); g.A(f"s_add_u32 s{S_HP}, s{S_HP}, s{S_HALF}")
    g.A(f"s_lshl_b32 s{S_BB}, s{S_BR}, 3"); g.A(f"s_add_u32 s{S_BB}, s{S_BB}, s{S_B}")
    if o.rot:
        g.A(f"s_lshl_b32 s{S_S0}, s{S_B}, 1"); g.A(f"s_lshl_b32 s{S_T0}, s{S_HALF}, 3")
        g.A(f"s_add_u32 s{S_S0}, s{S_S0}, s{S_T0}"); g.A(f"s_and_b32 s{S_S0}, s{S_S0}, 15")
        g.A(f"s_mov_b32 s{S_WOROT}, s{S_B}")
    else:
        g.A(f"s_mov_b32 s{S_S0}, 0"); g.A(f"s_mov_b32 s{S_WOROT}, 0")

def select_branch(g, idx):
    g.A(f"s_cmp_eq_u32 s{S_BR}, 1")
    for i in idx: g.A(f"s_cselect_b32 s{32+i}, s{42+i}, s{32+i}")

def srd_kv(g, which):
    g.A(f"s_lshl_b32 s{S_T0}, s{S_B}, 3"); g.A(f"s_add_u32 s{S_T0}, s{S_T0}, s{S_HKV}"); g.A(f"s_lshl_b32 s{S_T0}, s{S_T0}, 18")
    if "K" in which: srd(g, SRD_K, 34, 35, f"s{S_T0}", 262144)
    if "V" in which: srd(g, SRD_V, 36, 37, f"s{S_T0}", 262144)

EARLY = [("K", 0), ("K", 1), ("V", 0), ("K", 2), ("V", 1), ("K", 3)]

def full_tile_regs(g, kind):
    L = V_LANE; t0, t1 = V_FT+4, V_FT+5
    g.A(f"v_lshrrev_b32 v{t0}, 4, v{L}"); g.A(f"v_and_b32 v{t1}, 15, v{L}")
    for e in range(4 if kind == "K" else 1):
        d = V_FT + e
        if kind == "K": g.A(f"v_add_u32 v{d}, {4*e}, v{t0}")
        else: g.A(f"v_lshlrev_b32 v{d}, 2, v{t0}")
        g.A(f"v_xor_b32 v{d}, v{d}, v{t1}"); g.A(f"v_lshlrev_b32 v{d}, 4, v{d}"); g.A(f"v_lshl_add_u32 v{d}, v{t0}, 8, v{d}")

def full_tile(g, o, kind, t, tag):
    so = S_KOFF if kind == "K" else S_VOFF
    base = kslot(t) if kind == "K" else vslot(t)
    for hf in range(2):
        g.A(f"s_mov_b32 m0, {base + hf*4096}"); g.A("s_nop 0")
        dma_group(g, o, [(V_FT + (e if kind == "K" else 0), SRD_K if kind == "K" else SRD_V, f"s{so}", 1024*e) for e in range(4)], tag)
        g.A(f"s_add_u32 s{so}, s{so}, 4096")

def loader(g, o):
    g.C("================ loader waves")
    L = V_LANE; t0, t1, t2, t3 = V_LT, V_LT+1, V_LT+2, V_LT+3
    g.A(f"s_sub_u32 s{S_W}, s{S_W}, 4")
    g.A(f"v_lshrrev_b32 v{t0}, 4, v{L}"); g.A(f"v_and_b32 v{t1}, 15, v{L}")
    g.A(f"s_lshl_b32 s{S_T0}, s{S_W}, 2")
    g.A(f"v_add_u32 v{t2}, s{S_T0}, v{t0}"); g.A(f"v_xor_b32 v{t2}, v{t2}, v{t1}"); g.A(f"v_lshlrev_b32 v{t2}, 4, v{t2}")
    g.A(f"v_lshl_add_u32 v{V_XD}, v{t0}, 10, v{t2}")
    g.A(f"v_lshrrev_b32 v{t2}, 3, v{L}"); g.A(f"v_and_b32 v{t3}, 7, v{L}")
    g.A(f"s_lshl_b32 s{S_T0}, s{S_W}, 7")
    for jj in range(4):
        d = V_WD + jj
        g.A(f"v_and_b32 v{d}, 2, v{t2}")
        if jj & 1: g.A(f"v_or_b32 v{d}, 4, v{d}")
        g.A(f"v_xor_b32 v{d}, v{d}, v{t3}"); g.A(f"v_lshlrev_b32 v{d}, 4, v{d}")
        g.A(f"v_lshl_add_u32 v{d}, v{t2}, 13, v{d}")
        g.A(f"v_add_u32 v{d}, s{S_T0}, v{d}")
        if jj: g.A(f"v_add_u32 v{d}, {jj*64512}, v{d}")
    g.A(f"s_lshl_b32 s{S_RING}, s{S_W}, 14"); g.A(f"s_add_u32 s{S_RING}, s{S_RING}, {WQB}")
    def x_prep(j):
        g.A(f"s_lshr_b32 s{S_T0}, s{S_S0}, 2"); g.A(f"s_add_u32 s{S_T0}, s{S_T0}, {j}"); g.A(f"s_and_b32 s{S_T0}, s{S_T0}, 3")
        g.A(f"s_mul_i32 s{S_XM}, s{S_T0}, 12288"); g.A(f"s_lshl_b32 s{S_T1}, s{S_W}, 10"); g.A(f"s_add_u32 s{S_XM}, s{S_XM}, s{S_T1}")
        g.A(f"s_lshl_b32 s{S_XO}, s{S_T0}, 8"); g.A(f"s_lshl_b32 s{S_T1}, s{S_W}, 12"); g.A(f"s_add_u32 s{S_XO}, s{S_XO}, s{S_T1}")
    def x_issue(j):
        for i3 in range(3):
            g.A(f"s_add_u32 m0, s{S_XM}, {XB + i3*4096}")
            g.A(f"s_add_u32 s{S_T0}, s{S_XO}, {i3*16384}")
            dma(g, V_XD, SRD_X, f"s{S_T0}", 0, "nt" if (o.first_nt and j < int(o.nt_x)) else o.pol_x, f"x{j}")
    def wq_step(i):
        g.A(f"s_add_u32 s{S_T2}, s{S_S0}, {i}"); g.A(f"s_and_b32 s{S_T2}, s{S_T2}, 15")
        g.A(f"s_add_u32 m0, s{S_RING}, {(i%4)*4096}")
        g.A(f"s_lshl_b32 s{S_T2}, s{S_T2}, 18")
        pol = "nt" if (o.first_nt and i < int(o.nt_wq)) else o.pol_w
        for jj in range(4): dma(g, V_WD + jj, SRD_WQ, f"s{S_T2}", 1024*jj, pol, f"wq{i}")
    x_prep(0)
    g.A("s_waitcnt lgkmcnt(0)")
    stamp(g, o, 1)
    select_branch(g, [0, 1, 6, 7])
    g.A(f"s_mul_i32 s{S_T0}, s{S_B}, 49152"); srd(g, SRD_X, 32, 33, f"s{S_T0}", 49152)
    x_issue(0)
    g.A(f"s_lshl_b32 s{S_T1}, s{S_HP}, 9")
    srd(g, SRD_WQ, 38, 39, f"s{S_T1}", 0)
    g.A(f"s_sub_u32 s{SRD_WQ+2}, 0x400000, s{S_T1}")
    wq_step(0); wq_step(1)
    x_prep(1); x_issue(1)
    wq_step(2)
    if o.wq3: wq_step(3)
    stamp(g, o, 2)
    if o.code_pf:
        g.A(f"s_cmp_lg_u32 s{S_W}, 1"); g.A("s_cbranch_scc1 L_cpf")
        g.A("s_getpc_b64 s[98:99]"); g.label("L_pc")
        g.A(f"s_sub_u32 s98, s98, L_pc-{K1}"); g.A("s_subb_u32 s99, s99, 0")
        g.A(f"s_lshr_b32 s{S_T3}, s2, 3"); g.A(f"s_lshl_b32 s{S_T3}, s{S_T3}, 10")
        g.A(f"v_lshl_add_u32 v{t2}, v{L}, 4, s{S_T3}")
        g.A(f"v_min_u32 v{t2}, L_code_end-{K1}-16, v{t2}")
        g.A(f"global_load_dwordx4 v[32:35], v{t2}, s[98:99]")
        g.label("L_cpf")
    select_branch(g, [2, 3, 4, 5, 8, 9])
    srd_kv(g, "KV")
    g.A(f"s_lshl_b32 s{S_T1}, s{S_HP}, 18")
    srd(g, SRD_WO, 40, 41, f"s{S_T1}", 262144)
    if o.pretouch:
        g.A(f"s_lshl_b32 s{S_T1}, s{S_BB}, 4"); g.A(f"s_add_u32 s{S_T1}, s{S_T1}, s{S_HP}"); g.A(f"s_mul_i32 s{S_T1}, s{S_T1}, 49152")
        g.A(f"s_add_u32 s44, s{S_WS}, s{S_T1}"); g.A(f"s_addc_u32 s45, s{S_WS+1}, 0")
        for r in (SRD_K, SRD_V, SRD_WO, 44, S_OUT, S_DBG):
            g.A(f"s_load_dword s46, s[{r}:{r+1}], 0")
        g.A(f"s_add_u32 s44, s{S_WS}, {FLAGB}"); g.A(f"s_addc_u32 s45, s{S_WS+1}, 0")
        g.A("s_load_dword s46, s[44:45], 0")
    g.A(f"s_lshl_b32 s{S_LD2K}, s{S_W}, 11")
    g.A(f"v_lshlrev_b32 v{t2}, 8, v{t0}"); g.A(f"v_add_u32 v{t2}, s{S_LD2K}, v{t2}")
    g.A(f"s_lshl_b32 s{S_T1}, s{S_W}, 3"); g.A(f"s_and_b32 s{S_T1}, s{S_T1}, 15")
    for e in range(2):
        d = V_KE0 + e
        g.A(f"v_add_u32 v{d}, s{S_T1}, v{t0}")
        if e: g.A(f"v_add_u32 v{d}, 4, v{d}")
        g.A(f"v_xor_b32 v{d}, v{d}, v{t1}"); g.A(f"v_lshl_add_u32 v{d}, v{d}, 4, v{t2}")
    g.A(f"v_lshlrev_b32 v{V_VE}, 2, v{t0}"); g.A(f"v_xor_b32 v{V_VE}, v{V_VE}, v{t1}")
    g.A(f"v_lshl_add_u32 v{V_VE}, v{V_VE}, 4, v{t2}")
    g.A(f"v_lshrrev_b32 v{t2}, 3, v{L}"); g.A(f"v_and_b32 v{t3}, 7, v{L}")
    g.A(f"s_lshl_b32 s{S_T0}, s{S_W}, 8")
    for jj in range(4):
        d = V_WOD + jj
        g.A(f"v_and_b32 v{d}, 2, v{t2}")
        if jj & 1: g.A(f"v_or_b32 v{d}, 4, v{d}")
        g.A(f"v_xor_b32 v{d}, v{d}, v{t3}"); g.A(f"v_lshlrev_b32 v{d}, 4, v{d}")
        g.A(f"v_lshl_add_u32 v{d}, v{t2}, 10, v{d}")
        g.A(f"v_add_u32 v{d}, s{S_T0}, v{d}")
        if jj: g.A(f"v_add_u32 v{d}, {jj*7168}, v{d}")
    for s in range(4): select_by_wave(g, S_WOA + s, [WO_ADDR[s][w] for w in range(4)])
    g.A(f"s_mov_b32 s{S_KOFF}, 0"); g.A(f"s_mov_b32 s{S_VOFF}, 0")
    if o.pretouch: g.A("s_waitcnt lgkmcnt(0)")
    def kv(kind, t, tag):
        so = S_KOFF if kind == "K" else S_VOFF
        g.A(f"s_add_u32 m0, s{S_LD2K}, {kslot(t) if kind == 'K' else vslot(t)}")
        g.A("s_nop 0")
        if kind == "K": dma_group(g, o, [(V_KE0, SRD_K, f"s{so}", 0), (V_KE1, SRD_K, f"s{so}", 1024)], tag)
        else: dma_group(g, o, [(V_VE, SRD_V, f"s{so}", 0), (V_VE, SRD_V, f"s{so}", 1024)], tag)
        g.A(f"s_add_u32 s{so}, s{so}, 8192")
    def wo_soff(n):
        g.A(f"s_add_u32 s{S_T2}, s{S_WOROT}, {n % 8}"); g.A(f"s_and_b32 s{S_T2}, s{S_T2}, 7"); g.A(f"s_lshl_b32 s{S_T2}, s{S_T2}, 15")
        if n >= 8: g.A(f"s_add_u32 s{S_T2}, s{S_T2}, 128")
    def wo_step(d):
        for n in (2*d, 2*d+1):
            g.A(f"s_add_u32 m0, s{S_WOA + d % 4}, {(n % 2)*4096}")
            wo_soff(n)
            pol = "nt" if (o.first_nt and (n if o.wo_pf else n % 8) < int(o.nt_wo)) else o.pol_w
            for jj in range(4): dma(g, V_WOD + jj, SRD_WO, f"s{S_T2}", 1024*jj, pol, f"wo{d}")
    def wo_regs(k):
        for n in (8 + 2*k, 9 + 2*k):
            wo_soff(n)
            pol = " nt" if (o.first_nt and n - 8 < int(o.nt_wo)) else (f" {o.pol_w}" if o.pol_w else "")
            for jj in range(4):
                r = V_STG + ((n - 8)*4 + jj)*4
                off = f" offset:{1024*jj}" if jj else ""
                g.vmem(f"buffer_load_dwordx4 {vr(r,4)}, v{V_WOD+jj}, s[{SRD_WO}:{SRD_WO+3}], s{S_T2} offen{off}{pol}", f"wr{k}")
    def wo_write(d):
        g.wait_vm(f"wr{d-4}")
        g.A(f"v_add_u32 v{V_LT+2}, s{S_WOA + d - 4}, v{V_LT+3}")
        for k in range(8):
            if o.x_now: break
            r = V_STG + ((d-4)*8 + k)*4
            g.lds(f"ds_write_b128 v{V_LT+2}, {vr(r,4)} offset:{k*1024}", "ww")
    need_x = {0: "x0", 1: "x1", 5: "x2", 9: "x3"}
    for i in range(16):
        tags = []
        if i == 0: tags += ["wq0", "wq1"]
        elif i + 1 < 16: tags.append(f"wq{i+1}")
        if i in need_x: tags.append(need_x[i])
        if tags: g.wait_vm(tags)
        if i == 0: stamp(g, o, 3)
        g.A("s_barrier")
        if i + 3 < 16:
            if not (o.wq3 and i == 0): wq_step(i + 3)
        else:
            for kind, t in EARLY[(i-13)*2:(i-13)*2+2]: kv(kind, t, f"{kind}{t}")
        if i == 0: x_prep(2); x_issue(2)
        if i == 3: x_prep(3); x_issue(3)
    g.A("s_barrier")
    g.wait_vm(["K0", "K1"]); g.A("s_barrier")
    stamp(g, o, 4)
    def tail_p3(first):
        g.A("s_barrier")
        wo_step(3)
        if o.stage: wo_regs(2)
        g.A(f"v_lshlrev_b32 v{V_LT+3}, 4, v{V_LANE}")
        g.wait_vm(["wo0", "wo1"]); g.A("s_barrier")
        if o.stage: wo_regs(3)
        for d in range(1, 8):
            if d + 1 < 4 or (not o.stage and d + 1 < 8): g.wait_vm(f"wo{d+1}")
            elif o.stage: g.wait_lg0()
            if d == 7 and first: ready_check()
            g.A("s_barrier")
            if d + 3 < 8:
                if o.stage: wo_write(d + 3)
                else: wo_step(d + 3)
        g.A("s_branch L_ld_end")
    def ready_check():
        g.A(f"s_cmp_lg_u32 s{S_W}, 0"); g.A("s_cbranch_scc1 L_rdy_done")
        g.A(f"s_mov_b32 s{S_CNT}, 0")
        g.label("L_rdy")
        g.A(f"v_readfirstlane_b32 s{S_T1}, v{V_RD}")
        g.A(f"s_add_u32 s{S_CNT}, s{S_CNT}, 1")
        g.A(f"s_cmp_lg_u32 s{S_T1}, 0"); g.A("s_cbranch_scc1 L_rdy_done")
        g.A(f"s_cmp_ge_u32 s{S_CNT}, 0x40000"); g.A("s_cbranch_scc1 L_rdy_done")
        g.A(f"buffer_load_dword v{V_RD}, v{V_RA}, s[{SRD_DBG}:{SRD_DBG+3}], 0 offen sc1")
        g.A("s_waitcnt vmcnt(0)")
        g.A("s_branch L_rdy")
        g.label("L_rdy_done")
    def idle(n, lab):
        g.A(f"s_mov_b32 s{S_CNT}, {n}")
        g.label(lab)
        g.A("s_barrier")
        g.A(f"s_sub_u32 s{S_CNT}, s{S_CNT}, 1"); g.A(f"s_cmp_lg_u32 s{S_CNT}, 0"); g.A(f"s_cbranch_scc1 {lab}")
    def drain(vtags):
        wo_step(0)
        if o.wo_pf:
            g.A(f"v_and_b32 v{V_LT+2}, 31, v{V_LANE}"); g.A(f"v_lshlrev_b32 v{V_LT+2}, 10, v{V_LT+2}")
            g.A(f"s_lshl_b32 s{S_T0}, s{S_W}, 8"); g.A(f"s_add_u32 s{S_T0}, s{S_T0}, 128")
            g.A(f"v_add_u32 v{V_LT+2}, s{S_T0}, v{V_LT+2}")
            g.A(f"s_lshl_b32 s{S_T2}, s{S_WOROT}, 15")
            g.vmem(f"buffer_load_dword v{V_LT+1}, v{V_LT+2}, s[{SRD_WO}:{SRD_WO+3}], s{S_T2} offen nt", "pf")
        for t in range(28, 32):
            if vtags: g.wait_vm(f"V{t}")
            g.A("s_barrier")
            if t == 28: wo_step(1)
            if t == 29 and o.stage: wo_regs(0)
            if t == 30: wo_step(2)
            if t == 31 and o.stage: wo_regs(1)
        tail_p3(not vtags)
    g.A(f"s_cmp_eq_u32 s{S_W}, 3"); g.A("s_cbranch_scc1 L_vloader")
    vm_early = list(g.vm)
    g.wait_vm(["V0", "K2"]); g.A("s_barrier")
    g.wait_vm(["V1", "K3"]); g.A("s_barrier")
    srd(g, SRD_DBG, S_DBG, S_DBG+1, None, 256)
    srd(g, SRD_FL, S_WS, S_WS+1, None, FLAGB + 1024*128)
    g.A(f"s_lshl_b32 s{S_T0}, s{S_BB}, 13"); g.A(f"s_add_u32 s{S_T0}, s{S_T0}, {FLAGB}")
    g.A(f"v_lshlrev_b32 v{V_FA}, 7, v{V_LANE}"); g.A(f"v_add_u32 v{V_FA}, s{S_T0}, v{V_FA}")
    g.A(f"s_lshl_b32 s{S_T0}, s{S_BB}, 2"); g.A(f"v_mov_b32 v{V_RA}, s{S_T0}")
    g.A(f"s_or_b32 s{S_FIRST}, s{S_W}, s{S_HP}")
    g.A(f"s_cmp_lg_u32 s{S_FIRST}, 0"); g.A("s_cbranch_scc1 L_fl1")
    g.A(f"v_mov_b32 v{V_FD}, 0")
    g.A(f"buffer_store_dword v{V_FD}, v{V_FA}, s[{SRD_FL}:{SRD_FL+3}], 0 offen sc1")
    g.label("L_fl1")
    idle(8, "L_ld_idle1")
    g.A(f"s_cmp_lg_u32 s{S_FIRST}, 0"); g.A("s_cbranch_scc1 L_fl2")
    g.A("s_waitcnt vmcnt(0)")
    g.A(f"v_mov_b32 v{V_FD}, 1")
    g.A("s_mov_b64 exec, 1")
    g.A(f"buffer_store_dword v{V_FD}, v{V_RA}, s[{SRD_DBG}:{SRD_DBG+3}], 0 offen sc1")
    g.A("s_mov_b64 exec, -1")
    g.label("L_fl2")
    idle(10, "L_ld_idle2")
    g.A(f"s_cmp_lg_u32 s{S_W}, 0"); g.A("s_cbranch_scc1 L_fl3")
    g.A(f"buffer_load_dword v{V_RD}, v{V_RA}, s[{SRD_DBG}:{SRD_DBG+3}], 0 offen sc1")
    g.label("L_fl3")
    idle(8, "L_ld_idle3")
    g.A("s_waitcnt vmcnt(0)"); g.vm = []
    drain(False)
    g.label("L_vloader")
    g.vm = vm_early
    full_tile_regs(g, "V")
    g.A(f"s_mov_b32 s{S_VOFF}, {2*8192}")
    full_tile(g, o, "V", 2, "V2"); full_tile(g, o, "V", 3, "V3")
    g.wait_vm(["V0", "K2"])
    g.A(f"s_mov_b32 s{S_CNT}, 4")
    g.label("L_vld_loop")
    for t in range(6):
        g.A("s_waitcnt vmcnt(24)"); g.A("s_barrier")
        if not o.x_nodma: full_tile(g, o, "V", t+4, f"V{t+4}")
    g.A(f"s_sub_u32 s{S_CNT}, s{S_CNT}, 1"); g.A(f"s_cmp_lg_u32 s{S_CNT}, 0"); g.A("s_cbranch_scc1 L_vld_loop")
    g.vm = []
    for t in range(24, 28): g.vm += [f"V{t}"]*8
    for t in range(24, 28):
        g.wait_vm(f"V{t}"); g.A("s_barrier"); full_tile(g, o, "V", t+4, f"V{t+4}")
    drain(True)

def loader_tail(g, o):
    g.label("L_ld_end")
    if o.stamps is True:
        stamp(g, o, 7)
        g.A(f"s_cmp_lg_u32 s{S_W}, 0"); g.A("s_cbranch_scc1 L_ld_end2")
        dump_stamps(g, 0x1010000)
        g.label("L_ld_end2")
    g.A("s_endpgm")

def dump_stamps(g, base):
    g.A(f"s_add_u32 s40, s{S_WS}, {base}"); g.A(f"s_addc_u32 s41, s{S_WS+1}, 0"); g.A("s_and_b32 s41, s41, 0xffff")
    g.A("s_mov_b32 s42, 0x10000"); g.A("s_mov_b32 s43, 0x20000")
    for k in range(16): g.A(f"v_mov_b32 v{16+k}, s{S_STAMP+k}")
    g.A(f"s_lshl_b32 s{S_T0}, s2, 6"); g.A(f"v_mov_b32 v13, s{S_T0}")
    g.A("s_mov_b64 exec, 1")
    for k in range(4): g.A(f"buffer_store_dwordx4 v[{16+4*k}:{19+4*k}], v13, s[40:43], 0 offen offset:{16*k}")
    g.A("s_waitcnt vmcnt(0)")
    g.A("s_mov_b64 exec, -1")

def p1_compute(g, o):
    g.C("==== P1: Q projection")
    L = V_LANE; t0, t1, t2 = V_TMP, V_TMP+1, V_TMP+2
    g.A(f"s_mov_b32 s{S_THR}, {hex(fbits(float(2.0 ** float(o.thr))))}"); g.A(f"s_mov_b32 s{S_THRLO}, {hex(fbits(THR_LO))}")
    g.A(f"s_mov_b32 s{S_C}, {hex(fbits(CSCALE))}"); g.A(f"s_mov_b32 s{S_C+1}, {hex(fbits(CSCALE))}")
    for i in range(64): g.A(f"v_mov_b32 v{V_O+i}, 0")
    g.A(f"v_lshrrev_b32 v{t0}, 4, v{L}"); g.A(f"v_and_b32 v{t1}, 15, v{L}")
    g.A(f"v_xor_b32 v{t2}, v{t0}, v{t1}"); g.A(f"v_lshlrev_b32 v{t2}, 4, v{t2}")
    g.A(f"v_lshl_add_u32 v{V_XR}, v{t1}, 8, v{t2}")
    g.A(f"s_lshl_b32 s{S_RING}, s{S_W}, 14"); g.A(f"s_add_u32 s{S_RING}, s{S_RING}, {WQB}")
    r_, cc, sw = 12, 13, 14
    g.A(f"v_bfe_u32 v{r_}, v{L}, 2, 2"); g.A(f"v_and_b32 v{cc}, 3, v{L}")
    g.A(f"v_and_b32 v{sw}, 2, v{r_}"); g.A(f"v_and_b32 v{t2}, 1, v{t0}")
    g.A(f"v_lshl_or_b32 v{sw}, v{t2}, 2, v{sw}")
    g.A(f"v_lshrrev_b32 v{t2}, 1, v{cc}"); g.A(f"v_or_b32 v{sw}, v{sw}, v{t2}"); g.A(f"v_lshlrev_b32 v{sw}, 4, v{sw}")
    g.A(f"v_and_b32 v{t2}, 1, v{cc}"); g.A(f"v_lshl_add_u32 v{sw}, v{t2}, 3, v{sw}")
    g.A(f"v_lshl_add_u32 v{t2}, v{t0}, 3, v{r_}"); g.A(f"v_lshl_add_u32 v{sw}, v{t2}, 7, v{sw}")
    g.A(f"v_add_u32 v{sw}, s{S_RING}, v{sw}")
    for cb in range(4): g.A(f"v_xor_b32 v{V_WR+cb}, {cb << 5}, v{sw}")
    V_QW = 16
    g.A(f"s_and_b32 s{S_T0}, s{S_W}, 1"); g.A(f"s_lshl_b32 s{S_T0}, s{S_T0}, 3")
    g.A(f"v_lshrrev_b32 v{t2}, 1, v{t0}")
    g.A(f"v_xor_b32 v{t2}, v{t2}, v{t1}"); g.A(f"v_xor_b32 v{t2}, s{S_T0}, v{t2}"); g.A(f"v_lshlrev_b32 v{t2}, 4, v{t2}")
    g.A(f"v_and_b32 v{t0}, 1, v{t0}"); g.A(f"v_lshl_add_u32 v{t2}, v{t0}, 3, v{t2}")
    g.A(f"s_lshr_b32 s{S_T0}, s{S_W}, 1"); g.A(f"s_mul_i32 s{S_T0}, s{S_T0}, {48*256}"); g.A(f"s_add_u32 s{S_T0}, s{S_T0}, {QB}")
    g.A(f"v_lshl_add_u32 v{t2}, v{t1}, 8, v{t2}"); g.A(f"v_add_u32 v{t2}, s{S_T0}, v{t2}")
    for cb in range(4): g.A(f"v_xor_b32 v{V_QW+cb}, {cb << 5}, v{t2}")
    g.A("s_waitcnt lgkmcnt(0)")
    g.A(f"s_lshl_b32 s{S_T1}, s{S_BB}, 4"); g.A(f"s_add_u32 s{S_T1}, s{S_T1}, s{S_HP}"); g.A(f"s_mul_i32 s{S_T1}, s{S_T1}, 49152")
    srd(g, SRD_P, S_WS, S_WS+1, f"s{S_T1}", 49152)
    select_branch(g, [2, 3])
    srd_kv(g, "K")
    def reads(i):
        out = []; buf = i % 2; slot = i % 4; vt = V_XT + buf
        def addr():
            g.A(f"s_add_u32 s{S_T0}, s{S_S0}, {i}"); g.A(f"s_and_b32 s{S_T0}, s{S_T0}, 15")
            g.A(f"s_and_b32 s{S_T1}, s{S_T0}, 3"); g.A(f"s_lshl_b32 s{S_T1}, s{S_T1}, 6")
            g.A(f"s_lshr_b32 s{S_T0}, s{S_T0}, 2"); g.A(f"s_mul_i32 s{S_T0}, s{S_T0}, 12288"); g.A(f"s_add_u32 s{S_T0}, s{S_T0}, {XB}")
            g.A(f"v_xor_b32 v{vt}, s{S_T1}, v{V_XR}"); g.A(f"v_add_u32 v{vt}, s{S_T0}, v{vt}")
        out.append(addr)
        for rb in range(3):
            out.append(lambda rb=rb: g.lds(f"ds_read_b128 {ar(A_B1[buf]+4*rb,4)}, v{vt} offset:{rb*4096}", f"f{i}B"))
        for cb in range(4):
            for u in range(2):
                out.append(lambda cb=cb, u=u: g.lds(
                    f"ds_read_b64_tr_b16 {ar(A_A1[buf]+4*cb+2*u,2)}, v{V_WR+cb} offset:{slot*4096+u*512}", f"f{i}A{cb}"))
        return out
    r0 = reads(0); r0[0](); reads(1)[0]()
    for i in range(16):
        buf = i % 2
        g.A("s_barrier")
        if i == 0:
            stamp(g, o, 1)
            for f in r0[1:]: f()
        def mf(cb, rb, i=i, buf=buf):
            a = vr(V_ACC1 + (cb*3 + rb)*4, 4)
            g.A(f"v_mfma_f32_16x16x32_bf16 {a}, {ar(A_A1[buf]+4*cb,4)}, {ar(A_B1[buf]+4*rb,4)}, {'0' if i == 0 else a}")
        gemm_step(g, i, mf, reads(i + 1)[1:] if i + 1 < 16 else [], int(o.front), None, reads(i + 2)[0] if i + 2 < 16 else None)
    stamp(g, o, 2)
    g.A("s_barrier")
    for cb in range(4):
        for rb in range(3):
            a = V_ACC1 + (cb*3 + rb)*4
            g.A(f"v_pk_mul_f32 {vr(a,2)}, {vr(a,2)}, s[{S_C}:{S_C+1}]"); g.A(f"v_pk_mul_f32 {vr(a+2,2)}, {vr(a+2,2)}, s[{S_C}:{S_C+1}]")
            g.A(f"v_cvt_pk_bf16_f32 v{a}, v{a}, v{a+1}"); g.A(f"v_cvt_pk_bf16_f32 v{a+1}, v{a+2}, v{a+3}")
            g.lds(f"ds_write_b64 v{V_QW+cb}, {vr(a,2)} offset:{rb*4096}", "qw")

def p2_addresses(g):
    L = V_LANE; t0, t1, t2, t3 = V_TMP, V_TMP+1, V_TMP+2, V_TMP+3
    g.A(f"v_and_b32 v{t0}, 31, v{L}"); g.A(f"v_lshrrev_b32 v{t1}, 5, v{L}")
    g.A(f"v_and_b32 v{t2}, 15, v{L}"); g.A(f"v_xor_b32 v{t2}, v{t2}, v{t1}")
    g.A(f"v_lshlrev_b32 v{t2}, 4, v{t2}"); g.A(f"v_lshl_add_u32 v{t2}, v{t0}, 8, v{t2}")
    g.A(f"v_add_u32 v{t2}, {KB}, v{t2}")
    for s in range(8): g.A(f"v_xor_b32 v{V_KA+s}, {s << 5}, v{t2}")
    g.A(f"v_bfe_u32 v{t0}, v{L}, 2, 2")
    g.A(f"v_lshl_add_u32 v{t2}, v{t1}, 2, v{t0}"); g.A(f"v_lshlrev_b32 v{t2}, 8, v{t2}")
    g.A(f"v_lshl_add_u32 v{t2}, v{t0}, 6, v{t2}")
    g.A(f"v_bfe_u32 v{t3}, v{L}, 4, 1"); g.A(f"v_lshl_add_u32 v{t2}, v{t3}, 5, v{t2}")
    g.A(f"v_and_b32 v{t3}, 3, v{L}"); g.A(f"v_lshl_add_u32 v{t2}, v{t3}, 3, v{t2}")
    for blk in range(4): g.A(f"v_xor_b32 v{V_VA+blk}, {blk << 6}, v{t2}")
    g.A(f"s_lshl_b32 s{S_T0}, s{S_W}, 13"); g.A(f"s_add_u32 s{S_T0}, s{S_T0}, {QB-KB}")
    for s in range(8): g.A(f"v_add_u32 v{V_NEGM+s}, s{S_T0}, v{V_KA+s}")
    g.A(f"v_mov_b32 v{V_L}, 0")

def qk_mfma(g, s, dst, first_c):
    c = first_c if s == 0 else vr(dst, 16)
    g.A(f"v_mfma_f32_32x32x16_bf16 {vr(dst,16)}, {ar(A_K+4*s,4)}, {ar(A_Q+4*s,4)}, {c}")
def pv_mfma(g, s, blk, p):
    g.A(f"v_mfma_f32_32x32x16_bf16 {vr(V_O+16*blk,16)}, {ar(A_V+(s*4+blk)*4,4)}, {vr(p+4*s,4)}, {vr(V_O+16*blk,16)}")
def k_read(g, s, t):
    g.lds(f"ds_read_b128 {ar(A_K+4*s,4)}, v{V_KA+s} offset:{kslot(t)-KB}", "K")
def v_read(g, s, blk, u, t):
    g.lds(f"ds_read_b64_tr_b16 {ar(A_V+(s*4+blk)*4+2*u,2)}, v{V_VA+blk} offset:{vslot(t)-VB+4096*s+2048*u}", "V")

def p2_iter(g, t, do_qk=True, do_pv=True):
    o = OPT
    par = t % 2
    Scur, Snew, Pcur, Pprev = V_S[par], V_S[1-par], V_P[par], V_P[1-par]
    g.C(f"---- iteration {t}")
    gaps, left, load = schedule(do_qk, do_pv, cap_lo=int(o.cap_lo), cap_hi=int(o.cap_hi), ntemp=NTEMP)
    assert not left, left
    last_a = max(i for i, gp in enumerate(gaps) if ("A", 15) in gp)
    cmp_gap = min(last_a + 1, 15); br_gap = 15
    first = (t == 0 and o.m0init)
    e = lambda i: V_E + i % NTEMP
    def emit(it):
        k = it[0]
        if k == "E":
            if not o.x_novalu: g.A(f"v_exp_f32 v{e(it[1])}, v{Scur+it[1]}")
        elif k == "A":
            if o.x_novalu: return
            if it[1] == 1: g.A(f"v_add_f32 v{V_TS}, v{e(0)}, v{e(1)}")
            else: g.A(f"v_add_f32 v{V_TS}, v{V_TS}, v{e(it[1])}")
        elif k == "C":
            if not o.x_novalu: g.A(f"v_cvt_pk_bf16_f32 v{Pcur+it[1]}, v{e(2*it[1])}, v{e(2*it[1]+1)}")
        elif k == "K":
            if not o.x_nok: k_read(g, it[1], t+2)
        elif k == "V":
            if not o.x_nov: v_read(g, it[1]//4, it[1] % 4, it[2], t)
    for m in range(16):
        if m < 8 and do_qk and not o.x_nomfma: qk_mfma(g, m, Snew, vr(V_NEGM, 16))
        elif m >= 8 and do_pv and not o.x_nomfma: pv_mfma(g, (m-8)//4, (m-8) % 4, Pprev)
        else: g.A("s_nop 0")
        items = gaps[m]
        if ("X", "bar") in items: g.A("s_barrier")
        if m == cmp_gap:
            g.A(f"v_cmp_lt_f32 vcc, s{S_THR}, v{V_TS}")
            if first: g.A(f"v_cmp_gt_f32 s[{S_RET}:{S_RET+1}], s{S_THRLO}, v{V_TS}")
        for it in items:
            if it[0] != "X": emit(it)
        if m == br_gap:
            if first: g.A(f"s_or_b64 vcc, vcc, s[{S_RET}:{S_RET+1}]")
            g.A(f"s_cbranch_vccnz L_rare_{t}")
            g.label(f"L_back_{t}")
            g.A(f"v_add_f32 v{V_L}, v{V_L}, v{V_TS}")
        if m == 7 and do_pv: g.A(f"s_waitcnt lgkmcnt({8 if do_qk else 0})")
        if m == 15: g.A(f"s_waitcnt lgkmcnt({15 if do_pv else 0})")
    g.lg = []

def rare_stub(g, t):
    g.label(f"L_rare_{t}")
    sub = "L_rescale_first" if (t == 0 and OPT.m0init) else f"L_rescale_{t%2}"
    g.A(f"s_call_b64 s[{S_RET}:{S_RET+1}], {sub}")
    g.A(f"s_branch L_back_{t}")

def rowmax(g, S, dst, tmp):
    g.A(f"v_max3_f32 v{dst}, v{S}, v{S+1}, v{S+2}")
    for k in range(3, 15, 2): g.A(f"v_max3_f32 v{dst}, v{dst}, v{S+k}, v{S+k+1}")
    g.A(f"v_max_f32 v{dst}, v{dst}, v{S+15}")
    g.A(f"v_mov_b32 v{tmp}, v{dst}"); g.A("s_nop 1")
    g.A(f"v_permlane32_swap_b32 v{tmp}, v{dst}")
    g.A(f"v_max_f32 v{dst}, v{dst}, v{tmp}")

def rescale_sub(g, par, first=False):
    Scur, Snew, Pcur = V_S[par], V_S[1-par], V_P[par]
    d, tmp, f = V_T, V_T+1, V_F
    g.label("L_rescale_first" if first else f"L_rescale_{par}")
    g.A("s_nop 15"); g.A("s_nop 15")
    rowmax(g, Scur, d, tmp)
    if not first: g.A(f"v_max_f32 v{d}, 0, v{d}")
    for i in range(16):
        g.A(f"v_sub_f32 v{Scur+i}, v{Scur+i}, v{d}")
        g.A(f"v_sub_f32 v{Snew+i}, v{Snew+i}, v{d}")
        g.A(f"v_sub_f32 v{V_NEGM+i}, v{V_NEGM+i}, v{d}")
    if not first:
        g.A(f"v_sub_f32 v{f}, 0, v{d}"); g.A(f"v_exp_f32 v{f}, v{f}"); g.A("s_nop 0")
        g.A(f"v_mul_f32 v{V_L}, v{V_L}, v{f}")
        for i in range(64): g.A(f"v_mul_f32 v{V_O+i}, v{V_O+i}, v{f}")
    for k in range(8):
        g.A(f"v_exp_f32 v{V_E}, v{Scur+2*k}"); g.A(f"v_exp_f32 v{V_E+1}, v{Scur+2*k+1}"); g.A("s_nop 0")
        if k == 0: g.A(f"v_add_f32 v{V_TS}, v{V_E}, v{V_E+1}")
        else:
            g.A(f"v_add_f32 v{V_TS}, v{V_TS}, v{V_E}"); g.A(f"v_add_f32 v{V_TS}, v{V_TS}, v{V_E+1}")
        g.A(f"v_cvt_pk_bf16_f32 v{Pcur+k}, v{V_E}, v{V_E+1}")
    g.A("s_nop 1")
    g.A(f"s_setpc_b64 s[{S_RET}:{S_RET+1}]")

def p2_compute(g, o):
    g.C("==== P2: attention, compute waves 0..2")
    L = V_LANE; t0, t1, t2 = V_TMP, V_TMP+1, V_TMP+2
    for s in range(8): g.lds(f"ds_read_b128 {ar(A_Q+4*s,4)}, v{V_NEGM+s}", "Q")
    for s in range(8): k_read(g, s, 0)
    if o.m0init:
        for i in range(16): g.A(f"v_mov_b32 v{V_NEGM+i}, 0")
    g.wait_lg0()
    for s in range(8):
        qk_mfma(g, s, V_S[0], "0")
        k_read(g, s, 1)
    if not o.m0init:
        g.A("s_nop 15")
        rowmax(g, V_S[0], V_T, V_T+1)
        for i in range(16): g.A(f"v_sub_f32 v{V_NEGM+i}, 0, v{V_T}")
        for i in range(16): g.A(f"v_sub_f32 v{V_S[0]+i}, v{V_S[0]+i}, v{V_T}")
    else:
        g.A("s_nop 7")
    g.A("s_waitcnt lgkmcnt(0)")
    p2_iter(g, 0, do_pv=False)
    g.A(f"s_mov_b32 s{S_CNT}, 5")
    g.label("L_p2_loop")
    for t in range(1, 7): p2_iter(g, t)
    g.A(f"s_sub_u32 s{S_CNT}, s{S_CNT}, 1"); g.A(f"s_cmp_lg_u32 s{S_CNT}, 0"); g.A("s_cbranch_scc1 L_p2_loop")
    p2_iter(g, 31, do_qk=False)
    g.A("s_waitcnt lgkmcnt(0)")
    g.A("s_barrier")
    stamp(g, o, 4)
    base = V_TMP+3; AD = V_S[0]
    addr = []
    addr.append(lambda: g.A(f"s_lshl_b32 s{S_T0}, s{S_W}, 5"))
    addr.append(lambda: (g.A(f"v_and_b32 v{t0}, 31, v{L}"), g.A(f"v_add_u32 v{t0}, s{S_T0}, v{t0}")))
    addr.append(lambda: (g.A(f"v_cmp_le_u32 vcc, 48, v{t0}"), g.A(f"v_subrev_u32 v{t1}, 48, v{t0}"), g.A(f"v_mov_b32 v{t2}, 0")))
    addr.append(lambda: (g.A(f"v_cndmask_b32 v{t0}, v{t0}, v{t1}, vcc"), g.A(f"v_mov_b32 v{t1}, 256")))
    addr.append(lambda: (g.A(f"v_cndmask_b32 v{t2}, v{t2}, v{t1}, vcc"), g.A(f"v_lshl_add_u32 v{base}, v{t0}, 9, v{t2}")))
    addr.append(lambda: (g.A(f"v_and_b32 v{t0}, 15, v{t0}"), g.A(f"v_lshl_add_u32 v{base}, v{t0}, 4, v{base}")))
    addr.append(lambda: (g.A(f"v_lshrrev_b32 v{t0}, 5, v{L}"), g.A(f"v_lshl_add_u32 v{base}, v{t0}, 3, v{base}")))
    addr.append(lambda: g.A(f"v_add_u32 v{base}, {OB}, v{base}"))
    k = 0
    for s in range(2):
        for blk in range(4):
            pv_mfma(g, s, blk, V_P[1]); addr[k](); k += 1
    g.A(f"v_mov_b32 v{V_T}, v{V_L}")
    for j in range(16): g.A(f"v_xor_b32 v{AD+j}, {j << 4}, v{base}")
    g.A(f"v_permlane32_swap_b32 v{V_T}, v{V_L}")
    g.A(f"v_add_f32 v{V_L}, v{V_L}, v{V_T}")
    g.A(f"v_rcp_f32 v{V_T}, v{V_L}"); g.A("s_nop 0"); g.A(f"v_mov_b32 v{V_T+1}, v{V_T}")
    for blk in range(4):
        for i in range(4):
            a = V_O + 16*blk + 4*i
            g.A(f"v_pk_mul_f32 {vr(a,2)}, {vr(a,2)}, {vr(V_T,2)}"); g.A(f"v_pk_mul_f32 {vr(a+2,2)}, {vr(a+2,2)}, {vr(V_T,2)}")
            g.A(f"v_cvt_pk_bf16_f32 v{a}, v{a}, v{a+1}"); g.A(f"v_cvt_pk_bf16_f32 v{a+1}, v{a+2}, v{a+3}")
            g.lds(f"ds_write_b64 v{AD+4*blk+i}, {vr(a,2)}", "ow")

def p2_kloader(g, o):
    g.C("==== P2: wave 3 streams K")
    g.vm = []
    full_tile_regs(g, "K")
    g.A(f"s_mov_b32 s{S_KOFF}, {4*8192}")
    full_tile(g, o, "K", 4, "K4"); full_tile(g, o, "K", 5, "K5")
    g.A(f"s_mov_b32 s{S_CNT}, 4")
    g.label("L_kld_loop")
    for t in range(6):
        g.A("s_waitcnt vmcnt(24)"); g.A("s_barrier")
        if not o.x_nodma: full_tile(g, o, "K", t+6, f"K{t+6}")
    g.A(f"s_sub_u32 s{S_CNT}, s{S_CNT}, 1"); g.A(f"s_cmp_lg_u32 s{S_CNT}, 0"); g.A("s_cbranch_scc1 L_kld_loop")
    g.vm = []
    for t in range(26, 30): g.vm += [f"K{t}"]*8
    for t in range(24, 32):
        if t + 2 < 32: g.wait_vm(f"K{t+2}")
        g.A("s_barrier")
        if t + 6 < 32: full_tile(g, o, "K", t+6, f"K{t+6}")
    g.A("s_barrier")

def p3_compute(g, o):
    g.C("==== P3: partial output projection, two column halves of 8 k-steps")
    L = V_LANE; t0, t1, t2, t3 = 12, 13, 14, 15
    for s in range(4): select_by_wave(g, S_WOA + s, [WO_ADDR[s][w] for w in range(4)])
    g.A(f"v_lshrrev_b32 v{t0}, 4, v{L}"); g.A(f"v_and_b32 v{t1}, 15, v{L}")
    g.A(f"v_xor_b32 v{t2}, v{t0}, v{t1}"); g.A(f"v_lshlrev_b32 v{t2}, 4, v{t2}")
    g.A(f"v_lshl_add_u32 v{V_OR}, v{t1}, 9, v{t2}"); g.A(f"v_add_u32 v{V_OR}, {OB}, v{V_OR}")
    r_, cc, sw = 2, 3, 4
    g.A(f"v_bfe_u32 v{r_}, v{L}, 2, 2"); g.A(f"v_and_b32 v{cc}, 3, v{L}")
    g.A(f"v_and_b32 v{sw}, 2, v{r_}"); g.A(f"v_and_b32 v{t2}, 1, v{t0}")
    g.A(f"v_lshl_or_b32 v{sw}, v{t2}, 2, v{sw}")
    g.A(f"v_lshrrev_b32 v{t2}, 1, v{cc}"); g.A(f"v_or_b32 v{sw}, v{sw}, v{t2}"); g.A(f"v_lshlrev_b32 v{sw}, 4, v{sw}")
    g.A(f"v_and_b32 v{t2}, 1, v{cc}"); g.A(f"v_lshl_add_u32 v{sw}, v{t2}, 3, v{sw}")
    g.A(f"v_lshl_add_u32 v{t2}, v{t0}, 3, v{r_}"); g.A(f"v_lshl_add_u32 v{sw}, v{t2}, 7, v{sw}")
    for cb in range(4): g.A(f"v_xor_b32 v{6+cb}, {cb << 5}, v{sw}")
    g.wait_lg0()
    for d in range(4):
        for cb in range(4): g.A(f"v_add_u32 v{V_WOR+4*d+cb}, s{S_WOA+d}, v{6+cb}")
    V_ST = 13
    g.A(f"v_lshlrev_b32 v{V_ST}, 4, v{L}")
    g.A(f"s_mul_i32 s{S_T3}, s{S_W}, 12288")
    V_A3 = [128, 144]
    def b_addr(j):
        vt = V_OT + j % 2
        g.A(f"s_add_u32 s{S_T0}, s{S_WOROT}, {j}"); g.A(f"s_and_b32 s{S_T0}, s{S_T0}, 7"); g.A(f"s_lshl_b32 s{S_T0}, s{S_T0}, 6")
        g.A(f"v_xor_b32 v{vt}, s{S_T0}, v{V_OR}")
    def reads(n):
        out = []; buf = n % 2; d = (n // 2) % 4
        if n < 8:
            for rb in range(3):
                out.append(lambda rb=rb: g.lds(f"ds_read_b128 {ar(12*n+4*rb,4)}, v{V_OT + n % 2} offset:{rb*8192}", f"f{n}B"))
        for cb in range(4):
            for u in range(2):
                out.append(lambda cb=cb, u=u: g.lds(
                    f"ds_read_b64_tr_b16 {vr(V_A3[buf]+4*cb+2*u,2)}, v{V_WOR+4*d+cb} offset:{(n % 2)*4096+u*512}", f"f{n}A{cb}"))
        return out
    def acc(hb, cb, rb): return V_ACC3 + ((4*hb + cb)*3 + rb)*4
    def store_frag(cbp, rb):
        hb, c0 = cbp // 2, 2*(cbp % 2)
        a0, a1 = acc(hb, c0, rb), acc(hb, c0+1, rb)
        d = 2 + 4*((cbp*3+rb) % 2)
        g.A(f"v_cvt_pk_bf16_f32 v{d}, v{a0}, v{a0+1}"); g.A(f"v_cvt_pk_bf16_f32 v{d+1}, v{a0+2}, v{a0+3}")
        g.A(f"v_cvt_pk_bf16_f32 v{d+2}, v{a1}, v{a1+1}"); g.A(f"v_cvt_pk_bf16_f32 v{d+3}, v{a1+2}, v{a1+3}")
        pol = f" {o.pol_st}" if o.pol_st else ""
        g.A(f"s_add_u32 s{S_T2}, s{S_T3}, {rb*4096}")
        if o.x_nost and cbp < 2: return
        g.vmem(f"buffer_store_dwordx4 {vr(d,4)}, v{V_ST}, s[{SRD_P}:{SRD_P+3}], s{S_T2} offen offset:{cbp*1024}{pol}", "st")
    b_addr(0); b_addr(1)
    g.A("s_barrier")
    stamp(g, o, 5)
    for f in reads(0): f()
    early = [(cbp, rb) for cbp in (0, 1) for rb in range(3)]
    for n in range(16):
        hb, buf = n // 8, n % 2
        if n % 2 == 0 and n > 0: g.A("s_barrier")
        if n in (4, 8, 12): stamp(g, o, 9 + (n - 4)//4)
        def mf(cb, rb, n=n, hb=hb, buf=buf):
            a = vr(acc(hb, cb, rb), 4)
            g.A(f"v_mfma_f32_16x16x32_bf16 {a}, {vr(V_A3[buf]+4*cb,4)}, {ar(12*(n % 8)+4*rb,4)}, {'0' if n % 8 == 0 else a}")
        after = None
        if 9 <= n < 15: after = {10: lambda k=n-9: store_frag(*early[k])}
        if n == 15: after = {9: lambda: store_frag(2, 0), 10: lambda: store_frag(2, 1), 11: lambda: store_frag(2, 2)}
        gemm_step(g, n, mf, reads(n + 1) if n + 1 < 16 else [], int(o.front), after, (lambda n=n: b_addr(n + 2)) if n + 2 < 8 else None)
    stamp(g, o, 6)
    g.A("s_nop 7")
    for rb in range(3): store_frag(3, rb)

def compute_tail(g, o):
    L = V_LANE
    g.C("==== hand-off and reduction of the 16 partial slabs of this (branch, batch)")
    R, T = S_T2, S_T3
    g.A(f"s_mul_i32 s{R}, s{S_HP}, 3"); g.A(f"s_add_u32 s{R}, s{R}, s{S_W}")
    srd(g, 4, S_WS, S_WS+1, None, 256*49152)
    srd(g, 8, S_OUT, S_OUT+1, None, 786432)
    srd(g, SRD_FL, S_WS, S_WS+1, None, FLAGB + 1024*128)
    g.A(f"s_mul_i32 s12, s{S_BB}, 786432"); g.A(f"s_lshl_b32 s{T}, s{R}, 10"); g.A(f"s_add_u32 s12, s12, s{T}")
    g.A(f"s_mul_i32 s13, s{R}, 43"); g.A("s_lshr_b32 s13, s13, 9")
    g.A("s_mul_i32 s14, s13, 12"); g.A(f"s_sub_u32 s14, s{R}, s14")
    g.A("s_lshr_b32 s15, s14, 2"); g.A("s_and_b32 s14, s14, 3")
    g.A(f"s_mul_i32 s16, s{S_B}, 98304")
    g.A(f"s_lshl_b32 s17, s{S_BR}, 10"); g.A("s_add_u32 s16, s16, s17")
    g.A("s_lshl_b32 s17, s15, 15"); g.A("s_add_u32 s16, s16, s17")
    g.A("s_lshl_b32 s17, s13, 8"); g.A("s_add_u32 s16, s16, s17")
    g.A("s_lshl_b32 s17, s14, 6"); g.A("s_add_u32 s16, s16, s17")
    g.A(f"v_lshlrev_b32 v12, 4, v{L}")
    g.A(f"v_and_b32 v13, 15, v{L}"); g.A(f"v_lshrrev_b32 v14, 4, v{L}")
    g.A("v_lshlrev_b32 v13, 11, v13"); g.A("v_lshl_add_u32 v13, v14, 3, v13")
    g.A(f"s_lshl_b32 s18, s{S_BB}, 13"); g.A(f"s_add_u32 s18, s18, {FLAGB}")
    g.A(f"s_lshl_b32 s19, s{S_HP}, 2"); g.A(f"s_add_u32 s19, s19, s{S_W}"); g.A("s_lshl_b32 s19, s19, 7"); g.A("s_add_u32 s19, s19, s18")
    g.A("s_lshl_b32 s20, s13, 7"); g.A("s_add_u32 s20, s20, s18")
    g.A(f"v_and_b32 v15, 15, v{L}"); g.A("v_lshlrev_b32 v15, 9, v15"); g.A("v_add_u32 v15, s20, v15")
    g.A("v_mov_b32 v10, s19"); g.A("v_mov_b32 v11, 1")
    g.A("s_waitcnt vmcnt(0)"); g.vm = []
    g.A("s_mov_b64 exec, 1")
    g.A(f"buffer_store_dword v11, v10, s[{SRD_FL}:{SRD_FL+3}], 0 offen sc1")
    g.A("s_mov_b64 exec, -1")
    g.A(f"s_cmp_ge_u32 s{S_W}, 3"); g.A("s_cbranch_scc1 L_red_done")
    g.A(f"s_mov_b32 s{S_CNT}, 0")
    if o.early_ld:
        g.A("s_mov_b32 s22, 0")
        g.label("L_poll")
        g.A("s_mov_b64 exec, 0xffff")
        g.A(f"buffer_load_dword v10, v15, s[{SRD_FL}:{SRD_FL+3}], 0 offen sc1")
        g.A(f"s_add_u32 s{S_CNT}, s{S_CNT}, 1")
        g.A("s_waitcnt vmcnt(0)")
        g.A("v_cmp_eq_u32 vcc, 1, v10")
        g.A("s_mov_b64 exec, -1")
        g.A(f"s_cmp_ge_u32 s{S_CNT}, 0x40000"); g.A("s_cselect_b32 s23, 0xffff, vcc_lo")
        g.A("s_andn2_b32 s23, s23, s22")
        g.A("s_cbranch_scc0 L_poll_next")
        for q in range(16):
            g.A(f"s_bitcmp1_b32 s23, {q}"); g.A(f"s_cbranch_scc0 L_skip{q}")
            g.A(f"s_add_u32 s21, s12, {q*49152}")
            g.A(f"buffer_load_dwordx4 v[{16+4*q}:{19+4*q}], v12, s[4:7], s21 offen sc1")
            g.label(f"L_skip{q}")
        g.A("s_or_b32 s22, s22, s23")
        g.A("s_cmp_eq_u32 s22, 0xffff"); g.A("s_cbranch_scc1 L_poll_done")
        g.label("L_poll_next")
        if int(o.sleep): g.A(f"s_sleep {int(o.sleep)}")
        g.A("s_branch L_poll")
        g.label("L_poll_done")
        stamp(g, o, 7)
        g.A("s_waitcnt vmcnt(0)")
    else:
        g.A("s_mov_b64 exec, 0xffff")
        g.label("L_poll")
        g.A(f"buffer_load_dword v10, v15, s[{SRD_FL}:{SRD_FL+3}], 0 offen sc1")
        g.A(f"s_add_u32 s{S_CNT}, s{S_CNT}, 1")
        g.A("s_waitcnt vmcnt(0)")
        g.A("v_cmp_eq_u32 vcc, 1, v10")
        g.A("s_cmp_eq_u64 vcc, exec"); g.A("s_cbranch_scc1 L_poll_done")
        g.A(f"s_cmp_ge_u32 s{S_CNT}, 0x40000"); g.A("s_cbranch_scc1 L_poll_done")
        if int(o.sleep): g.A(f"s_sleep {int(o.sleep)}")
        g.A("s_branch L_poll")
        g.label("L_poll_done")
        g.A("s_mov_b64 exec, -1")
        stamp(g, o, 7)
        for q in range(16):
            g.vmem(f"buffer_load_dwordx4 v[{16+4*q}:{19+4*q}], v12, s[4:7], s12 offen sc1", f"p{q}")
            if q < 15: g.A("s_add_u32 s12, s12, 49152")
    if o.dot2:
        g.A("s_mov_b32 s22, 0x00003f80"); g.A("s_mov_b32 s23, 0x3f800000")
        for j in range(8): g.A(f"v_mov_b32 v{2+j}, 0")
        for q in range(16):
            g.wait_vm(f"p{q}")
            for j in range(4):
                g.A(f"v_dot2c_f32_bf16 v{2+2*j}, s22, v{16+4*q+j}"); g.A(f"v_dot2c_f32_bf16 v{3+2*j}, s23, v{16+4*q+j}")
    else:
        for q in range(16):
            g.wait_vm(f"p{q}")
            for j in range(4):
                src = 16 + 4*q + j
                if q == 0:
                    g.A(f"v_lshlrev_b32 v{2+2*j}, 16, v{src}"); g.A(f"v_and_b32 v{3+2*j}, 0xffff0000, v{src}")
                else:
                    g.A(f"v_lshlrev_b32 v10, 16, v{src}"); g.A(f"v_and_b32 v11, 0xffff0000, v{src}")
                    g.A(f"v_add_f32 v{2+2*j}, v{2+2*j}, v10"); g.A(f"v_add_f32 v{3+2*j}, v{3+2*j}, v11")
    for j in range(4): g.A(f"v_cvt_pk_bf16_f32 v{16+j}, v{2+2*j}, v{3+2*j}")
    po = f" {o.pol_out}" if o.pol_out else ""
    g.A(f"buffer_store_dwordx2 v[16:17], v13, s[8:11], s16 offen{po}")
    g.A(f"buffer_store_dwordx2 v[18:19], v13, s[8:11], s16 offen offset:32{po}")
    g.label("L_red_done")
    if o.stamps is True:
        g.A(f"s_cmp_lg_u32 s{S_W}, 0"); g.A("s_cbranch_scc1 L_end")
        g.A("s_waitcnt vmcnt(0)")
        stamp(g, o, 8)
        dump_stamps(g, 0x1000000)
    elif o.stamps == "dbg":
        dbg_stamps(g, o)

def dbg_stamps(g, o):
    g.A("s_waitcnt vmcnt(0)")
    stamp(g, o, 8)
    g.A(f"s_cmp_lg_u32 s{S_W}, 0"); g.A("s_cbranch_scc1 L_end")
    g.A(f"s_cmp_lg_u32 s2, {int(o.dbgwg)}"); g.A("s_cbranch_scc1 L_end")
    srd(g, 40, S_DBG, S_DBG+1, None, 256)
    for k in range(12):
        g.A(f"s_sub_u32 s{S_T0}, s{S_STAMP+k}, s{S_STAMP}"); g.A(f"v_mov_b32 v{16+k}, s{S_T0}")
    for k in range(12, 16):
        g.A(f"s_sub_u32 s{S_T0}, s{S_STAMP+k}, s{S_STAMP+12}"); g.A(f"v_mov_b32 v{16+k}, s{S_T0}")
    g.A("v_mov_b32 v13, 0")
    g.A("s_mov_b64 exec, 1")
    for k in range(4): g.A(f"buffer_store_dwordx4 v[{16+4*k}:{19+4*k}], v13, s[40:43], 0 offen offset:{16*k}")
    g.A("s_waitcnt vmcnt(0)")

def compute_path(g, o):
    if int(o.prio): g.A(f"s_setprio {int(o.prio)}")
    p1_compute(g, o)
    g.A(f"s_cmp_eq_u32 s{S_W}, 3"); g.A("s_cbranch_scc1 L_wave3")
    p2_addresses(g)
    g.wait_lg0()
    g.A("s_barrier")
    stamp(g, o, 3)
    p2_compute(g, o)
    g.label("L_p3")
    g.vm = []
    p3_compute(g, o)
    compute_tail(g, o)
    g.label("L_end")
    g.A("s_endpgm")
    g.label("L_wave3")
    g.A("s_waitcnt lgkmcnt(0)"); g.lg = []
    g.A("s_barrier")
    p2_kloader(g, o)
    g.A("s_branch L_p3")

def loader_path(g, o):
    g.lg = []; g.vm = []
    loader(g, o)
    loader_tail(g, o)

def k1(g, o):
    header(g, K1)
    entry(g, o)
    if o.ld_first:
        g.A(f"s_cmp_lt_u32 s{S_W}, 4"); g.A("s_cbranch_scc1 L_compute")
        loader_path(g, o)
        g.label("L_compute")
        g.lg = []; g.vm = []
        compute_path(g, o)
    else:
        g.A(f"s_cmp_ge_u32 s{S_W}, 4"); g.A("s_cbranch_scc1 L_loader")
        compute_path(g, o)
        g.label("L_loader")
        loader_path(g, o)
    for par in range(2): rescale_sub(g, par)
    if o.m0init: rescale_sub(g, 0, first=True)
    for t in [0, 1, 2, 3, 4, 5, 6, 31]: rare_stub(g, t)
    g.label("L_code_end")

def build(o):
    g = G()
    g.A("; @launch grid=(256,1,1) block=(512,1,1) lds=163840")
    g.A('.amdgcn_target "amdgcn-amd-amdhsa--gfx950"')
    k1(g, o)
    descriptor(g, K1, 256, ACC_OFF)
    return g

if __name__ == "__main__":
    o = Opt(); OPT = o
    for a in sys.argv[2:]:
        k, v = a.split("=", 1)
        setattr(o, k, {"True": True, "False": False}.get(v, v))
    g = build(o)
    probs = check(g.L)
    for p in probs[:8]: print("HAZARD", p)
    open(sys.argv[1], "w").write(g.text())
    print("lines", len(g.L))
```

```python
import sys, math, struct
from asmlib import G, check
from sched import schedule

PREFIX = "concat_heads__gqa_block_cached__gqa_block_cached__near_ridge"
K1 = PREFIX + "_kernel"

VB = 0
KB = 65536
XB = 114688
QB = XB
OB = 139264
WQB = 16384
NS = 6
def kslot(i): return KB + (NS - 1 - i % NS) * 8192
def vslot(i): return VB + (i % NS) * 8192
WO_ADDR = [[49152, 57344, 114688, 122880],
           [131072, kslot(26), kslot(27), kslot(28)],
           [vslot(26), kslot(29), vslot(27), kslot(30)],
           [vslot(28), kslot(31), vslot(29), vslot(30)]]
FLAGB = 14 << 20

CSCALE = math.log2(math.e) / math.sqrt(128.0)
def fbits(x): return struct.unpack("<I", struct.pack("<f", x))[0]
THR_HI = float(2 ** 20)
THR_LO = float(2 ** -20)

S_W = 3
SRD_X, SRD_WQ, SRD_K, SRD_V, SRD_WO, SRD_P = 4, 8, 12, 16, 20, 24
S_DBG, S_OUT, S_WS = 94, 96, 52
S_HKV, S_HALF, S_B, S_BR = 54, 55, 56, 57
S_S0, S_RING = 58, 59
S_T0, S_T1, S_T2, S_T3 = 60, 61, 62, 63
S_CNT = 64
S_KOFF, S_VOFF = 65, 66
S_THR = 67
S_C = 68
S_RET = 70
S_STAMP = 72
S_WOA = 88
S_BB, S_HP = 92, 93
S_LD2K, S_FIRST, S_THRLO, S_WOROT = 28, 29, 30, 31
S_XM, S_XO = 98, 99
SRD_DBG, SRD_FL = 32, 36

ACC_OFF = 160
V_LANE = 1
V_XR, V_XT = 2, 3
V_WR = 5
V_ACC1 = 32
V_E = 2; NTEMP = 8
V_L, V_TS, V_T, V_F = 10, 11, 12, 14
V_KA, V_VA = 16, 24
V_TMP = 28
V_S = [32, 48]; V_P = [64, 72]; V_NEGM = 80; V_O = 96
A_Q, A_K, A_V = 0, 32, 64
A_A1 = [0, 16]; A_B1 = [32, 44]
V_OR, V_OT = 10, 11
V_ACC3 = 16
V_WOR = 112
A_A3 = [0, 16]; A_B3 = [32, 44]
V_STG = 32
V_XD = 2; V_WD = 4; V_KE0, V_KE1, V_VE = 8, 9, 10; V_WOD = 12; V_LT = 16
V_FA, V_FD, V_RA, V_RD = 20, 21, 22, 23
V_FT = 24

def vr(b, n=1): return f"v{b}" if n == 1 else f"v[{b}:{b+n-1}]"
def ar(b, n=1): return f"a{b}" if n == 1 else f"a[{b}:{b+n-1}]"

class Opt:
    nt_kv = "nt"; pol_w = ""; pol_x = ""; pol_st = "sc1"
    stamps = False; rot = True; sleep = 1; dbgwg = 37
    cap_lo = 24; cap_hi = 24
    p3fine = True; swap_first = False; vtouch = False; pol_out = ""; wq3 = False; dot2 = True; early_ld = False; ld_first = True; code_pf = False; wo_pf = False; stage = False; front = 9; kv_pol1 = None; first_nt = False; nt_x = 0; nt_wq = 2; nt_wo = 1; pretouch = False; m0init = True; prio = 0; thr = 20
    x_now = False; x_nost = False; x_nok = False; x_nov = False; x_novalu = False; x_nomfma = False; x_nodma = False
OPT = None

def stamp(g, o, idx):
    if o.stamps:
        g.A("s_memrealtime s[100:101]"); g.A("s_waitcnt lgkmcnt(0)"); g.A(f"s_mov_b32 s{S_STAMP+idx}, s100")
        cyc = {0: 12, 3: 13, 4: 14, 8: 15}
        if idx in cyc:
            g.A("s_memtime s[100:101]"); g.A("s_waitcnt lgkmcnt(0)"); g.A(f"s_mov_b32 s{S_STAMP+cyc[idx]}, s100")
        g.lg = []

def header(g, name):
    g.A(".text"); g.A(f".globl {name}"); g.A(".p2align 8"); g.A(f".type {name},@function"); g.label(name)

def descriptor(g, name, vgpr, accum, sgpr=102):
    g.A('.section .rodata,"a"'); g.A(".p2align 6"); g.A(f".amdhsa_kernel {name}")
    g.A(f".amdhsa_next_free_vgpr {vgpr}"); g.A(f".amdhsa_next_free_sgpr {sgpr}"); g.A(f".amdhsa_accum_offset {accum}")
    g.A(".amdhsa_group_segment_fixed_size 0"); g.A(".amdhsa_kernarg_size 104"); g.A(".amdhsa_user_sgpr_count 2")
    g.A(".amdhsa_user_sgpr_kernarg_segment_ptr 1"); g.A(".amdhsa_system_sgpr_workgroup_id_x 1"); g.A(".end_amdhsa_kernel")

def srd(g, d, lo, hi, off_s, nrec):
    if off_s is None:
        g.A(f"s_mov_b32 s{d}, s{lo}"); g.A(f"s_and_b32 s{d+1}, s{hi}, 0xffff")
    else:
        g.A(f"s_add_u32 s{d}, s{lo}, {off_s}"); g.A(f"s_addc_u32 s{d+1}, s{hi}, 0"); g.A(f"s_and_b32 s{d+1}, s{d+1}, 0xffff")
    g.A(f"s_mov_b32 s{d+2}, {nrec}"); g.A(f"s_mov_b32 s{d+3}, 0x20000")

def dma(g, voff, srd_, soff, imm, pol, tag):
    off = f" offset:{imm}" if imm else ""
    pol = f" {pol}" if pol else ""
    g.vmem(f"buffer_load_dwordx4 v{voff}, s[{srd_}:{srd_+3}], {soff} offen{off}{pol} lds", tag)

_lab = [0]
def dma_group(g, o, items, tag):
    if o.kv_pol1 is None:
        for it in items: dma(g, *it, o.nt_kv, tag)
        return
    _lab[0] += 1; n = _lab[0]
    g.A(f"s_cmp_eq_u32 s{S_HALF}, 1"); g.A(f"s_cbranch_scc1 L_kvp{n}")
    vm = list(g.vm)
    for it in items: dma(g, *it, o.nt_kv, tag)
    g.A(f"s_branch L_kvq{n}")
    g.label(f"L_kvp{n}")
    g.vm = vm
    for it in items: dma(g, *it, o.kv_pol1, tag)
    g.label(f"L_kvq{n}")

def weave(main, fill):
    n = len(main); m = len(fill); k = 0
    for i, f in enumerate(main):
        f()
        tgt = (i + 1) * m // n
        while k < tgt:
            fill[k](); k += 1

def gemm_step(g, n, mfma, fill, front=9, after=None, addr=None):
    k = 0; m = len(fill)
    for i in range(12):
        cb = i // 3
        if i % 3 == 0: g.wait_lg([f"f{n}B", f"f{n}A{cb}"])
        mfma(cb, i % 3)
        tgt = min(m, -(-(i + 1) * m // front))
        while k < tgt:
            fill[k](); k += 1
        if addr and i == 9: addr()
        if after and i in after: after[i]()

def select_by_wave(g, dst, vals):
    g.A(f"s_mov_b32 s{dst}, {vals[0]}")
    for k in range(1, len(vals)):
        g.A(f"s_cmp_eq_u32 s{S_W}, {k}"); g.A(f"s_cselect_b32 s{dst}, {vals[k]}, s{dst}")

def entry(g, o):
    g.A("s_cmp_ge_u32 s2, 256"); g.A("s_cbranch_scc1 L_end")
    stamp(g, o, 0)
    g.A("s_load_dwordx16 s[32:47], s[0:1], 0")
    g.A("s_load_dwordx4 s[48:51], s[0:1], 64")
    g.A(f"s_load_dwordx2 s[{S_WS}:{S_WS+1}], s[0:1], 96")
    g.A(f"s_load_dwordx2 s[{S_OUT}:{S_OUT+1}], s[0:1], 80")
    g.A(f"s_load_dwordx2 s[{S_DBG}:{S_DBG+1}], s[0:1], 88")
    g.A(f"v_and_b32 v{V_LANE}, 63, v0")
    g.A("v_lshrrev_b32 v2, 6, v0")
    g.A(f"s_and_b32 s{S_HKV}, s2, 7")
    g.A(f"v_readfirstlane_b32 s{S_W}, v2")
    g.A(f"s_lshr_b32 s{S_T0}, s2, 3")
    g.A(f"s_and_b32 s{S_HALF}, s{S_T0}, 1")
    g.A(f"s_lshr_b32 s{S_B}, s{S_T0}, 1"); g.A(f"s_and_b32 s{S_B}, s{S_B}, 7")
    g.A(f"s_lshr_b32 s{S_BR}, s{S_T0}, 4")
    g.A(f"s_lshl_b32 s{S_HP}, s{S_HKV}, 1"); g.A(f"s_add_u32 s{S_HP}, s{S_HP}, s{S_HALF}")
    g.A(f"s_lshl_b32 s{S_BB}, s{S_BR}, 3"); g.A(f"s_add_u32 s{S_BB}, s{S_BB}, s{S_B}")
    if o.rot:
        g.A(f"s_lshl_b32 s{S_S0}, s{S_B}, 1"); g.A(f"s_lshl_b32 s{S_T0}, s{S_HALF}, 3")
        g.A(f"s_add_u32 s{S_S0}, s{S_S0}, s{S_T0}"); g.A(f"s_and_b32 s{S_S0}, s{S_S0}, 15")
        g.A(f"s_mov_b32 s{S_WOROT}, s{S_B}")
    else:
        g.A(f"s_mov_b32 s{S_S0}, 0"); g.A(f"s_mov_b32 s{S_WOROT}, 0")

def select_branch(g, idx):
    g.A(f"s_cmp_eq_u32 s{S_BR}, 1")
    for i in idx: g.A(f"s_cselect_b32 s{32+i}, s{42+i}, s{32+i}")

def srd_kv(g, which):
    g.A(f"s_lshl_b32 s{S_T0}, s{S_B}, 3"); g.A(f"s_add_u32 s{S_T0}, s{S_T0}, s{S_HKV}"); g.A(f"s_lshl_b32 s{S_T0}, s{S_T0}, 18")
    if "K" in which: srd(g, SRD_K, 34, 35, f"s{S_T0}", 262144)
    if "V" in which: srd(g, SRD_V, 36, 37, f"s{S_T0}", 262144)

EARLY = [("K", 0), ("K", 1), ("V", 0), ("K", 2), ("V", 1), ("K", 3)]

def full_tile_regs(g, kind):
    L = V_LANE; t0, t1 = V_FT+4, V_FT+5
    g.A(f"v_lshrrev_b32 v{t0}, 4, v{L}"); g.A(f"v_and_b32 v{t1}, 15, v{L}")
    for e in range(4 if kind == "K" else 1):
        d = V_FT + e
        if kind == "K": g.A(f"v_add_u32 v{d}, {4*e}, v{t0}")
        else: g.A(f"v_lshlrev_b32 v{d}, 2, v{t0}")
        g.A(f"v_xor_b32 v{d}, v{d}, v{t1}"); g.A(f"v_lshlrev_b32 v{d}, 4, v{d}"); g.A(f"v_lshl_add_u32 v{d}, v{t0}, 8, v{d}")

def full_tile(g, o, kind, t, tag):
    so = S_KOFF if kind == "K" else S_VOFF
    base = kslot(t) if kind == "K" else vslot(t)
    for hf in range(2):
        g.A(f"s_mov_b32 m0, {base + hf*4096}"); g.A("s_nop 0")
        dma_group(g, o, [(V_FT + (e if kind == "K" else 0), SRD_K if kind == "K" else SRD_V, f"s{so}", 1024*e) for e in range(4)], tag)
        g.A(f"s_add_u32 s{so}, s{so}, 4096")

def loader(g, o):
    g.C("================ loader waves")
    L = V_LANE; t0, t1, t2, t3 = V_LT, V_LT+1, V_LT+2, V_LT+3
    g.A(f"s_sub_u32 s{S_W}, s{S_W}, 4")
    g.A(f"v_lshrrev_b32 v{t0}, 4, v{L}"); g.A(f"v_and_b32 v{t1}, 15, v{L}")
    g.A(f"s_lshl_b32 s{S_T0}, s{S_W}, 2")
    g.A(f"v_add_u32 v{t2}, s{S_T0}, v{t0}"); g.A(f"v_xor_b32 v{t2}, v{t2}, v{t1}"); g.A(f"v_lshlrev_b32 v{t2}, 4, v{t2}")
    g.A(f"v_lshl_add_u32 v{V_XD}, v{t0}, 10, v{t2}")
    g.A(f"v_lshrrev_b32 v{t2}, 3, v{L}"); g.A(f"v_and_b32 v{t3}, 7, v{L}")
    g.A(f"s_lshl_b32 s{S_T0}, s{S_W}, 7")
    for jj in range(4):
        d = V_WD + jj
        g.A(f"v_and_b32 v{d}, 2, v{t2}")
        if jj & 1: g.A(f"v_or_b32 v{d}, 4, v{d}")
        g.A(f"v_xor_b32 v{d}, v{d}, v{t3}"); g.A(f"v_lshlrev_b32 v{d}, 4, v{d}")
        g.A(f"v_lshl_add_u32 v{d}, v{t2}, 13, v{d}")
        g.A(f"v_add_u32 v{d}, s{S_T0}, v{d}")
        if jj: g.A(f"v_add_u32 v{d}, {jj*64512}, v{d}")
    g.A(f"s_lshl_b32 s{S_RING}, s{S_W}, 14"); g.A(f"s_add_u32 s{S_RING}, s{S_RING}, {WQB}")
    def x_prep(j):
        g.A(f"s_lshr_b32 s{S_T0}, s{S_S0}, 2"); g.A(f"s_add_u32 s{S_T0}, s{S_T0}, {j}"); g.A(f"s_and_b32 s{S_T0}, s{S_T0}, 3")
        g.A(f"s_mul_i32 s{S_XM}, s{S_T0}, 12288"); g.A(f"s_lshl_b32 s{S_T1}, s{S_W}, 10"); g.A(f"s_add_u32 s{S_XM}, s{S_XM}, s{S_T1}")
        g.A(f"s_lshl_b32 s{S_XO}, s{S_T0}, 8"); g.A(f"s_lshl_b32 s{S_T1}, s{S_W}, 12"); g.A(f"s_add_u32 s{S_XO}, s{S_XO}, s{S_T1}")
    def x_issue(j):
        for i3 in range(3):
            g.A(f"s_add_u32 m0, s{S_XM}, {XB + i3*4096}")
            g.A(f"s_add_u32 s{S_T0}, s{S_XO}, {i3*16384}")
            dma(g, V_XD, SRD_X, f"s{S_T0}", 0, "nt" if (o.first_nt and j < int(o.nt_x)) else o.pol_x, f"x{j}")
    def wq_step(i):
        g.A(f"s_add_u32 s{S_T2}, s{S_S0}, {i}"); g.A(f"s_and_b32 s{S_T2}, s{S_T2}, 15")
        g.A(f"s_add_u32 m0, s{S_RING}, {(i%4)*4096}")
        g.A(f"s_lshl_b32 s{S_T2}, s{S_T2}, 18")
        pol = "nt" if (o.first_nt and i < int(o.nt_wq)) else o.pol_w
        for jj in range(4): dma(g, V_WD + jj, SRD_WQ, f"s{S_T2}", 1024*jj, pol, f"wq{i}")
    x_prep(0)
    g.A("s_waitcnt lgkmcnt(0)")
    stamp(g, o, 1)
    select_branch(g, [0, 1, 6, 7])
    g.A(f"s_mul_i32 s{S_T0}, s{S_B}, 49152"); srd(g, SRD_X, 32, 33, f"s{S_T0}", 49152)
    if not o.swap_first:
        x_issue(0)
    g.A(f"s_lshl_b32 s{S_T1}, s{S_HP}, 9")
    srd(g, SRD_WQ, 38, 39, f"s{S_T1}", 0)
    g.A(f"s_sub_u32 s{SRD_WQ+2}, 0x400000, s{S_T1}")
    if o.swap_first:
        g.A(f"s_bitcmp1_b32 s{S_W}, 0"); g.A("s_cbranch_scc1 L_sw1")
        vm = list(g.vm)
        x_issue(0); wq_step(0)
        g.A("s_branch L_sw2")
        g.label("L_sw1")
        g.vm = vm
        wq_step(0); x_issue(0)
        g.label("L_sw2")
        wq_step(1)
    else:
        wq_step(0); wq_step(1)
    x_prep(1); x_issue(1)
    wq_step(2)
    if o.wq3: wq_step(3)
    stamp(g, o, 2)
    if o.code_pf:
        g.A(f"s_cmp_lg_u32 s{S_W}, 1"); g.A("s_cbranch_scc1 L_cpf")
        g.A("s_getpc_b64 s[98:99]"); g.label("L_pc")
        g.A(f"s_sub_u32 s98, s98, L_pc-{K1}"); g.A("s_subb_u32 s99, s99, 0")
        g.A(f"s_lshr_b32 s{S_T3}, s2, 3"); g.A(f"s_lshl_b32 s{S_T3}, s{S_T3}, 10")
        g.A(f"v_lshl_add_u32 v{t2}, v{L}, 4, s{S_T3}")
        g.A(f"v_min_u32 v{t2}, L_code_end-{K1}-16, v{t2}")
        g.A(f"global_load_dwordx4 v[32:35], v{t2}, s[98:99]")
        g.label("L_cpf")
    select_branch(g, [2, 3, 4, 5, 8, 9])
    srd_kv(g, "KV")
    g.A(f"s_lshl_b32 s{S_T1}, s{S_HP}, 18")
    srd(g, SRD_WO, 40, 41, f"s{S_T1}", 262144)
    if o.vtouch:
        g.A(f"v_mov_b32 v{V_LT+2}, 0"); g.A("s_mov_b64 exec, 1")
        for k, srd_ in enumerate((SRD_K, SRD_V, SRD_WO)):
            g.A(f"s_cmp_lg_u32 s{S_W}, {k}"); g.A(f"s_cbranch_scc1 L_vt{k}")
            g.A(f"buffer_load_dword v31, v{V_LT+2}, s[{srd_}:{srd_+3}], 0 offen nt")
            g.label(f"L_vt{k}")
        g.A("s_mov_b64 exec, -1")
    if o.pretouch:
        g.A(f"s_lshl_b32 s{S_T1}, s{S_BB}, 4"); g.A(f"s_add_u32 s{S_T1}, s{S_T1}, s{S_HP}"); g.A(f"s_mul_i32 s{S_T1}, s{S_T1}, 49152")
        g.A(f"s_add_u32 s44, s{S_WS}, s{S_T1}"); g.A(f"s_addc_u32 s45, s{S_WS+1}, 0")
        for r in (SRD_K, SRD_V, SRD_WO, 44, S_OUT, S_DBG):
            g.A(f"s_load_dword s46, s[{r}:{r+1}], 0")
        g.A(f"s_add_u32 s44, s{S_WS}, {FLAGB}"); g.A(f"s_addc_u32 s45, s{S_WS+1}, 0")
        g.A("s_load_dword s46, s[44:45], 0")
    g.A(f"s_lshl_b32 s{S_LD2K}, s{S_W}, 11")
    g.A(f"v_lshlrev_b32 v{t2}, 8, v{t0}"); g.A(f"v_add_u32 v{t2}, s{S_LD2K}, v{t2}")
    g.A(f"s_lshl_b32 s{S_T1}, s{S_W}, 3"); g.A(f"s_and_b32 s{S_T1}, s{S_T1}, 15")
    for e in range(2):
        d = V_KE0 + e
        g.A(f"v_add_u32 v{d}, s{S_T1}, v{t0}")
        if e: g.A(f"v_add_u32 v{d}, 4, v{d}")
        g.A(f"v_xor_b32 v{d}, v{d}, v{t1}"); g.A(f"v_lshl_add_u32 v{d}, v{d}, 4, v{t2}")
    g.A(f"v_lshlrev_b32 v{V_VE}, 2, v{t0}"); g.A(f"v_xor_b32 v{V_VE}, v{V_VE}, v{t1}")
    g.A(f"v_lshl_add_u32 v{V_VE}, v{V_VE}, 4, v{t2}")
    g.A(f"v_lshrrev_b32 v{t2}, 3, v{L}"); g.A(f"v_and_b32 v{t3}, 7, v{L}")
    g.A(f"s_lshl_b32 s{S_T0}, s{S_W}, 8")
    for jj in range(4):
        d = V_WOD + jj
        g.A(f"v_and_b32 v{d}, 2, v{t2}")
        if jj & 1: g.A(f"v_or_b32 v{d}, 4, v{d}")
        g.A(f"v_xor_b32 v{d}, v{d}, v{t3}"); g.A(f"v_lshlrev_b32 v{d}, 4, v{d}")
        g.A(f"v_lshl_add_u32 v{d}, v{t2}, 10, v{d}")
        g.A(f"v_add_u32 v{d}, s{S_T0}, v{d}")
        if jj: g.A(f"v_add_u32 v{d}, {jj*7168}, v{d}")
    for s in range(4): select_by_wave(g, S_WOA + s, [WO_ADDR[s][w] for w in range(4)])
    g.A(f"s_mov_b32 s{S_KOFF}, 0"); g.A(f"s_mov_b32 s{S_VOFF}, 0")
    if o.pretouch: g.A("s_waitcnt lgkmcnt(0)")
    def kv(kind, t, tag):
        so = S_KOFF if kind == "K" else S_VOFF
        g.A(f"s_add_u32 m0, s{S_LD2K}, {kslot(t) if kind == 'K' else vslot(t)}")
        g.A("s_nop 0")
        if kind == "K": dma_group(g, o, [(V_KE0, SRD_K, f"s{so}", 0), (V_KE1, SRD_K, f"s{so}", 1024)], tag)
        else: dma_group(g, o, [(V_VE, SRD_V, f"s{so}", 0), (V_VE, SRD_V, f"s{so}", 1024)], tag)
        g.A(f"s_add_u32 s{so}, s{so}, 8192")
    def wo_soff(n):
        g.A(f"s_add_u32 s{S_T2}, s{S_WOROT}, {n % 8}"); g.A(f"s_and_b32 s{S_T2}, s{S_T2}, 7"); g.A(f"s_lshl_b32 s{S_T2}, s{S_T2}, 15")
        if n >= 8: g.A(f"s_add_u32 s{S_T2}, s{S_T2}, 128")
    def wo_step(d):
        for n in (2*d, 2*d+1):
            g.A(f"s_add_u32 m0, s{S_WOA + d % 4}, {(n % 2)*4096}")
            wo_soff(n)
            pol = "nt" if (o.first_nt and (n if o.wo_pf else n % 8) < int(o.nt_wo)) else o.pol_w
            for jj in range(4): dma(g, V_WOD + jj, SRD_WO, f"s{S_T2}", 1024*jj, pol, f"wo{d}")
    def wo_piece(n):
        g.A(f"s_add_u32 m0, s{S_WOA + ((n - 8) // 2)}, {(n % 2)*4096}")
        wo_soff(n)
        for jj in range(4): dma(g, V_WOD + jj, SRD_WO, f"s{S_T2}", 1024*jj, o.pol_w, f"wp{n}")
    def wo_regs(k):
        for n in (8 + 2*k, 9 + 2*k):
            wo_soff(n)
            pol = " nt" if (o.first_nt and n - 8 < int(o.nt_wo)) else (f" {o.pol_w}" if o.pol_w else "")
            for jj in range(4):
                r = V_STG + ((n - 8)*4 + jj)*4
                off = f" offset:{1024*jj}" if jj else ""
                g.vmem(f"buffer_load_dwordx4 {vr(r,4)}, v{V_WOD+jj}, s[{SRD_WO}:{SRD_WO+3}], s{S_T2} offen{off}{pol}", f"wr{k}")
    def wo_write(d):
        g.wait_vm(f"wr{d-4}")
        g.A(f"v_add_u32 v{V_LT+2}, s{S_WOA + d - 4}, v{V_LT+3}")
        for k in range(8):
            if o.x_now: break
            r = V_STG + ((d-4)*8 + k)*4
            g.lds(f"ds_write_b128 v{V_LT+2}, {vr(r,4)} offset:{k*1024}", "ww")
    need_x = {0: "x0", 1: "x1", 5: "x2", 9: "x3"}
    for i in range(16):
        tags = []
        if i == 0: tags += ["wq0", "wq1"]
        elif i + 1 < 16: tags.append(f"wq{i+1}")
        if i in need_x: tags.append(need_x[i])
        if tags: g.wait_vm(tags)
        if i == 0: stamp(g, o, 3)
        g.A("s_barrier")
        if i + 3 < 16:
            if not (o.wq3 and i == 0): wq_step(i + 3)
        else:
            for kind, t in EARLY[(i-13)*2:(i-13)*2+2]: kv(kind, t, f"{kind}{t}")
        if i == 0: x_prep(2); x_issue(2)
        if i == 3: x_prep(3); x_issue(3)
    g.A("s_barrier")
    g.wait_vm(["K0", "K1"]); g.A("s_barrier")
    stamp(g, o, 4)
    def tail_p3(first):
        g.A("s_barrier")
        wo_step(3)
        if o.stage: wo_regs(2)
        g.A(f"v_lshlrev_b32 v{V_LT+3}, 4, v{V_LANE}")
        g.wait_vm(["wo0", "wo1"]); g.A("s_barrier")
        if o.stage: wo_regs(3)
        if o.p3fine:
            for m in range(1, 16):
                need = m + 1
                if need < 8:
                    if need % 2 == 0: g.wait_vm(f"wo{need // 2}")
                elif need < 16: g.wait_vm(f"wp{need}")
                if m == 15 and first: ready_check()
                g.A("s_barrier")
                if m + 7 < 16: wo_piece(m + 7)
            g.A("s_branch L_ld_end")
            return
        for d in range(1, 8):
            if d + 1 < 4 or (not o.stage and d + 1 < 8): g.wait_vm(f"wo{d+1}")
            elif o.stage: g.wait_lg0()
            if d == 7 and first: ready_check()
            g.A("s_barrier")
            if d + 3 < 8:
                if o.stage: wo_write(d + 3)
                else: wo_step(d + 3)
        g.A("s_branch L_ld_end")
    def ready_check():
        g.A(f"s_cmp_lg_u32 s{S_W}, 0"); g.A("s_cbranch_scc1 L_rdy_done")
        g.A(f"s_mov_b32 s{S_CNT}, 0")
        g.label("L_rdy")
        g.A(f"v_readfirstlane_b32 s{S_T1}, v{V_RD}")
        g.A(f"s_add_u32 s{S_CNT}, s{S_CNT}, 1")
        g.A(f"s_cmp_lg_u32 s{S_T1}, 0"); g.A("s_cbranch_scc1 L_rdy_done")
        g.A(f"s_cmp_ge_u32 s{S_CNT}, 0x40000"); g.A("s_cbranch_scc1 L_rdy_done")
        g.A(f"buffer_load_dword v{V_RD}, v{V_RA}, s[{SRD_DBG}:{SRD_DBG+3}], 0 offen sc1")
        g.A("s_waitcnt vmcnt(0)")
        g.A("s_branch L_rdy")
        g.label("L_rdy_done")
    def idle(n, lab):
        g.A(f"s_mov_b32 s{S_CNT}, {n}")
        g.label(lab)
        g.A("s_barrier")
        g.A(f"s_sub_u32 s{S_CNT}, s{S_CNT}, 1"); g.A(f"s_cmp_lg_u32 s{S_CNT}, 0"); g.A(f"s_cbranch_scc1 {lab}")
    def drain(vtags):
        wo_step(0)
        if o.wo_pf:
            g.A(f"v_and_b32 v{V_LT+2}, 31, v{V_LANE}"); g.A(f"v_lshlrev_b32 v{V_LT+2}, 10, v{V_LT+2}")
            g.A(f"s_lshl_b32 s{S_T0}, s{S_W}, 8"); g.A(f"s_add_u32 s{S_T0}, s{S_T0}, 128")
            g.A(f"v_add_u32 v{V_LT+2}, s{S_T0}, v{V_LT+2}")
            g.A(f"s_lshl_b32 s{S_T2}, s{S_WOROT}, 15")
            g.vmem(f"buffer_load_dword v{V_LT+1}, v{V_LT+2}, s[{SRD_WO}:{SRD_WO+3}], s{S_T2} offen nt", "pf")
        for t in range(28, 32):
            if vtags: g.wait_vm(f"V{t}")
            g.A("s_barrier")
            if t == 28: wo_step(1)
            if t == 29 and o.stage: wo_regs(0)
            if t == 30: wo_step(2)
            if t == 31 and o.stage: wo_regs(1)
        tail_p3(not vtags)
    g.A(f"s_cmp_eq_u32 s{S_W}, 3"); g.A("s_cbranch_scc1 L_vloader")
    vm_early = list(g.vm)
    g.wait_vm(["V0", "K2"]); g.A("s_barrier")
    g.wait_vm(["V1", "K3"]); g.A("s_barrier")
    srd(g, SRD_DBG, S_DBG, S_DBG+1, None, 256)
    srd(g, SRD_FL, S_WS, S_WS+1, None, FLAGB + 1024*128)
    g.A(f"s_lshl_b32 s{S_T0}, s{S_BB}, 13"); g.A(f"s_add_u32 s{S_T0}, s{S_T0}, {FLAGB}")
    g.A(f"v_lshlrev_b32 v{V_FA}, 7, v{V_LANE}"); g.A(f"v_add_u32 v{V_FA}, s{S_T0}, v{V_FA}")
    g.A(f"s_lshl_b32 s{S_T0}, s{S_BB}, 2"); g.A(f"v_mov_b32 v{V_RA}, s{S_T0}")
    g.A(f"s_or_b32 s{S_FIRST}, s{S_W}, s{S_HP}")
    g.A(f"s_cmp_lg_u32 s{S_FIRST}, 0"); g.A("s_cbranch_scc1 L_fl1")
    g.A(f"v_mov_b32 v{V_FD}, 0")
    g.A(f"buffer_store_dword v{V_FD}, v{V_FA}, s[{SRD_FL}:{SRD_FL+3}], 0 offen sc1")
    g.label("L_fl1")
    idle(8, "L_ld_idle1")
    g.A(f"s_cmp_lg_u32 s{S_FIRST}, 0"); g.A("s_cbranch_scc1 L_fl2")
    g.A("s_waitcnt vmcnt(0)")
    g.A(f"v_mov_b32 v{V_FD}, 1")
    g.A("s_mov_b64 exec, 1")
    g.A(f"buffer_store_dword v{V_FD}, v{V_RA}, s[{SRD_DBG}:{SRD_DBG+3}], 0 offen sc1")
    g.A("s_mov_b64 exec, -1")
    g.label("L_fl2")
    idle(10, "L_ld_idle2")
    g.A(f"s_cmp_lg_u32 s{S_W}, 0"); g.A("s_cbranch_scc1 L_fl3")
    g.A(f"buffer_load_dword v{V_RD}, v{V_RA}, s[{SRD_DBG}:{SRD_DBG+3}], 0 offen sc1")
    g.label("L_fl3")
    idle(8, "L_ld_idle3")
    g.A("s_waitcnt vmcnt(0)"); g.vm = []
    drain(False)
    g.label("L_vloader")
    g.vm = vm_early
    full_tile_regs(g, "V")
    g.A(f"s_mov_b32 s{S_VOFF}, {2*8192}")
    full_tile(g, o, "V", 2, "V2"); full_tile(g, o, "V", 3, "V3")
    g.wait_vm(["V0", "K2"])
    g.A(f"s_mov_b32 s{S_CNT}, 4")
    g.label("L_vld_loop")
    for t in range(6):
        g.A("s_waitcnt vmcnt(24)"); g.A("s_barrier")
        if not o.x_nodma: full_tile(g, o, "V", t+4, f"V{t+4}")
    g.A(f"s_sub_u32 s{S_CNT}, s{S_CNT}, 1"); g.A(f"s_cmp_lg_u32 s{S_CNT}, 0"); g.A("s_cbranch_scc1 L_vld_loop")
    g.vm = []
    for t in range(24, 28): g.vm += [f"V{t}"]*8
    for t in range(24, 28):
        g.wait_vm(f"V{t}"); g.A("s_barrier"); full_tile(g, o, "V", t+4, f"V{t+4}")
    drain(True)

def loader_tail(g, o):
    g.label("L_ld_end")
    if o.stamps is True:
        stamp(g, o, 7)
        g.A(f"s_cmp_lg_u32 s{S_W}, 0"); g.A("s_cbranch_scc1 L_ld_end2")
        dump_stamps(g, 0x1010000)
        g.label("L_ld_end2")
    g.A("s_endpgm")

def dump_stamps(g, base):
    g.A(f"s_add_u32 s40, s{S_WS}, {base}"); g.A(f"s_addc_u32 s41, s{S_WS+1}, 0"); g.A("s_and_b32 s41, s41, 0xffff")
    g.A("s_mov_b32 s42, 0x10000"); g.A("s_mov_b32 s43, 0x20000")
    for k in range(16): g.A(f"v_mov_b32 v{16+k}, s{S_STAMP+k}")
    g.A(f"s_lshl_b32 s{S_T0}, s2, 6"); g.A(f"v_mov_b32 v13, s{S_T0}")
    g.A("s_mov_b64 exec, 1")
    for k in range(4): g.A(f"buffer_store_dwordx4 v[{16+4*k}:{19+4*k}], v13, s[40:43], 0 offen offset:{16*k}")
    g.A("s_waitcnt vmcnt(0)")
    g.A("s_mov_b64 exec, -1")

def p1_compute(g, o):
    g.C("==== P1: Q projection")
    L = V_LANE; t0, t1, t2 = V_TMP, V_TMP+1, V_TMP+2
    g.A(f"s_mov_b32 s{S_THR}, {hex(fbits(float(2.0 ** float(o.thr))))}"); g.A(f"s_mov_b32 s{S_THRLO}, {hex(fbits(THR_LO))}")
    g.A(f"s_mov_b32 s{S_C}, {hex(fbits(CSCALE))}"); g.A(f"s_mov_b32 s{S_C+1}, {hex(fbits(CSCALE))}")
    for i in range(64): g.A(f"v_mov_b32 v{V_O+i}, 0")
    g.A(f"v_lshrrev_b32 v{t0}, 4, v{L}"); g.A(f"v_and_b32 v{t1}, 15, v{L}")
    g.A(f"v_xor_b32 v{t2}, v{t0}, v{t1}"); g.A(f"v_lshlrev_b32 v{t2}, 4, v{t2}")
    g.A(f"v_lshl_add_u32 v{V_XR}, v{t1}, 8, v{t2}")
    g.A(f"s_lshl_b32 s{S_RING}, s{S_W}, 14"); g.A(f"s_add_u32 s{S_RING}, s{S_RING}, {WQB}")
    r_, cc, sw = 12, 13, 14
    g.A(f"v_bfe_u32 v{r_}, v{L}, 2, 2"); g.A(f"v_and_b32 v{cc}, 3, v{L}")
    g.A(f"v_and_b32 v{sw}, 2, v{r_}"); g.A(f"v_and_b32 v{t2}, 1, v{t0}")
    g.A(f"v_lshl_or_b32 v{sw}, v{t2}, 2, v{sw}")
    g.A(f"v_lshrrev_b32 v{t2}, 1, v{cc}"); g.A(f"v_or_b32 v{sw}, v{sw}, v{t2}"); g.A(f"v_lshlrev_b32 v{sw}, 4, v{sw}")
    g.A(f"v_and_b32 v{t2}, 1, v{cc}"); g.A(f"v_lshl_add_u32 v{sw}, v{t2}, 3, v{sw}")
    g.A(f"v_lshl_add_u32 v{t2}, v{t0}, 3, v{r_}"); g.A(f"v_lshl_add_u32 v{sw}, v{t2}, 7, v{sw}")
    g.A(f"v_add_u32 v{sw}, s{S_RING}, v{sw}")
    for cb in range(4): g.A(f"v_xor_b32 v{V_WR+cb}, {cb << 5}, v{sw}")
    V_QW = 16
    g.A(f"s_and_b32 s{S_T0}, s{S_W}, 1"); g.A(f"s_lshl_b32 s{S_T0}, s{S_T0}, 3")
    g.A(f"v_lshrrev_b32 v{t2}, 1, v{t0}")
    g.A(f"v_xor_b32 v{t2}, v{t2}, v{t1}"); g.A(f"v_xor_b32 v{t2}, s{S_T0}, v{t2}"); g.A(f"v_lshlrev_b32 v{t2}, 4, v{t2}")
    g.A(f"v_and_b32 v{t0}, 1, v{t0}"); g.A(f"v_lshl_add_u32 v{t2}, v{t0}, 3, v{t2}")
    g.A(f"s_lshr_b32 s{S_T0}, s{S_W}, 1"); g.A(f"s_mul_i32 s{S_T0}, s{S_T0}, {48*256}"); g.A(f"s_add_u32 s{S_T0}, s{S_T0}, {QB}")
    g.A(f"v_lshl_add_u32 v{t2}, v{t1}, 8, v{t2}"); g.A(f"v_add_u32 v{t2}, s{S_T0}, v{t2}")
    for cb in range(4): g.A(f"v_xor_b32 v{V_QW+cb}, {cb << 5}, v{t2}")
    g.A("s_waitcnt lgkmcnt(0)")
    g.A(f"s_lshl_b32 s{S_T1}, s{S_BB}, 4"); g.A(f"s_add_u32 s{S_T1}, s{S_T1}, s{S_HP}"); g.A(f"s_mul_i32 s{S_T1}, s{S_T1}, 49152")
    srd(g, SRD_P, S_WS, S_WS+1, f"s{S_T1}", 49152)
    select_branch(g, [2, 3])
    srd_kv(g, "K")
    def reads(i):
        out = []; buf = i % 2; slot = i % 4; vt = V_XT + buf
        def addr():
            g.A(f"s_add_u32 s{S_T0}, s{S_S0}, {i}"); g.A(f"s_and_b32 s{S_T0}, s{S_T0}, 15")
            g.A(f"s_and_b32 s{S_T1}, s{S_T0}, 3"); g.A(f"s_lshl_b32 s{S_T1}, s{S_T1}, 6")
            g.A(f"s_lshr_b32 s{S_T0}, s{S_T0}, 2"); g.A(f"s_mul_i32 s{S_T0}, s{S_T0}, 12288"); g.A(f"s_add_u32 s{S_T0}, s{S_T0}, {XB}")
            g.A(f"v_xor_b32 v{vt}, s{S_T1}, v{V_XR}"); g.A(f"v_add_u32 v{vt}, s{S_T0}, v{vt}")
        out.append(addr)
        for rb in range(3):
            out.append(lambda rb=rb: g.lds(f"ds_read_b128 {ar(A_B1[buf]+4*rb,4)}, v{vt} offset:{rb*4096}", f"f{i}B"))
        for cb in range(4):
            for u in range(2):
                out.append(lambda cb=cb, u=u: g.lds(
                    f"ds_read_b64_tr_b16 {ar(A_A1[buf]+4*cb+2*u,2)}, v{V_WR+cb} offset:{slot*4096+u*512}", f"f{i}A{cb}"))
        return out
    r0 = reads(0); r0[0](); reads(1)[0]()
    for i in range(16):
        buf = i % 2
        g.A("s_barrier")
        if i == 0:
            stamp(g, o, 1)
            for f in r0[1:]: f()
        def mf(cb, rb, i=i, buf=buf):
            a = vr(V_ACC1 + (cb*3 + rb)*4, 4)
            g.A(f"v_mfma_f32_16x16x32_bf16 {a}, {ar(A_A1[buf]+4*cb,4)}, {ar(A_B1[buf]+4*rb,4)}, {'0' if i == 0 else a}")
        gemm_step(g, i, mf, reads(i + 1)[1:] if i + 1 < 16 else [], int(o.front), None, reads(i + 2)[0] if i + 2 < 16 else None)
    stamp(g, o, 2)
    g.A("s_barrier")
    for cb in range(4):
        for rb in range(3):
            a = V_ACC1 + (cb*3 + rb)*4
            g.A(f"v_pk_mul_f32 {vr(a,2)}, {vr(a,2)}, s[{S_C}:{S_C+1}]"); g.A(f"v_pk_mul_f32 {vr(a+2,2)}, {vr(a+2,2)}, s[{S_C}:{S_C+1}]")
            g.A(f"v_cvt_pk_bf16_f32 v{a}, v{a}, v{a+1}"); g.A(f"v_cvt_pk_bf16_f32 v{a+1}, v{a+2}, v{a+3}")
            g.lds(f"ds_write_b64 v{V_QW+cb}, {vr(a,2)} offset:{rb*4096}", "qw")

def p2_addresses(g):
    L = V_LANE; t0, t1, t2, t3 = V_TMP, V_TMP+1, V_TMP+2, V_TMP+3
    g.A(f"v_and_b32 v{t0}, 31, v{L}"); g.A(f"v_lshrrev_b32 v{t1}, 5, v{L}")
    g.A(f"v_and_b32 v{t2}, 15, v{L}"); g.A(f"v_xor_b32 v{t2}, v{t2}, v{t1}")
    g.A(f"v_lshlrev_b32 v{t2}, 4, v{t2}"); g.A(f"v_lshl_add_u32 v{t2}, v{t0}, 8, v{t2}")
    g.A(f"v_add_u32 v{t2}, {KB}, v{t2}")
    for s in range(8): g.A(f"v_xor_b32 v{V_KA+s}, {s << 5}, v{t2}")
    g.A(f"v_bfe_u32 v{t0}, v{L}, 2, 2")
    g.A(f"v_lshl_add_u32 v{t2}, v{t1}, 2, v{t0}"); g.A(f"v_lshlrev_b32 v{t2}, 8, v{t2}")
    g.A(f"v_lshl_add_u32 v{t2}, v{t0}, 6, v{t2}")
    g.A(f"v_bfe_u32 v{t3}, v{L}, 4, 1"); g.A(f"v_lshl_add_u32 v{t2}, v{t3}, 5, v{t2}")
    g.A(f"v_and_b32 v{t3}, 3, v{L}"); g.A(f"v_lshl_add_u32 v{t2}, v{t3}, 3, v{t2}")
    for blk in range(4): g.A(f"v_xor_b32 v{V_VA+blk}, {blk << 6}, v{t2}")
    g.A(f"s_lshl_b32 s{S_T0}, s{S_W}, 13"); g.A(f"s_add_u32 s{S_T0}, s{S_T0}, {QB-KB}")
    for s in range(8): g.A(f"v_add_u32 v{V_NEGM+s}, s{S_T0}, v{V_KA+s}")
    g.A(f"v_mov_b32 v{V_L}, 0")

def qk_mfma(g, s, dst, first_c):
    c = first_c if s == 0 else vr(dst, 16)
    g.A(f"v_mfma_f32_32x32x16_bf16 {vr(dst,16)}, {ar(A_K+4*s,4)}, {ar(A_Q+4*s,4)}, {c}")
def pv_mfma(g, s, blk, p):
    g.A(f"v_mfma_f32_32x32x16_bf16 {vr(V_O+16*blk,16)}, {ar(A_V+(s*4+blk)*4,4)}, {vr(p+4*s,4)}, {vr(V_O+16*blk,16)}")
def k_read(g, s, t):
    g.lds(f"ds_read_b128 {ar(A_K+4*s,4)}, v{V_KA+s} offset:{kslot(t)-KB}", "K")
def v_read(g, s, blk, u, t):
    g.lds(f"ds_read_b64_tr_b16 {ar(A_V+(s*4+blk)*4+2*u,2)}, v{V_VA+blk} offset:{vslot(t)-VB+4096*s+2048*u}", "V")

def p2_iter(g, t, do_qk=True, do_pv=True):
    o = OPT
    par = t % 2
    Scur, Snew, Pcur, Pprev = V_S[par], V_S[1-par], V_P[par], V_P[1-par]
    g.C(f"---- iteration {t}")
    gaps, left, load = schedule(do_qk, do_pv, cap_lo=int(o.cap_lo), cap_hi=int(o.cap_hi), ntemp=NTEMP)
    assert not left, left
    last_a = max(i for i, gp in enumerate(gaps) if ("A", 15) in gp)
    cmp_gap = min(last_a + 1, 15); br_gap = 15
    first = (t == 0 and o.m0init)
    e = lambda i: V_E + i % NTEMP
    def emit(it):
        k = it[0]
        if k == "E":
            if not o.x_novalu: g.A(f"v_exp_f32 v{e(it[1])}, v{Scur+it[1]}")
        elif k == "A":
            if o.x_novalu: return
            if it[1] == 1: g.A(f"v_add_f32 v{V_TS}, v{e(0)}, v{e(1)}")
            else: g.A(f"v_add_f32 v{V_TS}, v{V_TS}, v{e(it[1])}")
        elif k == "C":
            if not o.x_novalu: g.A(f"v_cvt_pk_bf16_f32 v{Pcur+it[1]}, v{e(2*it[1])}, v{e(2*it[1]+1)}")
        elif k == "K":
            if not o.x_nok: k_read(g, it[1], t+2)
        elif k == "V":
            if not o.x_nov: v_read(g, it[1]//4, it[1] % 4, it[2], t)
    for m in range(16):
        if m < 8 and do_qk and not o.x_nomfma: qk_mfma(g, m, Snew, vr(V_NEGM, 16))
        elif m >= 8 and do_pv and not o.x_nomfma: pv_mfma(g, (m-8)//4, (m-8) % 4, Pprev)
        else: g.A("s_nop 0")
        items = gaps[m]
        if ("X", "bar") in items: g.A("s_barrier")
        if m == cmp_gap:
            g.A(f"v_cmp_lt_f32 vcc, s{S_THR}, v{V_TS}")
            if first: g.A(f"v_cmp_gt_f32 s[{S_RET}:{S_RET+1}], s{S_THRLO}, v{V_TS}")
        for it in items:
            if it[0] != "X": emit(it)
        if m == br_gap:
            if first: g.A(f"s_or_b64 vcc, vcc, s[{S_RET}:{S_RET+1}]")
            g.A(f"s_cbranch_vccnz L_rare_{t}")
            g.label(f"L_back_{t}")
            g.A(f"v_add_f32 v{V_L}, v{V_L}, v{V_TS}")
        if m == 7 and do_pv: g.A(f"s_waitcnt lgkmcnt({8 if do_qk else 0})")
        if m == 15: g.A(f"s_waitcnt lgkmcnt({15 if do_pv else 0})")
    g.lg = []

def rare_stub(g, t):
    g.label(f"L_rare_{t}")
    sub = "L_rescale_first" if (t == 0 and OPT.m0init) else f"L_rescale_{t%2}"
    g.A(f"s_call_b64 s[{S_RET}:{S_RET+1}], {sub}")
    g.A(f"s_branch L_back_{t}")

def rowmax(g, S, dst, tmp):
    g.A(f"v_max3_f32 v{dst}, v{S}, v{S+1}, v{S+2}")
    for k in range(3, 15, 2): g.A(f"v_max3_f32 v{dst}, v{dst}, v{S+k}, v{S+k+1}")
    g.A(f"v_max_f32 v{dst}, v{dst}, v{S+15}")
    g.A(f"v_mov_b32 v{tmp}, v{dst}"); g.A("s_nop 1")
    g.A(f"v_permlane32_swap_b32 v{tmp}, v{dst}")
    g.A(f"v_max_f32 v{dst}, v{dst}, v{tmp}")

def rescale_sub(g, par, first=False):
    Scur, Snew, Pcur = V_S[par], V_S[1-par], V_P[par]
    d, tmp, f = V_T, V_T+1, V_F
    g.label("L_rescale_first" if first else f"L_rescale_{par}")
    g.A("s_nop 15"); g.A("s_nop 15")
    rowmax(g, Scur, d, tmp)
    if not first: g.A(f"v_max_f32 v{d}, 0, v{d}")
    for i in range(16):
        g.A(f"v_sub_f32 v{Scur+i}, v{Scur+i}, v{d}")
        g.A(f"v_sub_f32 v{Snew+i}, v{Snew+i}, v{d}")
        g.A(f"v_sub_f32 v{V_NEGM+i}, v{V_NEGM+i}, v{d}")
    if not first:
        g.A(f"v_sub_f32 v{f}, 0, v{d}"); g.A(f"v_exp_f32 v{f}, v{f}"); g.A("s_nop 0")
        g.A(f"v_mul_f32 v{V_L}, v{V_L}, v{f}")
        for i in range(64): g.A(f"v_mul_f32 v{V_O+i}, v{V_O+i}, v{f}")
    for k in range(8):
        g.A(f"v_exp_f32 v{V_E}, v{Scur+2*k}"); g.A(f"v_exp_f32 v{V_E+1}, v{Scur+2*k+1}"); g.A("s_nop 0")
        if k == 0: g.A(f"v_add_f32 v{V_TS}, v{V_E}, v{V_E+1}")
        else:
            g.A(f"v_add_f32 v{V_TS}, v{V_TS}, v{V_E}"); g.A(f"v_add_f32 v{V_TS}, v{V_TS}, v{V_E+1}")
        g.A(f"v_cvt_pk_bf16_f32 v{Pcur+k}, v{V_E}, v{V_E+1}")
    g.A("s_nop 1")
    g.A(f"s_setpc_b64 s[{S_RET}:{S_RET+1}]")

def p2_compute(g, o):
    g.C("==== P2: attention, compute waves 0..2")
    L = V_LANE; t0, t1, t2 = V_TMP, V_TMP+1, V_TMP+2
    for s in range(8): g.lds(f"ds_read_b128 {ar(A_Q+4*s,4)}, v{V_NEGM+s}", "Q")
    for s in range(8): k_read(g, s, 0)
    if o.m0init:
        for i in range(16): g.A(f"v_mov_b32 v{V_NEGM+i}, 0")
    g.wait_lg0()
    for s in range(8):
        qk_mfma(g, s, V_S[0], "0")
        k_read(g, s, 1)
    if not o.m0init:
        g.A("s_nop 15")
        rowmax(g, V_S[0], V_T, V_T+1)
        for i in range(16): g.A(f"v_sub_f32 v{V_NEGM+i}, 0, v{V_T}")
        for i in range(16): g.A(f"v_sub_f32 v{V_S[0]+i}, v{V_S[0]+i}, v{V_T}")
    else:
        g.A("s_nop 7")
    g.A("s_waitcnt lgkmcnt(0)")
    p2_iter(g, 0, do_pv=False)
    g.A(f"s_mov_b32 s{S_CNT}, 5")
    g.label("L_p2_loop")
    for t in range(1, 7): p2_iter(g, t)
    g.A(f"s_sub_u32 s{S_CNT}, s{S_CNT}, 1"); g.A(f"s_cmp_lg_u32 s{S_CNT}, 0"); g.A("s_cbranch_scc1 L_p2_loop")
    p2_iter(g, 31, do_qk=False)
    g.A("s_waitcnt lgkmcnt(0)")
    g.A("s_barrier")
    stamp(g, o, 4)
    base = V_TMP+3; AD = V_S[0]
    addr = []
    addr.append(lambda: g.A(f"s_lshl_b32 s{S_T0}, s{S_W}, 5"))
    addr.append(lambda: (g.A(f"v_and_b32 v{t0}, 31, v{L}"), g.A(f"v_add_u32 v{t0}, s{S_T0}, v{t0}")))
    addr.append(lambda: (g.A(f"v_cmp_le_u32 vcc, 48, v{t0}"), g.A(f"v_subrev_u32 v{t1}, 48, v{t0}"), g.A(f"v_mov_b32 v{t2}, 0")))
    addr.append(lambda: (g.A(f"v_cndmask_b32 v{t0}, v{t0}, v{t1}, vcc"), g.A(f"v_mov_b32 v{t1}, 256")))
    addr.append(lambda: (g.A(f"v_cndmask_b32 v{t2}, v{t2}, v{t1}, vcc"), g.A(f"v_lshl_add_u32 v{base}, v{t0}, 9, v{t2}")))
    addr.append(lambda: (g.A(f"v_and_b32 v{t0}, 15, v{t0}"), g.A(f"v_lshl_add_u32 v{base}, v{t0}, 4, v{base}")))
    addr.append(lambda: (g.A(f"v_lshrrev_b32 v{t0}, 5, v{L}"), g.A(f"v_lshl_add_u32 v{base}, v{t0}, 3, v{base}")))
    addr.append(lambda: g.A(f"v_add_u32 v{base}, {OB}, v{base}"))
    k = 0
    for s in range(2):
        for blk in range(4):
            pv_mfma(g, s, blk, V_P[1]); addr[k](); k += 1
    g.A(f"v_mov_b32 v{V_T}, v{V_L}")
    for j in range(16): g.A(f"v_xor_b32 v{AD+j}, {j << 4}, v{base}")
    g.A(f"v_permlane32_swap_b32 v{V_T}, v{V_L}")
    g.A(f"v_add_f32 v{V_L}, v{V_L}, v{V_T}")
    g.A(f"v_rcp_f32 v{V_T}, v{V_L}"); g.A("s_nop 0"); g.A(f"v_mov_b32 v{V_T+1}, v{V_T}")
    for blk in range(4):
        for i in range(4):
            a = V_O + 16*blk + 4*i
            g.A(f"v_pk_mul_f32 {vr(a,2)}, {vr(a,2)}, {vr(V_T,2)}"); g.A(f"v_pk_mul_f32 {vr(a+2,2)}, {vr(a+2,2)}, {vr(V_T,2)}")
            g.A(f"v_cvt_pk_bf16_f32 v{a}, v{a}, v{a+1}"); g.A(f"v_cvt_pk_bf16_f32 v{a+1}, v{a+2}, v{a+3}")
            g.lds(f"ds_write_b64 v{AD+4*blk+i}, {vr(a,2)}", "ow")

def p2_kloader(g, o):
    g.C("==== P2: wave 3 streams K")
    g.vm = []
    full_tile_regs(g, "K")
    g.A(f"s_mov_b32 s{S_KOFF}, {4*8192}")
    full_tile(g, o, "K", 4, "K4"); full_tile(g, o, "K", 5, "K5")
    g.A(f"s_mov_b32 s{S_CNT}, 4")
    g.label("L_kld_loop")
    for t in range(6):
        g.A("s_waitcnt vmcnt(24)"); g.A("s_barrier")
        if not o.x_nodma: full_tile(g, o, "K", t+6, f"K{t+6}")
    g.A(f"s_sub_u32 s{S_CNT}, s{S_CNT}, 1"); g.A(f"s_cmp_lg_u32 s{S_CNT}, 0"); g.A("s_cbranch_scc1 L_kld_loop")
    g.vm = []
    for t in range(26, 30): g.vm += [f"K{t}"]*8
    for t in range(24, 32):
        if t + 2 < 32: g.wait_vm(f"K{t+2}")
        g.A("s_barrier")
        if t + 6 < 32: full_tile(g, o, "K", t+6, f"K{t+6}")
    g.A("s_barrier")

def p3_compute(g, o):
    g.C("==== P3: partial output projection, two column halves of 8 k-steps")
    L = V_LANE; t0, t1, t2, t3 = 12, 13, 14, 15
    for s in range(4): select_by_wave(g, S_WOA + s, [WO_ADDR[s][w] for w in range(4)])
    g.A(f"v_lshrrev_b32 v{t0}, 4, v{L}"); g.A(f"v_and_b32 v{t1}, 15, v{L}")
    g.A(f"v_xor_b32 v{t2}, v{t0}, v{t1}"); g.A(f"v_lshlrev_b32 v{t2}, 4, v{t2}")
    g.A(f"v_lshl_add_u32 v{V_OR}, v{t1}, 9, v{t2}"); g.A(f"v_add_u32 v{V_OR}, {OB}, v{V_OR}")
    r_, cc, sw = 2, 3, 4
    g.A(f"v_bfe_u32 v{r_}, v{L}, 2, 2"); g.A(f"v_and_b32 v{cc}, 3, v{L}")
    g.A(f"v_and_b32 v{sw}, 2, v{r_}"); g.A(f"v_and_b32 v{t2}, 1, v{t0}")
    g.A(f"v_lshl_or_b32 v{sw}, v{t2}, 2, v{sw}")
    g.A(f"v_lshrrev_b32 v{t2}, 1, v{cc}"); g.A(f"v_or_b32 v{sw}, v{sw}, v{t2}"); g.A(f"v_lshlrev_b32 v{sw}, 4, v{sw}")
    g.A(f"v_and_b32 v{t2}, 1, v{cc}"); g.A(f"v_lshl_add_u32 v{sw}, v{t2}, 3, v{sw}")
    g.A(f"v_lshl_add_u32 v{t2}, v{t0}, 3, v{r_}"); g.A(f"v_lshl_add_u32 v{sw}, v{t2}, 7, v{sw}")
    for cb in range(4): g.A(f"v_xor_b32 v{6+cb}, {cb << 5}, v{sw}")
    g.wait_lg0()
    for d in range(4):
        for cb in range(4): g.A(f"v_add_u32 v{V_WOR+4*d+cb}, s{S_WOA+d}, v{6+cb}")
    V_ST = 13
    g.A(f"v_lshlrev_b32 v{V_ST}, 4, v{L}")
    g.A(f"s_mul_i32 s{S_T3}, s{S_W}, 12288")
    V_A3 = [128, 144]
    def b_addr(j):
        vt = V_OT + j % 2
        g.A(f"s_add_u32 s{S_T0}, s{S_WOROT}, {j}"); g.A(f"s_and_b32 s{S_T0}, s{S_T0}, 7"); g.A(f"s_lshl_b32 s{S_T0}, s{S_T0}, 6")
        g.A(f"v_xor_b32 v{vt}, s{S_T0}, v{V_OR}")
    def reads(n):
        out = []; buf = n % 2; d = (n // 2) % 4
        if n < 8:
            for rb in range(3):
                out.append(lambda rb=rb: g.lds(f"ds_read_b128 {ar(12*n+4*rb,4)}, v{V_OT + n % 2} offset:{rb*8192}", f"f{n}B"))
        for cb in range(4):
            for u in range(2):
                out.append(lambda cb=cb, u=u: g.lds(
                    f"ds_read_b64_tr_b16 {vr(V_A3[buf]+4*cb+2*u,2)}, v{V_WOR+4*d+cb} offset:{(n % 2)*4096+u*512}", f"f{n}A{cb}"))
        return out
    def acc(hb, cb, rb): return V_ACC3 + ((4*hb + cb)*3 + rb)*4
    def store_frag(cbp, rb):
        hb, c0 = cbp // 2, 2*(cbp % 2)
        a0, a1 = acc(hb, c0, rb), acc(hb, c0+1, rb)
        d = 2 + 4*((cbp*3+rb) % 2)
        g.A(f"v_cvt_pk_bf16_f32 v{d}, v{a0}, v{a0+1}"); g.A(f"v_cvt_pk_bf16_f32 v{d+1}, v{a0+2}, v{a0+3}")
        g.A(f"v_cvt_pk_bf16_f32 v{d+2}, v{a1}, v{a1+1}"); g.A(f"v_cvt_pk_bf16_f32 v{d+3}, v{a1+2}, v{a1+3}")
        pol = f" {o.pol_st}" if o.pol_st else ""
        g.A(f"s_add_u32 s{S_T2}, s{S_T3}, {rb*4096}")
        if o.x_nost and cbp < 2: return
        g.vmem(f"buffer_store_dwordx4 {vr(d,4)}, v{V_ST}, s[{SRD_P}:{SRD_P+3}], s{S_T2} offen offset:{cbp*1024}{pol}", "st")
    b_addr(0); b_addr(1)
    g.A("s_barrier")
    stamp(g, o, 5)
    for f in reads(0): f()
    early = [(cbp, rb) for cbp in (0, 1) for rb in range(3)]
    for n in range(16):
        hb, buf = n // 8, n % 2
        if (n % 2 == 0 or o.p3fine) and n > 0: g.A("s_barrier")
        if n in (4, 8, 12): stamp(g, o, 9 + (n - 4)//4)
        def mf(cb, rb, n=n, hb=hb, buf=buf):
            a = vr(acc(hb, cb, rb), 4)
            g.A(f"v_mfma_f32_16x16x32_bf16 {a}, {vr(V_A3[buf]+4*cb,4)}, {ar(12*(n % 8)+4*rb,4)}, {'0' if n % 8 == 0 else a}")
        after = None
        if 9 <= n < 15: after = {10: lambda k=n-9: store_frag(*early[k])}
        if n == 15: after = {9: lambda: store_frag(2, 0), 10: lambda: store_frag(2, 1), 11: lambda: store_frag(2, 2)}
        gemm_step(g, n, mf, reads(n + 1) if n + 1 < 16 else [], int(o.front), after, (lambda n=n: b_addr(n + 2)) if n + 2 < 8 else None)
    stamp(g, o, 6)
    g.A("s_nop 7")
    for rb in range(3): store_frag(3, rb)

def compute_tail(g, o):
    L = V_LANE
    g.C("==== hand-off and reduction of the 16 partial slabs of this (branch, batch)")
    R, T = S_T2, S_T3
    g.A(f"s_mul_i32 s{R}, s{S_HP}, 3"); g.A(f"s_add_u32 s{R}, s{R}, s{S_W}")
    srd(g, 4, S_WS, S_WS+1, None, 256*49152)
    srd(g, 8, S_OUT, S_OUT+1, None, 786432)
    srd(g, SRD_FL, S_WS, S_WS+1, None, FLAGB + 1024*128)
    g.A(f"s_mul_i32 s12, s{S_BB}, 786432"); g.A(f"s_lshl_b32 s{T}, s{R}, 10"); g.A(f"s_add_u32 s12, s12, s{T}")
    g.A(f"s_mul_i32 s13, s{R}, 43"); g.A("s_lshr_b32 s13, s13, 9")
    g.A("s_mul_i32 s14, s13, 12"); g.A(f"s_sub_u32 s14, s{R}, s14")
    g.A("s_lshr_b32 s15, s14, 2"); g.A("s_and_b32 s14, s14, 3")
    g.A(f"s_mul_i32 s16, s{S_B}, 98304")
    g.A(f"s_lshl_b32 s17, s{S_BR}, 10"); g.A("s_add_u32 s16, s16, s17")
    g.A("s_lshl_b32 s17, s15, 15"); g.A("s_add_u32 s16, s16, s17")
    g.A("s_lshl_b32 s17, s13, 8"); g.A("s_add_u32 s16, s16, s17")
    g.A("s_lshl_b32 s17, s14, 6"); g.A("s_add_u32 s16, s16, s17")
    g.A(f"v_lshlrev_b32 v12, 4, v{L}")
    g.A(f"v_and_b32 v13, 15, v{L}"); g.A(f"v_lshrrev_b32 v14, 4, v{L}")
    g.A("v_lshlrev_b32 v13, 11, v13"); g.A("v_lshl_add_u32 v13, v14, 3, v13")
    g.A(f"s_lshl_b32 s18, s{S_BB}, 13"); g.A(f"s_add_u32 s18, s18, {FLAGB}")
    g.A(f"s_lshl_b32 s19, s{S_HP}, 2"); g.A(f"s_add_u32 s19, s19, s{S_W}"); g.A("s_lshl_b32 s19, s19, 7"); g.A("s_add_u32 s19, s19, s18")
    g.A("s_lshl_b32 s20, s13, 7"); g.A("s_add_u32 s20, s20, s18")
    g.A(f"v_and_b32 v15, 15, v{L}"); g.A("v_lshlrev_b32 v15, 9, v15"); g.A("v_add_u32 v15, s20, v15")
    g.A("v_mov_b32 v10, s19"); g.A("v_mov_b32 v11, 1")
    g.A("s_waitcnt vmcnt(0)"); g.vm = []
    g.A("s_mov_b64 exec, 1")
    g.A(f"buffer_store_dword v11, v10, s[{SRD_FL}:{SRD_FL+3}], 0 offen sc1")
    g.A("s_mov_b64 exec, -1")
    g.A(f"s_cmp_ge_u32 s{S_W}, 3"); g.A("s_cbranch_scc1 L_red_done")
    g.A(f"s_mov_b32 s{S_CNT}, 0")
    if o.early_ld:
        g.A("s_mov_b32 s22, 0")
        g.label("L_poll")
        g.A("s_mov_b64 exec, 0xffff")
        g.A(f"buffer_load_dword v10, v15, s[{SRD_FL}:{SRD_FL+3}], 0 offen sc1")
        g.A(f"s_add_u32 s{S_CNT}, s{S_CNT}, 1")
        g.A("s_waitcnt vmcnt(0)")
        g.A("v_cmp_eq_u32 vcc, 1, v10")
        g.A("s_mov_b64 exec, -1")
        g.A(f"s_cmp_ge_u32 s{S_CNT}, 0x40000"); g.A("s_cselect_b32 s23, 0xffff, vcc_lo")
        g.A("s_andn2_b32 s23, s23, s22")
        g.A("s_cbranch_scc0 L_poll_next")
        for q in range(16):
            g.A(f"s_bitcmp1_b32 s23, {q}"); g.A(f"s_cbranch_scc0 L_skip{q}")
            g.A(f"s_add_u32 s21, s12, {q*49152}")
            g.A(f"buffer_load_dwordx4 v[{16+4*q}:{19+4*q}], v12, s[4:7], s21 offen sc1")
            g.label(f"L_skip{q}")
        g.A("s_or_b32 s22, s22, s23")
        g.A("s_cmp_eq_u32 s22, 0xffff"); g.A("s_cbranch_scc1 L_poll_done")
        g.label("L_poll_next")
        if int(o.sleep): g.A(f"s_sleep {int(o.sleep)}")
        g.A("s_branch L_poll")
        g.label("L_poll_done")
        stamp(g, o, 7)
        g.A("s_waitcnt vmcnt(0)")
    else:
        g.A("s_mov_b64 exec, 0xffff")
        g.label("L_poll")
        g.A(f"buffer_load_dword v10, v15, s[{SRD_FL}:{SRD_FL+3}], 0 offen sc1")
        g.A(f"s_add_u32 s{S_CNT}, s{S_CNT}, 1")
        g.A("s_waitcnt vmcnt(0)")
        g.A("v_cmp_eq_u32 vcc, 1, v10")
        g.A("s_cmp_eq_u64 vcc, exec"); g.A("s_cbranch_scc1 L_poll_done")
        g.A(f"s_cmp_ge_u32 s{S_CNT}, 0x40000"); g.A("s_cbranch_scc1 L_poll_done")
        if int(o.sleep): g.A(f"s_sleep {int(o.sleep)}")
        g.A("s_branch L_poll")
        g.label("L_poll_done")
        g.A("s_mov_b64 exec, -1")
        stamp(g, o, 7)
        for q in range(16):
            g.vmem(f"buffer_load_dwordx4 v[{16+4*q}:{19+4*q}], v12, s[4:7], s12 offen sc1", f"p{q}")
            if q < 15: g.A("s_add_u32 s12, s12, 49152")
    if o.dot2:
        g.A("s_mov_b32 s22, 0x00003f80"); g.A("s_mov_b32 s23, 0x3f800000")
        for j in range(8): g.A(f"v_mov_b32 v{2+j}, 0")
        for q in range(16):
            g.wait_vm(f"p{q}")
            for j in range(4):
                g.A(f"v_dot2c_f32_bf16 v{2+2*j}, s22, v{16+4*q+j}"); g.A(f"v_dot2c_f32_bf16 v{3+2*j}, s23, v{16+4*q+j}")
    else:
        for q in range(16):
            g.wait_vm(f"p{q}")
            for j in range(4):
                src = 16 + 4*q + j
                if q == 0:
                    g.A(f"v_lshlrev_b32 v{2+2*j}, 16, v{src}"); g.A(f"v_and_b32 v{3+2*j}, 0xffff0000, v{src}")
                else:
                    g.A(f"v_lshlrev_b32 v10, 16, v{src}"); g.A(f"v_and_b32 v11, 0xffff0000, v{src}")
                    g.A(f"v_add_f32 v{2+2*j}, v{2+2*j}, v10"); g.A(f"v_add_f32 v{3+2*j}, v{3+2*j}, v11")
    for j in range(4): g.A(f"v_cvt_pk_bf16_f32 v{16+j}, v{2+2*j}, v{3+2*j}")
    po = f" {o.pol_out}" if o.pol_out else ""
    g.A(f"buffer_store_dwordx2 v[16:17], v13, s[8:11], s16 offen{po}")
    g.A(f"buffer_store_dwordx2 v[18:19], v13, s[8:11], s16 offen offset:32{po}")
    g.label("L_red_done")
    if o.stamps is True:
        g.A(f"s_cmp_lg_u32 s{S_W}, 0"); g.A("s_cbranch_scc1 L_end")
        g.A("s_waitcnt vmcnt(0)")
        stamp(g, o, 8)
        dump_stamps(g, 0x1000000)
    elif o.stamps == "dbg":
        dbg_stamps(g, o)

def dbg_stamps(g, o):
    g.A("s_waitcnt vmcnt(0)")
    stamp(g, o, 8)
    g.A(f"s_cmp_lg_u32 s{S_W}, 0"); g.A("s_cbranch_scc1 L_end")
    g.A(f"s_cmp_lg_u32 s2, {int(o.dbgwg)}"); g.A("s_cbranch_scc1 L_end")
    srd(g, 40, S_DBG, S_DBG+1, None, 256)
    for k in range(12):
        g.A(f"s_sub_u32 s{S_T0}, s{S_STAMP+k}, s{S_STAMP}"); g.A(f"v_mov_b32 v{16+k}, s{S_T0}")
    for k in range(12, 16):
        g.A(f"s_sub_u32 s{S_T0}, s{S_STAMP+k}, s{S_STAMP+12}"); g.A(f"v_mov_b32 v{16+k}, s{S_T0}")
    g.A("v_mov_b32 v13, 0")
    g.A("s_mov_b64 exec, 1")
    for k in range(4): g.A(f"buffer_store_dwordx4 v[{16+4*k}:{19+4*k}], v13, s[40:43], 0 offen offset:{16*k}")
    g.A("s_waitcnt vmcnt(0)")

def compute_path(g, o):
    if int(o.prio): g.A(f"s_setprio {int(o.prio)}")
    p1_compute(g, o)
    g.A(f"s_cmp_eq_u32 s{S_W}, 3"); g.A("s_cbranch_scc1 L_wave3")
    p2_addresses(g)
    g.wait_lg0()
    g.A("s_barrier")
    stamp(g, o, 3)
    p2_compute(g, o)
    g.label("L_p3")
    g.vm = []
    p3_compute(g, o)
    compute_tail(g, o)
    g.label("L_end")
    g.A("s_endpgm")
    g.label("L_wave3")
    g.A("s_waitcnt lgkmcnt(0)"); g.lg = []
    g.A("s_barrier")
    p2_kloader(g, o)
    g.A("s_branch L_p3")

def loader_path(g, o):
    g.lg = []; g.vm = []
    loader(g, o)
    loader_tail(g, o)

def k1(g, o):
    header(g, K1)
    entry(g, o)
    if o.ld_first:
        g.A(f"s_cmp_lt_u32 s{S_W}, 4"); g.A("s_cbranch_scc1 L_compute")
        loader_path(g, o)
        g.label("L_compute")
        g.lg = []; g.vm = []
        compute_path(g, o)
    else:
        g.A(f"s_cmp_ge_u32 s{S_W}, 4"); g.A("s_cbranch_scc1 L_loader")
        compute_path(g, o)
        g.label("L_loader")
        loader_path(g, o)
    for par in range(2): rescale_sub(g, par)
    if o.m0init: rescale_sub(g, 0, first=True)
    for t in [0, 1, 2, 3, 4, 5, 6, 31]: rare_stub(g, t)
    g.label("L_code_end")

def build(o):
    g = G()
    g.A("; @launch grid=(256,1,1) block=(512,1,1) lds=163840")
    g.A('.amdgcn_target "amdgcn-amd-amdhsa--gfx950"')
    k1(g, o)
    descriptor(g, K1, 256, ACC_OFF)
    return g

if __name__ == "__main__":
    o = Opt(); OPT = o
    for a in sys.argv[2:]:
        k, v = a.split("=", 1)
        setattr(o, k, {"True": True, "False": False}.get(v, v))
    g = build(o)
    probs = check(g.L)
    for p in probs[:8]: print("HAZARD", p)
    open(sys.argv[1], "w").write(g.text())
    print("lines", len(g.L))
```

```python
import sys, math, struct
from asmlib import G, check
from sched import schedule
import alignpass

PREFIX = "concat_heads__gqa_block_cached__gqa_block_cached__near_ridge"
K1 = PREFIX + "_kernel"

VB = 0
KB = 65536
XB = 114688
QB = XB
OB = 139264
WQB = 16384
NS = 6
def kslot(i): return KB + (NS - 1 - i % NS) * 8192
def vslot(i): return VB + (i % NS) * 8192
WO_ADDR = [[49152, 57344, 114688, 122880],
           [131072, kslot(26), kslot(27), kslot(28)],
           [vslot(26), kslot(29), vslot(27), kslot(30)],
           [vslot(28), kslot(31), vslot(29), vslot(30)]]
FLAGB = 14 << 20

CSCALE = math.log2(math.e) / math.sqrt(128.0)
def fbits(x): return struct.unpack("<I", struct.pack("<f", x))[0]
THR_HI = float(2 ** 20)
THR_LO = float(2 ** -20)

S_W = 3
SRD_X, SRD_WQ, SRD_K, SRD_V, SRD_WO, SRD_P = 4, 8, 12, 16, 20, 24
S_DBG, S_OUT, S_WS = 94, 96, 52
S_HKV, S_HALF, S_B, S_BR = 54, 55, 56, 57
S_S0, S_RING = 58, 59
S_T0, S_T1, S_T2, S_T3 = 60, 61, 62, 63
S_CNT = 64
S_KOFF, S_VOFF = 65, 66
S_THR = 67
S_C = 68
S_RET = 70
S_STAMP = 72
S_WOA = 88
S_BB, S_HP = 92, 93
S_LD2K, S_FIRST, S_THRLO, S_WOROT = 28, 29, 30, 31
S_XM, S_XO = 98, 99
SRD_DBG, SRD_FL = 32, 36

ACC_OFF = 160
V_LANE = 1
V_XR, V_XT = 2, 3
V_WR = 5
V_ACC1 = 32
V_E = 2; NTEMP = 8
V_L, V_TS, V_T, V_F = 10, 11, 12, 14
V_KA, V_VA = 16, 24
V_TMP = 28
V_S = [32, 48]; V_P = [64, 72]; V_NEGM = 80; V_O = 96
A_Q, A_K, A_V = 0, 32, 64
A_A1 = [0, 16]; A_B1 = [32, 44]
V_OR, V_OT = 10, 11
V_ACC3 = 16
V_WOR = 112
A_A3 = [0, 16]; A_B3 = [32, 44]
V_STG = 32
V_XD = 2; V_WD = 4; V_KE0, V_KE1, V_VE = 8, 9, 10; V_WOD = 12; V_LT = 16
V_FA, V_FD, V_RA, V_RD = 20, 21, 22, 23
V_FT = 24

def vr(b, n=1): return f"v{b}" if n == 1 else f"v[{b}:{b+n-1}]"
def ar(b, n=1): return f"a{b}" if n == 1 else f"a[{b}:{b+n-1}]"

class Opt:
    nt_kv = "nt"; pol_w = ""; pol_x = ""; pol_st = "sc1"
    stamps = False; rot = True; sleep = 1; dbgwg = 37
    cap_lo = 24; cap_hi = 24
    al8 = False; align = 0; p3fine = True; swap_first = False; vtouch = False; pol_out = ""; wq3 = False; dot2 = True; early_ld = False; ld_first = True; code_pf = False; wo_pf = False; stage = False; front = 9; kv_pol1 = None; first_nt = False; nt_x = 0; nt_wq = 2; nt_wo = 1; pretouch = False; m0init = True; prio = 0; thr = 20
    x_now = False; x_nost = False; x_nok = False; x_nov = False; x_novalu = False; x_nomfma = False; x_nodma = False
OPT = None

def stamp(g, o, idx):
    if o.stamps:
        g.A("s_memrealtime s[100:101]"); g.A("s_waitcnt lgkmcnt(0)"); g.A(f"s_mov_b32 s{S_STAMP+idx}, s100")
        cyc = {0: 12, 3: 13, 4: 14, 8: 15}
        if idx in cyc:
            g.A("s_memtime s[100:101]"); g.A("s_waitcnt lgkmcnt(0)"); g.A(f"s_mov_b32 s{S_STAMP+cyc[idx]}, s100")
        g.lg = []

def header(g, name):
    g.A(".text"); g.A(f".globl {name}"); g.A(".p2align 8"); g.A(f".type {name},@function"); g.label(name)

def descriptor(g, name, vgpr, accum, sgpr=102):
    g.A('.section .rodata,"a"'); g.A(".p2align 6"); g.A(f".amdhsa_kernel {name}")
    g.A(f".amdhsa_next_free_vgpr {vgpr}"); g.A(f".amdhsa_next_free_sgpr {sgpr}"); g.A(f".amdhsa_accum_offset {accum}")
    g.A(".amdhsa_group_segment_fixed_size 0"); g.A(".amdhsa_kernarg_size 104"); g.A(".amdhsa_user_sgpr_count 2")
    g.A(".amdhsa_user_sgpr_kernarg_segment_ptr 1"); g.A(".amdhsa_system_sgpr_workgroup_id_x 1"); g.A(".end_amdhsa_kernel")

def srd(g, d, lo, hi, off_s, nrec):
    if off_s is None:
        g.A(f"s_mov_b32 s{d}, s{lo}"); g.A(f"s_and_b32 s{d+1}, s{hi}, 0xffff")
    else:
        g.A(f"s_add_u32 s{d}, s{lo}, {off_s}"); g.A(f"s_addc_u32 s{d+1}, s{hi}, 0"); g.A(f"s_and_b32 s{d+1}, s{d+1}, 0xffff")
    g.A(f"s_mov_b32 s{d+2}, {nrec}"); g.A(f"s_mov_b32 s{d+3}, 0x20000")

def dma(g, voff, srd_, soff, imm, pol, tag):
    off = f" offset:{imm}" if imm else ""
    pol = f" {pol}" if pol else ""
    g.vmem(f"buffer_load_dwordx4 v{voff}, s[{srd_}:{srd_+3}], {soff} offen{off}{pol} lds", tag)

_lab = [0]
def dma_group(g, o, items, tag):
    if o.kv_pol1 is None:
        for it in items: dma(g, *it, o.nt_kv, tag)
        return
    _lab[0] += 1; n = _lab[0]
    g.A(f"s_cmp_eq_u32 s{S_HALF}, 1"); g.A(f"s_cbranch_scc1 L_kvp{n}")
    vm = list(g.vm)
    for it in items: dma(g, *it, o.nt_kv, tag)
    g.A(f"s_branch L_kvq{n}")
    g.label(f"L_kvp{n}")
    g.vm = vm
    for it in items: dma(g, *it, o.kv_pol1, tag)
    g.label(f"L_kvq{n}")

def weave(main, fill):
    n = len(main); m = len(fill); k = 0
    for i, f in enumerate(main):
        f()
        tgt = (i + 1) * m // n
        while k < tgt:
            fill[k](); k += 1

def gemm_step(g, n, mfma, fill, front=9, after=None, addr=None):
    k = 0; m = len(fill)
    for i in range(12):
        cb = i // 3
        if i % 3 == 0: g.wait_lg([f"f{n}B", f"f{n}A{cb}"])
        mfma(cb, i % 3)
        tgt = min(m, -(-(i + 1) * m // front))
        while k < tgt:
            fill[k](); k += 1
        if addr and i == 9: addr()
        if after and i in after: after[i]()

def loop_label(g, name):
    if int(OPT.align): g.A(f".p2align {int(OPT.align)}")
    g.label(name)

def select_by_wave(g, dst, vals):
    g.A(f"s_mov_b32 s{dst}, {vals[0]}")
    for k in range(1, len(vals)):
        g.A(f"s_cmp_eq_u32 s{S_W}, {k}"); g.A(f"s_cselect_b32 s{dst}, {vals[k]}, s{dst}")

def entry(g, o):
    g.A("s_cmp_ge_u32 s2, 256"); g.A("s_cbranch_scc1 L_end")
    stamp(g, o, 0)
    g.A("s_load_dwordx16 s[32:47], s[0:1], 0")
    g.A("s_load_dwordx4 s[48:51], s[0:1], 64")
    g.A(f"s_load_dwordx2 s[{S_WS}:{S_WS+1}], s[0:1], 96")
    g.A(f"s_load_dwordx2 s[{S_OUT}:{S_OUT+1}], s[0:1], 80")
    g.A(f"s_load_dwordx2 s[{S_DBG}:{S_DBG+1}], s[0:1], 88")
    g.A(f"v_and_b32 v{V_LANE}, 63, v0")
    g.A("v_lshrrev_b32 v2, 6, v0")
    g.A(f"s_and_b32 s{S_HKV}, s2, 7")
    g.A(f"v_readfirstlane_b32 s{S_W}, v2")
    g.A(f"s_lshr_b32 s{S_T0}, s2, 3")
    g.A(f"s_and_b32 s{S_HALF}, s{S_T0}, 1")
    g.A(f"s_lshr_b32 s{S_B}, s{S_T0}, 1"); g.A(f"s_and_b32 s{S_B}, s{S_B}, 7")
    g.A(f"s_lshr_b32 s{S_BR}, s{S_T0}, 4")
    g.A(f"s_lshl_b32 s{S_HP}, s{S_HKV}, 1"); g.A(f"s_add_u32 s{S_HP}, s{S_HP}, s{S_HALF}")
    g.A(f"s_lshl_b32 s{S_BB}, s{S_BR}, 3"); g.A(f"s_add_u32 s{S_BB}, s{S_BB}, s{S_B}")
    if o.rot:
        g.A(f"s_lshl_b32 s{S_S0}, s{S_B}, 1"); g.A(f"s_lshl_b32 s{S_T0}, s{S_HALF}, 3")
        g.A(f"s_add_u32 s{S_S0}, s{S_S0}, s{S_T0}"); g.A(f"s_and_b32 s{S_S0}, s{S_S0}, 15")
        g.A(f"s_mov_b32 s{S_WOROT}, s{S_B}")
    else:
        g.A(f"s_mov_b32 s{S_S0}, 0"); g.A(f"s_mov_b32 s{S_WOROT}, 0")

def select_branch(g, idx):
    g.A(f"s_cmp_eq_u32 s{S_BR}, 1")
    for i in idx: g.A(f"s_cselect_b32 s{32+i}, s{42+i}, s{32+i}")

def srd_kv(g, which):
    g.A(f"s_lshl_b32 s{S_T0}, s{S_B}, 3"); g.A(f"s_add_u32 s{S_T0}, s{S_T0}, s{S_HKV}"); g.A(f"s_lshl_b32 s{S_T0}, s{S_T0}, 18")
    if "K" in which: srd(g, SRD_K, 34, 35, f"s{S_T0}", 262144)
    if "V" in which: srd(g, SRD_V, 36, 37, f"s{S_T0}", 262144)

EARLY = [("K", 0), ("K", 1), ("V", 0), ("K", 2), ("V", 1), ("K", 3)]

def full_tile_regs(g, kind):
    L = V_LANE; t0, t1 = V_FT+4, V_FT+5
    g.A(f"v_lshrrev_b32 v{t0}, 4, v{L}"); g.A(f"v_and_b32 v{t1}, 15, v{L}")
    for e in range(4 if kind == "K" else 1):
        d = V_FT + e
        if kind == "K": g.A(f"v_add_u32 v{d}, {4*e}, v{t0}")
        else: g.A(f"v_lshlrev_b32 v{d}, 2, v{t0}")
        g.A(f"v_xor_b32 v{d}, v{d}, v{t1}"); g.A(f"v_lshlrev_b32 v{d}, 4, v{d}"); g.A(f"v_lshl_add_u32 v{d}, v{t0}, 8, v{d}")

def full_tile(g, o, kind, t, tag):
    so = S_KOFF if kind == "K" else S_VOFF
    base = kslot(t) if kind == "K" else vslot(t)
    for hf in range(2):
        g.A(f"s_mov_b32 m0, {base + hf*4096}"); g.A("s_nop 0")
        dma_group(g, o, [(V_FT + (e if kind == "K" else 0), SRD_K if kind == "K" else SRD_V, f"s{so}", 1024*e) for e in range(4)], tag)
        g.A(f"s_add_u32 s{so}, s{so}, 4096")

def loader(g, o):
    g.C("================ loader waves")
    L = V_LANE; t0, t1, t2, t3 = V_LT, V_LT+1, V_LT+2, V_LT+3
    g.A(f"s_sub_u32 s{S_W}, s{S_W}, 4")
    g.A(f"v_lshrrev_b32 v{t0}, 4, v{L}"); g.A(f"v_and_b32 v{t1}, 15, v{L}")
    g.A(f"s_lshl_b32 s{S_T0}, s{S_W}, 2")
    g.A(f"v_add_u32 v{t2}, s{S_T0}, v{t0}"); g.A(f"v_xor_b32 v{t2}, v{t2}, v{t1}"); g.A(f"v_lshlrev_b32 v{t2}, 4, v{t2}")
    g.A(f"v_lshl_add_u32 v{V_XD}, v{t0}, 10, v{t2}")
    g.A(f"v_lshrrev_b32 v{t2}, 3, v{L}"); g.A(f"v_and_b32 v{t3}, 7, v{L}")
    g.A(f"s_lshl_b32 s{S_T0}, s{S_W}, 7")
    for jj in range(4):
        d = V_WD + jj
        g.A(f"v_and_b32 v{d}, 2, v{t2}")
        if jj & 1: g.A(f"v_or_b32 v{d}, 4, v{d}")
        g.A(f"v_xor_b32 v{d}, v{d}, v{t3}"); g.A(f"v_lshlrev_b32 v{d}, 4, v{d}")
        g.A(f"v_lshl_add_u32 v{d}, v{t2}, 13, v{d}")
        g.A(f"v_add_u32 v{d}, s{S_T0}, v{d}")
        if jj: g.A(f"v_add_u32 v{d}, {jj*64512}, v{d}")
    g.A(f"s_lshl_b32 s{S_RING}, s{S_W}, 14"); g.A(f"s_add_u32 s{S_RING}, s{S_RING}, {WQB}")
    def x_prep(j):
        g.A(f"s_lshr_b32 s{S_T0}, s{S_S0}, 2"); g.A(f"s_add_u32 s{S_T0}, s{S_T0}, {j}"); g.A(f"s_and_b32 s{S_T0}, s{S_T0}, 3")
        g.A(f"s_mul_i32 s{S_XM}, s{S_T0}, 12288"); g.A(f"s_lshl_b32 s{S_T1}, s{S_W}, 10"); g.A(f"s_add_u32 s{S_XM}, s{S_XM}, s{S_T1}")
        g.A(f"s_lshl_b32 s{S_XO}, s{S_T0}, 8"); g.A(f"s_lshl_b32 s{S_T1}, s{S_W}, 12"); g.A(f"s_add_u32 s{S_XO}, s{S_XO}, s{S_T1}")
    def x_issue(j):
        for i3 in range(3):
            g.A(f"s_add_u32 m0, s{S_XM}, {XB + i3*4096}")
            g.A(f"s_add_u32 s{S_T0}, s{S_XO}, {i3*16384}")
            dma(g, V_XD, SRD_X, f"s{S_T0}", 0, "nt" if (o.first_nt and j < int(o.nt_x)) else o.pol_x, f"x{j}")
    def wq_step(i):
        g.A(f"s_add_u32 s{S_T2}, s{S_S0}, {i}"); g.A(f"s_and_b32 s{S_T2}, s{S_T2}, 15")
        g.A(f"s_add_u32 m0, s{S_RING}, {(i%4)*4096}")
        g.A(f"s_lshl_b32 s{S_T2}, s{S_T2}, 18")
        pol = "nt" if (o.first_nt and i < int(o.nt_wq)) else o.pol_w
        for jj in range(4): dma(g, V_WD + jj, SRD_WQ, f"s{S_T2}", 1024*jj, pol, f"wq{i}")
    x_prep(0)
    g.A("s_waitcnt lgkmcnt(0)")
    stamp(g, o, 1)
    select_branch(g, [0, 1, 6, 7])
    g.A(f"s_mul_i32 s{S_T0}, s{S_B}, 49152"); srd(g, SRD_X, 32, 33, f"s{S_T0}", 49152)
    if not o.swap_first:
        x_issue(0)
    g.A(f"s_lshl_b32 s{S_T1}, s{S_HP}, 9")
    srd(g, SRD_WQ, 38, 39, f"s{S_T1}", 0)
    g.A(f"s_sub_u32 s{SRD_WQ+2}, 0x400000, s{S_T1}")
    if o.swap_first:
        g.A(f"s_bitcmp1_b32 s{S_W}, 0"); g.A("s_cbranch_scc1 L_sw1")
        vm = list(g.vm)
        x_issue(0); wq_step(0)
        g.A("s_branch L_sw2")
        g.label("L_sw1")
        g.vm = vm
        wq_step(0); x_issue(0)
        g.label("L_sw2")
        wq_step(1)
    else:
        wq_step(0); wq_step(1)
    x_prep(1); x_issue(1)
    wq_step(2)
    if o.wq3: wq_step(3)
    stamp(g, o, 2)
    if o.code_pf:
        g.A(f"s_cmp_lg_u32 s{S_W}, 1"); g.A("s_cbranch_scc1 L_cpf")
        g.A("s_getpc_b64 s[98:99]"); g.label("L_pc")
        g.A(f"s_sub_u32 s98, s98, L_pc-{K1}"); g.A("s_subb_u32 s99, s99, 0")
        g.A(f"s_lshr_b32 s{S_T3}, s2, 3"); g.A(f"s_lshl_b32 s{S_T3}, s{S_T3}, 10")
        g.A(f"v_lshl_add_u32 v{t2}, v{L}, 4, s{S_T3}")
        g.A(f"v_min_u32 v{t2}, L_code_end-{K1}-16, v{t2}")
        g.A(f"global_load_dwordx4 v[32:35], v{t2}, s[98:99]")
        g.label("L_cpf")
    select_branch(g, [2, 3, 4, 5, 8, 9])
    srd_kv(g, "KV")
    g.A(f"s_lshl_b32 s{S_T1}, s{S_HP}, 18")
    srd(g, SRD_WO, 40, 41, f"s{S_T1}", 262144)
    if o.vtouch:
        g.A(f"v_mov_b32 v{V_LT+2}, 0"); g.A("s_mov_b64 exec, 1")
        for k, srd_ in enumerate((SRD_K, SRD_V, SRD_WO)):
            g.A(f"s_cmp_lg_u32 s{S_W}, {k}"); g.A(f"s_cbranch_scc1 L_vt{k}")
            g.A(f"buffer_load_dword v31, v{V_LT+2}, s[{srd_}:{srd_+3}], 0 offen nt")
            g.label(f"L_vt{k}")
        g.A("s_mov_b64 exec, -1")
    if o.pretouch:
        g.A(f"s_lshl_b32 s{S_T1}, s{S_BB}, 4"); g.A(f"s_add_u32 s{S_T1}, s{S_T1}, s{S_HP}"); g.A(f"s_mul_i32 s{S_T1}, s{S_T1}, 49152")
        g.A(f"s_add_u32 s44, s{S_WS}, s{S_T1}"); g.A(f"s_addc_u32 s45, s{S_WS+1}, 0")
        for r in (SRD_K, SRD_V, SRD_WO, 44, S_OUT, S_DBG):
            g.A(f"s_load_dword s46, s[{r}:{r+1}], 0")
        g.A(f"s_add_u32 s44, s{S_WS}, {FLAGB}"); g.A(f"s_addc_u32 s45, s{S_WS+1}, 0")
        g.A("s_load_dword s46, s[44:45], 0")
    g.A(f"s_lshl_b32 s{S_LD2K}, s{S_W}, 11")
    g.A(f"v_lshlrev_b32 v{t2}, 8, v{t0}"); g.A(f"v_add_u32 v{t2}, s{S_LD2K}, v{t2}")
    g.A(f"s_lshl_b32 s{S_T1}, s{S_W}, 3"); g.A(f"s_and_b32 s{S_T1}, s{S_T1}, 15")
    for e in range(2):
        d = V_KE0 + e
        g.A(f"v_add_u32 v{d}, s{S_T1}, v{t0}")
        if e: g.A(f"v_add_u32 v{d}, 4, v{d}")
        g.A(f"v_xor_b32 v{d}, v{d}, v{t1}"); g.A(f"v_lshl_add_u32 v{d}, v{d}, 4, v{t2}")
    g.A(f"v_lshlrev_b32 v{V_VE}, 2, v{t0}"); g.A(f"v_xor_b32 v{V_VE}, v{V_VE}, v{t1}")
    g.A(f"v_lshl_add_u32 v{V_VE}, v{V_VE}, 4, v{t2}")
    g.A(f"v_lshrrev_b32 v{t2}, 3, v{L}"); g.A(f"v_and_b32 v{t3}, 7, v{L}")
    g.A(f"s_lshl_b32 s{S_T0}, s{S_W}, 8")
    for jj in range(4):
        d = V_WOD + jj
        g.A(f"v_and_b32 v{d}, 2, v{t2}")
        if jj & 1: g.A(f"v_or_b32 v{d}, 4, v{d}")
        g.A(f"v_xor_b32 v{d}, v{d}, v{t3}"); g.A(f"v_lshlrev_b32 v{d}, 4, v{d}")
        g.A(f"v_lshl_add_u32 v{d}, v{t2}, 10, v{d}")
        g.A(f"v_add_u32 v{d}, s{S_T0}, v{d}")
        if jj: g.A(f"v_add_u32 v{d}, {jj*7168}, v{d}")
    for s in range(4): select_by_wave(g, S_WOA + s, [WO_ADDR[s][w] for w in range(4)])
    g.A(f"s_mov_b32 s{S_KOFF}, 0"); g.A(f"s_mov_b32 s{S_VOFF}, 0")
    if o.pretouch: g.A("s_waitcnt lgkmcnt(0)")
    def kv(kind, t, tag):
        so = S_KOFF if kind == "K" else S_VOFF
        g.A(f"s_add_u32 m0, s{S_LD2K}, {kslot(t) if kind == 'K' else vslot(t)}")
        g.A("s_nop 0")
        if kind == "K": dma_group(g, o, [(V_KE0, SRD_K, f"s{so}", 0), (V_KE1, SRD_K, f"s{so}", 1024)], tag)
        else: dma_group(g, o, [(V_VE, SRD_V, f"s{so}", 0), (V_VE, SRD_V, f"s{so}", 1024)], tag)
        g.A(f"s_add_u32 s{so}, s{so}, 8192")
    def wo_soff(n):
        g.A(f"s_add_u32 s{S_T2}, s{S_WOROT}, {n % 8}"); g.A(f"s_and_b32 s{S_T2}, s{S_T2}, 7"); g.A(f"s_lshl_b32 s{S_T2}, s{S_T2}, 15")
        if n >= 8: g.A(f"s_add_u32 s{S_T2}, s{S_T2}, 128")
    def wo_step(d):
        for n in (2*d, 2*d+1):
            g.A(f"s_add_u32 m0, s{S_WOA + d % 4}, {(n % 2)*4096}")
            wo_soff(n)
            pol = "nt" if (o.first_nt and (n if o.wo_pf else n % 8) < int(o.nt_wo)) else o.pol_w
            for jj in range(4): dma(g, V_WOD + jj, SRD_WO, f"s{S_T2}", 1024*jj, pol, f"wo{d}")
    def wo_piece(n):
        g.A(f"s_add_u32 m0, s{S_WOA + ((n - 8) // 2)}, {(n % 2)*4096}")
        wo_soff(n)
        for jj in range(4): dma(g, V_WOD + jj, SRD_WO, f"s{S_T2}", 1024*jj, o.pol_w, f"wp{n}")
    def wo_regs(k):
        for n in (8 + 2*k, 9 + 2*k):
            wo_soff(n)
            pol = " nt" if (o.first_nt and n - 8 < int(o.nt_wo)) else (f" {o.pol_w}" if o.pol_w else "")
            for jj in range(4):
                r = V_STG + ((n - 8)*4 + jj)*4
                off = f" offset:{1024*jj}" if jj else ""
                g.vmem(f"buffer_load_dwordx4 {vr(r,4)}, v{V_WOD+jj}, s[{SRD_WO}:{SRD_WO+3}], s{S_T2} offen{off}{pol}", f"wr{k}")
    def wo_write(d):
        g.wait_vm(f"wr{d-4}")
        g.A(f"v_add_u32 v{V_LT+2}, s{S_WOA + d - 4}, v{V_LT+3}")
        for k in range(8):
            if o.x_now: break
            r = V_STG + ((d-4)*8 + k)*4
            g.lds(f"ds_write_b128 v{V_LT+2}, {vr(r,4)} offset:{k*1024}", "ww")
    need_x = {0: "x0", 1: "x1", 5: "x2", 9: "x3"}
    for i in range(16):
        tags = []
        if i == 0: tags += ["wq0", "wq1"]
        elif i + 1 < 16: tags.append(f"wq{i+1}")
        if i in need_x: tags.append(need_x[i])
        if tags: g.wait_vm(tags)
        if i == 0: stamp(g, o, 3)
        g.A("s_barrier")
        if i + 3 < 16:
            if not (o.wq3 and i == 0): wq_step(i + 3)
        else:
            for kind, t in EARLY[(i-13)*2:(i-13)*2+2]: kv(kind, t, f"{kind}{t}")
        if i == 0: x_prep(2); x_issue(2)
        if i == 3: x_prep(3); x_issue(3)
    g.A("s_barrier")
    g.wait_vm(["K0", "K1"]); g.A("s_barrier")
    stamp(g, o, 4)
    def tail_p3(first):
        g.A("s_barrier")
        wo_step(3)
        if o.stage: wo_regs(2)
        g.A(f"v_lshlrev_b32 v{V_LT+3}, 4, v{V_LANE}")
        g.wait_vm(["wo0", "wo1"]); g.A("s_barrier")
        if o.stage: wo_regs(3)
        if o.p3fine:
            for m in range(1, 16):
                need = m + 1
                if need < 8:
                    if need % 2 == 0: g.wait_vm(f"wo{need // 2}")
                elif need < 16: g.wait_vm(f"wp{need}")
                if m == 15 and first: ready_check()
                g.A("s_barrier")
                if m + 7 < 16: wo_piece(m + 7)
            g.A("s_branch L_ld_end")
            return
        for d in range(1, 8):
            if d + 1 < 4 or (not o.stage and d + 1 < 8): g.wait_vm(f"wo{d+1}")
            elif o.stage: g.wait_lg0()
            if d == 7 and first: ready_check()
            g.A("s_barrier")
            if d + 3 < 8:
                if o.stage: wo_write(d + 3)
                else: wo_step(d + 3)
        g.A("s_branch L_ld_end")
    def ready_check():
        g.A(f"s_cmp_lg_u32 s{S_W}, 0"); g.A("s_cbranch_scc1 L_rdy_done")
        g.A(f"s_mov_b32 s{S_CNT}, 0")
        g.label("L_rdy")
        g.A(f"v_readfirstlane_b32 s{S_T1}, v{V_RD}")
        g.A(f"s_add_u32 s{S_CNT}, s{S_CNT}, 1")
        g.A(f"s_cmp_lg_u32 s{S_T1}, 0"); g.A("s_cbranch_scc1 L_rdy_done")
        g.A(f"s_cmp_ge_u32 s{S_CNT}, 0x40000"); g.A("s_cbranch_scc1 L_rdy_done")
        g.A(f"buffer_load_dword v{V_RD}, v{V_RA}, s[{SRD_DBG}:{SRD_DBG+3}], 0 offen sc1")
        g.A("s_waitcnt vmcnt(0)")
        g.A("s_branch L_rdy")
        g.label("L_rdy_done")
    def idle(n, lab):
        g.A(f"s_mov_b32 s{S_CNT}, {n}")
        g.label(lab)
        g.A("s_barrier")
        g.A(f"s_sub_u32 s{S_CNT}, s{S_CNT}, 1"); g.A(f"s_cmp_lg_u32 s{S_CNT}, 0"); g.A(f"s_cbranch_scc1 {lab}")
    def drain(vtags):
        wo_step(0)
        if o.wo_pf:
            g.A(f"v_and_b32 v{V_LT+2}, 31, v{V_LANE}"); g.A(f"v_lshlrev_b32 v{V_LT+2}, 10, v{V_LT+2}")
            g.A(f"s_lshl_b32 s{S_T0}, s{S_W}, 8"); g.A(f"s_add_u32 s{S_T0}, s{S_T0}, 128")
            g.A(f"v_add_u32 v{V_LT+2}, s{S_T0}, v{V_LT+2}")
            g.A(f"s_lshl_b32 s{S_T2}, s{S_WOROT}, 15")
            g.vmem(f"buffer_load_dword v{V_LT+1}, v{V_LT+2}, s[{SRD_WO}:{SRD_WO+3}], s{S_T2} offen nt", "pf")
        for t in range(28, 32):
            if vtags: g.wait_vm(f"V{t}")
            g.A("s_barrier")
            if t == 28: wo_step(1)
            if t == 29 and o.stage: wo_regs(0)
            if t == 30: wo_step(2)
            if t == 31 and o.stage: wo_regs(1)
        tail_p3(not vtags)
    g.A(f"s_cmp_eq_u32 s{S_W}, 3"); g.A("s_cbranch_scc1 L_vloader")
    vm_early = list(g.vm)
    g.wait_vm(["V0", "K2"]); g.A("s_barrier")
    g.wait_vm(["V1", "K3"]); g.A("s_barrier")
    srd(g, SRD_DBG, S_DBG, S_DBG+1, None, 256)
    srd(g, SRD_FL, S_WS, S_WS+1, None, FLAGB + 1024*128)
    g.A(f"s_lshl_b32 s{S_T0}, s{S_BB}, 13"); g.A(f"s_add_u32 s{S_T0}, s{S_T0}, {FLAGB}")
    g.A(f"v_lshlrev_b32 v{V_FA}, 7, v{V_LANE}"); g.A(f"v_add_u32 v{V_FA}, s{S_T0}, v{V_FA}")
    g.A(f"s_lshl_b32 s{S_T0}, s{S_BB}, 2"); g.A(f"v_mov_b32 v{V_RA}, s{S_T0}")
    g.A(f"s_or_b32 s{S_FIRST}, s{S_W}, s{S_HP}")
    g.A(f"s_cmp_lg_u32 s{S_FIRST}, 0"); g.A("s_cbranch_scc1 L_fl1")
    g.A(f"v_mov_b32 v{V_FD}, 0")
    g.A(f"buffer_store_dword v{V_FD}, v{V_FA}, s[{SRD_FL}:{SRD_FL+3}], 0 offen sc1")
    g.label("L_fl1")
    idle(8, "L_ld_idle1")
    g.A(f"s_cmp_lg_u32 s{S_FIRST}, 0"); g.A("s_cbranch_scc1 L_fl2")
    g.A("s_waitcnt vmcnt(0)")
    g.A(f"v_mov_b32 v{V_FD}, 1")
    g.A("s_mov_b64 exec, 1")
    g.A(f"buffer_store_dword v{V_FD}, v{V_RA}, s[{SRD_DBG}:{SRD_DBG+3}], 0 offen sc1")
    g.A("s_mov_b64 exec, -1")
    g.label("L_fl2")
    idle(10, "L_ld_idle2")
    g.A(f"s_cmp_lg_u32 s{S_W}, 0"); g.A("s_cbranch_scc1 L_fl3")
    g.A(f"buffer_load_dword v{V_RD}, v{V_RA}, s[{SRD_DBG}:{SRD_DBG+3}], 0 offen sc1")
    g.label("L_fl3")
    idle(8, "L_ld_idle3")
    g.A("s_waitcnt vmcnt(0)"); g.vm = []
    drain(False)
    g.label("L_vloader")
    g.vm = vm_early
    full_tile_regs(g, "V")
    g.A(f"s_mov_b32 s{S_VOFF}, {2*8192}")
    full_tile(g, o, "V", 2, "V2"); full_tile(g, o, "V", 3, "V3")
    g.wait_vm(["V0", "K2"])
    g.A(f"s_mov_b32 s{S_CNT}, 4")
    loop_label(g, "L_vld_loop")
    for t in range(6):
        g.A("s_waitcnt vmcnt(24)"); g.A("s_barrier")
        if not o.x_nodma: full_tile(g, o, "V", t+4, f"V{t+4}")
    g.A(f"s_sub_u32 s{S_CNT}, s{S_CNT}, 1"); g.A(f"s_cmp_lg_u32 s{S_CNT}, 0"); g.A("s_cbranch_scc1 L_vld_loop")
    g.vm = []
    for t in range(24, 28): g.vm += [f"V{t}"]*8
    for t in range(24, 28):
        g.wait_vm(f"V{t}"); g.A("s_barrier"); full_tile(g, o, "V", t+4, f"V{t+4}")
    drain(True)

def loader_tail(g, o):
    g.label("L_ld_end")
    if o.stamps is True:
        stamp(g, o, 7)
        g.A(f"s_cmp_lg_u32 s{S_W}, 0"); g.A("s_cbranch_scc1 L_ld_end2")
        dump_stamps(g, 0x1010000)
        g.label("L_ld_end2")
    g.A("s_endpgm")

def dump_stamps(g, base):
    g.A(f"s_add_u32 s40, s{S_WS}, {base}"); g.A(f"s_addc_u32 s41, s{S_WS+1}, 0"); g.A("s_and_b32 s41, s41, 0xffff")
    g.A("s_mov_b32 s42, 0x10000"); g.A("s_mov_b32 s43, 0x20000")
    for k in range(16): g.A(f"v_mov_b32 v{16+k}, s{S_STAMP+k}")
    g.A(f"s_lshl_b32 s{S_T0}, s2, 6"); g.A(f"v_mov_b32 v13, s{S_T0}")
    g.A("s_mov_b64 exec, 1")
    for k in range(4): g.A(f"buffer_store_dwordx4 v[{16+4*k}:{19+4*k}], v13, s[40:43], 0 offen offset:{16*k}")
    g.A("s_waitcnt vmcnt(0)")
    g.A("s_mov_b64 exec, -1")

def p1_compute(g, o):
    g.C("==== P1: Q projection")
    L = V_LANE; t0, t1, t2 = V_TMP, V_TMP+1, V_TMP+2
    g.A(f"s_mov_b32 s{S_THR}, {hex(fbits(float(2.0 ** float(o.thr))))}"); g.A(f"s_mov_b32 s{S_THRLO}, {hex(fbits(THR_LO))}")
    g.A(f"s_mov_b32 s{S_C}, {hex(fbits(CSCALE))}"); g.A(f"s_mov_b32 s{S_C+1}, {hex(fbits(CSCALE))}")
    for i in range(64): g.A(f"v_mov_b32 v{V_O+i}, 0")
    g.A(f"v_lshrrev_b32 v{t0}, 4, v{L}"); g.A(f"v_and_b32 v{t1}, 15, v{L}")
    g.A(f"v_xor_b32 v{t2}, v{t0}, v{t1}"); g.A(f"v_lshlrev_b32 v{t2}, 4, v{t2}")
    g.A(f"v_lshl_add_u32 v{V_XR}, v{t1}, 8, v{t2}")
    g.A(f"s_lshl_b32 s{S_RING}, s{S_W}, 14"); g.A(f"s_add_u32 s{S_RING}, s{S_RING}, {WQB}")
    r_, cc, sw = 12, 13, 14
    g.A(f"v_bfe_u32 v{r_}, v{L}, 2, 2"); g.A(f"v_and_b32 v{cc}, 3, v{L}")
    g.A(f"v_and_b32 v{sw}, 2, v{r_}"); g.A(f"v_and_b32 v{t2}, 1, v{t0}")
    g.A(f"v_lshl_or_b32 v{sw}, v{t2}, 2, v{sw}")
    g.A(f"v_lshrrev_b32 v{t2}, 1, v{cc}"); g.A(f"v_or_b32 v{sw}, v{sw}, v{t2}"); g.A(f"v_lshlrev_b32 v{sw}, 4, v{sw}")
    g.A(f"v_and_b32 v{t2}, 1, v{cc}"); g.A(f"v_lshl_add_u32 v{sw}, v{t2}, 3, v{sw}")
    g.A(f"v_lshl_add_u32 v{t2}, v{t0}, 3, v{r_}"); g.A(f"v_lshl_add_u32 v{sw}, v{t2}, 7, v{sw}")
    g.A(f"v_add_u32 v{sw}, s{S_RING}, v{sw}")
    for cb in range(4): g.A(f"v_xor_b32 v{V_WR+cb}, {cb << 5}, v{sw}")
    V_QW = 16
    g.A(f"s_and_b32 s{S_T0}, s{S_W}, 1"); g.A(f"s_lshl_b32 s{S_T0}, s{S_T0}, 3")
    g.A(f"v_lshrrev_b32 v{t2}, 1, v{t0}")
    g.A(f"v_xor_b32 v{t2}, v{t2}, v{t1}"); g.A(f"v_xor_b32 v{t2}, s{S_T0}, v{t2}"); g.A(f"v_lshlrev_b32 v{t2}, 4, v{t2}")
    g.A(f"v_and_b32 v{t0}, 1, v{t0}"); g.A(f"v_lshl_add_u32 v{t2}, v{t0}, 3, v{t2}")
    g.A(f"s_lshr_b32 s{S_T0}, s{S_W}, 1"); g.A(f"s_mul_i32 s{S_T0}, s{S_T0}, {48*256}"); g.A(f"s_add_u32 s{S_T0}, s{S_T0}, {QB}")
    g.A(f"v_lshl_add_u32 v{t2}, v{t1}, 8, v{t2}"); g.A(f"v_add_u32 v{t2}, s{S_T0}, v{t2}")
    for cb in range(4): g.A(f"v_xor_b32 v{V_QW+cb}, {cb << 5}, v{t2}")
    g.A("s_waitcnt lgkmcnt(0)")
    g.A(f"s_lshl_b32 s{S_T1}, s{S_BB}, 4"); g.A(f"s_add_u32 s{S_T1}, s{S_T1}, s{S_HP}"); g.A(f"s_mul_i32 s{S_T1}, s{S_T1}, 49152")
    srd(g, SRD_P, S_WS, S_WS+1, f"s{S_T1}", 49152)
    select_branch(g, [2, 3])
    srd_kv(g, "K")
    def reads(i):
        out = []; buf = i % 2; slot = i % 4; vt = V_XT + buf
        def addr():
            g.A(f"s_add_u32 s{S_T0}, s{S_S0}, {i}"); g.A(f"s_and_b32 s{S_T0}, s{S_T0}, 15")
            g.A(f"s_and_b32 s{S_T1}, s{S_T0}, 3"); g.A(f"s_lshl_b32 s{S_T1}, s{S_T1}, 6")
            g.A(f"s_lshr_b32 s{S_T0}, s{S_T0}, 2"); g.A(f"s_mul_i32 s{S_T0}, s{S_T0}, 12288"); g.A(f"s_add_u32 s{S_T0}, s{S_T0}, {XB}")
            g.A(f"v_xor_b32 v{vt}, s{S_T1}, v{V_XR}"); g.A(f"v_add_u32 v{vt}, s{S_T0}, v{vt}")
        out.append(addr)
        for rb in range(3):
            out.append(lambda rb=rb: g.lds(f"ds_read_b128 {ar(A_B1[buf]+4*rb,4)}, v{vt} offset:{rb*4096}", f"f{i}B"))
        for cb in range(4):
            for u in range(2):
                out.append(lambda cb=cb, u=u: g.lds(
                    f"ds_read_b64_tr_b16 {ar(A_A1[buf]+4*cb+2*u,2)}, v{V_WR+cb} offset:{slot*4096+u*512}", f"f{i}A{cb}"))
        return out
    r0 = reads(0); r0[0](); reads(1)[0]()
    for i in range(16):
        buf = i % 2
        g.A("s_barrier")
        if i == 0:
            stamp(g, o, 1)
            for f in r0[1:]: f()
        def mf(cb, rb, i=i, buf=buf):
            a = vr(V_ACC1 + (cb*3 + rb)*4, 4)
            g.A(f"v_mfma_f32_16x16x32_bf16 {a}, {ar(A_A1[buf]+4*cb,4)}, {ar(A_B1[buf]+4*rb,4)}, {'0' if i == 0 else a}")
        gemm_step(g, i, mf, reads(i + 1)[1:] if i + 1 < 16 else [], int(o.front), None, reads(i + 2)[0] if i + 2 < 16 else None)
    stamp(g, o, 2)
    g.A("s_barrier")
    for cb in range(4):
        for rb in range(3):
            a = V_ACC1 + (cb*3 + rb)*4
            g.A(f"v_pk_mul_f32 {vr(a,2)}, {vr(a,2)}, s[{S_C}:{S_C+1}]"); g.A(f"v_pk_mul_f32 {vr(a+2,2)}, {vr(a+2,2)}, s[{S_C}:{S_C+1}]")
            g.A(f"v_cvt_pk_bf16_f32 v{a}, v{a}, v{a+1}"); g.A(f"v_cvt_pk_bf16_f32 v{a+1}, v{a+2}, v{a+3}")
            g.lds(f"ds_write_b64 v{V_QW+cb}, {vr(a,2)} offset:{rb*4096}", "qw")

def p2_addresses(g):
    L = V_LANE; t0, t1, t2, t3 = V_TMP, V_TMP+1, V_TMP+2, V_TMP+3
    g.A(f"v_and_b32 v{t0}, 31, v{L}"); g.A(f"v_lshrrev_b32 v{t1}, 5, v{L}")
    g.A(f"v_and_b32 v{t2}, 15, v{L}"); g.A(f"v_xor_b32 v{t2}, v{t2}, v{t1}")
    g.A(f"v_lshlrev_b32 v{t2}, 4, v{t2}"); g.A(f"v_lshl_add_u32 v{t2}, v{t0}, 8, v{t2}")
    g.A(f"v_add_u32 v{t2}, {KB}, v{t2}")
    for s in range(8): g.A(f"v_xor_b32 v{V_KA+s}, {s << 5}, v{t2}")
    g.A(f"v_bfe_u32 v{t0}, v{L}, 2, 2")
    g.A(f"v_lshl_add_u32 v{t2}, v{t1}, 2, v{t0}"); g.A(f"v_lshlrev_b32 v{t2}, 8, v{t2}")
    g.A(f"v_lshl_add_u32 v{t2}, v{t0}, 6, v{t2}")
    g.A(f"v_bfe_u32 v{t3}, v{L}, 4, 1"); g.A(f"v_lshl_add_u32 v{t2}, v{t3}, 5, v{t2}")
    g.A(f"v_and_b32 v{t3}, 3, v{L}"); g.A(f"v_lshl_add_u32 v{t2}, v{t3}, 3, v{t2}")
    for blk in range(4): g.A(f"v_xor_b32 v{V_VA+blk}, {blk << 6}, v{t2}")
    g.A(f"s_lshl_b32 s{S_T0}, s{S_W}, 13"); g.A(f"s_add_u32 s{S_T0}, s{S_T0}, {QB-KB}")
    for s in range(8): g.A(f"v_add_u32 v{V_NEGM+s}, s{S_T0}, v{V_KA+s}")
    g.A(f"v_mov_b32 v{V_L}, 0")

def qk_mfma(g, s, dst, first_c):
    c = first_c if s == 0 else vr(dst, 16)
    g.A(f"v_mfma_f32_32x32x16_bf16 {vr(dst,16)}, {ar(A_K+4*s,4)}, {ar(A_Q+4*s,4)}, {c}")
def pv_mfma(g, s, blk, p):
    g.A(f"v_mfma_f32_32x32x16_bf16 {vr(V_O+16*blk,16)}, {ar(A_V+(s*4+blk)*4,4)}, {vr(p+4*s,4)}, {vr(V_O+16*blk,16)}")
def k_read(g, s, t):
    g.lds(f"ds_read_b128 {ar(A_K+4*s,4)}, v{V_KA+s} offset:{kslot(t)-KB}", "K")
def v_read(g, s, blk, u, t):
    g.lds(f"ds_read_b64_tr_b16 {ar(A_V+(s*4+blk)*4+2*u,2)}, v{V_VA+blk} offset:{vslot(t)-VB+4096*s+2048*u}", "V")

def p2_iter(g, t, do_qk=True, do_pv=True):
    o = OPT
    par = t % 2
    Scur, Snew, Pcur, Pprev = V_S[par], V_S[1-par], V_P[par], V_P[1-par]
    g.C(f"---- iteration {t}")
    gaps, left, load = schedule(do_qk, do_pv, cap_lo=int(o.cap_lo), cap_hi=int(o.cap_hi), ntemp=NTEMP)
    assert not left, left
    last_a = max(i for i, gp in enumerate(gaps) if ("A", 15) in gp)
    cmp_gap = min(last_a + 1, 15); br_gap = 15
    first = (t == 0 and o.m0init)
    e = lambda i: V_E + i % NTEMP
    def emit(it):
        k = it[0]
        if k == "E":
            if not o.x_novalu: g.A(f"v_exp_f32 v{e(it[1])}, v{Scur+it[1]}")
        elif k == "A":
            if o.x_novalu: return
            if it[1] == 1: g.A(f"v_add_f32 v{V_TS}, v{e(0)}, v{e(1)}")
            else: g.A(f"v_add_f32 v{V_TS}, v{V_TS}, v{e(it[1])}")
        elif k == "C":
            if not o.x_novalu: g.A(f"v_cvt_pk_bf16_f32 v{Pcur+it[1]}, v{e(2*it[1])}, v{e(2*it[1]+1)}")
        elif k == "K":
            if not o.x_nok: k_read(g, it[1], t+2)
        elif k == "V":
            if not o.x_nov: v_read(g, it[1]//4, it[1] % 4, it[2], t)
    for m in range(16):
        if m < 8 and do_qk and not o.x_nomfma: qk_mfma(g, m, Snew, vr(V_NEGM, 16))
        elif m >= 8 and do_pv and not o.x_nomfma: pv_mfma(g, (m-8)//4, (m-8) % 4, Pprev)
        else: g.A("s_nop 0")
        items = gaps[m]
        if ("X", "bar") in items: g.A("s_barrier")
        if m == cmp_gap:
            g.A(f"v_cmp_lt_f32 vcc, s{S_THR}, v{V_TS}")
            if first: g.A(f"v_cmp_gt_f32 s[{S_RET}:{S_RET+1}], s{S_THRLO}, v{V_TS}")
        for it in items:
            if it[0] != "X": emit(it)
        if m == br_gap:
            if first: g.A(f"s_or_b64 vcc, vcc, s[{S_RET}:{S_RET+1}]")
            g.A(f"s_cbranch_vccnz L_rare_{t}")
            g.label(f"L_back_{t}")
            g.A(f"v_add_f32 v{V_L}, v{V_L}, v{V_TS}")
        if m == 7 and do_pv: g.A(f"s_waitcnt lgkmcnt({8 if do_qk else 0})")
        if m == 15: g.A(f"s_waitcnt lgkmcnt({15 if do_pv else 0})")
    g.lg = []

def rare_stub(g, t):
    g.label(f"L_rare_{t}")
    sub = "L_rescale_first" if (t == 0 and OPT.m0init) else f"L_rescale_{t%2}"
    g.A(f"s_call_b64 s[{S_RET}:{S_RET+1}], {sub}")
    g.A(f"s_branch L_back_{t}")

def rowmax(g, S, dst, tmp):
    g.A(f"v_max3_f32 v{dst}, v{S}, v{S+1}, v{S+2}")
    for k in range(3, 15, 2): g.A(f"v_max3_f32 v{dst}, v{dst}, v{S+k}, v{S+k+1}")
    g.A(f"v_max_f32 v{dst}, v{dst}, v{S+15}")
    g.A(f"v_mov_b32 v{tmp}, v{dst}"); g.A("s_nop 1")
    g.A(f"v_permlane32_swap_b32 v{tmp}, v{dst}")
    g.A(f"v_max_f32 v{dst}, v{dst}, v{tmp}")

def rescale_sub(g, par, first=False):
    Scur, Snew, Pcur = V_S[par], V_S[1-par], V_P[par]
    d, tmp, f = V_T, V_T+1, V_F
    g.label("L_rescale_first" if first else f"L_rescale_{par}")
    g.A("s_nop 15"); g.A("s_nop 15")
    rowmax(g, Scur, d, tmp)
    if not first: g.A(f"v_max_f32 v{d}, 0, v{d}")
    for i in range(16):
        g.A(f"v_sub_f32 v{Scur+i}, v{Scur+i}, v{d}")
        g.A(f"v_sub_f32 v{Snew+i}, v{Snew+i}, v{d}")
        g.A(f"v_sub_f32 v{V_NEGM+i}, v{V_NEGM+i}, v{d}")
    if not first:
        g.A(f"v_sub_f32 v{f}, 0, v{d}"); g.A(f"v_exp_f32 v{f}, v{f}"); g.A("s_nop 0")
        g.A(f"v_mul_f32 v{V_L}, v{V_L}, v{f}")
        for i in range(64): g.A(f"v_mul_f32 v{V_O+i}, v{V_O+i}, v{f}")
    for k in range(8):
        g.A(f"v_exp_f32 v{V_E}, v{Scur+2*k}"); g.A(f"v_exp_f32 v{V_E+1}, v{Scur+2*k+1}"); g.A("s_nop 0")
        if k == 0: g.A(f"v_add_f32 v{V_TS}, v{V_E}, v{V_E+1}")
        else:
            g.A(f"v_add_f32 v{V_TS}, v{V_TS}, v{V_E}"); g.A(f"v_add_f32 v{V_TS}, v{V_TS}, v{V_E+1}")
        g.A(f"v_cvt_pk_bf16_f32 v{Pcur+k}, v{V_E}, v{V_E+1}")
    g.A("s_nop 1")
    g.A(f"s_setpc_b64 s[{S_RET}:{S_RET+1}]")

def p2_compute(g, o):
    g.C("==== P2: attention, compute waves 0..2")
    L = V_LANE; t0, t1, t2 = V_TMP, V_TMP+1, V_TMP+2
    for s in range(8): g.lds(f"ds_read_b128 {ar(A_Q+4*s,4)}, v{V_NEGM+s}", "Q")
    for s in range(8): k_read(g, s, 0)
    if o.m0init:
        for i in range(16): g.A(f"v_mov_b32 v{V_NEGM+i}, 0")
    g.wait_lg0()
    for s in range(8):
        qk_mfma(g, s, V_S[0], "0")
        k_read(g, s, 1)
    if not o.m0init:
        g.A("s_nop 15")
        rowmax(g, V_S[0], V_T, V_T+1)
        for i in range(16): g.A(f"v_sub_f32 v{V_NEGM+i}, 0, v{V_T}")
        for i in range(16): g.A(f"v_sub_f32 v{V_S[0]+i}, v{V_S[0]+i}, v{V_T}")
    else:
        g.A("s_nop 7")
    g.A("s_waitcnt lgkmcnt(0)")
    p2_iter(g, 0, do_pv=False)
    g.A(f"s_mov_b32 s{S_CNT}, 5")
    loop_label(g, "L_p2_loop")
    for t in range(1, 7): p2_iter(g, t)
    g.A(f"s_sub_u32 s{S_CNT}, s{S_CNT}, 1"); g.A(f"s_cmp_lg_u32 s{S_CNT}, 0"); g.A("s_cbranch_scc1 L_p2_loop")
    p2_iter(g, 31, do_qk=False)
    g.A("s_waitcnt lgkmcnt(0)")
    g.A("s_barrier")
    stamp(g, o, 4)
    base = V_TMP+3; AD = V_S[0]
    addr = []
    addr.append(lambda: g.A(f"s_lshl_b32 s{S_T0}, s{S_W}, 5"))
    addr.append(lambda: (g.A(f"v_and_b32 v{t0}, 31, v{L}"), g.A(f"v_add_u32 v{t0}, s{S_T0}, v{t0}")))
    addr.append(lambda: (g.A(f"v_cmp_le_u32 vcc, 48, v{t0}"), g.A(f"v_subrev_u32 v{t1}, 48, v{t0}"), g.A(f"v_mov_b32 v{t2}, 0")))
    addr.append(lambda: (g.A(f"v_cndmask_b32 v{t0}, v{t0}, v{t1}, vcc"), g.A(f"v_mov_b32 v{t1}, 256")))
    addr.append(lambda: (g.A(f"v_cndmask_b32 v{t2}, v{t2}, v{t1}, vcc"), g.A(f"v_lshl_add_u32 v{base}, v{t0}, 9, v{t2}")))
    addr.append(lambda: (g.A(f"v_and_b32 v{t0}, 15, v{t0}"), g.A(f"v_lshl_add_u32 v{base}, v{t0}, 4, v{base}")))
    addr.append(lambda: (g.A(f"v_lshrrev_b32 v{t0}, 5, v{L}"), g.A(f"v_lshl_add_u32 v{base}, v{t0}, 3, v{base}")))
    addr.append(lambda: g.A(f"v_add_u32 v{base}, {OB}, v{base}"))
    k = 0
    for s in range(2):
        for blk in range(4):
            pv_mfma(g, s, blk, V_P[1]); addr[k](); k += 1
    g.A(f"v_mov_b32 v{V_T}, v{V_L}")
    for j in range(16): g.A(f"v_xor_b32 v{AD+j}, {j << 4}, v{base}")
    g.A(f"v_permlane32_swap_b32 v{V_T}, v{V_L}")
    g.A(f"v_add_f32 v{V_L}, v{V_L}, v{V_T}")
    g.A(f"v_rcp_f32 v{V_T}, v{V_L}"); g.A("s_nop 0"); g.A(f"v_mov_b32 v{V_T+1}, v{V_T}")
    for blk in range(4):
        for i in range(4):
            a = V_O + 16*blk + 4*i
            g.A(f"v_pk_mul_f32 {vr(a,2)}, {vr(a,2)}, {vr(V_T,2)}"); g.A(f"v_pk_mul_f32 {vr(a+2,2)}, {vr(a+2,2)}, {vr(V_T,2)}")
            g.A(f"v_cvt_pk_bf16_f32 v{a}, v{a}, v{a+1}"); g.A(f"v_cvt_pk_bf16_f32 v{a+1}, v{a+2}, v{a+3}")
            g.lds(f"ds_write_b64 v{AD+4*blk+i}, {vr(a,2)}", "ow")

def p2_kloader(g, o):
    g.C("==== P2: wave 3 streams K")
    g.vm = []
    full_tile_regs(g, "K")
    g.A(f"s_mov_b32 s{S_KOFF}, {4*8192}")
    full_tile(g, o, "K", 4, "K4"); full_tile(g, o, "K", 5, "K5")
    g.A(f"s_mov_b32 s{S_CNT}, 4")
    loop_label(g, "L_kld_loop")
    for t in range(6):
        g.A("s_waitcnt vmcnt(24)"); g.A("s_barrier")
        if not o.x_nodma: full_tile(g, o, "K", t+6, f"K{t+6}")
    g.A(f"s_sub_u32 s{S_CNT}, s{S_CNT}, 1"); g.A(f"s_cmp_lg_u32 s{S_CNT}, 0"); g.A("s_cbranch_scc1 L_kld_loop")
    g.vm = []
    for t in range(26, 30): g.vm += [f"K{t}"]*8
    for t in range(24, 32):
        if t + 2 < 32: g.wait_vm(f"K{t+2}")
        g.A("s_barrier")
        if t + 6 < 32: full_tile(g, o, "K", t+6, f"K{t+6}")
    g.A("s_barrier")

def p3_compute(g, o):
    g.C("==== P3: partial output projection, two column halves of 8 k-steps")
    L = V_LANE; t0, t1, t2, t3 = 12, 13, 14, 15
    for s in range(4): select_by_wave(g, S_WOA + s, [WO_ADDR[s][w] for w in range(4)])
    g.A(f"v_lshrrev_b32 v{t0}, 4, v{L}"); g.A(f"v_and_b32 v{t1}, 15, v{L}")
    g.A(f"v_xor_b32 v{t2}, v{t0}, v{t1}"); g.A(f"v_lshlrev_b32 v{t2}, 4, v{t2}")
    g.A(f"v_lshl_add_u32 v{V_OR}, v{t1}, 9, v{t2}"); g.A(f"v_add_u32 v{V_OR}, {OB}, v{V_OR}")
    r_, cc, sw = 2, 3, 4
    g.A(f"v_bfe_u32 v{r_}, v{L}, 2, 2"); g.A(f"v_and_b32 v{cc}, 3, v{L}")
    g.A(f"v_and_b32 v{sw}, 2, v{r_}"); g.A(f"v_and_b32 v{t2}, 1, v{t0}")
    g.A(f"v_lshl_or_b32 v{sw}, v{t2}, 2, v{sw}")
    g.A(f"v_lshrrev_b32 v{t2}, 1, v{cc}"); g.A(f"v_or_b32 v{sw}, v{sw}, v{t2}"); g.A(f"v_lshlrev_b32 v{sw}, 4, v{sw}")
    g.A(f"v_and_b32 v{t2}, 1, v{cc}"); g.A(f"v_lshl_add_u32 v{sw}, v{t2}, 3, v{sw}")
    g.A(f"v_lshl_add_u32 v{t2}, v{t0}, 3, v{r_}"); g.A(f"v_lshl_add_u32 v{sw}, v{t2}, 7, v{sw}")
    for cb in range(4): g.A(f"v_xor_b32 v{6+cb}, {cb << 5}, v{sw}")
    g.wait_lg0()
    for d in range(4):
        for cb in range(4): g.A(f"v_add_u32 v{V_WOR+4*d+cb}, s{S_WOA+d}, v{6+cb}")
    V_ST = 13
    g.A(f"v_lshlrev_b32 v{V_ST}, 4, v{L}")
    g.A(f"s_mul_i32 s{S_T3}, s{S_W}, 12288")
    V_A3 = [128, 144]
    def b_addr(j):
        vt = V_OT + j % 2
        g.A(f"s_add_u32 s{S_T0}, s{S_WOROT}, {j}"); g.A(f"s_and_b32 s{S_T0}, s{S_T0}, 7"); g.A(f"s_lshl_b32 s{S_T0}, s{S_T0}, 6")
        g.A(f"v_xor_b32 v{vt}, s{S_T0}, v{V_OR}")
    def reads(n):
        out = []; buf = n % 2; d = (n // 2) % 4
        if n < 8:
            for rb in range(3):
                out.append(lambda rb=rb: g.lds(f"ds_read_b128 {ar(12*n+4*rb,4)}, v{V_OT + n % 2} offset:{rb*8192}", f"f{n}B"))
        for cb in range(4):
            for u in range(2):
                out.append(lambda cb=cb, u=u: g.lds(
                    f"ds_read_b64_tr_b16 {vr(V_A3[buf]+4*cb+2*u,2)}, v{V_WOR+4*d+cb} offset:{(n % 2)*4096+u*512}", f"f{n}A{cb}"))
        return out
    def acc(hb, cb, rb): return V_ACC3 + ((4*hb + cb)*3 + rb)*4
    def store_frag(cbp, rb):
        hb, c0 = cbp // 2, 2*(cbp % 2)
        a0, a1 = acc(hb, c0, rb), acc(hb, c0+1, rb)
        d = 2 + 4*((cbp*3+rb) % 2)
        g.A(f"v_cvt_pk_bf16_f32 v{d}, v{a0}, v{a0+1}"); g.A(f"v_cvt_pk_bf16_f32 v{d+1}, v{a0+2}, v{a0+3}")
        g.A(f"v_cvt_pk_bf16_f32 v{d+2}, v{a1}, v{a1+1}"); g.A(f"v_cvt_pk_bf16_f32 v{d+3}, v{a1+2}, v{a1+3}")
        pol = f" {o.pol_st}" if o.pol_st else ""
        g.A(f"s_add_u32 s{S_T2}, s{S_T3}, {rb*4096}")
        if o.x_nost and cbp < 2: return
        g.vmem(f"buffer_store_dwordx4 {vr(d,4)}, v{V_ST}, s[{SRD_P}:{SRD_P+3}], s{S_T2} offen offset:{cbp*1024}{pol}", "st")
    b_addr(0); b_addr(1)
    g.A("s_barrier")
    stamp(g, o, 5)
    for f in reads(0): f()
    early = [(cbp, rb) for cbp in (0, 1) for rb in range(3)]
    for n in range(16):
        hb, buf = n // 8, n % 2
        if (n % 2 == 0 or o.p3fine) and n > 0: g.A("s_barrier")
        if n in (4, 8, 12): stamp(g, o, 9 + (n - 4)//4)
        def mf(cb, rb, n=n, hb=hb, buf=buf):
            a = vr(acc(hb, cb, rb), 4)
            g.A(f"v_mfma_f32_16x16x32_bf16 {a}, {vr(V_A3[buf]+4*cb,4)}, {ar(12*(n % 8)+4*rb,4)}, {'0' if n % 8 == 0 else a}")
        after = None
        if 9 <= n < 15: after = {10: lambda k=n-9: store_frag(*early[k])}
        if n == 15: after = {9: lambda: store_frag(2, 0), 10: lambda: store_frag(2, 1), 11: lambda: store_frag(2, 2)}
        gemm_step(g, n, mf, reads(n + 1) if n + 1 < 16 else [], int(o.front), after, (lambda n=n: b_addr(n + 2)) if n + 2 < 8 else None)
    stamp(g, o, 6)
    g.A("s_nop 7")
    for rb in range(3): store_frag(3, rb)

def compute_tail(g, o):
    L = V_LANE
    g.C("==== hand-off and reduction of the 16 partial slabs of this (branch, batch)")
    R, T = S_T2, S_T3
    g.A(f"s_mul_i32 s{R}, s{S_HP}, 3"); g.A(f"s_add_u32 s{R}, s{R}, s{S_W}")
    srd(g, 4, S_WS, S_WS+1, None, 256*49152)
    srd(g, 8, S_OUT, S_OUT+1, None, 786432)
    srd(g, SRD_FL, S_WS, S_WS+1, None, FLAGB + 1024*128)
    g.A(f"s_mul_i32 s12, s{S_BB}, 786432"); g.A(f"s_lshl_b32 s{T}, s{R}, 10"); g.A(f"s_add_u32 s12, s12, s{T}")
    g.A(f"s_mul_i32 s13, s{R}, 43"); g.A("s_lshr_b32 s13, s13, 9")
    g.A("s_mul_i32 s14, s13, 12"); g.A(f"s_sub_u32 s14, s{R}, s14")
    g.A("s_lshr_b32 s15, s14, 2"); g.A("s_and_b32 s14, s14, 3")
    g.A(f"s_mul_i32 s16, s{S_B}, 98304")
    g.A(f"s_lshl_b32 s17, s{S_BR}, 10"); g.A("s_add_u32 s16, s16, s17")
    g.A("s_lshl_b32 s17, s15, 15"); g.A("s_add_u32 s16, s16, s17")
    g.A("s_lshl_b32 s17, s13, 8"); g.A("s_add_u32 s16, s16, s17")
    g.A("s_lshl_b32 s17, s14, 6"); g.A("s_add_u32 s16, s16, s17")
    g.A(f"v_lshlrev_b32 v12, 4, v{L}")
    g.A(f"v_and_b32 v13, 15, v{L}"); g.A(f"v_lshrrev_b32 v14, 4, v{L}")
    g.A("v_lshlrev_b32 v13, 11, v13"); g.A("v_lshl_add_u32 v13, v14, 3, v13")
    g.A(f"s_lshl_b32 s18, s{S_BB}, 13"); g.A(f"s_add_u32 s18, s18, {FLAGB}")
    g.A(f"s_lshl_b32 s19, s{S_HP}, 2"); g.A(f"s_add_u32 s19, s19, s{S_W}"); g.A("s_lshl_b32 s19, s19, 7"); g.A("s_add_u32 s19, s19, s18")
    g.A("s_lshl_b32 s20, s13, 7"); g.A("s_add_u32 s20, s20, s18")
    g.A(f"v_and_b32 v15, 15, v{L}"); g.A("v_lshlrev_b32 v15, 9, v15"); g.A("v_add_u32 v15, s20, v15")
    g.A("v_mov_b32 v10, s19"); g.A("v_mov_b32 v11, 1")
    g.A("s_waitcnt vmcnt(0)"); g.vm = []
    g.A("s_mov_b64 exec, 1")
    g.A(f"buffer_store_dword v11, v10, s[{SRD_FL}:{SRD_FL+3}], 0 offen sc1")
    g.A("s_mov_b64 exec, -1")
    g.A(f"s_cmp_ge_u32 s{S_W}, 3"); g.A("s_cbranch_scc1 L_red_done")
    g.A(f"s_mov_b32 s{S_CNT}, 0")
    if o.early_ld:
        g.A("s_mov_b32 s22, 0")
        g.label("L_poll")
        g.A("s_mov_b64 exec, 0xffff")
        g.A(f"buffer_load_dword v10, v15, s[{SRD_FL}:{SRD_FL+3}], 0 offen sc1")
        g.A(f"s_add_u32 s{S_CNT}, s{S_CNT}, 1")
        g.A("s_waitcnt vmcnt(0)")
        g.A("v_cmp_eq_u32 vcc, 1, v10")
        g.A("s_mov_b64 exec, -1")
        g.A(f"s_cmp_ge_u32 s{S_CNT}, 0x40000"); g.A("s_cselect_b32 s23, 0xffff, vcc_lo")
        g.A("s_andn2_b32 s23, s23, s22")
        g.A("s_cbranch_scc0 L_poll_next")
        for q in range(16):
            g.A(f"s_bitcmp1_b32 s23, {q}"); g.A(f"s_cbranch_scc0 L_skip{q}")
            g.A(f"s_add_u32 s21, s12, {q*49152}")
            g.A(f"buffer_load_dwordx4 v[{16+4*q}:{19+4*q}], v12, s[4:7], s21 offen sc1")
            g.label(f"L_skip{q}")
        g.A("s_or_b32 s22, s22, s23")
        g.A("s_cmp_eq_u32 s22, 0xffff"); g.A("s_cbranch_scc1 L_poll_done")
        g.label("L_poll_next")
        if int(o.sleep): g.A(f"s_sleep {int(o.sleep)}")
        g.A("s_branch L_poll")
        g.label("L_poll_done")
        stamp(g, o, 7)
        g.A("s_waitcnt vmcnt(0)")
    else:
        g.A("s_mov_b64 exec, 0xffff")
        g.label("L_poll")
        g.A(f"buffer_load_dword v10, v15, s[{SRD_FL}:{SRD_FL+3}], 0 offen sc1")
        g.A(f"s_add_u32 s{S_CNT}, s{S_CNT}, 1")
        g.A("s_waitcnt vmcnt(0)")
        g.A("v_cmp_eq_u32 vcc, 1, v10")
        g.A("s_cmp_eq_u64 vcc, exec"); g.A("s_cbranch_scc1 L_poll_done")
        g.A(f"s_cmp_ge_u32 s{S_CNT}, 0x40000"); g.A("s_cbranch_scc1 L_poll_done")
        if int(o.sleep): g.A(f"s_sleep {int(o.sleep)}")
        g.A("s_branch L_poll")
        g.label("L_poll_done")
        g.A("s_mov_b64 exec, -1")
        stamp(g, o, 7)
        for q in range(16):
            g.vmem(f"buffer_load_dwordx4 v[{16+4*q}:{19+4*q}], v12, s[4:7], s12 offen sc1", f"p{q}")
            if q < 15: g.A("s_add_u32 s12, s12, 49152")
    if o.dot2:
        g.A("s_mov_b32 s22, 0x00003f80"); g.A("s_mov_b32 s23, 0x3f800000")
        for j in range(8): g.A(f"v_mov_b32 v{2+j}, 0")
        for q in range(16):
            g.wait_vm(f"p{q}")
            for j in range(4):
                g.A(f"v_dot2c_f32_bf16 v{2+2*j}, s22, v{16+4*q+j}"); g.A(f"v_dot2c_f32_bf16 v{3+2*j}, s23, v{16+4*q+j}")
    else:
        for q in range(16):
            g.wait_vm(f"p{q}")
            for j in range(4):
                src = 16 + 4*q + j
                if q == 0:
                    g.A(f"v_lshlrev_b32 v{2+2*j}, 16, v{src}"); g.A(f"v_and_b32 v{3+2*j}, 0xffff0000, v{src}")
                else:
                    g.A(f"v_lshlrev_b32 v10, 16, v{src}"); g.A(f"v_and_b32 v11, 0xffff0000, v{src}")
                    g.A(f"v_add_f32 v{2+2*j}, v{2+2*j}, v10"); g.A(f"v_add_f32 v{3+2*j}, v{3+2*j}, v11")
    for j in range(4): g.A(f"v_cvt_pk_bf16_f32 v{16+j}, v{2+2*j}, v{3+2*j}")
    po = f" {o.pol_out}" if o.pol_out else ""
    g.A(f"buffer_store_dwordx2 v[16:17], v13, s[8:11], s16 offen{po}")
    g.A(f"buffer_store_dwordx2 v[18:19], v13, s[8:11], s16 offen offset:32{po}")
    g.label("L_red_done")
    if o.stamps is True:
        g.A(f"s_cmp_lg_u32 s{S_W}, 0"); g.A("s_cbranch_scc1 L_end")
        g.A("s_waitcnt vmcnt(0)")
        stamp(g, o, 8)
        dump_stamps(g, 0x1000000)
    elif o.stamps == "dbg":
        dbg_stamps(g, o)

def dbg_stamps(g, o):
    g.A("s_waitcnt vmcnt(0)")
    stamp(g, o, 8)
    g.A(f"s_cmp_lg_u32 s{S_W}, 0"); g.A("s_cbranch_scc1 L_end")
    g.A(f"s_cmp_lg_u32 s2, {int(o.dbgwg)}"); g.A("s_cbranch_scc1 L_end")
    srd(g, 40, S_DBG, S_DBG+1, None, 256)
    for k in range(12):
        g.A(f"s_sub_u32 s{S_T0}, s{S_STAMP+k}, s{S_STAMP}"); g.A(f"v_mov_b32 v{16+k}, s{S_T0}")
    for k in range(12, 16):
        g.A(f"s_sub_u32 s{S_T0}, s{S_STAMP+k}, s{S_STAMP+12}"); g.A(f"v_mov_b32 v{16+k}, s{S_T0}")
    g.A("v_mov_b32 v13, 0")
    g.A("s_mov_b64 exec, 1")
    for k in range(4): g.A(f"buffer_store_dwordx4 v[{16+4*k}:{19+4*k}], v13, s[40:43], 0 offen offset:{16*k}")
    g.A("s_waitcnt vmcnt(0)")

def compute_path(g, o):
    if int(o.prio): g.A(f"s_setprio {int(o.prio)}")
    p1_compute(g, o)
    g.A(f"s_cmp_eq_u32 s{S_W}, 3"); g.A("s_cbranch_scc1 L_wave3")
    p2_addresses(g)
    g.wait_lg0()
    g.A("s_barrier")
    stamp(g, o, 3)
    p2_compute(g, o)
    g.label("L_p3")
    g.vm = []
    p3_compute(g, o)
    compute_tail(g, o)
    g.label("L_end")
    g.A("s_endpgm")
    g.label("L_wave3")
    g.A("s_waitcnt lgkmcnt(0)"); g.lg = []
    g.A("s_barrier")
    p2_kloader(g, o)
    g.A("s_branch L_p3")

def loader_path(g, o):
    g.lg = []; g.vm = []
    loader(g, o)
    loader_tail(g, o)

def k1(g, o):
    header(g, K1)
    entry(g, o)
    if o.ld_first:
        g.A(f"s_cmp_lt_u32 s{S_W}, 4"); g.A("s_cbranch_scc1 L_compute")
        loader_path(g, o)
        g.label("L_compute")
        g.lg = []; g.vm = []
        compute_path(g, o)
    else:
        g.A(f"s_cmp_ge_u32 s{S_W}, 4"); g.A("s_cbranch_scc1 L_loader")
        compute_path(g, o)
        g.label("L_loader")
        loader_path(g, o)
    for par in range(2): rescale_sub(g, par)
    if o.m0init: rescale_sub(g, 0, first=True)
    for t in [0, 1, 2, 3, 4, 5, 6, 31]: rare_stub(g, t)
    g.label("L_code_end")

def build(o):
    g = G()
    g.A("; @launch grid=(256,1,1) block=(512,1,1) lds=163840")
    g.A('.amdgcn_target "amdgcn-amd-amdhsa--gfx950"')
    k1(g, o)
    descriptor(g, K1, 256, ACC_OFF)
    return g

if __name__ == "__main__":
    o = Opt(); OPT = o
    for a in sys.argv[2:]:
        k, v = a.split("=", 1)
        setattr(o, k, {"True": True, "False": False}.get(v, v))
    g = build(o)
    if o.al8:
        g.L, fixed, left = alignpass.run(g.L, o.al8 == "pad")
        print("aligned", fixed, "left misaligned", left)
    probs = check(g.L)
    for p in probs[:8]: print("HAZARD", p)
    open(sys.argv[1], "w").write(g.text())
    print("lines", len(g.L))
```

```python
import sys, math, struct
from asmlib import G, check
from sched import schedule
import alignpass

PREFIX = "concat_heads__gqa_block_cached__gqa_block_cached__near_ridge"
K1 = PREFIX + "_kernel"

VB = 0
KB = 65536
XB = 114688
QB = XB
OB = 139264
WQB = 16384
NS = 6
def kslot(i): return KB + (NS - 1 - i % NS) * 8192
def vslot(i): return VB + (i % NS) * 8192
WO_ADDR = [[49152, 57344, 114688, 122880],
           [131072, kslot(26), kslot(27), kslot(28)],
           [vslot(26), kslot(29), vslot(27), kslot(30)],
           [vslot(28), kslot(31), vslot(29), vslot(30)]]
FLAGB = 14 << 20

CSCALE = math.log2(math.e) / math.sqrt(128.0)
def fbits(x): return struct.unpack("<I", struct.pack("<f", x))[0]
THR_HI = float(2 ** 20)
THR_LO = float(2 ** -20)

S_W = 3
SRD_X, SRD_WQ, SRD_K, SRD_V, SRD_WO, SRD_P = 4, 8, 12, 16, 20, 24
S_DBG, S_OUT, S_WS = 94, 96, 52
S_HKV, S_HALF, S_B, S_BR = 54, 55, 56, 57
S_S0, S_RING = 58, 59
S_T0, S_T1, S_T2, S_T3 = 60, 61, 62, 63
S_CNT = 64
S_KOFF, S_VOFF = 65, 66
S_THR = 67
S_C = 68
S_RET = 70
S_STAMP = 72
S_WOA = 88
S_BB, S_HP = 92, 93
S_LD2K, S_FIRST, S_THRLO, S_WOROT = 28, 29, 30, 31
S_XM, S_XO = 98, 99
SRD_DBG, SRD_FL = 32, 36

ACC_OFF = 160
V_LANE = 1
V_XR, V_XT = 2, 3
V_WR = 5
V_ACC1 = 32
V_E = 2; NTEMP = 8
V_L, V_TS, V_T, V_F = 10, 11, 12, 14
V_KA, V_VA = 16, 24
V_TMP = 28
V_S = [32, 48]; V_P = [64, 72]; V_NEGM = 80; V_O = 96
A_Q, A_K, A_V = 0, 32, 64
A_A1 = [0, 16]; A_B1 = [32, 44]
V_OB, V_OR, V_SW, V_ST = 28, 29, 30, 31
V_OT = 14
V_RI = 8
V_QW = 88
V_ACC3 = 64
WOR = [10, 11, 12, 13] + list(range(16, 28))
V_A3 = [32, 48]
A_A3 = [0, 16]; A_B3 = [32, 44]
V_STG = 32
V_XD = 2; V_WD = 4; V_KE0, V_KE1, V_VE = 8, 9, 10; V_WOD = 12; V_LT = 16
V_FA, V_FD, V_RA, V_RD = 20, 21, 22, 23
V_FT = 24

def vr(b, n=1): return f"v{b}" if n == 1 else f"v[{b}:{b+n-1}]"
def ar(b, n=1): return f"a{b}" if n == 1 else f"a[{b}:{b+n-1}]"

class Opt:
    nt_kv = "nt"; pol_w = ""; pol_x = ""; pol_st = "sc1"
    stamps = False; rot = True; sleep = 1; dbgwg = 37
    cap_lo = 24; cap_hi = 24
    al8 = True; align = 0; p3fine = True; swap_first = False; vtouch = False; pol_out = ""; wq3 = False; dot2 = True; early_ld = True; ld_first = False; code_pf = False; wo_pf = False; stage = False; front = 9; kv_pol1 = None; first_nt = False; nt_x = 0; nt_wq = 2; nt_wo = 1; pretouch = False; m0init = True; prio = 0; thr = 20
    x_now = False; x_nost = False; x_nok = False; x_nov = False; x_novalu = False; x_nomfma = False; x_nodma = False
OPT = None

def stamp(g, o, idx):
    if o.stamps:
        g.A("s_memrealtime s[100:101]"); g.A("s_waitcnt lgkmcnt(0)"); g.A(f"s_mov_b32 s{S_STAMP+idx}, s100")
        cyc = {0: 12, 3: 13, 4: 14, 8: 15}
        if idx in cyc:
            g.A("s_memtime s[100:101]"); g.A("s_waitcnt lgkmcnt(0)"); g.A(f"s_mov_b32 s{S_STAMP+cyc[idx]}, s100")
        g.lg = []

def header(g, name):
    g.A(".text"); g.A(f".globl {name}"); g.A(".p2align 8"); g.A(f".type {name},@function"); g.label(name)

def descriptor(g, name, vgpr, accum, sgpr=102):
    g.A('.section .rodata,"a"'); g.A(".p2align 6"); g.A(f".amdhsa_kernel {name}")
    g.A(f".amdhsa_next_free_vgpr {vgpr}"); g.A(f".amdhsa_next_free_sgpr {sgpr}"); g.A(f".amdhsa_accum_offset {accum}")
    g.A(".amdhsa_group_segment_fixed_size 0"); g.A(".amdhsa_kernarg_size 104"); g.A(".amdhsa_user_sgpr_count 2")
    g.A(".amdhsa_user_sgpr_kernarg_segment_ptr 1"); g.A(".amdhsa_system_sgpr_workgroup_id_x 1"); g.A(".end_amdhsa_kernel")

def srd(g, d, lo, hi, off_s, nrec):
    if off_s is None:
        g.A(f"s_mov_b32 s{d}, s{lo}"); g.A(f"s_and_b32 s{d+1}, s{hi}, 0xffff")
    else:
        g.A(f"s_add_u32 s{d}, s{lo}, {off_s}"); g.A(f"s_addc_u32 s{d+1}, s{hi}, 0"); g.A(f"s_and_b32 s{d+1}, s{d+1}, 0xffff")
    g.A(f"s_mov_b32 s{d+2}, {nrec}"); g.A(f"s_mov_b32 s{d+3}, 0x20000")

def dma(g, voff, srd_, soff, imm, pol, tag):
    off = f" offset:{imm}" if imm else ""
    pol = f" {pol}" if pol else ""
    g.vmem(f"buffer_load_dwordx4 v{voff}, s[{srd_}:{srd_+3}], {soff} offen{off}{pol} lds", tag)

_lab = [0]
def dma_group(g, o, items, tag):
    if o.kv_pol1 is None:
        for it in items: dma(g, *it, o.nt_kv, tag)
        return
    _lab[0] += 1; n = _lab[0]
    g.A(f"s_cmp_eq_u32 s{S_HALF}, 1"); g.A(f"s_cbranch_scc1 L_kvp{n}")
    vm = list(g.vm)
    for it in items: dma(g, *it, o.nt_kv, tag)
    g.A(f"s_branch L_kvq{n}")
    g.label(f"L_kvp{n}")
    g.vm = vm
    for it in items: dma(g, *it, o.kv_pol1, tag)
    g.label(f"L_kvq{n}")

def weave(main, fill):
    n = len(main); m = len(fill); k = 0
    for i, f in enumerate(main):
        f()
        tgt = (i + 1) * m // n
        while k < tgt:
            fill[k](); k += 1

def gemm_step(g, n, mfma, fill, front=9, after=None, addr=None):
    k = 0; m = len(fill)
    for i in range(12):
        cb = i // 3
        if i % 3 == 0: g.wait_lg([f"f{n}B", f"f{n}A{cb}"])
        mfma(cb, i % 3)
        tgt = min(m, -(-(i + 1) * m // front))
        while k < tgt:
            fill[k](); k += 1
        if addr and i == 9: addr()
        if after and i in after: after[i]()

def loop_label(g, name):
    if int(OPT.align): g.A(f".p2align {int(OPT.align)}")
    g.label(name)

def select_by_wave(g, dst, vals):
    g.A(f"s_mov_b32 s{dst}, {vals[0]}")
    for k in range(1, len(vals)):
        g.A(f"s_cmp_eq_u32 s{S_W}, {k}"); g.A(f"s_cselect_b32 s{dst}, {vals[k]}, s{dst}")

def entry(g, o):
    g.A("s_cmp_ge_u32 s2, 256"); g.A("s_cbranch_scc1 L_end")
    stamp(g, o, 0)
    g.A("s_load_dwordx16 s[32:47], s[0:1], 0")
    g.A("s_load_dwordx4 s[48:51], s[0:1], 64")
    g.A(f"s_load_dwordx2 s[{S_WS}:{S_WS+1}], s[0:1], 96")
    g.A(f"s_load_dwordx2 s[{S_OUT}:{S_OUT+1}], s[0:1], 80")
    g.A(f"s_load_dwordx2 s[{S_DBG}:{S_DBG+1}], s[0:1], 88")
    g.A(f"v_and_b32 v{V_LANE}, 63, v0")
    g.A("v_lshrrev_b32 v2, 6, v0")
    g.A(f"s_and_b32 s{S_HKV}, s2, 7")
    g.A(f"v_readfirstlane_b32 s{S_W}, v2")
    g.A(f"s_lshr_b32 s{S_T0}, s2, 3")
    g.A(f"s_and_b32 s{S_HALF}, s{S_T0}, 1")
    g.A(f"s_lshr_b32 s{S_B}, s{S_T0}, 1"); g.A(f"s_and_b32 s{S_B}, s{S_B}, 7")
    g.A(f"s_lshr_b32 s{S_BR}, s{S_T0}, 4")
    g.A(f"s_lshl_b32 s{S_HP}, s{S_HKV}, 1"); g.A(f"s_add_u32 s{S_HP}, s{S_HP}, s{S_HALF}")
    g.A(f"s_lshl_b32 s{S_BB}, s{S_BR}, 3"); g.A(f"s_add_u32 s{S_BB}, s{S_BB}, s{S_B}")
    if o.rot:
        g.A(f"s_lshl_b32 s{S_S0}, s{S_B}, 1"); g.A(f"s_lshl_b32 s{S_T0}, s{S_HALF}, 3")
        g.A(f"s_add_u32 s{S_S0}, s{S_S0}, s{S_T0}"); g.A(f"s_and_b32 s{S_S0}, s{S_S0}, 15")
        g.A(f"s_mov_b32 s{S_WOROT}, s{S_B}")
    else:
        g.A(f"s_mov_b32 s{S_S0}, 0"); g.A(f"s_mov_b32 s{S_WOROT}, 0")

def select_branch(g, idx):
    g.A(f"s_cmp_eq_u32 s{S_BR}, 1")
    for i in idx: g.A(f"s_cselect_b32 s{32+i}, s{42+i}, s{32+i}")

def srd_kv(g, which):
    g.A(f"s_lshl_b32 s{S_T0}, s{S_B}, 3"); g.A(f"s_add_u32 s{S_T0}, s{S_T0}, s{S_HKV}"); g.A(f"s_lshl_b32 s{S_T0}, s{S_T0}, 18")
    if "K" in which: srd(g, SRD_K, 34, 35, f"s{S_T0}", 262144)
    if "V" in which: srd(g, SRD_V, 36, 37, f"s{S_T0}", 262144)

EARLY = [("K", 0), ("K", 1), ("V", 0), ("K", 2), ("V", 1), ("K", 3)]

def full_tile_regs(g, kind):
    L = V_LANE; t0, t1 = 60, 61
    g.A(f"v_lshrrev_b32 v{t0}, 4, v{L}"); g.A(f"v_and_b32 v{t1}, 15, v{L}")
    for e in range(4 if kind == "K" else 1):
        d = V_FT + e
        if kind == "K": g.A(f"v_add_u32 v{d}, {4*e}, v{t0}")
        else: g.A(f"v_lshlrev_b32 v{d}, 2, v{t0}")
        g.A(f"v_xor_b32 v{d}, v{d}, v{t1}"); g.A(f"v_lshlrev_b32 v{d}, 4, v{d}"); g.A(f"v_lshl_add_u32 v{d}, v{t0}, 8, v{d}")

def full_tile(g, o, kind, t, tag):
    so = S_KOFF if kind == "K" else S_VOFF
    base = kslot(t) if kind == "K" else vslot(t)
    for hf in range(2):
        g.A(f"s_mov_b32 m0, {base + hf*4096}"); g.A("s_nop 0")
        dma_group(g, o, [(V_FT + (e if kind == "K" else 0), SRD_K if kind == "K" else SRD_V, f"s{so}", 1024*e) for e in range(4)], tag)
        g.A(f"s_add_u32 s{so}, s{so}, 4096")

def loader(g, o):
    g.C("================ loader waves")
    L = V_LANE; t0, t1, t2, t3 = V_LT, V_LT+1, V_LT+2, V_LT+3
    g.A(f"s_sub_u32 s{S_W}, s{S_W}, 4")
    g.A(f"v_lshrrev_b32 v{t0}, 4, v{L}"); g.A(f"v_and_b32 v{t1}, 15, v{L}")
    g.A(f"s_lshl_b32 s{S_T0}, s{S_W}, 2")
    g.A(f"v_add_u32 v{t2}, s{S_T0}, v{t0}"); g.A(f"v_xor_b32 v{t2}, v{t2}, v{t1}"); g.A(f"v_lshlrev_b32 v{t2}, 4, v{t2}")
    g.A(f"v_lshl_add_u32 v{V_XD}, v{t0}, 10, v{t2}")
    def x_prep(j):
        g.A(f"s_lshr_b32 s{S_T0}, s{S_S0}, 2"); g.A(f"s_add_u32 s{S_T0}, s{S_T0}, {j}"); g.A(f"s_and_b32 s{S_T0}, s{S_T0}, 3")
        g.A(f"s_mul_i32 s{S_XM}, s{S_T0}, 12288"); g.A(f"s_lshl_b32 s{S_T1}, s{S_W}, 10"); g.A(f"s_add_u32 s{S_XM}, s{S_XM}, s{S_T1}")
        g.A(f"s_lshl_b32 s{S_XO}, s{S_T0}, 8"); g.A(f"s_lshl_b32 s{S_T1}, s{S_W}, 12"); g.A(f"s_add_u32 s{S_XO}, s{S_XO}, s{S_T1}")
    def x_issue(j):
        for i3 in range(3):
            g.A(f"s_add_u32 m0, s{S_XM}, {XB + i3*4096}")
            g.A(f"s_add_u32 s{S_T0}, s{S_XO}, {i3*16384}")
            dma(g, V_XD, SRD_X, f"s{S_T0}", 0, "nt" if (o.first_nt and j < int(o.nt_x)) else o.pol_x, f"x{j}")
    def wq_step(i):
        g.A(f"s_add_u32 s{S_T2}, s{S_S0}, {i}"); g.A(f"s_and_b32 s{S_T2}, s{S_T2}, 15")
        g.A(f"s_add_u32 m0, s{S_RING}, {(i%4)*4096}")
        g.A(f"s_lshl_b32 s{S_T2}, s{S_T2}, 18")
        pol = "nt" if (o.first_nt and i < int(o.nt_wq)) else o.pol_w
        for jj in range(4): dma(g, V_WD + jj, SRD_WQ, f"s{S_T2}", 1024*jj, pol, f"wq{i}")
    x_prep(0)
    g.A("s_waitcnt lgkmcnt(0)")
    stamp(g, o, 1)
    select_branch(g, [0, 1, 6, 7])
    g.A(f"s_mul_i32 s{S_T0}, s{S_B}, 49152"); srd(g, SRD_X, 32, 33, f"s{S_T0}", 49152)
    x_issue(0)
    g.A(f"v_lshrrev_b32 v{t2}, 3, v{L}"); g.A(f"v_and_b32 v{t3}, 7, v{L}")
    g.A(f"s_lshl_b32 s{S_T0}, s{S_W}, 7")
    for jj in range(4):
        d = V_WD + jj
        g.A(f"v_and_b32 v{d}, 2, v{t2}")
        if jj & 1: g.A(f"v_or_b32 v{d}, 4, v{d}")
        g.A(f"v_xor_b32 v{d}, v{d}, v{t3}"); g.A(f"v_lshlrev_b32 v{d}, 4, v{d}")
        g.A(f"v_lshl_add_u32 v{d}, v{t2}, 13, v{d}")
        g.A(f"v_add_u32 v{d}, s{S_T0}, v{d}")
        if jj: g.A(f"v_add_u32 v{d}, {jj*64512}, v{d}")
    g.A(f"s_lshl_b32 s{S_RING}, s{S_W}, 14"); g.A(f"s_add_u32 s{S_RING}, s{S_RING}, {WQB}")
    g.A(f"s_lshl_b32 s{S_T1}, s{S_HP}, 9")
    srd(g, SRD_WQ, 38, 39, f"s{S_T1}", 0)
    g.A(f"s_sub_u32 s{SRD_WQ+2}, 0x400000, s{S_T1}")
    wq_step(0); wq_step(1)
    x_prep(1); x_issue(1)
    wq_step(2)
    if o.wq3: wq_step(3)
    stamp(g, o, 2)
    if o.code_pf:
        g.A(f"s_cmp_lg_u32 s{S_W}, 1"); g.A("s_cbranch_scc1 L_cpf")
        g.A("s_getpc_b64 s[98:99]"); g.label("L_pc")
        g.A(f"s_sub_u32 s98, s98, L_pc-{K1}"); g.A("s_subb_u32 s99, s99, 0")
        g.A(f"s_lshr_b32 s{S_T3}, s2, 3"); g.A(f"s_lshl_b32 s{S_T3}, s{S_T3}, 10")
        g.A(f"v_lshl_add_u32 v{t2}, v{L}, 4, s{S_T3}")
        g.A(f"v_min_u32 v{t2}, L_code_end-{K1}-16, v{t2}")
        g.A(f"global_load_dwordx4 v[32:35], v{t2}, s[98:99]")
        g.label("L_cpf")
    select_branch(g, [2, 3, 4, 5, 8, 9])
    srd_kv(g, "KV")
    g.A(f"s_lshl_b32 s{S_T1}, s{S_HP}, 18")
    srd(g, SRD_WO, 40, 41, f"s{S_T1}", 262144)
    if o.vtouch:
        g.A(f"v_mov_b32 v{V_LT+2}, 0"); g.A("s_mov_b64 exec, 1")
        for k, srd_ in enumerate((SRD_K, SRD_V, SRD_WO)):
            g.A(f"s_cmp_lg_u32 s{S_W}, {k}"); g.A(f"s_cbranch_scc1 L_vt{k}")
            g.A(f"buffer_load_dword v31, v{V_LT+2}, s[{srd_}:{srd_+3}], 0 offen nt")
            g.label(f"L_vt{k}")
        g.A("s_mov_b64 exec, -1")
    if o.pretouch:
        g.A(f"s_lshl_b32 s{S_T1}, s{S_BB}, 4"); g.A(f"s_add_u32 s{S_T1}, s{S_T1}, s{S_HP}"); g.A(f"s_mul_i32 s{S_T1}, s{S_T1}, 49152")
        g.A(f"s_add_u32 s44, s{S_WS}, s{S_T1}"); g.A(f"s_addc_u32 s45, s{S_WS+1}, 0")
        for r in (SRD_K, SRD_V, SRD_WO, 44, S_OUT, S_DBG):
            g.A(f"s_load_dword s46, s[{r}:{r+1}], 0")
        g.A(f"s_add_u32 s44, s{S_WS}, {FLAGB}"); g.A(f"s_addc_u32 s45, s{S_WS+1}, 0")
        g.A("s_load_dword s46, s[44:45], 0")
    g.A(f"s_lshl_b32 s{S_LD2K}, s{S_W}, 11")
    g.A(f"v_lshlrev_b32 v{t2}, 8, v{t0}"); g.A(f"v_add_u32 v{t2}, s{S_LD2K}, v{t2}")
    g.A(f"s_lshl_b32 s{S_T1}, s{S_W}, 3"); g.A(f"s_and_b32 s{S_T1}, s{S_T1}, 15")
    for e in range(2):
        d = V_KE0 + e
        g.A(f"v_add_u32 v{d}, s{S_T1}, v{t0}")
        if e: g.A(f"v_add_u32 v{d}, 4, v{d}")
        g.A(f"v_xor_b32 v{d}, v{d}, v{t1}"); g.A(f"v_lshl_add_u32 v{d}, v{d}, 4, v{t2}")
    g.A(f"v_lshlrev_b32 v{V_VE}, 2, v{t0}"); g.A(f"v_xor_b32 v{V_VE}, v{V_VE}, v{t1}")
    g.A(f"v_lshl_add_u32 v{V_VE}, v{V_VE}, 4, v{t2}")
    g.A(f"v_lshrrev_b32 v{t2}, 3, v{L}"); g.A(f"v_and_b32 v{t3}, 7, v{L}")
    g.A(f"s_lshl_b32 s{S_T0}, s{S_W}, 8")
    for jj in range(4):
        d = V_WOD + jj
        g.A(f"v_and_b32 v{d}, 2, v{t2}")
        if jj & 1: g.A(f"v_or_b32 v{d}, 4, v{d}")
        g.A(f"v_xor_b32 v{d}, v{d}, v{t3}"); g.A(f"v_lshlrev_b32 v{d}, 4, v{d}")
        g.A(f"v_lshl_add_u32 v{d}, v{t2}, 10, v{d}")
        g.A(f"v_add_u32 v{d}, s{S_T0}, v{d}")
        if jj: g.A(f"v_add_u32 v{d}, {jj*7168}, v{d}")
    for s in range(4): select_by_wave(g, S_WOA + s, [WO_ADDR[s][w] for w in range(4)])
    g.A(f"s_mov_b32 s{S_KOFF}, 0"); g.A(f"s_mov_b32 s{S_VOFF}, 0")
    if o.pretouch: g.A("s_waitcnt lgkmcnt(0)")
    def kv(kind, t, tag):
        so = S_KOFF if kind == "K" else S_VOFF
        g.A(f"s_add_u32 m0, s{S_LD2K}, {kslot(t) if kind == 'K' else vslot(t)}")
        g.A("s_nop 0")
        if kind == "K": dma_group(g, o, [(V_KE0, SRD_K, f"s{so}", 0), (V_KE1, SRD_K, f"s{so}", 1024)], tag)
        else: dma_group(g, o, [(V_VE, SRD_V, f"s{so}", 0), (V_VE, SRD_V, f"s{so}", 1024)], tag)
        g.A(f"s_add_u32 s{so}, s{so}, 8192")
    def wo_soff(n):
        g.A(f"s_add_u32 s{S_T2}, s{S_WOROT}, {n % 8}"); g.A(f"s_and_b32 s{S_T2}, s{S_T2}, 7"); g.A(f"s_lshl_b32 s{S_T2}, s{S_T2}, 15")
        if n >= 8: g.A(f"s_add_u32 s{S_T2}, s{S_T2}, 128")
    def wo_step(d):
        for n in (2*d, 2*d+1):
            g.A(f"s_add_u32 m0, s{S_WOA + d % 4}, {(n % 2)*4096}")
            wo_soff(n)
            pol = "nt" if (o.first_nt and (n if o.wo_pf else n % 8) < int(o.nt_wo)) else o.pol_w
            for jj in range(4): dma(g, V_WOD + jj, SRD_WO, f"s{S_T2}", 1024*jj, pol, f"wo{d}")
    def wo_piece(n):
        g.A(f"s_add_u32 m0, s{S_WOA + ((n - 8) // 2)}, {(n % 2)*4096}")
        wo_soff(n)
        for jj in range(4): dma(g, V_WOD + jj, SRD_WO, f"s{S_T2}", 1024*jj, o.pol_w, f"wp{n}")
    def wo_regs(k):
        for n in (8 + 2*k, 9 + 2*k):
            wo_soff(n)
            pol = " nt" if (o.first_nt and n - 8 < int(o.nt_wo)) else (f" {o.pol_w}" if o.pol_w else "")
            for jj in range(4):
                r = V_STG + ((n - 8)*4 + jj)*4
                off = f" offset:{1024*jj}" if jj else ""
                g.vmem(f"buffer_load_dwordx4 {vr(r,4)}, v{V_WOD+jj}, s[{SRD_WO}:{SRD_WO+3}], s{S_T2} offen{off}{pol}", f"wr{k}")
    def wo_write(d):
        g.wait_vm(f"wr{d-4}")
        g.A(f"v_add_u32 v{V_LT+2}, s{S_WOA + d - 4}, v{V_LT+3}")
        for k in range(8):
            if o.x_now: break
            r = V_STG + ((d-4)*8 + k)*4
            g.lds(f"ds_write_b128 v{V_LT+2}, {vr(r,4)} offset:{k*1024}", "ww")
    need_x = {0: "x0", 1: "x1", 5: "x2", 9: "x3"}
    for i in range(16):
        tags = []
        if i == 0: tags += ["wq0", "wq1"]
        elif i + 1 < 16: tags.append(f"wq{i+1}")
        if i in need_x: tags.append(need_x[i])
        if tags: g.wait_vm(tags)
        if i == 0: stamp(g, o, 3)
        g.A("s_barrier")
        if i + 3 < 16:
            if not (o.wq3 and i == 0): wq_step(i + 3)
        else:
            for kind, t in EARLY[(i-13)*2:(i-13)*2+2]: kv(kind, t, f"{kind}{t}")
        if i == 0: x_prep(2); x_issue(2)
        if i == 3: x_prep(3); x_issue(3)
    g.A("s_barrier")
    g.wait_vm(["K0", "K1"]); g.A("s_barrier")
    stamp(g, o, 4)
    def tail_p3(first):
        g.A("s_barrier")
        wo_step(3)
        if o.stage: wo_regs(2)
        g.A(f"v_lshlrev_b32 v{V_LT+3}, 4, v{V_LANE}")
        g.wait_vm(["wo0", "wo1"]); g.A("s_barrier")
        if o.stage: wo_regs(3)
        if o.p3fine:
            for m in range(1, 16):
                need = m + 1
                if need < 8:
                    if need % 2 == 0: g.wait_vm(f"wo{need // 2}")
                elif need < 16: g.wait_vm(f"wp{need}")
                if m == 15 and first: ready_check()
                g.A("s_barrier")
                if m + 7 < 16: wo_piece(m + 7)
            g.A("s_branch L_ld_end")
            return
        for d in range(1, 8):
            if d + 1 < 4 or (not o.stage and d + 1 < 8): g.wait_vm(f"wo{d+1}")
            elif o.stage: g.wait_lg0()
            if d == 7 and first: ready_check()
            g.A("s_barrier")
            if d + 3 < 8:
                if o.stage: wo_write(d + 3)
                else: wo_step(d + 3)
        g.A("s_branch L_ld_end")
    def ready_check():
        g.A(f"s_cmp_lg_u32 s{S_W}, 0"); g.A("s_cbranch_scc1 L_rdy_done")
        g.A(f"s_mov_b32 s{S_CNT}, 0")
        g.label("L_rdy")
        g.A(f"v_readfirstlane_b32 s{S_T1}, v{V_RD}")
        g.A(f"s_add_u32 s{S_CNT}, s{S_CNT}, 1")
        g.A(f"s_cmp_lg_u32 s{S_T1}, 0"); g.A("s_cbranch_scc1 L_rdy_done")
        g.A(f"s_cmp_ge_u32 s{S_CNT}, 0x40000"); g.A("s_cbranch_scc1 L_rdy_done")
        g.A(f"buffer_load_dword v{V_RD}, v{V_RA}, s[{SRD_DBG}:{SRD_DBG+3}], 0 offen sc1")
        g.A("s_waitcnt vmcnt(0)")
        g.A("s_branch L_rdy")
        g.label("L_rdy_done")
    def idle(n, lab):
        g.A(f"s_mov_b32 s{S_CNT}, {n}")
        g.label(lab)
        g.A("s_barrier")
        g.A(f"s_sub_u32 s{S_CNT}, s{S_CNT}, 1"); g.A(f"s_cmp_lg_u32 s{S_CNT}, 0"); g.A(f"s_cbranch_scc1 {lab}")
    def drain(vtags):
        wo_step(0)
        if o.wo_pf:
            g.A(f"v_and_b32 v{V_LT+2}, 31, v{V_LANE}"); g.A(f"v_lshlrev_b32 v{V_LT+2}, 10, v{V_LT+2}")
            g.A(f"s_lshl_b32 s{S_T0}, s{S_W}, 8"); g.A(f"s_add_u32 s{S_T0}, s{S_T0}, 128")
            g.A(f"v_add_u32 v{V_LT+2}, s{S_T0}, v{V_LT+2}")
            g.A(f"s_lshl_b32 s{S_T2}, s{S_WOROT}, 15")
            g.vmem(f"buffer_load_dword v{V_LT+1}, v{V_LT+2}, s[{SRD_WO}:{SRD_WO+3}], s{S_T2} offen nt", "pf")
        for t in range(28, 32):
            if vtags: g.wait_vm(f"V{t}")
            g.A("s_barrier")
            if t == 28: wo_step(1)
            if t == 29 and o.stage: wo_regs(0)
            if t == 30: wo_step(2)
            if t == 31 and o.stage: wo_regs(1)
        tail_p3(not vtags)
    g.A(f"s_cmp_eq_u32 s{S_W}, 3"); g.A("s_cbranch_scc1 L_vloader")
    vm_early = list(g.vm)
    g.wait_vm(["V0", "K2"]); g.A("s_barrier")
    g.wait_vm(["V1", "K3"]); g.A("s_barrier")
    srd(g, SRD_DBG, S_DBG, S_DBG+1, None, 256)
    srd(g, SRD_FL, S_WS, S_WS+1, None, FLAGB + 1024*128)
    g.A(f"s_lshl_b32 s{S_T0}, s{S_BB}, 13"); g.A(f"s_add_u32 s{S_T0}, s{S_T0}, {FLAGB}")
    g.A(f"v_lshlrev_b32 v{V_FA}, 7, v{V_LANE}"); g.A(f"v_add_u32 v{V_FA}, s{S_T0}, v{V_FA}")
    g.A(f"s_lshl_b32 s{S_T0}, s{S_BB}, 2"); g.A(f"v_mov_b32 v{V_RA}, s{S_T0}")
    g.A(f"s_or_b32 s{S_FIRST}, s{S_W}, s{S_HP}")
    g.A(f"s_cmp_lg_u32 s{S_FIRST}, 0"); g.A("s_cbranch_scc1 L_fl1")
    g.A(f"v_mov_b32 v{V_FD}, 0")
    g.A(f"buffer_store_dword v{V_FD}, v{V_FA}, s[{SRD_FL}:{SRD_FL+3}], 0 offen sc1")
    g.label("L_fl1")
    idle(8, "L_ld_idle1")
    g.A(f"s_cmp_lg_u32 s{S_FIRST}, 0"); g.A("s_cbranch_scc1 L_fl2")
    g.A("s_waitcnt vmcnt(0)")
    g.A(f"v_mov_b32 v{V_FD}, 1")
    g.A("s_mov_b64 exec, 1")
    g.A(f"buffer_store_dword v{V_FD}, v{V_RA}, s[{SRD_DBG}:{SRD_DBG+3}], 0 offen sc1")
    g.A("s_mov_b64 exec, -1")
    g.label("L_fl2")
    idle(10, "L_ld_idle2")
    g.A(f"s_cmp_lg_u32 s{S_W}, 0"); g.A("s_cbranch_scc1 L_fl3")
    g.A(f"buffer_load_dword v{V_RD}, v{V_RA}, s[{SRD_DBG}:{SRD_DBG+3}], 0 offen sc1")
    g.label("L_fl3")
    idle(8, "L_ld_idle3")
    g.A("s_waitcnt vmcnt(0)"); g.vm = []
    drain(False)
    g.label("L_vloader")
    g.vm = vm_early
    full_tile_regs(g, "V")
    g.A(f"s_mov_b32 s{S_VOFF}, {2*8192}")
    full_tile(g, o, "V", 2, "V2"); full_tile(g, o, "V", 3, "V3")
    g.wait_vm(["V0", "K2"])
    g.A(f"s_mov_b32 s{S_CNT}, 4")
    loop_label(g, "L_vld_loop")
    for t in range(6):
        g.A("s_waitcnt vmcnt(24)"); g.A("s_barrier")
        if not o.x_nodma: full_tile(g, o, "V", t+4, f"V{t+4}")
    g.A(f"s_sub_u32 s{S_CNT}, s{S_CNT}, 1"); g.A(f"s_cmp_lg_u32 s{S_CNT}, 0"); g.A("s_cbranch_scc1 L_vld_loop")
    g.vm = []
    for t in range(24, 28): g.vm += [f"V{t}"]*8
    for t in range(24, 28):
        g.wait_vm(f"V{t}"); g.A("s_barrier"); full_tile(g, o, "V", t+4, f"V{t+4}")
    drain(True)

def loader_tail(g, o):
    g.label("L_ld_end")
    if o.stamps is True:
        stamp(g, o, 7)
        g.A(f"s_cmp_lg_u32 s{S_W}, 0"); g.A("s_cbranch_scc1 L_ld_end2")
        dump_stamps(g, 0x1010000)
        g.label("L_ld_end2")
    g.A("s_endpgm")

def dump_stamps(g, base):
    g.A(f"s_add_u32 s40, s{S_WS}, {base}"); g.A(f"s_addc_u32 s41, s{S_WS+1}, 0"); g.A("s_and_b32 s41, s41, 0xffff")
    g.A("s_mov_b32 s42, 0x10000"); g.A("s_mov_b32 s43, 0x20000")
    for k in range(16): g.A(f"v_mov_b32 v{16+k}, s{S_STAMP+k}")
    g.A(f"s_lshl_b32 s{S_T0}, s2, 6"); g.A(f"v_mov_b32 v13, s{S_T0}")
    g.A("s_mov_b64 exec, 1")
    for k in range(4): g.A(f"buffer_store_dwordx4 v[{16+4*k}:{19+4*k}], v13, s[40:43], 0 offen offset:{16*k}")
    g.A("s_waitcnt vmcnt(0)")
    g.A("s_mov_b64 exec, -1")

def deferred_setup(o):
    g = G(); L = V_LANE; t0, t1, t2 = 92, 93, 94
    T0, T1 = S_T2, S_T3
    g.A(f"s_mov_b32 s{S_THR}, {hex(fbits(float(2.0 ** float(o.thr))))}"); g.A(f"s_mov_b32 s{S_THRLO}, {hex(fbits(THR_LO))}")
    g.A(f"s_mov_b32 s{S_C}, {hex(fbits(CSCALE))}"); g.A(f"s_mov_b32 s{S_C+1}, {hex(fbits(CSCALE))}")
    g.A(f"v_lshrrev_b32 v{t0}, 4, v{L}"); g.A(f"v_and_b32 v{t1}, 15, v{L}")
    g.A(f"s_and_b32 s{T0}, s{S_W}, 1"); g.A(f"s_lshl_b32 s{T0}, s{T0}, 3")
    g.A(f"v_lshrrev_b32 v{t2}, 1, v{t0}")
    g.A(f"v_xor_b32 v{t2}, v{t2}, v{t1}"); g.A(f"v_xor_b32 v{t2}, s{T0}, v{t2}"); g.A(f"v_lshlrev_b32 v{t2}, 4, v{t2}")
    g.A(f"v_and_b32 v{t0}, 1, v{t0}"); g.A(f"v_lshl_add_u32 v{t2}, v{t0}, 3, v{t2}")
    g.A(f"s_lshr_b32 s{T0}, s{S_W}, 1"); g.A(f"s_mul_i32 s{T0}, s{T0}, {48*256}"); g.A(f"s_add_u32 s{T0}, s{T0}, {QB}")
    g.A(f"v_lshl_add_u32 v{t2}, v{t1}, 8, v{t2}"); g.A(f"v_add_u32 v{t2}, s{T0}, v{t2}")
    for cb in range(4): g.A(f"v_xor_b32 v{V_QW+cb}, {cb << 5}, v{t2}")
    later_addresses(g, T0)
    g.A(f"s_lshl_b32 s{T1}, s{S_BB}, 4"); g.A(f"s_add_u32 s{T1}, s{T1}, s{S_HP}"); g.A(f"s_mul_i32 s{T1}, s{T1}, 49152")
    srd(g, SRD_P, S_WS, S_WS+1, f"s{T1}", 49152)
    select_branch(g, [2, 3])
    g.A(f"s_lshl_b32 s{T0}, s{S_B}, 3"); g.A(f"s_add_u32 s{T0}, s{T0}, s{S_HKV}"); g.A(f"s_lshl_b32 s{T0}, s{T0}, 18")
    srd(g, SRD_K, 34, 35, f"s{T0}", 262144)
    for i in range(64): g.A(f"v_mov_b32 v{V_O+i}, 0")
    return [l for l in g.L if not l.startswith(";")]

def chunks(lines, n):
    out = []; k = 0
    for i in range(n):
        e = len(lines) if i == n - 1 else max(k, (i + 1) * len(lines) // n)
        while e < len(lines) and (lines[e].startswith(("s_cselect", "s_addc", "v_cndmask", "s_nop")) or lines[e-1].startswith(("s_cmp", "v_cmp"))
                                  or (lines[e-2].startswith("v_cmp") or lines[e-3].startswith("v_cmp") or lines[e-4].startswith("v_cmp"))): e += 1
        out.append(lines[k:e]); k = e
    return out

def p1_compute(g, o):
    g.C("==== P1: Q projection")
    L = V_LANE; t0, t1, t2 = 9, 15, 12
    g.A(f"v_lshrrev_b32 v{t0}, 4, v{L}"); g.A(f"v_and_b32 v{t1}, 15, v{L}")
    g.A(f"v_xor_b32 v{t2}, v{t0}, v{t1}"); g.A(f"v_lshlrev_b32 v{t2}, 4, v{t2}")
    g.A(f"v_lshl_add_u32 v{V_XR}, v{t1}, 8, v{t2}")
    g.A(f"s_lshl_b32 s{S_RING}, s{S_W}, 14"); g.A(f"s_add_u32 s{S_RING}, s{S_RING}, {WQB}")
    r_, cc, sw = 13, 15, 14
    g.A(f"v_bfe_u32 v{r_}, v{L}, 2, 2"); g.A(f"v_and_b32 v{cc}, 3, v{L}")
    g.A(f"v_and_b32 v{sw}, 2, v{r_}"); g.A(f"v_and_b32 v{t2}, 1, v{t0}")
    g.A(f"v_lshl_or_b32 v{sw}, v{t2}, 2, v{sw}")
    g.A(f"v_lshrrev_b32 v{t2}, 1, v{cc}"); g.A(f"v_or_b32 v{sw}, v{sw}, v{t2}"); g.A(f"v_lshlrev_b32 v{sw}, 4, v{sw}")
    g.A(f"v_and_b32 v{t2}, 1, v{cc}"); g.A(f"v_lshl_add_u32 v{sw}, v{t2}, 3, v{sw}")
    g.A(f"v_lshl_add_u32 v{t2}, v{t0}, 3, v{r_}"); g.A(f"v_lshl_add_u32 v{sw}, v{t2}, 7, v{sw}")
    g.A(f"v_add_u32 v{sw}, s{S_RING}, v{sw}")
    for cb in range(4): g.A(f"v_xor_b32 v{V_WR+cb}, {cb << 5}, v{sw}")
    defer = chunks(deferred_setup(o), 15)
    def reads(i):
        out = []; buf = i % 2; slot = i % 4; vt = V_XT + buf
        def addr():
            g.A(f"s_add_u32 s{S_T0}, s{S_S0}, {i}"); g.A(f"s_and_b32 s{S_T0}, s{S_T0}, 15")
            g.A(f"s_and_b32 s{S_T1}, s{S_T0}, 3"); g.A(f"s_lshl_b32 s{S_T1}, s{S_T1}, 6")
            g.A(f"s_lshr_b32 s{S_T0}, s{S_T0}, 2"); g.A(f"s_mul_i32 s{S_T0}, s{S_T0}, 12288"); g.A(f"s_add_u32 s{S_T0}, s{S_T0}, {XB}")
            g.A(f"v_xor_b32 v{vt}, s{S_T1}, v{V_XR}"); g.A(f"v_add_u32 v{vt}, s{S_T0}, v{vt}")
        out.append(addr)
        for rb in range(3):
            out.append(lambda rb=rb: g.lds(f"ds_read_b128 {ar(A_B1[buf]+4*rb,4)}, v{vt} offset:{rb*4096}", f"f{i}B"))
        for cb in range(4):
            for u in range(2):
                out.append(lambda cb=cb, u=u: g.lds(
                    f"ds_read_b64_tr_b16 {ar(A_A1[buf]+4*cb+2*u,2)}, v{V_WR+cb} offset:{slot*4096+u*512}", f"f{i}A{cb}"))
        return out
    r0 = reads(0); r0[0](); reads(1)[0]()
    g.A("s_waitcnt lgkmcnt(0)")
    for i in range(16):
        buf = i % 2
        g.A("s_barrier")
        if i == 0:
            stamp(g, o, 1)
            for f in r0[1:]: f()
        def mf(cb, rb, i=i, buf=buf):
            a = vr(V_ACC1 + (cb*3 + rb)*4, 4)
            g.A(f"v_mfma_f32_16x16x32_bf16 {a}, {ar(A_A1[buf]+4*cb,4)}, {ar(A_B1[buf]+4*rb,4)}, {'0' if i == 0 else a}")
        gemm_step(g, i, mf, reads(i + 1)[1:] if i + 1 < 16 else [], int(o.front), None, reads(i + 2)[0] if i + 2 < 16 else None)
        if i < 15:
            for l in defer[i]: g.A(l)
    stamp(g, o, 2)
    g.A("s_barrier")
    for cb in range(4):
        for rb in range(3):
            a = V_ACC1 + (cb*3 + rb)*4
            g.A(f"v_pk_mul_f32 {vr(a,2)}, {vr(a,2)}, s[{S_C}:{S_C+1}]"); g.A(f"v_pk_mul_f32 {vr(a+2,2)}, {vr(a+2,2)}, s[{S_C}:{S_C+1}]")
            g.A(f"v_cvt_pk_bf16_f32 v{a}, v{a}, v{a+1}"); g.A(f"v_cvt_pk_bf16_f32 v{a+1}, v{a+2}, v{a+3}")
            g.lds(f"ds_write_b64 v{V_QW+cb}, {vr(a,2)} offset:{rb*4096}", "qw")

def later_addresses(g, T0):
    L = V_LANE; t0, t1, t2, t3 = 92, 93, 94, 95
    g.A(f"v_and_b32 v{t0}, 31, v{L}"); g.A(f"v_lshrrev_b32 v{t1}, 5, v{L}")
    g.A(f"v_and_b32 v{t2}, 15, v{L}"); g.A(f"v_xor_b32 v{t2}, v{t2}, v{t1}")
    g.A(f"v_lshlrev_b32 v{t2}, 4, v{t2}"); g.A(f"v_lshl_add_u32 v{t2}, v{t0}, 8, v{t2}")
    g.A(f"v_add_u32 v{t2}, {KB}, v{t2}")
    for s in range(8): g.A(f"v_xor_b32 v{V_KA+s}, {s << 5}, v{t2}")
    g.A(f"s_lshl_b32 s{T0}, s{S_W}, 13"); g.A(f"s_add_u32 s{T0}, s{T0}, {QB-KB}")
    for s in range(8): g.A(f"v_add_u32 v{V_NEGM+s}, s{T0}, v{V_KA+s}")
    g.A(f"v_bfe_u32 v{t0}, v{L}, 2, 2")
    g.A(f"v_lshl_add_u32 v{t2}, v{t1}, 2, v{t0}"); g.A(f"v_lshlrev_b32 v{t2}, 8, v{t2}")
    g.A(f"v_lshl_add_u32 v{t2}, v{t0}, 6, v{t2}")
    g.A(f"v_bfe_u32 v{t3}, v{L}, 4, 1"); g.A(f"v_lshl_add_u32 v{t2}, v{t3}, 5, v{t2}")
    g.A(f"v_and_b32 v{t3}, 3, v{L}"); g.A(f"v_lshl_add_u32 v{t2}, v{t3}, 3, v{t2}")
    for blk in range(4): g.A(f"v_xor_b32 v{V_VA+blk}, {blk << 6}, v{t2}")
    g.A(f"s_lshl_b32 s{T0}, s{S_W}, 5")
    g.A(f"v_and_b32 v{t0}, 31, v{L}"); g.A(f"v_add_u32 v{t0}, s{T0}, v{t0}")
    g.A(f"v_cmp_le_u32 vcc, 48, v{t0}"); g.A(f"v_subrev_u32 v{t3}, 48, v{t0}"); g.A(f"v_mov_b32 v{t2}, 0"); g.A("s_nop 0")
    g.A(f"v_cndmask_b32 v{t0}, v{t0}, v{t3}, vcc"); g.A(f"v_mov_b32 v{t3}, 256")
    g.A(f"v_cndmask_b32 v{t2}, v{t2}, v{t3}, vcc"); g.A(f"v_lshl_add_u32 v{V_OB}, v{t0}, 9, v{t2}")
    g.A(f"v_and_b32 v{t0}, 15, v{t0}"); g.A(f"v_lshl_add_u32 v{V_OB}, v{t0}, 4, v{V_OB}")
    g.A(f"v_lshl_add_u32 v{V_OB}, v{t1}, 3, v{V_OB}"); g.A(f"v_add_u32 v{V_OB}, {OB}, v{V_OB}")
    g.A(f"v_lshrrev_b32 v{t0}, 4, v{L}"); g.A(f"v_and_b32 v{t1}, 15, v{L}")
    g.A(f"v_xor_b32 v{t2}, v{t0}, v{t1}"); g.A(f"v_lshlrev_b32 v{t2}, 4, v{t2}")
    g.A(f"v_lshl_add_u32 v{V_OR}, v{t1}, 9, v{t2}"); g.A(f"v_add_u32 v{V_OR}, {OB}, v{V_OR}")
    r_, cc, sw = 9, 15, V_SW
    g.A(f"v_bfe_u32 v{r_}, v{L}, 2, 2"); g.A(f"v_and_b32 v{cc}, 3, v{L}")
    g.A(f"v_and_b32 v{sw}, 2, v{r_}"); g.A(f"v_and_b32 v{t2}, 1, v{t0}")
    g.A(f"v_lshl_or_b32 v{sw}, v{t2}, 2, v{sw}")
    g.A(f"v_lshrrev_b32 v{t2}, 1, v{cc}"); g.A(f"v_or_b32 v{sw}, v{sw}, v{t2}"); g.A(f"v_lshlrev_b32 v{sw}, 4, v{sw}")
    g.A(f"v_and_b32 v{t2}, 1, v{cc}"); g.A(f"v_lshl_add_u32 v{sw}, v{t2}, 3, v{sw}")
    g.A(f"v_lshl_add_u32 v{t2}, v{t0}, 3, v{r_}"); g.A(f"v_lshl_add_u32 v{sw}, v{t2}, 7, v{sw}")
    g.A(f"v_lshlrev_b32 v{V_ST}, 4, v{L}")
    for s in range(4): select_by_wave(g, S_WOA + s, [WO_ADDR[s][w] for w in range(4)])
    g.A(f"v_mov_b32 v{V_L}, 0")

def qk_mfma(g, s, dst, first_c):
    c = first_c if s == 0 else vr(dst, 16)
    g.A(f"v_mfma_f32_32x32x16_bf16 {vr(dst,16)}, {ar(A_K+4*s,4)}, {ar(A_Q+4*s,4)}, {c}")
def pv_mfma(g, s, blk, p):
    g.A(f"v_mfma_f32_32x32x16_bf16 {vr(V_O+16*blk,16)}, {ar(A_V+(s*4+blk)*4,4)}, {vr(p+4*s,4)}, {vr(V_O+16*blk,16)}")
def k_read(g, s, t):
    g.lds(f"ds_read_b128 {ar(A_K+4*s,4)}, v{V_KA+s} offset:{kslot(t)-KB}", "K")
def v_read(g, s, blk, u, t):
    g.lds(f"ds_read_b64_tr_b16 {ar(A_V+(s*4+blk)*4+2*u,2)}, v{V_VA+blk} offset:{vslot(t)-VB+4096*s+2048*u}", "V")

def p2_iter(g, t, do_qk=True, do_pv=True):
    o = OPT
    par = t % 2
    Scur, Snew, Pcur, Pprev = V_S[par], V_S[1-par], V_P[par], V_P[1-par]
    g.C(f"---- iteration {t}")
    gaps, left, load = schedule(do_qk, do_pv, cap_lo=int(o.cap_lo), cap_hi=int(o.cap_hi), ntemp=NTEMP)
    assert not left, left
    last_a = max(i for i, gp in enumerate(gaps) if ("A", 15) in gp)
    cmp_gap = min(last_a + 1, 15); br_gap = 15
    first = (t == 0 and o.m0init)
    e = lambda i: V_E + i % NTEMP
    def emit(it):
        k = it[0]
        if k == "E":
            if not o.x_novalu: g.A(f"v_exp_f32 v{e(it[1])}, v{Scur+it[1]}")
        elif k == "A":
            if o.x_novalu: return
            if it[1] == 1: g.A(f"v_add_f32 v{V_TS}, v{e(0)}, v{e(1)}")
            else: g.A(f"v_add_f32 v{V_TS}, v{V_TS}, v{e(it[1])}")
        elif k == "C":
            if not o.x_novalu: g.A(f"v_cvt_pk_bf16_f32 v{Pcur+it[1]}, v{e(2*it[1])}, v{e(2*it[1]+1)}")
        elif k == "K":
            if not o.x_nok: k_read(g, it[1], t+2)
        elif k == "V":
            if not o.x_nov: v_read(g, it[1]//4, it[1] % 4, it[2], t)
    for m in range(16):
        if m < 8 and do_qk and not o.x_nomfma: qk_mfma(g, m, Snew, vr(V_NEGM, 16))
        elif m >= 8 and do_pv and not o.x_nomfma: pv_mfma(g, (m-8)//4, (m-8) % 4, Pprev)
        else: g.A("s_nop 0")
        items = gaps[m]
        if ("X", "bar") in items: g.A("s_barrier")
        if m == cmp_gap:
            g.A(f"v_cmp_lt_f32 vcc, s{S_THR}, v{V_TS}")
            if first: g.A(f"v_cmp_gt_f32 s[{S_RET}:{S_RET+1}], s{S_THRLO}, v{V_TS}")
        for it in items:
            if it[0] != "X": emit(it)
        if m == br_gap:
            if first: g.A(f"s_or_b64 vcc, vcc, s[{S_RET}:{S_RET+1}]")
            g.A(f"s_cbranch_vccnz L_rare_{t}")
            g.label(f"L_back_{t}")
            g.A(f"v_add_f32 v{V_L}, v{V_L}, v{V_TS}")
        if m == 7 and do_pv: g.A(f"s_waitcnt lgkmcnt({8 if do_qk else 0})")
        if m == 15: g.A(f"s_waitcnt lgkmcnt({15 if do_pv else 0})")
    g.lg = []

def rare_stub(g, t):
    g.label(f"L_rare_{t}")
    sub = "L_rescale_first" if (t == 0 and OPT.m0init) else f"L_rescale_{t%2}"
    g.A(f"s_call_b64 s[{S_RET}:{S_RET+1}], {sub}")
    g.A(f"s_branch L_back_{t}")

def rowmax(g, S, dst, tmp):
    g.A(f"v_max3_f32 v{dst}, v{S}, v{S+1}, v{S+2}")
    for k in range(3, 15, 2): g.A(f"v_max3_f32 v{dst}, v{dst}, v{S+k}, v{S+k+1}")
    g.A(f"v_max_f32 v{dst}, v{dst}, v{S+15}")
    g.A(f"v_mov_b32 v{tmp}, v{dst}"); g.A("s_nop 1")
    g.A(f"v_permlane32_swap_b32 v{tmp}, v{dst}")
    g.A(f"v_max_f32 v{dst}, v{dst}, v{tmp}")

def rescale_sub(g, par, first=False):
    Scur, Snew, Pcur = V_S[par], V_S[1-par], V_P[par]
    d, tmp, f = V_T, V_T+1, V_F
    g.label("L_rescale_first" if first else f"L_rescale_{par}")
    g.A("s_nop 15"); g.A("s_nop 15")
    rowmax(g, Scur, d, tmp)
    if not first: g.A(f"v_max_f32 v{d}, 0, v{d}")
    for i in range(16):
        g.A(f"v_sub_f32 v{Scur+i}, v{Scur+i}, v{d}")
        g.A(f"v_sub_f32 v{Snew+i}, v{Snew+i}, v{d}")
        g.A(f"v_sub_f32 v{V_NEGM+i}, v{V_NEGM+i}, v{d}")
    if not first:
        g.A(f"v_sub_f32 v{f}, 0, v{d}"); g.A(f"v_exp_f32 v{f}, v{f}"); g.A("s_nop 0")
        g.A(f"v_mul_f32 v{V_L}, v{V_L}, v{f}")
        for i in range(64): g.A(f"v_mul_f32 v{V_O+i}, v{V_O+i}, v{f}")
    for k in range(8):
        g.A(f"v_exp_f32 v{V_E}, v{Scur+2*k}"); g.A(f"v_exp_f32 v{V_E+1}, v{Scur+2*k+1}"); g.A("s_nop 0")
        if k == 0: g.A(f"v_add_f32 v{V_TS}, v{V_E}, v{V_E+1}")
        else:
            g.A(f"v_add_f32 v{V_TS}, v{V_TS}, v{V_E}"); g.A(f"v_add_f32 v{V_TS}, v{V_TS}, v{V_E+1}")
        g.A(f"v_cvt_pk_bf16_f32 v{Pcur+k}, v{V_E}, v{V_E+1}")
    g.A("s_nop 1")
    g.A(f"s_setpc_b64 s[{S_RET}:{S_RET+1}]")

def p2_compute(g, o):
    g.C("==== P2: attention, compute waves 0..2")
    L = V_LANE; t0, t1, t2 = V_TMP, V_TMP+1, V_TMP+2
    for s in range(8): g.lds(f"ds_read_b128 {ar(A_Q+4*s,4)}, v{V_NEGM+s}", "Q")
    for s in range(8): k_read(g, s, 0)
    if o.m0init:
        for i in range(16): g.A(f"v_mov_b32 v{V_NEGM+i}, 0")
    g.wait_lg0()
    for s in range(8):
        qk_mfma(g, s, V_S[0], "0")
        k_read(g, s, 1)
    if not o.m0init:
        g.A("s_nop 15")
        rowmax(g, V_S[0], V_T, V_T+1)
        for i in range(16): g.A(f"v_sub_f32 v{V_NEGM+i}, 0, v{V_T}")
        for i in range(16): g.A(f"v_sub_f32 v{V_S[0]+i}, v{V_S[0]+i}, v{V_T}")
    else:
        g.A("s_nop 7")
    g.A("s_waitcnt lgkmcnt(0)")
    p2_iter(g, 0, do_pv=False)
    g.A(f"s_mov_b32 s{S_CNT}, 5")
    loop_label(g, "L_p2_loop")
    for t in range(1, 7): p2_iter(g, t)
    g.A(f"s_sub_u32 s{S_CNT}, s{S_CNT}, 1"); g.A(f"s_cmp_lg_u32 s{S_CNT}, 0"); g.A("s_cbranch_scc1 L_p2_loop")
    p2_iter(g, 31, do_qk=False)
    AD = V_S[0]
    g.A(f"v_mov_b32 v{V_RI}, v{V_L}"); g.A("s_nop 1")
    g.A(f"v_permlane32_swap_b32 v{V_RI}, v{V_L}")
    g.A(f"v_add_f32 v{V_L}, v{V_L}, v{V_RI}")
    g.A(f"v_rcp_f32 v{V_RI}, v{V_L}")
    g.A("s_waitcnt lgkmcnt(0)")
    g.A(f"v_mov_b32 v{V_RI+1}, v{V_RI}")
    g.A("s_barrier")
    stamp(g, o, 4)
    def norm(blk, i):
        a = V_O + 16*blk + 4*i
        g.A(f"v_pk_mul_f32 {vr(a,2)}, {vr(a,2)}, {vr(V_RI,2)}"); g.A(f"v_pk_mul_f32 {vr(a+2,2)}, {vr(a+2,2)}, {vr(V_RI,2)}")
        g.A(f"v_cvt_pk_bf16_f32 v{a}, v{a}, v{a+1}"); g.A(f"v_cvt_pk_bf16_f32 v{a+1}, v{a+2}, v{a+3}")
        g.lds(f"ds_write_b64 v{AD+4*blk+i}, {vr(a,2)}", "ow")
    pv = lambda s, blk: pv_mfma(g, s, blk, V_P[1])
    ad = lambda lo, hi: [g.A(f"v_xor_b32 v{AD+j}, {j << 4}, v{V_OB}") for j in range(lo, hi)]
    pv(0, 0); ad(0, 4); pv(1, 0); ad(4, 8); pv(0, 1); ad(8, 12); pv(1, 1); ad(12, 16)
    p3_setup(g, o, 0, 1)
    norm(0, 0); norm(0, 1); pv(0, 2); norm(0, 2); norm(0, 3); pv(1, 2)
    norm(1, 0); norm(1, 1); pv(0, 3); norm(1, 2); norm(1, 3); pv(1, 3)
    p3_setup(g, o, 1, 4)
    for blk in (2, 3):
        for i in range(4): norm(blk, i)

def p2_kloader(g, o):
    g.C("==== P2: wave 3 streams K")
    g.vm = []
    full_tile_regs(g, "K")
    g.A(f"s_mov_b32 s{S_KOFF}, {4*8192}")
    full_tile(g, o, "K", 4, "K4"); full_tile(g, o, "K", 5, "K5")
    g.A(f"s_mov_b32 s{S_CNT}, 4")
    loop_label(g, "L_kld_loop")
    for t in range(6):
        g.A("s_waitcnt vmcnt(24)"); g.A("s_barrier")
        if not o.x_nodma: full_tile(g, o, "K", t+6, f"K{t+6}")
    g.A(f"s_sub_u32 s{S_CNT}, s{S_CNT}, 1"); g.A(f"s_cmp_lg_u32 s{S_CNT}, 0"); g.A("s_cbranch_scc1 L_kld_loop")
    g.vm = []
    for t in range(26, 30): g.vm += [f"K{t}"]*8
    for t in range(24, 32):
        if t + 2 < 32: g.wait_vm(f"K{t+2}")
        g.A("s_barrier")
        if t + 6 < 32: full_tile(g, o, "K", t+6, f"K{t+6}")
    p3_setup(g, o, 0, 4)
    g.A("s_barrier")

def b_addr(g, j):
    g.A(f"s_add_u32 s{S_T0}, s{S_WOROT}, {j}"); g.A(f"s_and_b32 s{S_T0}, s{S_T0}, 7"); g.A(f"s_lshl_b32 s{S_T0}, s{S_T0}, 6")
    g.A(f"v_xor_b32 v{V_OT + j % 2}, s{S_T0}, v{V_OR}")

def p3_setup(g, o, d0, d1):
    if d0 == 0:
        for cb in range(4): g.A(f"v_xor_b32 v{2+cb}, {cb << 5}, v{V_SW}")
        g.A(f"s_mul_i32 s{S_T3}, s{S_W}, 12288")
    for d in range(d0, d1):
        for cb in range(4): g.A(f"v_add_u32 v{WOR[4*d+cb]}, s{S_WOA+d}, v{2+cb}")
    if d1 == 4: b_addr(g, 0); b_addr(g, 1)

def p3_compute(g, o):
    g.C("==== P3: partial output projection, two column halves of 8 k-steps")
    L = V_LANE
    g.wait_lg0()
    def reads(n):
        out = []; buf = n % 2; d = (n // 2) % 4
        if n < 8:
            for rb in range(3):
                out.append(lambda rb=rb: g.lds(f"ds_read_b128 {ar(12*n+4*rb,4)}, v{V_OT + n % 2} offset:{rb*8192}", f"f{n}B"))
        for cb in range(4):
            for u in range(2):
                out.append(lambda cb=cb, u=u: g.lds(
                    f"ds_read_b64_tr_b16 {vr(V_A3[buf]+4*cb+2*u,2)}, v{WOR[4*d+cb]} offset:{(n % 2)*4096+u*512}", f"f{n}A{cb}"))
        return out
    def acc(hb, cb, rb): return V_ACC3 + ((4*hb + cb)*3 + rb)*4
    def store_frag(cbp, rb):
        hb, c0 = cbp // 2, 2*(cbp % 2)
        a0, a1 = acc(hb, c0, rb), acc(hb, c0+1, rb)
        d = 2 + 4*((cbp*3+rb) % 2)
        g.A(f"v_cvt_pk_bf16_f32 v{d}, v{a0}, v{a0+1}"); g.A(f"v_cvt_pk_bf16_f32 v{d+1}, v{a0+2}, v{a0+3}")
        g.A(f"v_cvt_pk_bf16_f32 v{d+2}, v{a1}, v{a1+1}"); g.A(f"v_cvt_pk_bf16_f32 v{d+3}, v{a1+2}, v{a1+3}")
        pol = f" {o.pol_st}" if o.pol_st else ""
        g.A(f"s_add_u32 s{S_T2}, s{S_T3}, {rb*4096}")
        if o.x_nost and cbp < 2: return
        g.vmem(f"buffer_store_dwordx4 {vr(d,4)}, v{V_ST}, s[{SRD_P}:{SRD_P+3}], s{S_T2} offen offset:{cbp*1024}{pol}", "st")
    g.A("s_barrier")
    stamp(g, o, 5)
    for f in reads(0): f()
    early = [(cbp, rb) for cbp in (0, 1) for rb in range(3)]
    for n in range(16):
        hb, buf = n // 8, n % 2
        if (n % 2 == 0 or o.p3fine) and n > 0: g.A("s_barrier")
        if n in (4, 8, 12): stamp(g, o, 9 + (n - 4)//4)
        def mf(cb, rb, n=n, hb=hb, buf=buf):
            a = vr(acc(hb, cb, rb), 4)
            g.A(f"v_mfma_f32_16x16x32_bf16 {a}, {vr(V_A3[buf]+4*cb,4)}, {ar(12*(n % 8)+4*rb,4)}, {'0' if n % 8 == 0 else a}")
        after = None
        if 9 <= n < 15: after = {10: lambda k=n-9: store_frag(*early[k])}
        if n == 15: after = {9: lambda: store_frag(2, 0), 10: lambda: store_frag(2, 1), 11: lambda: store_frag(2, 2)}
        gemm_step(g, n, mf, reads(n + 1) if n + 1 < 16 else [], int(o.front), after, (lambda n=n: b_addr(g, n + 2)) if n + 2 < 8 else None)
    stamp(g, o, 6)
    g.A("s_nop 7")
    for rb in range(3): store_frag(3, rb)

def compute_tail(g, o):
    L = V_LANE
    g.C("==== hand-off and reduction of the 16 partial slabs of this (branch, batch)")
    R, T = S_T2, S_T3
    g.A(f"s_mul_i32 s{R}, s{S_HP}, 3"); g.A(f"s_add_u32 s{R}, s{R}, s{S_W}")
    srd(g, 4, S_WS, S_WS+1, None, 256*49152)
    srd(g, 8, S_OUT, S_OUT+1, None, 786432)
    srd(g, SRD_FL, S_WS, S_WS+1, None, FLAGB + 1024*128)
    g.A(f"s_mul_i32 s12, s{S_BB}, 786432"); g.A(f"s_lshl_b32 s{T}, s{R}, 10"); g.A(f"s_add_u32 s12, s12, s{T}")
    g.A(f"s_mul_i32 s13, s{R}, 43"); g.A("s_lshr_b32 s13, s13, 9")
    g.A("s_mul_i32 s14, s13, 12"); g.A(f"s_sub_u32 s14, s{R}, s14")
    g.A("s_lshr_b32 s15, s14, 2"); g.A("s_and_b32 s14, s14, 3")
    g.A(f"s_mul_i32 s16, s{S_B}, 98304")
    g.A(f"s_lshl_b32 s17, s{S_BR}, 10"); g.A("s_add_u32 s16, s16, s17")
    g.A("s_lshl_b32 s17, s15, 15"); g.A("s_add_u32 s16, s16, s17")
    g.A("s_lshl_b32 s17, s13, 8"); g.A("s_add_u32 s16, s16, s17")
    g.A("s_lshl_b32 s17, s14, 6"); g.A("s_add_u32 s16, s16, s17")
    g.A(f"v_lshlrev_b32 v12, 4, v{L}")
    g.A(f"v_and_b32 v13, 15, v{L}"); g.A(f"v_lshrrev_b32 v14, 4, v{L}")
    g.A("v_lshlrev_b32 v13, 11, v13"); g.A("v_lshl_add_u32 v13, v14, 3, v13")
    g.A(f"s_lshl_b32 s18, s{S_BB}, 13"); g.A(f"s_add_u32 s18, s18, {FLAGB}")
    g.A(f"s_lshl_b32 s19, s{S_HP}, 2"); g.A(f"s_add_u32 s19, s19, s{S_W}"); g.A("s_lshl_b32 s19, s19, 7"); g.A("s_add_u32 s19, s19, s18")
    g.A("s_lshl_b32 s20, s13, 7"); g.A("s_add_u32 s20, s20, s18")
    g.A(f"v_and_b32 v15, 15, v{L}"); g.A("v_lshlrev_b32 v15, 9, v15"); g.A("v_add_u32 v15, s20, v15")
    g.A("v_mov_b32 v10, s19"); g.A("v_mov_b32 v11, 1")
    g.A("s_waitcnt vmcnt(0)"); g.vm = []
    g.A("s_mov_b64 exec, 1")
    g.A(f"buffer_store_dword v11, v10, s[{SRD_FL}:{SRD_FL+3}], 0 offen sc1")
    g.A("s_mov_b64 exec, -1")
    g.A(f"s_cmp_ge_u32 s{S_W}, 3"); g.A("s_cbranch_scc1 L_red_done")
    g.A(f"s_mov_b32 s{S_CNT}, 0")
    if o.early_ld:
        g.A("s_mov_b32 s22, 0")
        g.label("L_poll")
        g.A("s_mov_b64 exec, 0xffff")
        g.A(f"buffer_load_dword v10, v15, s[{SRD_FL}:{SRD_FL+3}], 0 offen sc1")
        g.A(f"s_add_u32 s{S_CNT}, s{S_CNT}, 1")
        g.A("s_waitcnt vmcnt(0)")
        g.A("v_cmp_eq_u32 vcc, 1, v10")
        g.A("s_mov_b64 exec, -1")
        g.A(f"s_cmp_ge_u32 s{S_CNT}, 0x40000"); g.A("s_cselect_b32 s23, 0xffff, vcc_lo")
        g.A("s_andn2_b32 s23, s23, s22")
        g.A("s_cbranch_scc0 L_poll_next")
        for q in range(16):
            g.A(f"s_bitcmp1_b32 s23, {q}"); g.A(f"s_cbranch_scc0 L_skip{q}")
            g.A(f"s_add_u32 s21, s12, {q*49152}")
            g.A(f"buffer_load_dwordx4 v[{16+4*q}:{19+4*q}], v12, s[4:7], s21 offen sc1")
            g.label(f"L_skip{q}")
        g.A("s_or_b32 s22, s22, s23")
        g.A("s_cmp_eq_u32 s22, 0xffff"); g.A("s_cbranch_scc1 L_poll_done")
        g.label("L_poll_next")
        if int(o.sleep): g.A(f"s_sleep {int(o.sleep)}")
        g.A("s_branch L_poll")
        g.label("L_poll_done")
        stamp(g, o, 7)
        g.A("s_waitcnt vmcnt(0)")
    else:
        g.A("s_mov_b64 exec, 0xffff")
        g.label("L_poll")
        g.A(f"buffer_load_dword v10, v15, s[{SRD_FL}:{SRD_FL+3}], 0 offen sc1")
        g.A(f"s_add_u32 s{S_CNT}, s{S_CNT}, 1")
        g.A("s_waitcnt vmcnt(0)")
        g.A("v_cmp_eq_u32 vcc, 1, v10")
        g.A("s_cmp_eq_u64 vcc, exec"); g.A("s_cbranch_scc1 L_poll_done")
        g.A(f"s_cmp_ge_u32 s{S_CNT}, 0x40000"); g.A("s_cbranch_scc1 L_poll_done")
        if int(o.sleep): g.A(f"s_sleep {int(o.sleep)}")
        g.A("s_branch L_poll")
        g.label("L_poll_done")
        g.A("s_mov_b64 exec, -1")
        stamp(g, o, 7)
        for q in range(16):
            g.vmem(f"buffer_load_dwordx4 v[{16+4*q}:{19+4*q}], v12, s[4:7], s12 offen sc1", f"p{q}")
            if q < 15: g.A("s_add_u32 s12, s12, 49152")
    if o.dot2:
        g.A("s_mov_b32 s22, 0x00003f80"); g.A("s_mov_b32 s23, 0x3f800000")
        for j in range(8): g.A(f"v_mov_b32 v{2+j}, 0")
        for q in range(16):
            g.wait_vm(f"p{q}")
            for j in range(4):
                g.A(f"v_dot2c_f32_bf16 v{2+2*j}, s22, v{16+4*q+j}"); g.A(f"v_dot2c_f32_bf16 v{3+2*j}, s23, v{16+4*q+j}")
    else:
        for q in range(16):
            g.wait_vm(f"p{q}")
            for j in range(4):
                src = 16 + 4*q + j
                if q == 0:
                    g.A(f"v_lshlrev_b32 v{2+2*j}, 16, v{src}"); g.A(f"v_and_b32 v{3+2*j}, 0xffff0000, v{src}")
                else:
                    g.A(f"v_lshlrev_b32 v10, 16, v{src}"); g.A(f"v_and_b32 v11, 0xffff0000, v{src}")
                    g.A(f"v_add_f32 v{2+2*j}, v{2+2*j}, v10"); g.A(f"v_add_f32 v{3+2*j}, v{3+2*j}, v11")
    for j in range(4): g.A(f"v_cvt_pk_bf16_f32 v{16+j}, v{2+2*j}, v{3+2*j}")
    po = f" {o.pol_out}" if o.pol_out else ""
    g.A(f"buffer_store_dwordx2 v[16:17], v13, s[8:11], s16 offen{po}")
    g.A(f"buffer_store_dwordx2 v[18:19], v13, s[8:11], s16 offen offset:32{po}")
    g.label("L_red_done")
    if o.stamps is True:
        g.A(f"s_cmp_lg_u32 s{S_W}, 0"); g.A("s_cbranch_scc1 L_end")
        g.A("s_waitcnt vmcnt(0)")
        stamp(g, o, 8)
        dump_stamps(g, 0x1000000)
    elif o.stamps == "dbg":
        dbg_stamps(g, o)

def dbg_stamps(g, o):
    g.A("s_waitcnt vmcnt(0)")
    stamp(g, o, 8)
    g.A(f"s_cmp_lg_u32 s{S_W}, 0"); g.A("s_cbranch_scc1 L_end")
    g.A(f"s_cmp_lg_u32 s2, {int(o.dbgwg)}"); g.A("s_cbranch_scc1 L_end")
    srd(g, 40, S_DBG, S_DBG+1, None, 256)
    for k in range(12):
        g.A(f"s_sub_u32 s{S_T0}, s{S_STAMP+k}, s{S_STAMP}"); g.A(f"v_mov_b32 v{16+k}, s{S_T0}")
    for k in range(12, 16):
        g.A(f"s_sub_u32 s{S_T0}, s{S_STAMP+k}, s{S_STAMP+12}"); g.A(f"v_mov_b32 v{16+k}, s{S_T0}")
    g.A("v_mov_b32 v13, 0")
    g.A("s_mov_b64 exec, 1")
    for k in range(4): g.A(f"buffer_store_dwordx4 v[{16+4*k}:{19+4*k}], v13, s[40:43], 0 offen offset:{16*k}")
    g.A("s_waitcnt vmcnt(0)")

def compute_path(g, o):
    if int(o.prio): g.A(f"s_setprio {int(o.prio)}")
    p1_compute(g, o)
    g.A(f"s_cmp_eq_u32 s{S_W}, 3"); g.A("s_cbranch_scc1 L_wave3")
    g.wait_lg0()
    g.A("s_barrier")
    stamp(g, o, 3)
    p2_compute(g, o)
    g.label("L_p3")
    g.vm = []
    p3_compute(g, o)
    compute_tail(g, o)
    g.label("L_end")
    g.A("s_endpgm")
    g.label("L_wave3")
    g.A("s_waitcnt lgkmcnt(0)"); g.lg = []
    g.A("s_barrier")
    p2_kloader(g, o)
    g.A("s_branch L_p3")

def loader_path(g, o):
    g.lg = []; g.vm = []
    loader(g, o)
    loader_tail(g, o)

def k1(g, o):
    header(g, K1)
    entry(g, o)
    if o.ld_first:
        g.A(f"s_cmp_lt_u32 s{S_W}, 4"); g.A("s_cbranch_scc1 L_compute")
        loader_path(g, o)
        g.label("L_compute")
        g.lg = []; g.vm = []
        compute_path(g, o)
    else:
        g.A(f"s_cmp_ge_u32 s{S_W}, 4"); g.A("s_cbranch_scc1 L_loader")
        compute_path(g, o)
        g.label("L_loader")
        loader_path(g, o)
    for par in range(2): rescale_sub(g, par)
    if o.m0init: rescale_sub(g, 0, first=True)
    for t in [0, 1, 2, 3, 4, 5, 6, 31]: rare_stub(g, t)
    g.label("L_code_end")

def build(o):
    g = G()
    g.A("; @launch grid=(256,1,1) block=(512,1,1) lds=163840")
    g.A('.amdgcn_target "amdgcn-amd-amdhsa--gfx950"')
    k1(g, o)
    descriptor(g, K1, 256, ACC_OFF)
    return g

if __name__ == "__main__":
    o = Opt(); OPT = o
    for a in sys.argv[2:]:
        k, v = a.split("=", 1)
        setattr(o, k, {"True": True, "False": False}.get(v, v))
    g = build(o)
    if o.al8:
        g.L, fixed, left = alignpass.run(g.L, o.al8 == "pad")
        print("aligned", fixed, "left misaligned", left)
    probs = check(g.L)
    for p in probs[:8]: print("HAZARD", p)
    open(sys.argv[1], "w").write(g.text())
    print("lines", len(g.L))
```

```python
import sys, math, struct
from asmlib import G, check
from sched import schedule
import alignpass

PREFIX = "concat_heads__gqa_block_cached__gqa_block_cached__near_ridge"
K1 = PREFIX + "_kernel"

VB = 0
KB = 65536
XB = 114688
QB = XB
OB = 139264
WQB = 16384
NS = 6
def kslot(i): return KB + (NS - 1 - i % NS) * 8192
def vslot(i): return VB + (i % NS) * 8192
WO_ADDR = [[49152, 57344, 114688, 122880],
           [131072, kslot(26), kslot(27), kslot(28)],
           [vslot(26), kslot(29), vslot(27), kslot(30)],
           [vslot(28), kslot(31), vslot(29), vslot(30)]]
FLAGB = 14 << 20

CSCALE = math.log2(math.e) / math.sqrt(128.0)
def fbits(x): return struct.unpack("<I", struct.pack("<f", x))[0]
THR_HI = float(2 ** 20)
THR_LO = float(2 ** -20)

S_W = 3
SRD_X, SRD_WQ, SRD_K, SRD_V, SRD_WO, SRD_P = 4, 8, 12, 16, 20, 24
S_DBG, S_OUT, S_WS = 94, 96, 52
S_HKV, S_HALF, S_B, S_BR = 54, 55, 56, 57
S_S0, S_RING = 58, 59
S_T0, S_T1, S_T2, S_T3 = 60, 61, 62, 63
S_CNT = 64
S_KOFF, S_VOFF = 65, 66
S_THR = 67
S_C = 68
S_RET = 70
S_STAMP = 72
S_WOA = 88
S_BB, S_HP = 92, 93
S_LD2K, S_FIRST, S_THRLO, S_WOROT = 28, 29, 30, 31
S_XM, S_XO = 98, 99
SRD_DBG, SRD_FL = 32, 36

ACC_OFF = 160
V_LANE = 1
V_XR, V_XT = 2, 3
V_WR = 5
V_ACC1 = 32
V_E = 2; NTEMP = 8
V_L, V_TS, V_T, V_F = 10, 11, 12, 14
V_KA, V_VA = 16, 24
V_TMP = 28
V_S = [32, 48]; V_P = [64, 72]; V_NEGM = 80; V_O = 96
A_Q, A_K, A_V = 0, 32, 64
A_A1 = [0, 16]; A_B1 = [32, 44]
V_OB, V_OR, V_SW, V_ST = 28, 29, 30, 31
V_OT = 14
V_RI = 8
V_QW = 88
V_ACC3 = 64
WOR = [10, 11, 12, 13] + list(range(16, 28))
V_A3 = [32, 48]
A_A3 = [0, 16]; A_B3 = [32, 44]
V_STG = 32
V_XD = 2; V_WD = 4; V_KE0, V_KE1, V_VE = 8, 9, 10; V_WOD = 12; V_LT = 16
V_FA, V_FD, V_RA, V_RD = 20, 21, 22, 23
V_FT = 24

def vr(b, n=1): return f"v{b}" if n == 1 else f"v[{b}:{b+n-1}]"
def ar(b, n=1): return f"a{b}" if n == 1 else f"a[{b}:{b+n-1}]"

class Opt:
    nt_kv = "nt"; pol_w = ""; pol_x = ""; pol_st = "sc1"
    stamps = False; rot = True; sleep = 1; dbgwg = 37
    cap_lo = 24; cap_hi = 24
    layout = "cf"; ldprio = 0; probe = None; al8 = True; align = 0; p3fine = True; swap_first = False; vtouch = False; pol_out = ""; wq3 = False; dot2 = True; early_ld = True; ld_first = False; code_pf = False; wo_pf = False; stage = False; front = 9; kv_pol1 = None; first_nt = False; nt_x = 0; nt_wq = 2; nt_wo = 1; pretouch = False; m0init = True; prio = 0; thr = 20
    x_now = False; x_nost = False; x_nok = False; x_nov = False; x_novalu = False; x_nomfma = False; x_nodma = False
OPT = None

def stamp(g, o, idx):
    if o.stamps:
        g.A("s_memrealtime s[100:101]"); g.A("s_waitcnt lgkmcnt(0)"); g.A(f"s_mov_b32 s{S_STAMP+idx}, s100")
        cyc = {0: 12, 3: 13, 4: 14, 8: 15}
        if idx in cyc:
            g.A("s_memtime s[100:101]"); g.A("s_waitcnt lgkmcnt(0)"); g.A(f"s_mov_b32 s{S_STAMP+cyc[idx]}, s100")
        g.lg = []

def header(g, name):
    g.A(".text"); g.A(f".globl {name}"); g.A(".p2align 8"); g.A(f".type {name},@function"); g.label(name)

def descriptor(g, name, vgpr, accum, sgpr=102):
    g.A('.section .rodata,"a"'); g.A(".p2align 6"); g.A(f".amdhsa_kernel {name}")
    g.A(f".amdhsa_next_free_vgpr {vgpr}"); g.A(f".amdhsa_next_free_sgpr {sgpr}"); g.A(f".amdhsa_accum_offset {accum}")
    g.A(".amdhsa_group_segment_fixed_size 0"); g.A(".amdhsa_kernarg_size 104"); g.A(".amdhsa_user_sgpr_count 2")
    g.A(".amdhsa_user_sgpr_kernarg_segment_ptr 1"); g.A(".amdhsa_system_sgpr_workgroup_id_x 1"); g.A(".end_amdhsa_kernel")

def srd(g, d, lo, hi, off_s, nrec):
    if off_s is None:
        g.A(f"s_mov_b32 s{d}, s{lo}"); g.A(f"s_and_b32 s{d+1}, s{hi}, 0xffff")
    else:
        g.A(f"s_add_u32 s{d}, s{lo}, {off_s}"); g.A(f"s_addc_u32 s{d+1}, s{hi}, 0"); g.A(f"s_and_b32 s{d+1}, s{d+1}, 0xffff")
    g.A(f"s_mov_b32 s{d+2}, {nrec}"); g.A(f"s_mov_b32 s{d+3}, 0x20000")

def dma(g, voff, srd_, soff, imm, pol, tag):
    off = f" offset:{imm}" if imm else ""
    pol = f" {pol}" if pol else ""
    g.vmem(f"buffer_load_dwordx4 v{voff}, s[{srd_}:{srd_+3}], {soff} offen{off}{pol} lds", tag)

_lab = [0]
def dma_group(g, o, items, tag):
    if o.kv_pol1 is None:
        for it in items: dma(g, *it, o.nt_kv, tag)
        return
    _lab[0] += 1; n = _lab[0]
    g.A(f"s_cmp_eq_u32 s{S_HALF}, 1"); g.A(f"s_cbranch_scc1 L_kvp{n}")
    vm = list(g.vm)
    for it in items: dma(g, *it, o.nt_kv, tag)
    g.A(f"s_branch L_kvq{n}")
    g.label(f"L_kvp{n}")
    g.vm = vm
    for it in items: dma(g, *it, o.kv_pol1, tag)
    g.label(f"L_kvq{n}")

def weave(main, fill):
    n = len(main); m = len(fill); k = 0
    for i, f in enumerate(main):
        f()
        tgt = (i + 1) * m // n
        while k < tgt:
            fill[k](); k += 1

def gemm_step(g, n, mfma, fill, front=9, after=None, addr=None):
    k = 0; m = len(fill)
    for i in range(12):
        cb = i // 3
        if i % 3 == 0: g.wait_lg([f"f{n}B", f"f{n}A{cb}"])
        mfma(cb, i % 3)
        tgt = min(m, -(-(i + 1) * m // front))
        while k < tgt:
            fill[k](); k += 1
        if addr and i == 9: addr()
        if after and i in after: after[i]()

def loop_label(g, name):
    if int(OPT.align): g.A(f".p2align {int(OPT.align)}")
    g.label(name)

def select_by_wave(g, dst, vals):
    g.A(f"s_mov_b32 s{dst}, {vals[0]}")
    for k in range(1, len(vals)):
        g.A(f"s_cmp_eq_u32 s{S_W}, {k}"); g.A(f"s_cselect_b32 s{dst}, {vals[k]}, s{dst}")

def entry(g, o):
    g.A("s_cmp_ge_u32 s2, 256"); g.A("s_cbranch_scc1 L_end")
    stamp(g, o, 0)
    g.A("s_load_dwordx16 s[32:47], s[0:1], 0")
    g.A("s_load_dwordx4 s[48:51], s[0:1], 64")
    g.A(f"s_load_dwordx2 s[{S_WS}:{S_WS+1}], s[0:1], 96")
    g.A(f"s_load_dwordx2 s[{S_OUT}:{S_OUT+1}], s[0:1], 80")
    g.A(f"s_load_dwordx2 s[{S_DBG}:{S_DBG+1}], s[0:1], 88")
    g.A(f"v_and_b32 v{V_LANE}, 63, v0")
    g.A("v_lshrrev_b32 v2, 6, v0")
    g.A(f"s_and_b32 s{S_HKV}, s2, 7")
    g.A(f"v_readfirstlane_b32 s{S_W}, v2")
    g.A(f"s_lshr_b32 s{S_T0}, s2, 3")
    g.A(f"s_and_b32 s{S_HALF}, s{S_T0}, 1")
    g.A(f"s_lshr_b32 s{S_B}, s{S_T0}, 1"); g.A(f"s_and_b32 s{S_B}, s{S_B}, 7")
    g.A(f"s_lshr_b32 s{S_BR}, s{S_T0}, 4")
    g.A(f"s_lshl_b32 s{S_HP}, s{S_HKV}, 1"); g.A(f"s_add_u32 s{S_HP}, s{S_HP}, s{S_HALF}")
    g.A(f"s_lshl_b32 s{S_BB}, s{S_BR}, 3"); g.A(f"s_add_u32 s{S_BB}, s{S_BB}, s{S_B}")
    if o.rot:
        g.A(f"s_lshl_b32 s{S_S0}, s{S_B}, 1"); g.A(f"s_lshl_b32 s{S_T0}, s{S_HALF}, 3")
        g.A(f"s_add_u32 s{S_S0}, s{S_S0}, s{S_T0}"); g.A(f"s_and_b32 s{S_S0}, s{S_S0}, 15")
        g.A(f"s_mov_b32 s{S_WOROT}, s{S_B}")
    else:
        g.A(f"s_mov_b32 s{S_S0}, 0"); g.A(f"s_mov_b32 s{S_WOROT}, 0")

def select_branch(g, idx):
    g.A(f"s_cmp_eq_u32 s{S_BR}, 1")
    for i in idx: g.A(f"s_cselect_b32 s{32+i}, s{42+i}, s{32+i}")

def srd_kv(g, which):
    g.A(f"s_lshl_b32 s{S_T0}, s{S_B}, 3"); g.A(f"s_add_u32 s{S_T0}, s{S_T0}, s{S_HKV}"); g.A(f"s_lshl_b32 s{S_T0}, s{S_T0}, 18")
    if "K" in which: srd(g, SRD_K, 34, 35, f"s{S_T0}", 262144)
    if "V" in which: srd(g, SRD_V, 36, 37, f"s{S_T0}", 262144)

EARLY = [("K", 0), ("K", 1), ("V", 0), ("K", 2), ("V", 1), ("K", 3)]

def full_tile_regs(g, kind):
    L = V_LANE; t0, t1 = 60, 61
    g.A(f"v_lshrrev_b32 v{t0}, 4, v{L}"); g.A(f"v_and_b32 v{t1}, 15, v{L}")
    for e in range(4 if kind == "K" else 1):
        d = V_FT + e
        if kind == "K": g.A(f"v_add_u32 v{d}, {4*e}, v{t0}")
        else: g.A(f"v_lshlrev_b32 v{d}, 2, v{t0}")
        g.A(f"v_xor_b32 v{d}, v{d}, v{t1}"); g.A(f"v_lshlrev_b32 v{d}, 4, v{d}"); g.A(f"v_lshl_add_u32 v{d}, v{t0}, 8, v{d}")

def full_tile(g, o, kind, t, tag):
    so = S_KOFF if kind == "K" else S_VOFF
    base = kslot(t) if kind == "K" else vslot(t)
    for hf in range(2):
        g.A(f"s_mov_b32 m0, {base + hf*4096}"); g.A("s_nop 0")
        dma_group(g, o, [(V_FT + (e if kind == "K" else 0), SRD_K if kind == "K" else SRD_V, f"s{so}", 1024*e) for e in range(4)], tag)
        g.A(f"s_add_u32 s{so}, s{so}, 4096")

def loader(g, o):
    g.C("================ loader waves")
    L = V_LANE; t0, t1, t2, t3 = V_LT, V_LT+1, V_LT+2, V_LT+3
    g.A(f"s_sub_u32 s{S_W}, s{S_W}, 4")
    g.A(f"v_lshrrev_b32 v{t0}, 4, v{L}"); g.A(f"v_and_b32 v{t1}, 15, v{L}")
    g.A(f"s_lshl_b32 s{S_T0}, s{S_W}, 2")
    g.A(f"v_add_u32 v{t2}, s{S_T0}, v{t0}"); g.A(f"v_xor_b32 v{t2}, v{t2}, v{t1}"); g.A(f"v_lshlrev_b32 v{t2}, 4, v{t2}")
    g.A(f"v_lshl_add_u32 v{V_XD}, v{t0}, 10, v{t2}")
    def x_prep(j):
        g.A(f"s_lshr_b32 s{S_T0}, s{S_S0}, 2"); g.A(f"s_add_u32 s{S_T0}, s{S_T0}, {j}"); g.A(f"s_and_b32 s{S_T0}, s{S_T0}, 3")
        g.A(f"s_mul_i32 s{S_XM}, s{S_T0}, 12288"); g.A(f"s_lshl_b32 s{S_T1}, s{S_W}, 10"); g.A(f"s_add_u32 s{S_XM}, s{S_XM}, s{S_T1}")
        g.A(f"s_lshl_b32 s{S_XO}, s{S_T0}, 8"); g.A(f"s_lshl_b32 s{S_T1}, s{S_W}, 12"); g.A(f"s_add_u32 s{S_XO}, s{S_XO}, s{S_T1}")
    def x_issue(j):
        for i3 in range(3):
            g.A(f"s_add_u32 m0, s{S_XM}, {XB + i3*4096}")
            g.A(f"s_add_u32 s{S_T0}, s{S_XO}, {i3*16384}")
            dma(g, V_XD, SRD_X, f"s{S_T0}", 0, "nt" if (o.first_nt and j < int(o.nt_x)) else o.pol_x, f"x{j}")
    def wq_step(i):
        g.A(f"s_add_u32 s{S_T2}, s{S_S0}, {i}"); g.A(f"s_and_b32 s{S_T2}, s{S_T2}, 15")
        g.A(f"s_add_u32 m0, s{S_RING}, {(i%4)*4096}")
        g.A(f"s_lshl_b32 s{S_T2}, s{S_T2}, 18")
        pol = "nt" if (o.first_nt and i < int(o.nt_wq)) else o.pol_w
        for jj in range(4): dma(g, V_WD + jj, SRD_WQ, f"s{S_T2}", 1024*jj, pol, f"wq{i}")
    x_prep(0)
    g.A("s_waitcnt lgkmcnt(0)")
    stamp(g, o, 1)
    select_branch(g, [0, 1, 6, 7])
    g.A(f"s_mul_i32 s{S_T0}, s{S_B}, 49152"); srd(g, SRD_X, 32, 33, f"s{S_T0}", 49152)
    x_issue(0)
    g.A(f"v_lshrrev_b32 v{t2}, 3, v{L}"); g.A(f"v_and_b32 v{t3}, 7, v{L}")
    g.A(f"s_lshl_b32 s{S_T0}, s{S_W}, 7")
    for jj in range(4):
        d = V_WD + jj
        g.A(f"v_and_b32 v{d}, 2, v{t2}")
        if jj & 1: g.A(f"v_or_b32 v{d}, 4, v{d}")
        g.A(f"v_xor_b32 v{d}, v{d}, v{t3}"); g.A(f"v_lshlrev_b32 v{d}, 4, v{d}")
        g.A(f"v_lshl_add_u32 v{d}, v{t2}, 13, v{d}")
        g.A(f"v_add_u32 v{d}, s{S_T0}, v{d}")
        if jj: g.A(f"v_add_u32 v{d}, {jj*64512}, v{d}")
    g.A(f"s_lshl_b32 s{S_RING}, s{S_W}, 14"); g.A(f"s_add_u32 s{S_RING}, s{S_RING}, {WQB}")
    g.A(f"s_lshl_b32 s{S_T1}, s{S_HP}, 9")
    srd(g, SRD_WQ, 38, 39, f"s{S_T1}", 0)
    g.A(f"s_sub_u32 s{SRD_WQ+2}, 0x400000, s{S_T1}")
    wq_step(0); wq_step(1)
    x_prep(1); x_issue(1)
    wq_step(2)
    if o.wq3: wq_step(3)
    stamp(g, o, 2)
    g.C("@SPLIT")
    if o.code_pf:
        g.A(f"s_cmp_lg_u32 s{S_W}, 1"); g.A("s_cbranch_scc1 L_cpf")
        g.A("s_getpc_b64 s[98:99]"); g.label("L_pc")
        g.A(f"s_sub_u32 s98, s98, L_pc-{K1}"); g.A("s_subb_u32 s99, s99, 0")
        g.A(f"s_lshr_b32 s{S_T3}, s2, 3"); g.A(f"s_lshl_b32 s{S_T3}, s{S_T3}, 10")
        g.A(f"v_lshl_add_u32 v{t2}, v{L}, 4, s{S_T3}")
        g.A(f"v_min_u32 v{t2}, L_code_end-{K1}-16, v{t2}")
        g.A(f"global_load_dwordx4 v[32:35], v{t2}, s[98:99]")
        g.label("L_cpf")
    select_branch(g, [2, 3, 4, 5, 8, 9])
    srd_kv(g, "KV")
    g.A(f"s_lshl_b32 s{S_T1}, s{S_HP}, 18")
    srd(g, SRD_WO, 40, 41, f"s{S_T1}", 262144)
    if o.vtouch:
        g.A(f"v_mov_b32 v{V_LT+2}, 0"); g.A("s_mov_b64 exec, 1")
        for k, srd_ in enumerate((SRD_K, SRD_V, SRD_WO)):
            g.A(f"s_cmp_lg_u32 s{S_W}, {k}"); g.A(f"s_cbranch_scc1 L_vt{k}")
            g.A(f"buffer_load_dword v31, v{V_LT+2}, s[{srd_}:{srd_+3}], 0 offen nt")
            g.label(f"L_vt{k}")
        g.A("s_mov_b64 exec, -1")
    if o.pretouch:
        g.A(f"s_lshl_b32 s{S_T1}, s{S_BB}, 4"); g.A(f"s_add_u32 s{S_T1}, s{S_T1}, s{S_HP}"); g.A(f"s_mul_i32 s{S_T1}, s{S_T1}, 49152")
        g.A(f"s_add_u32 s44, s{S_WS}, s{S_T1}"); g.A(f"s_addc_u32 s45, s{S_WS+1}, 0")
        for r in (SRD_K, SRD_V, SRD_WO, 44, S_OUT, S_DBG):
            g.A(f"s_load_dword s46, s[{r}:{r+1}], 0")
        g.A(f"s_add_u32 s44, s{S_WS}, {FLAGB}"); g.A(f"s_addc_u32 s45, s{S_WS+1}, 0")
        g.A("s_load_dword s46, s[44:45], 0")
    g.A(f"s_lshl_b32 s{S_LD2K}, s{S_W}, 11")
    g.A(f"v_lshlrev_b32 v{t2}, 8, v{t0}"); g.A(f"v_add_u32 v{t2}, s{S_LD2K}, v{t2}")
    g.A(f"s_lshl_b32 s{S_T1}, s{S_W}, 3"); g.A(f"s_and_b32 s{S_T1}, s{S_T1}, 15")
    for e in range(2):
        d = V_KE0 + e
        g.A(f"v_add_u32 v{d}, s{S_T1}, v{t0}")
        if e: g.A(f"v_add_u32 v{d}, 4, v{d}")
        g.A(f"v_xor_b32 v{d}, v{d}, v{t1}"); g.A(f"v_lshl_add_u32 v{d}, v{d}, 4, v{t2}")
    g.A(f"v_lshlrev_b32 v{V_VE}, 2, v{t0}"); g.A(f"v_xor_b32 v{V_VE}, v{V_VE}, v{t1}")
    g.A(f"v_lshl_add_u32 v{V_VE}, v{V_VE}, 4, v{t2}")
    g.A(f"v_lshrrev_b32 v{t2}, 3, v{L}"); g.A(f"v_and_b32 v{t3}, 7, v{L}")
    g.A(f"s_lshl_b32 s{S_T0}, s{S_W}, 8")
    for jj in range(4):
        d = V_WOD + jj
        g.A(f"v_and_b32 v{d}, 2, v{t2}")
        if jj & 1: g.A(f"v_or_b32 v{d}, 4, v{d}")
        g.A(f"v_xor_b32 v{d}, v{d}, v{t3}"); g.A(f"v_lshlrev_b32 v{d}, 4, v{d}")
        g.A(f"v_lshl_add_u32 v{d}, v{t2}, 10, v{d}")
        g.A(f"v_add_u32 v{d}, s{S_T0}, v{d}")
        if jj: g.A(f"v_add_u32 v{d}, {jj*7168}, v{d}")
    for s in range(4): select_by_wave(g, S_WOA + s, [WO_ADDR[s][w] for w in range(4)])
    g.A(f"s_mov_b32 s{S_KOFF}, 0"); g.A(f"s_mov_b32 s{S_VOFF}, 0")
    if o.pretouch: g.A("s_waitcnt lgkmcnt(0)")
    def kv(kind, t, tag):
        so = S_KOFF if kind == "K" else S_VOFF
        g.A(f"s_add_u32 m0, s{S_LD2K}, {kslot(t) if kind == 'K' else vslot(t)}")
        g.A("s_nop 0")
        if kind == "K": dma_group(g, o, [(V_KE0, SRD_K, f"s{so}", 0), (V_KE1, SRD_K, f"s{so}", 1024)], tag)
        else: dma_group(g, o, [(V_VE, SRD_V, f"s{so}", 0), (V_VE, SRD_V, f"s{so}", 1024)], tag)
        g.A(f"s_add_u32 s{so}, s{so}, 8192")
    def wo_soff(n):
        g.A(f"s_add_u32 s{S_T2}, s{S_WOROT}, {n % 8}"); g.A(f"s_and_b32 s{S_T2}, s{S_T2}, 7"); g.A(f"s_lshl_b32 s{S_T2}, s{S_T2}, 15")
        if n >= 8: g.A(f"s_add_u32 s{S_T2}, s{S_T2}, 128")
    def wo_step(d):
        for n in (2*d, 2*d+1):
            g.A(f"s_add_u32 m0, s{S_WOA + d % 4}, {(n % 2)*4096}")
            wo_soff(n)
            pol = "nt" if (o.first_nt and (n if o.wo_pf else n % 8) < int(o.nt_wo)) else o.pol_w
            for jj in range(4): dma(g, V_WOD + jj, SRD_WO, f"s{S_T2}", 1024*jj, pol, f"wo{d}")
    def wo_piece(n):
        g.A(f"s_add_u32 m0, s{S_WOA + ((n - 8) // 2)}, {(n % 2)*4096}")
        wo_soff(n)
        for jj in range(4): dma(g, V_WOD + jj, SRD_WO, f"s{S_T2}", 1024*jj, o.pol_w, f"wp{n}")
    def wo_regs(k):
        for n in (8 + 2*k, 9 + 2*k):
            wo_soff(n)
            pol = " nt" if (o.first_nt and n - 8 < int(o.nt_wo)) else (f" {o.pol_w}" if o.pol_w else "")
            for jj in range(4):
                r = V_STG + ((n - 8)*4 + jj)*4
                off = f" offset:{1024*jj}" if jj else ""
                g.vmem(f"buffer_load_dwordx4 {vr(r,4)}, v{V_WOD+jj}, s[{SRD_WO}:{SRD_WO+3}], s{S_T2} offen{off}{pol}", f"wr{k}")
    def wo_write(d):
        g.wait_vm(f"wr{d-4}")
        g.A(f"v_add_u32 v{V_LT+2}, s{S_WOA + d - 4}, v{V_LT+3}")
        for k in range(8):
            if o.x_now: break
            r = V_STG + ((d-4)*8 + k)*4
            g.lds(f"ds_write_b128 v{V_LT+2}, {vr(r,4)} offset:{k*1024}", "ww")
    need_x = {0: "x0", 1: "x1", 5: "x2", 9: "x3"}
    for i in range(16):
        tags = []
        if i == 0: tags += ["wq0", "wq1"]
        elif i + 1 < 16: tags.append(f"wq{i+1}")
        if i in need_x: tags.append(need_x[i])
        if tags: g.wait_vm(tags)
        if i == 0: stamp(g, o, 3)
        g.A("s_barrier")
        if i + 3 < 16:
            if not (o.wq3 and i == 0): wq_step(i + 3)
        else:
            for kind, t in EARLY[(i-13)*2:(i-13)*2+2]: kv(kind, t, f"{kind}{t}")
        if i == 0: x_prep(2); x_issue(2)
        if i == 3: x_prep(3); x_issue(3)
    g.A("s_barrier")
    g.wait_vm(["K0", "K1"]); g.A("s_barrier")
    stamp(g, o, 4)
    def tail_p3(first):
        g.A("s_barrier")
        wo_step(3)
        if o.stage: wo_regs(2)
        g.A(f"v_lshlrev_b32 v{V_LT+3}, 4, v{V_LANE}")
        g.wait_vm(["wo0", "wo1"]); g.A("s_barrier")
        if o.stage: wo_regs(3)
        if o.p3fine:
            for m in range(1, 16):
                need = m + 1
                if need < 8:
                    if need % 2 == 0: g.wait_vm(f"wo{need // 2}")
                elif need < 16: g.wait_vm(f"wp{need}")
                if m == 15 and first: ready_check()
                g.A("s_barrier")
                if m + 7 < 16: wo_piece(m + 7)
            g.A("s_branch L_ld_end")
            return
        for d in range(1, 8):
            if d + 1 < 4 or (not o.stage and d + 1 < 8): g.wait_vm(f"wo{d+1}")
            elif o.stage: g.wait_lg0()
            if d == 7 and first: ready_check()
            g.A("s_barrier")
            if d + 3 < 8:
                if o.stage: wo_write(d + 3)
                else: wo_step(d + 3)
        g.A("s_branch L_ld_end")
    def ready_check():
        g.A(f"s_cmp_lg_u32 s{S_W}, 0"); g.A("s_cbranch_scc1 L_rdy_done")
        g.A(f"s_mov_b32 s{S_CNT}, 0")
        g.label("L_rdy")
        g.A(f"v_readfirstlane_b32 s{S_T1}, v{V_RD}")
        g.A(f"s_add_u32 s{S_CNT}, s{S_CNT}, 1")
        g.A(f"s_cmp_lg_u32 s{S_T1}, 0"); g.A("s_cbranch_scc1 L_rdy_done")
        g.A(f"s_cmp_ge_u32 s{S_CNT}, 0x40000"); g.A("s_cbranch_scc1 L_rdy_done")
        g.A(f"buffer_load_dword v{V_RD}, v{V_RA}, s[{SRD_DBG}:{SRD_DBG+3}], 0 offen sc1")
        g.A("s_waitcnt vmcnt(0)")
        g.A("s_branch L_rdy")
        g.label("L_rdy_done")
    def idle(n, lab):
        g.A(f"s_mov_b32 s{S_CNT}, {n}")
        g.label(lab)
        g.A("s_barrier")
        g.A(f"s_sub_u32 s{S_CNT}, s{S_CNT}, 1"); g.A(f"s_cmp_lg_u32 s{S_CNT}, 0"); g.A(f"s_cbranch_scc1 {lab}")
    def drain(vtags):
        wo_step(0)
        if o.wo_pf:
            g.A(f"v_and_b32 v{V_LT+2}, 31, v{V_LANE}"); g.A(f"v_lshlrev_b32 v{V_LT+2}, 10, v{V_LT+2}")
            g.A(f"s_lshl_b32 s{S_T0}, s{S_W}, 8"); g.A(f"s_add_u32 s{S_T0}, s{S_T0}, 128")
            g.A(f"v_add_u32 v{V_LT+2}, s{S_T0}, v{V_LT+2}")
            g.A(f"s_lshl_b32 s{S_T2}, s{S_WOROT}, 15")
            g.vmem(f"buffer_load_dword v{V_LT+1}, v{V_LT+2}, s[{SRD_WO}:{SRD_WO+3}], s{S_T2} offen nt", "pf")
        for t in range(28, 32):
            if vtags: g.wait_vm(f"V{t}")
            g.A("s_barrier")
            if t == 28: wo_step(1)
            if t == 29 and o.stage: wo_regs(0)
            if t == 30: wo_step(2)
            if t == 31 and o.stage: wo_regs(1)
        tail_p3(not vtags)
    g.A(f"s_cmp_eq_u32 s{S_W}, 3"); g.A("s_cbranch_scc1 L_vloader")
    vm_early = list(g.vm)
    g.wait_vm(["V0", "K2"]); g.A("s_barrier")
    g.wait_vm(["V1", "K3"]); g.A("s_barrier")
    srd(g, SRD_DBG, S_DBG, S_DBG+1, None, 256)
    srd(g, SRD_FL, S_WS, S_WS+1, None, FLAGB + 1024*128)
    g.A(f"s_lshl_b32 s{S_T0}, s{S_BB}, 13"); g.A(f"s_add_u32 s{S_T0}, s{S_T0}, {FLAGB}")
    g.A(f"v_lshlrev_b32 v{V_FA}, 7, v{V_LANE}"); g.A(f"v_add_u32 v{V_FA}, s{S_T0}, v{V_FA}")
    g.A(f"s_lshl_b32 s{S_T0}, s{S_BB}, 2"); g.A(f"v_mov_b32 v{V_RA}, s{S_T0}")
    g.A(f"s_or_b32 s{S_FIRST}, s{S_W}, s{S_HP}")
    g.A(f"s_cmp_lg_u32 s{S_FIRST}, 0"); g.A("s_cbranch_scc1 L_fl1")
    g.A(f"v_mov_b32 v{V_FD}, 0")
    g.A(f"buffer_store_dword v{V_FD}, v{V_FA}, s[{SRD_FL}:{SRD_FL+3}], 0 offen sc1")
    g.label("L_fl1")
    idle(8, "L_ld_idle1")
    g.A(f"s_cmp_lg_u32 s{S_FIRST}, 0"); g.A("s_cbranch_scc1 L_fl2")
    g.A("s_waitcnt vmcnt(0)")
    g.A(f"v_mov_b32 v{V_FD}, 1")
    g.A("s_mov_b64 exec, 1")
    g.A(f"buffer_store_dword v{V_FD}, v{V_RA}, s[{SRD_DBG}:{SRD_DBG+3}], 0 offen sc1")
    g.A("s_mov_b64 exec, -1")
    g.label("L_fl2")
    idle(10, "L_ld_idle2")
    g.A(f"s_cmp_lg_u32 s{S_W}, 0"); g.A("s_cbranch_scc1 L_fl3")
    g.A(f"buffer_load_dword v{V_RD}, v{V_RA}, s[{SRD_DBG}:{SRD_DBG+3}], 0 offen sc1")
    g.label("L_fl3")
    idle(8, "L_ld_idle3")
    g.A("s_waitcnt vmcnt(0)"); g.vm = []
    drain(False)
    g.label("L_vloader")
    g.vm = vm_early
    full_tile_regs(g, "V")
    g.A(f"s_mov_b32 s{S_VOFF}, {2*8192}")
    full_tile(g, o, "V", 2, "V2"); full_tile(g, o, "V", 3, "V3")
    g.wait_vm(["V0", "K2"])
    g.A(f"s_mov_b32 s{S_CNT}, 4")
    loop_label(g, "L_vld_loop")
    for t in range(6):
        g.A("s_waitcnt vmcnt(24)"); g.A("s_barrier")
        if not o.x_nodma: full_tile(g, o, "V", t+4, f"V{t+4}")
    g.A(f"s_sub_u32 s{S_CNT}, s{S_CNT}, 1"); g.A(f"s_cmp_lg_u32 s{S_CNT}, 0"); g.A("s_cbranch_scc1 L_vld_loop")
    g.vm = []
    for t in range(24, 28): g.vm += [f"V{t}"]*8
    for t in range(24, 28):
        g.wait_vm(f"V{t}"); g.A("s_barrier"); full_tile(g, o, "V", t+4, f"V{t+4}")
    drain(True)

def loader_tail(g, o):
    g.label("L_ld_end")
    if o.stamps is True:
        stamp(g, o, 7)
        g.A(f"s_cmp_lg_u32 s{S_W}, 0"); g.A("s_cbranch_scc1 L_ld_end2")
        dump_stamps(g, 0x1010000)
        g.label("L_ld_end2")
    g.A("s_endpgm")

def dump_stamps(g, base):
    g.A(f"s_add_u32 s40, s{S_WS}, {base}"); g.A(f"s_addc_u32 s41, s{S_WS+1}, 0"); g.A("s_and_b32 s41, s41, 0xffff")
    g.A("s_mov_b32 s42, 0x10000"); g.A("s_mov_b32 s43, 0x20000")
    for k in range(16): g.A(f"v_mov_b32 v{16+k}, s{S_STAMP+k}")
    g.A(f"s_lshl_b32 s{S_T0}, s2, 6"); g.A(f"v_mov_b32 v13, s{S_T0}")
    g.A("s_mov_b64 exec, 1")
    for k in range(4): g.A(f"buffer_store_dwordx4 v[{16+4*k}:{19+4*k}], v13, s[40:43], 0 offen offset:{16*k}")
    g.A("s_waitcnt vmcnt(0)")
    g.A("s_mov_b64 exec, -1")

def deferred_setup(o):
    g = G(); L = V_LANE; t0, t1, t2 = 92, 93, 94
    T0, T1 = S_T2, S_T3
    g.A(f"s_mov_b32 s{S_THR}, {hex(fbits(float(2.0 ** float(o.thr))))}"); g.A(f"s_mov_b32 s{S_THRLO}, {hex(fbits(THR_LO))}")
    g.A(f"s_mov_b32 s{S_C}, {hex(fbits(CSCALE))}"); g.A(f"s_mov_b32 s{S_C+1}, {hex(fbits(CSCALE))}")
    g.A(f"v_lshrrev_b32 v{t0}, 4, v{L}"); g.A(f"v_and_b32 v{t1}, 15, v{L}")
    g.A(f"s_and_b32 s{T0}, s{S_W}, 1"); g.A(f"s_lshl_b32 s{T0}, s{T0}, 3")
    g.A(f"v_lshrrev_b32 v{t2}, 1, v{t0}")
    g.A(f"v_xor_b32 v{t2}, v{t2}, v{t1}"); g.A(f"v_xor_b32 v{t2}, s{T0}, v{t2}"); g.A(f"v_lshlrev_b32 v{t2}, 4, v{t2}")
    g.A(f"v_and_b32 v{t0}, 1, v{t0}"); g.A(f"v_lshl_add_u32 v{t2}, v{t0}, 3, v{t2}")
    g.A(f"s_lshr_b32 s{T0}, s{S_W}, 1"); g.A(f"s_mul_i32 s{T0}, s{T0}, {48*256}"); g.A(f"s_add_u32 s{T0}, s{T0}, {QB}")
    g.A(f"v_lshl_add_u32 v{t2}, v{t1}, 8, v{t2}"); g.A(f"v_add_u32 v{t2}, s{T0}, v{t2}")
    for cb in range(4): g.A(f"v_xor_b32 v{V_QW+cb}, {cb << 5}, v{t2}")
    later_addresses(g, T0)
    g.A(f"s_lshl_b32 s{T1}, s{S_BB}, 4"); g.A(f"s_add_u32 s{T1}, s{T1}, s{S_HP}"); g.A(f"s_mul_i32 s{T1}, s{T1}, 49152")
    srd(g, SRD_P, S_WS, S_WS+1, f"s{T1}", 49152)
    select_branch(g, [2, 3])
    g.A(f"s_lshl_b32 s{T0}, s{S_B}, 3"); g.A(f"s_add_u32 s{T0}, s{T0}, s{S_HKV}"); g.A(f"s_lshl_b32 s{T0}, s{T0}, 18")
    srd(g, SRD_K, 34, 35, f"s{T0}", 262144)
    for i in range(64): g.A(f"v_mov_b32 v{V_O+i}, 0")
    return [l for l in g.L if not l.startswith(";")]

def chunks(lines, n):
    out = []; k = 0
    for i in range(n):
        e = len(lines) if i == n - 1 else max(k, (i + 1) * len(lines) // n)
        while e < len(lines) and (lines[e].startswith(("s_cselect", "s_addc", "v_cndmask", "s_nop")) or lines[e-1].startswith(("s_cmp", "v_cmp"))
                                  or (lines[e-2].startswith("v_cmp") or lines[e-3].startswith("v_cmp") or lines[e-4].startswith("v_cmp"))): e += 1
        out.append(lines[k:e]); k = e
    return out

def p1_compute(g, o):
    g.C("==== P1: Q projection")
    L = V_LANE; t0, t1, t2 = 9, 15, 12
    g.A(f"v_lshrrev_b32 v{t0}, 4, v{L}"); g.A(f"v_and_b32 v{t1}, 15, v{L}")
    g.A(f"v_xor_b32 v{t2}, v{t0}, v{t1}"); g.A(f"v_lshlrev_b32 v{t2}, 4, v{t2}")
    g.A(f"v_lshl_add_u32 v{V_XR}, v{t1}, 8, v{t2}")
    g.A(f"s_lshl_b32 s{S_RING}, s{S_W}, 14"); g.A(f"s_add_u32 s{S_RING}, s{S_RING}, {WQB}")
    r_, cc, sw = 13, 15, 14
    g.A(f"v_bfe_u32 v{r_}, v{L}, 2, 2"); g.A(f"v_and_b32 v{cc}, 3, v{L}")
    g.A(f"v_and_b32 v{sw}, 2, v{r_}"); g.A(f"v_and_b32 v{t2}, 1, v{t0}")
    g.A(f"v_lshl_or_b32 v{sw}, v{t2}, 2, v{sw}")
    g.A(f"v_lshrrev_b32 v{t2}, 1, v{cc}"); g.A(f"v_or_b32 v{sw}, v{sw}, v{t2}"); g.A(f"v_lshlrev_b32 v{sw}, 4, v{sw}")
    g.A(f"v_and_b32 v{t2}, 1, v{cc}"); g.A(f"v_lshl_add_u32 v{sw}, v{t2}, 3, v{sw}")
    g.A(f"v_lshl_add_u32 v{t2}, v{t0}, 3, v{r_}"); g.A(f"v_lshl_add_u32 v{sw}, v{t2}, 7, v{sw}")
    g.A(f"v_add_u32 v{sw}, s{S_RING}, v{sw}")
    for cb in range(4): g.A(f"v_xor_b32 v{V_WR+cb}, {cb << 5}, v{sw}")
    defer = chunks(deferred_setup(o), 15)
    def reads(i):
        out = []; buf = i % 2; slot = i % 4; vt = V_XT + buf
        def addr():
            g.A(f"s_add_u32 s{S_T0}, s{S_S0}, {i}"); g.A(f"s_and_b32 s{S_T0}, s{S_T0}, 15")
            g.A(f"s_and_b32 s{S_T1}, s{S_T0}, 3"); g.A(f"s_lshl_b32 s{S_T1}, s{S_T1}, 6")
            g.A(f"s_lshr_b32 s{S_T0}, s{S_T0}, 2"); g.A(f"s_mul_i32 s{S_T0}, s{S_T0}, 12288"); g.A(f"s_add_u32 s{S_T0}, s{S_T0}, {XB}")
            g.A(f"v_xor_b32 v{vt}, s{S_T1}, v{V_XR}"); g.A(f"v_add_u32 v{vt}, s{S_T0}, v{vt}")
        out.append(addr)
        for rb in range(3):
            out.append(lambda rb=rb: g.lds(f"ds_read_b128 {ar(A_B1[buf]+4*rb,4)}, v{vt} offset:{rb*4096}", f"f{i}B"))
        for cb in range(4):
            for u in range(2):
                out.append(lambda cb=cb, u=u: g.lds(
                    f"ds_read_b64_tr_b16 {ar(A_A1[buf]+4*cb+2*u,2)}, v{V_WR+cb} offset:{slot*4096+u*512}", f"f{i}A{cb}"))
        return out
    r0 = reads(0); r0[0](); reads(1)[0]()
    g.A("s_waitcnt lgkmcnt(0)")
    for i in range(16):
        buf = i % 2
        g.A("s_barrier")
        if i == 0:
            stamp(g, o, 1)
            for f in r0[1:]: f()
        def mf(cb, rb, i=i, buf=buf):
            a = vr(V_ACC1 + (cb*3 + rb)*4, 4)
            g.A(f"v_mfma_f32_16x16x32_bf16 {a}, {ar(A_A1[buf]+4*cb,4)}, {ar(A_B1[buf]+4*rb,4)}, {'0' if i == 0 else a}")
        gemm_step(g, i, mf, reads(i + 1)[1:] if i + 1 < 16 else [], int(o.front), None, reads(i + 2)[0] if i + 2 < 16 else None)
        if i < 15:
            for l in defer[i]: g.A(l)
    stamp(g, o, 2)
    g.A("s_barrier")
    for cb in range(4):
        for rb in range(3):
            a = V_ACC1 + (cb*3 + rb)*4
            g.A(f"v_pk_mul_f32 {vr(a,2)}, {vr(a,2)}, s[{S_C}:{S_C+1}]"); g.A(f"v_pk_mul_f32 {vr(a+2,2)}, {vr(a+2,2)}, s[{S_C}:{S_C+1}]")
            g.A(f"v_cvt_pk_bf16_f32 v{a}, v{a}, v{a+1}"); g.A(f"v_cvt_pk_bf16_f32 v{a+1}, v{a+2}, v{a+3}")
            g.lds(f"ds_write_b64 v{V_QW+cb}, {vr(a,2)} offset:{rb*4096}", "qw")

def later_addresses(g, T0):
    L = V_LANE; t0, t1, t2, t3 = 92, 93, 94, 95
    g.A(f"v_and_b32 v{t0}, 31, v{L}"); g.A(f"v_lshrrev_b32 v{t1}, 5, v{L}")
    g.A(f"v_and_b32 v{t2}, 15, v{L}"); g.A(f"v_xor_b32 v{t2}, v{t2}, v{t1}")
    g.A(f"v_lshlrev_b32 v{t2}, 4, v{t2}"); g.A(f"v_lshl_add_u32 v{t2}, v{t0}, 8, v{t2}")
    g.A(f"v_add_u32 v{t2}, {KB}, v{t2}")
    for s in range(8): g.A(f"v_xor_b32 v{V_KA+s}, {s << 5}, v{t2}")
    g.A(f"s_lshl_b32 s{T0}, s{S_W}, 13"); g.A(f"s_add_u32 s{T0}, s{T0}, {QB-KB}")
    for s in range(8): g.A(f"v_add_u32 v{V_NEGM+s}, s{T0}, v{V_KA+s}")
    g.A(f"v_bfe_u32 v{t0}, v{L}, 2, 2")
    g.A(f"v_lshl_add_u32 v{t2}, v{t1}, 2, v{t0}"); g.A(f"v_lshlrev_b32 v{t2}, 8, v{t2}")
    g.A(f"v_lshl_add_u32 v{t2}, v{t0}, 6, v{t2}")
    g.A(f"v_bfe_u32 v{t3}, v{L}, 4, 1"); g.A(f"v_lshl_add_u32 v{t2}, v{t3}, 5, v{t2}")
    g.A(f"v_and_b32 v{t3}, 3, v{L}"); g.A(f"v_lshl_add_u32 v{t2}, v{t3}, 3, v{t2}")
    for blk in range(4): g.A(f"v_xor_b32 v{V_VA+blk}, {blk << 6}, v{t2}")
    g.A(f"s_lshl_b32 s{T0}, s{S_W}, 5")
    g.A(f"v_and_b32 v{t0}, 31, v{L}"); g.A(f"v_add_u32 v{t0}, s{T0}, v{t0}")
    g.A(f"v_cmp_le_u32 vcc, 48, v{t0}"); g.A(f"v_subrev_u32 v{t3}, 48, v{t0}"); g.A(f"v_mov_b32 v{t2}, 0"); g.A("s_nop 0")
    g.A(f"v_cndmask_b32 v{t0}, v{t0}, v{t3}, vcc"); g.A(f"v_mov_b32 v{t3}, 256")
    g.A(f"v_cndmask_b32 v{t2}, v{t2}, v{t3}, vcc"); g.A(f"v_lshl_add_u32 v{V_OB}, v{t0}, 9, v{t2}")
    g.A(f"v_and_b32 v{t0}, 15, v{t0}"); g.A(f"v_lshl_add_u32 v{V_OB}, v{t0}, 4, v{V_OB}")
    g.A(f"v_lshl_add_u32 v{V_OB}, v{t1}, 3, v{V_OB}"); g.A(f"v_add_u32 v{V_OB}, {OB}, v{V_OB}")
    g.A(f"v_lshrrev_b32 v{t0}, 4, v{L}"); g.A(f"v_and_b32 v{t1}, 15, v{L}")
    g.A(f"v_xor_b32 v{t2}, v{t0}, v{t1}"); g.A(f"v_lshlrev_b32 v{t2}, 4, v{t2}")
    g.A(f"v_lshl_add_u32 v{V_OR}, v{t1}, 9, v{t2}"); g.A(f"v_add_u32 v{V_OR}, {OB}, v{V_OR}")
    r_, cc, sw = 9, 15, V_SW
    g.A(f"v_bfe_u32 v{r_}, v{L}, 2, 2"); g.A(f"v_and_b32 v{cc}, 3, v{L}")
    g.A(f"v_and_b32 v{sw}, 2, v{r_}"); g.A(f"v_and_b32 v{t2}, 1, v{t0}")
    g.A(f"v_lshl_or_b32 v{sw}, v{t2}, 2, v{sw}")
    g.A(f"v_lshrrev_b32 v{t2}, 1, v{cc}"); g.A(f"v_or_b32 v{sw}, v{sw}, v{t2}"); g.A(f"v_lshlrev_b32 v{sw}, 4, v{sw}")
    g.A(f"v_and_b32 v{t2}, 1, v{cc}"); g.A(f"v_lshl_add_u32 v{sw}, v{t2}, 3, v{sw}")
    g.A(f"v_lshl_add_u32 v{t2}, v{t0}, 3, v{r_}"); g.A(f"v_lshl_add_u32 v{sw}, v{t2}, 7, v{sw}")
    g.A(f"v_lshlrev_b32 v{V_ST}, 4, v{L}")
    for s in range(4): select_by_wave(g, S_WOA + s, [WO_ADDR[s][w] for w in range(4)])
    g.A(f"v_mov_b32 v{V_L}, 0")

def qk_mfma(g, s, dst, first_c):
    c = first_c if s == 0 else vr(dst, 16)
    g.A(f"v_mfma_f32_32x32x16_bf16 {vr(dst,16)}, {ar(A_K+4*s,4)}, {ar(A_Q+4*s,4)}, {c}")
def pv_mfma(g, s, blk, p):
    g.A(f"v_mfma_f32_32x32x16_bf16 {vr(V_O+16*blk,16)}, {ar(A_V+(s*4+blk)*4,4)}, {vr(p+4*s,4)}, {vr(V_O+16*blk,16)}")
def k_read(g, s, t):
    g.lds(f"ds_read_b128 {ar(A_K+4*s,4)}, v{V_KA+s} offset:{kslot(t)-KB}", "K")
def v_read(g, s, blk, u, t):
    g.lds(f"ds_read_b64_tr_b16 {ar(A_V+(s*4+blk)*4+2*u,2)}, v{V_VA+blk} offset:{vslot(t)-VB+4096*s+2048*u}", "V")

def p2_iter(g, t, do_qk=True, do_pv=True):
    o = OPT
    par = t % 2
    Scur, Snew, Pcur, Pprev = V_S[par], V_S[1-par], V_P[par], V_P[1-par]
    g.C(f"---- iteration {t}")
    gaps, left, load = schedule(do_qk, do_pv, cap_lo=int(o.cap_lo), cap_hi=int(o.cap_hi), ntemp=NTEMP)
    assert not left, left
    last_a = max(i for i, gp in enumerate(gaps) if ("A", 15) in gp)
    cmp_gap = min(last_a + 1, 15); br_gap = 15
    first = (t == 0 and o.m0init)
    e = lambda i: V_E + i % NTEMP
    def emit(it):
        k = it[0]
        if k == "E":
            if not o.x_novalu: g.A(f"v_exp_f32 v{e(it[1])}, v{Scur+it[1]}")
        elif k == "A":
            if o.x_novalu: return
            if it[1] == 1: g.A(f"v_add_f32 v{V_TS}, v{e(0)}, v{e(1)}")
            else: g.A(f"v_add_f32 v{V_TS}, v{V_TS}, v{e(it[1])}")
        elif k == "C":
            if not o.x_novalu: g.A(f"v_cvt_pk_bf16_f32 v{Pcur+it[1]}, v{e(2*it[1])}, v{e(2*it[1]+1)}")
        elif k == "K":
            if not o.x_nok: k_read(g, it[1], t+2)
        elif k == "V":
            if not o.x_nov: v_read(g, it[1]//4, it[1] % 4, it[2], t)
    for m in range(16):
        if m < 8 and do_qk and not o.x_nomfma: qk_mfma(g, m, Snew, vr(V_NEGM, 16))
        elif m >= 8 and do_pv and not o.x_nomfma: pv_mfma(g, (m-8)//4, (m-8) % 4, Pprev)
        else: g.A("s_nop 0")
        items = gaps[m]
        if ("X", "bar") in items: g.A("s_barrier")
        if m == cmp_gap:
            g.A(f"v_cmp_lt_f32 vcc, s{S_THR}, v{V_TS}")
            if first: g.A(f"v_cmp_gt_f32 s[{S_RET}:{S_RET+1}], s{S_THRLO}, v{V_TS}")
        for it in items:
            if it[0] != "X": emit(it)
        if m == br_gap:
            if first: g.A(f"s_or_b64 vcc, vcc, s[{S_RET}:{S_RET+1}]")
            g.A(f"s_cbranch_vccnz L_rare_{t}")
            g.label(f"L_back_{t}")
            g.A(f"v_add_f32 v{V_L}, v{V_L}, v{V_TS}")
        if m == 7 and do_pv: g.A(f"s_waitcnt lgkmcnt({8 if do_qk else 0})")
        if m == 15: g.A(f"s_waitcnt lgkmcnt({15 if do_pv else 0})")
    g.lg = []

def rare_stub(g, t):
    g.label(f"L_rare_{t}")
    sub = "L_rescale_first" if (t == 0 and OPT.m0init) else f"L_rescale_{t%2}"
    g.A(f"s_call_b64 s[{S_RET}:{S_RET+1}], {sub}")
    g.A(f"s_branch L_back_{t}")

def rowmax(g, S, dst, tmp):
    g.A(f"v_max3_f32 v{dst}, v{S}, v{S+1}, v{S+2}")
    for k in range(3, 15, 2): g.A(f"v_max3_f32 v{dst}, v{dst}, v{S+k}, v{S+k+1}")
    g.A(f"v_max_f32 v{dst}, v{dst}, v{S+15}")
    g.A(f"v_mov_b32 v{tmp}, v{dst}"); g.A("s_nop 1")
    g.A(f"v_permlane32_swap_b32 v{tmp}, v{dst}")
    g.A(f"v_max_f32 v{dst}, v{dst}, v{tmp}")

def rescale_sub(g, par, first=False):
    Scur, Snew, Pcur = V_S[par], V_S[1-par], V_P[par]
    d, tmp, f = V_T, V_T+1, V_F
    g.label("L_rescale_first" if first else f"L_rescale_{par}")
    g.A("s_nop 15"); g.A("s_nop 15")
    rowmax(g, Scur, d, tmp)
    if not first: g.A(f"v_max_f32 v{d}, 0, v{d}")
    for i in range(16):
        g.A(f"v_sub_f32 v{Scur+i}, v{Scur+i}, v{d}")
        g.A(f"v_sub_f32 v{Snew+i}, v{Snew+i}, v{d}")
        g.A(f"v_sub_f32 v{V_NEGM+i}, v{V_NEGM+i}, v{d}")
    if not first:
        g.A(f"v_sub_f32 v{f}, 0, v{d}"); g.A(f"v_exp_f32 v{f}, v{f}"); g.A("s_nop 0")
        g.A(f"v_mul_f32 v{V_L}, v{V_L}, v{f}")
        for i in range(64): g.A(f"v_mul_f32 v{V_O+i}, v{V_O+i}, v{f}")
    for k in range(8):
        g.A(f"v_exp_f32 v{V_E}, v{Scur+2*k}"); g.A(f"v_exp_f32 v{V_E+1}, v{Scur+2*k+1}"); g.A("s_nop 0")
        if k == 0: g.A(f"v_add_f32 v{V_TS}, v{V_E}, v{V_E+1}")
        else:
            g.A(f"v_add_f32 v{V_TS}, v{V_TS}, v{V_E}"); g.A(f"v_add_f32 v{V_TS}, v{V_TS}, v{V_E+1}")
        g.A(f"v_cvt_pk_bf16_f32 v{Pcur+k}, v{V_E}, v{V_E+1}")
    g.A("s_nop 1")
    g.A(f"s_setpc_b64 s[{S_RET}:{S_RET+1}]")

def p2_compute(g, o):
    g.C("==== P2: attention, compute waves 0..2")
    L = V_LANE; t0, t1, t2 = V_TMP, V_TMP+1, V_TMP+2
    for s in range(8): g.lds(f"ds_read_b128 {ar(A_Q+4*s,4)}, v{V_NEGM+s}", "Q")
    for s in range(8): k_read(g, s, 0)
    if o.m0init:
        for i in range(16): g.A(f"v_mov_b32 v{V_NEGM+i}, 0")
    g.wait_lg0()
    for s in range(8):
        qk_mfma(g, s, V_S[0], "0")
        k_read(g, s, 1)
    if not o.m0init:
        g.A("s_nop 15")
        rowmax(g, V_S[0], V_T, V_T+1)
        for i in range(16): g.A(f"v_sub_f32 v{V_NEGM+i}, 0, v{V_T}")
        for i in range(16): g.A(f"v_sub_f32 v{V_S[0]+i}, v{V_S[0]+i}, v{V_T}")
    else:
        g.A("s_nop 7")
    g.A("s_waitcnt lgkmcnt(0)")
    p2_iter(g, 0, do_pv=False)
    g.A(f"s_mov_b32 s{S_CNT}, 5")
    loop_label(g, "L_p2_loop")
    for t in range(1, 7): p2_iter(g, t)
    g.A(f"s_sub_u32 s{S_CNT}, s{S_CNT}, 1"); g.A(f"s_cmp_lg_u32 s{S_CNT}, 0"); g.A("s_cbranch_scc1 L_p2_loop")
    p2_iter(g, 31, do_qk=False)
    AD = V_S[0]
    g.A(f"v_mov_b32 v{V_RI}, v{V_L}"); g.A("s_nop 1")
    g.A(f"v_permlane32_swap_b32 v{V_RI}, v{V_L}")
    g.A(f"v_add_f32 v{V_L}, v{V_L}, v{V_RI}")
    g.A(f"v_rcp_f32 v{V_RI}, v{V_L}")
    g.A("s_waitcnt lgkmcnt(0)")
    g.A(f"v_mov_b32 v{V_RI+1}, v{V_RI}")
    g.A("s_barrier")
    stamp(g, o, 4)
    def norm(blk, i):
        a = V_O + 16*blk + 4*i
        g.A(f"v_pk_mul_f32 {vr(a,2)}, {vr(a,2)}, {vr(V_RI,2)}"); g.A(f"v_pk_mul_f32 {vr(a+2,2)}, {vr(a+2,2)}, {vr(V_RI,2)}")
        g.A(f"v_cvt_pk_bf16_f32 v{a}, v{a}, v{a+1}"); g.A(f"v_cvt_pk_bf16_f32 v{a+1}, v{a+2}, v{a+3}")
        g.lds(f"ds_write_b64 v{AD+4*blk+i}, {vr(a,2)}", "ow")
    pv = lambda s, blk: pv_mfma(g, s, blk, V_P[1])
    ad = lambda lo, hi: [g.A(f"v_xor_b32 v{AD+j}, {j << 4}, v{V_OB}") for j in range(lo, hi)]
    pv(0, 0); ad(0, 4); pv(1, 0); ad(4, 8); pv(0, 1); ad(8, 12); pv(1, 1); ad(12, 16)
    p3_setup(g, o, 0, 1)
    norm(0, 0); norm(0, 1); pv(0, 2); norm(0, 2); norm(0, 3); pv(1, 2)
    norm(1, 0); norm(1, 1); pv(0, 3); norm(1, 2); norm(1, 3); pv(1, 3)
    p3_setup(g, o, 1, 4)
    for blk in (2, 3):
        for i in range(4): norm(blk, i)

def p2_kloader(g, o):
    g.C("==== P2: wave 3 streams K")
    g.vm = []
    full_tile_regs(g, "K")
    g.A(f"s_mov_b32 s{S_KOFF}, {4*8192}")
    full_tile(g, o, "K", 4, "K4"); full_tile(g, o, "K", 5, "K5")
    g.A(f"s_mov_b32 s{S_CNT}, 4")
    loop_label(g, "L_kld_loop")
    for t in range(6):
        g.A("s_waitcnt vmcnt(24)"); g.A("s_barrier")
        if not o.x_nodma: full_tile(g, o, "K", t+6, f"K{t+6}")
    g.A(f"s_sub_u32 s{S_CNT}, s{S_CNT}, 1"); g.A(f"s_cmp_lg_u32 s{S_CNT}, 0"); g.A("s_cbranch_scc1 L_kld_loop")
    g.vm = []
    for t in range(26, 30): g.vm += [f"K{t}"]*8
    for t in range(24, 32):
        if t + 2 < 32: g.wait_vm(f"K{t+2}")
        g.A("s_barrier")
        if t + 6 < 32: full_tile(g, o, "K", t+6, f"K{t+6}")
    p3_setup(g, o, 0, 4)
    g.A("s_barrier")

def b_addr(g, j):
    g.A(f"s_add_u32 s{S_T0}, s{S_WOROT}, {j}"); g.A(f"s_and_b32 s{S_T0}, s{S_T0}, 7"); g.A(f"s_lshl_b32 s{S_T0}, s{S_T0}, 6")
    g.A(f"v_xor_b32 v{V_OT + j % 2}, s{S_T0}, v{V_OR}")

def p3_setup(g, o, d0, d1):
    if d0 == 0:
        for cb in range(4): g.A(f"v_xor_b32 v{2+cb}, {cb << 5}, v{V_SW}")
        g.A(f"s_mul_i32 s{S_T3}, s{S_W}, 12288")
    for d in range(d0, d1):
        for cb in range(4): g.A(f"v_add_u32 v{WOR[4*d+cb]}, s{S_WOA+d}, v{2+cb}")
    if d1 == 4: b_addr(g, 0); b_addr(g, 1)

def p3_compute(g, o):
    g.C("==== P3: partial output projection, two column halves of 8 k-steps")
    L = V_LANE
    if o.probe == "line":
        for i in range(256): g.A(f"v_mov_b32_e64 v{6 + i % 2}, v1")
    elif o.probe == "loop":
        g.A(f"s_mov_b32 s{S_CNT}, 16")
        g.label("L_probe")
        for i in range(16): g.A(f"v_mov_b32_e64 v{6 + i % 2}, v1")
        g.A(f"s_sub_u32 s{S_CNT}, s{S_CNT}, 1"); g.A(f"s_cmp_lg_u32 s{S_CNT}, 0"); g.A("s_cbranch_scc1 L_probe")
    g.wait_lg0()
    def reads(n):
        out = []; buf = n % 2; d = (n // 2) % 4
        if n < 8:
            for rb in range(3):
                out.append(lambda rb=rb: g.lds(f"ds_read_b128 {ar(12*n+4*rb,4)}, v{V_OT + n % 2} offset:{rb*8192}", f"f{n}B"))
        for cb in range(4):
            for u in range(2):
                out.append(lambda cb=cb, u=u: g.lds(
                    f"ds_read_b64_tr_b16 {vr(V_A3[buf]+4*cb+2*u,2)}, v{WOR[4*d+cb]} offset:{(n % 2)*4096+u*512}", f"f{n}A{cb}"))
        return out
    def acc(hb, cb, rb): return V_ACC3 + ((4*hb + cb)*3 + rb)*4
    def store_frag(cbp, rb):
        hb, c0 = cbp // 2, 2*(cbp % 2)
        a0, a1 = acc(hb, c0, rb), acc(hb, c0+1, rb)
        d = 2 + 4*((cbp*3+rb) % 2)
        g.A(f"v_cvt_pk_bf16_f32 v{d}, v{a0}, v{a0+1}"); g.A(f"v_cvt_pk_bf16_f32 v{d+1}, v{a0+2}, v{a0+3}")
        g.A(f"v_cvt_pk_bf16_f32 v{d+2}, v{a1}, v{a1+1}"); g.A(f"v_cvt_pk_bf16_f32 v{d+3}, v{a1+2}, v{a1+3}")
        pol = f" {o.pol_st}" if o.pol_st else ""
        g.A(f"s_add_u32 s{S_T2}, s{S_T3}, {rb*4096}")
        if o.x_nost and cbp < 2: return
        g.vmem(f"buffer_store_dwordx4 {vr(d,4)}, v{V_ST}, s[{SRD_P}:{SRD_P+3}], s{S_T2} offen offset:{cbp*1024}{pol}", "st")
    g.A("s_barrier")
    stamp(g, o, 5)
    for f in reads(0): f()
    early = [(cbp, rb) for cbp in (0, 1) for rb in range(3)]
    for n in range(16):
        hb, buf = n // 8, n % 2
        if (n % 2 == 0 or o.p3fine) and n > 0: g.A("s_barrier")
        if n in (4, 8, 12): stamp(g, o, 9 + (n - 4)//4)
        def mf(cb, rb, n=n, hb=hb, buf=buf):
            a = vr(acc(hb, cb, rb), 4)
            g.A(f"v_mfma_f32_16x16x32_bf16 {a}, {vr(V_A3[buf]+4*cb,4)}, {ar(12*(n % 8)+4*rb,4)}, {'0' if n % 8 == 0 else a}")
        after = None
        if 9 <= n < 15: after = {10: lambda k=n-9: store_frag(*early[k])}
        if n == 15: after = {9: lambda: store_frag(2, 0), 10: lambda: store_frag(2, 1), 11: lambda: store_frag(2, 2)}
        gemm_step(g, n, mf, reads(n + 1) if n + 1 < 16 else [], int(o.front), after, (lambda n=n: b_addr(g, n + 2)) if n + 2 < 8 else None)
    stamp(g, o, 6)
    g.A("s_nop 7")
    for rb in range(3): store_frag(3, rb)

def compute_tail(g, o):
    L = V_LANE
    g.C("==== hand-off and reduction of the 16 partial slabs of this (branch, batch)")
    R, T = S_T2, S_T3
    g.A(f"s_mul_i32 s{R}, s{S_HP}, 3"); g.A(f"s_add_u32 s{R}, s{R}, s{S_W}")
    srd(g, 4, S_WS, S_WS+1, None, 256*49152)
    srd(g, 8, S_OUT, S_OUT+1, None, 786432)
    srd(g, SRD_FL, S_WS, S_WS+1, None, FLAGB + 1024*128)
    g.A(f"s_mul_i32 s12, s{S_BB}, 786432"); g.A(f"s_lshl_b32 s{T}, s{R}, 10"); g.A(f"s_add_u32 s12, s12, s{T}")
    g.A(f"s_mul_i32 s13, s{R}, 43"); g.A("s_lshr_b32 s13, s13, 9")
    g.A("s_mul_i32 s14, s13, 12"); g.A(f"s_sub_u32 s14, s{R}, s14")
    g.A("s_lshr_b32 s15, s14, 2"); g.A("s_and_b32 s14, s14, 3")
    g.A(f"s_mul_i32 s16, s{S_B}, 98304")
    g.A(f"s_lshl_b32 s17, s{S_BR}, 10"); g.A("s_add_u32 s16, s16, s17")
    g.A("s_lshl_b32 s17, s15, 15"); g.A("s_add_u32 s16, s16, s17")
    g.A("s_lshl_b32 s17, s13, 8"); g.A("s_add_u32 s16, s16, s17")
    g.A("s_lshl_b32 s17, s14, 6"); g.A("s_add_u32 s16, s16, s17")
    g.A(f"v_lshlrev_b32 v12, 4, v{L}")
    g.A(f"v_and_b32 v13, 15, v{L}"); g.A(f"v_lshrrev_b32 v14, 4, v{L}")
    g.A("v_lshlrev_b32 v13, 11, v13"); g.A("v_lshl_add_u32 v13, v14, 3, v13")
    g.A(f"s_lshl_b32 s18, s{S_BB}, 13"); g.A(f"s_add_u32 s18, s18, {FLAGB}")
    g.A(f"s_lshl_b32 s19, s{S_HP}, 2"); g.A(f"s_add_u32 s19, s19, s{S_W}"); g.A("s_lshl_b32 s19, s19, 7"); g.A("s_add_u32 s19, s19, s18")
    g.A("s_lshl_b32 s20, s13, 7"); g.A("s_add_u32 s20, s20, s18")
    g.A(f"v_and_b32 v15, 15, v{L}"); g.A("v_lshlrev_b32 v15, 9, v15"); g.A("v_add_u32 v15, s20, v15")
    g.A("v_mov_b32 v10, s19"); g.A("v_mov_b32 v11, 1")
    g.A("s_waitcnt vmcnt(0)"); g.vm = []
    g.A("s_mov_b64 exec, 1")
    g.A(f"buffer_store_dword v11, v10, s[{SRD_FL}:{SRD_FL+3}], 0 offen sc1")
    g.A("s_mov_b64 exec, -1")
    g.A(f"s_cmp_ge_u32 s{S_W}, 3"); g.A("s_cbranch_scc1 L_red_done")
    g.A(f"s_mov_b32 s{S_CNT}, 0")
    if o.early_ld:
        g.A("s_mov_b32 s22, 0")
        g.label("L_poll")
        g.A("s_mov_b64 exec, 0xffff")
        g.A(f"buffer_load_dword v10, v15, s[{SRD_FL}:{SRD_FL+3}], 0 offen sc1")
        g.A(f"s_add_u32 s{S_CNT}, s{S_CNT}, 1")
        g.A("s_waitcnt vmcnt(0)")
        g.A("v_cmp_eq_u32 vcc, 1, v10")
        g.A("s_mov_b64 exec, -1")
        g.A(f"s_cmp_ge_u32 s{S_CNT}, 0x40000"); g.A("s_cselect_b32 s23, 0xffff, vcc_lo")
        g.A("s_andn2_b32 s23, s23, s22")
        g.A("s_cbranch_scc0 L_poll_next")
        for q in range(16):
            g.A(f"s_bitcmp1_b32 s23, {q}"); g.A(f"s_cbranch_scc0 L_skip{q}")
            g.A(f"s_add_u32 s21, s12, {q*49152}")
            g.A(f"buffer_load_dwordx4 v[{16+4*q}:{19+4*q}], v12, s[4:7], s21 offen sc1")
            g.label(f"L_skip{q}")
        g.A("s_or_b32 s22, s22, s23")
        g.A("s_cmp_eq_u32 s22, 0xffff"); g.A("s_cbranch_scc1 L_poll_done")
        g.label("L_poll_next")
        if int(o.sleep): g.A(f"s_sleep {int(o.sleep)}")
        g.A("s_branch L_poll")
        g.label("L_poll_done")
        stamp(g, o, 7)
        g.A("s_waitcnt vmcnt(0)")
    else:
        g.A("s_mov_b64 exec, 0xffff")
        g.label("L_poll")
        g.A(f"buffer_load_dword v10, v15, s[{SRD_FL}:{SRD_FL+3}], 0 offen sc1")
        g.A(f"s_add_u32 s{S_CNT}, s{S_CNT}, 1")
        g.A("s_waitcnt vmcnt(0)")
        g.A("v_cmp_eq_u32 vcc, 1, v10")
        g.A("s_cmp_eq_u64 vcc, exec"); g.A("s_cbranch_scc1 L_poll_done")
        g.A(f"s_cmp_ge_u32 s{S_CNT}, 0x40000"); g.A("s_cbranch_scc1 L_poll_done")
        if int(o.sleep): g.A(f"s_sleep {int(o.sleep)}")
        g.A("s_branch L_poll")
        g.label("L_poll_done")
        g.A("s_mov_b64 exec, -1")
        stamp(g, o, 7)
        for q in range(16):
            g.vmem(f"buffer_load_dwordx4 v[{16+4*q}:{19+4*q}], v12, s[4:7], s12 offen sc1", f"p{q}")
            if q < 15: g.A("s_add_u32 s12, s12, 49152")
    if o.dot2:
        g.A("s_mov_b32 s22, 0x00003f80"); g.A("s_mov_b32 s23, 0x3f800000")
        for j in range(8): g.A(f"v_mov_b32 v{2+j}, 0")
        for q in range(16):
            g.wait_vm(f"p{q}")
            for j in range(4):
                g.A(f"v_dot2c_f32_bf16 v{2+2*j}, s22, v{16+4*q+j}"); g.A(f"v_dot2c_f32_bf16 v{3+2*j}, s23, v{16+4*q+j}")
    else:
        for q in range(16):
            g.wait_vm(f"p{q}")
            for j in range(4):
                src = 16 + 4*q + j
                if q == 0:
                    g.A(f"v_lshlrev_b32 v{2+2*j}, 16, v{src}"); g.A(f"v_and_b32 v{3+2*j}, 0xffff0000, v{src}")
                else:
                    g.A(f"v_lshlrev_b32 v10, 16, v{src}"); g.A(f"v_and_b32 v11, 0xffff0000, v{src}")
                    g.A(f"v_add_f32 v{2+2*j}, v{2+2*j}, v10"); g.A(f"v_add_f32 v{3+2*j}, v{3+2*j}, v11")
    for j in range(4): g.A(f"v_cvt_pk_bf16_f32 v{16+j}, v{2+2*j}, v{3+2*j}")
    po = f" {o.pol_out}" if o.pol_out else ""
    g.A(f"buffer_store_dwordx2 v[16:17], v13, s[8:11], s16 offen{po}")
    g.A(f"buffer_store_dwordx2 v[18:19], v13, s[8:11], s16 offen offset:32{po}")
    g.label("L_red_done")
    if o.stamps is True:
        g.A(f"s_cmp_lg_u32 s{S_W}, 0"); g.A("s_cbranch_scc1 L_end")
        g.A("s_waitcnt vmcnt(0)")
        stamp(g, o, 8)
        dump_stamps(g, 0x1000000)
    elif o.stamps == "dbg":
        dbg_stamps(g, o)

def dbg_stamps(g, o):
    g.A("s_waitcnt vmcnt(0)")
    stamp(g, o, 8)
    g.A(f"s_cmp_lg_u32 s{S_W}, 0"); g.A("s_cbranch_scc1 L_end")
    g.A(f"s_cmp_lg_u32 s2, {int(o.dbgwg)}"); g.A("s_cbranch_scc1 L_end")
    srd(g, 40, S_DBG, S_DBG+1, None, 256)
    for k in range(12):
        g.A(f"s_sub_u32 s{S_T0}, s{S_STAMP+k}, s{S_STAMP}"); g.A(f"v_mov_b32 v{16+k}, s{S_T0}")
    for k in range(12, 16):
        g.A(f"s_sub_u32 s{S_T0}, s{S_STAMP+k}, s{S_STAMP+12}"); g.A(f"v_mov_b32 v{16+k}, s{S_T0}")
    g.A("v_mov_b32 v13, 0")
    g.A("s_mov_b64 exec, 1")
    for k in range(4): g.A(f"buffer_store_dwordx4 v[{16+4*k}:{19+4*k}], v13, s[40:43], 0 offen offset:{16*k}")
    g.A("s_waitcnt vmcnt(0)")

def compute_path(g, o):
    if int(o.prio): g.A(f"s_setprio {int(o.prio)}")
    p1_compute(g, o)
    g.A(f"s_cmp_eq_u32 s{S_W}, 3"); g.A("s_cbranch_scc1 L_wave3")
    g.wait_lg0()
    g.A("s_barrier")
    stamp(g, o, 3)
    p2_compute(g, o)
    g.label("L_p3")
    g.vm = []
    p3_compute(g, o)
    compute_tail(g, o)
    g.label("L_end")
    g.A("s_endpgm")
    g.label("L_wave3")
    g.A("s_waitcnt lgkmcnt(0)"); g.lg = []
    g.A("s_barrier")
    p2_kloader(g, o)
    g.A("s_branch L_p3")

def loader_path(g, o):
    g.lg = []; g.vm = []
    if int(o.ldprio): g.A(f"s_setprio {int(o.ldprio)}")
    loader(g, o)
    loader_tail(g, o)

def k1(g, o):
    header(g, K1)
    entry(g, o)
    if o.layout == "near":
        gl = G(); loader_path(gl, o)
        k = gl.L.index("; @SPLIT")
        g.A(f"s_cmp_lt_u32 s{S_W}, 4"); g.A("s_cbranch_scc1 L_compute")
        g.L += gl.L[:k]
        g.A("s_branch L_loader_b")
        g.label("L_compute")
        g.lg = []; g.vm = []
        compute_path(g, o)
        g.label("L_loader_b")
        g.L += gl.L[k+1:]
    elif o.ld_first:
        g.A(f"s_cmp_lt_u32 s{S_W}, 4"); g.A("s_cbranch_scc1 L_compute")
        loader_path(g, o)
        g.label("L_compute")
        g.lg = []; g.vm = []
        compute_path(g, o)
    else:
        g.A(f"s_cmp_ge_u32 s{S_W}, 4"); g.A("s_cbranch_scc1 L_loader")
        compute_path(g, o)
        g.label("L_loader")
        loader_path(g, o)
    for par in range(2): rescale_sub(g, par)
    if o.m0init: rescale_sub(g, 0, first=True)
    for t in [0, 1, 2, 3, 4, 5, 6, 31]: rare_stub(g, t)
    g.label("L_code_end")

def build(o):
    g = G()
    g.A("; @launch grid=(256,1,1) block=(512,1,1) lds=163840")
    g.A('.amdgcn_target "amdgcn-amd-amdhsa--gfx950"')
    k1(g, o)
    descriptor(g, K1, 256, ACC_OFF)
    return g

if __name__ == "__main__":
    o = Opt(); OPT = o
    for a in sys.argv[2:]:
        k, v = a.split("=", 1)
        setattr(o, k, {"True": True, "False": False}.get(v, v))
    g = build(o)
    if o.al8:
        g.L, fixed, left = alignpass.run(g.L, o.al8 == "pad")
        print("aligned", fixed, "left misaligned", left)
    probs = check(g.L)
    for p in probs[:8]: print("HAZARD", p)
    open(sys.argv[1], "w").write(g.text())
    print("lines", len(g.L))
```

```python
import sys, math, struct
from asmlib import G, check
from sched import schedule
import alignpass

PREFIX = "concat_heads__gqa_block_cached__gqa_block_cached__near_ridge"
K1 = PREFIX + "_kernel"

VB = 0
KB = 65536
XB = 114688
QB = XB
OB = 139264
WQB = 16384
NS = 6
def kslot(i): return KB + (NS - 1 - i % NS) * 8192
def vslot(i): return VB + (i % NS) * 8192
WO_ADDR = [[49152, 57344, 114688, 122880],
           [131072, kslot(26), kslot(27), kslot(28)],
           [vslot(26), kslot(29), vslot(27), kslot(30)],
           [vslot(28), kslot(31), vslot(29), vslot(30)]]
FLAGB = 14 << 20

CSCALE = math.log2(math.e) / math.sqrt(128.0)
def fbits(x): return struct.unpack("<I", struct.pack("<f", x))[0]
THR_HI = float(2 ** 20)
THR_LO = float(2 ** -20)

S_W = 3
SRD_X, SRD_WQ, SRD_K, SRD_V, SRD_WO, SRD_P = 4, 8, 12, 16, 20, 24
S_DBG, S_OUT, S_WS = 94, 96, 52
S_HKV, S_HALF, S_B, S_BR = 54, 55, 56, 57
S_S0, S_RING = 58, 59
S_T0, S_T1, S_T2, S_T3 = 60, 61, 62, 63
S_CNT = 64
S_KOFF, S_VOFF = 65, 66
S_THR = 67
S_C = 68
S_RET = 70
S_STAMP = 72
S_WOA = 88
S_BB, S_HP = 92, 93
S_LD2K, S_FIRST, S_THRLO, S_WOROT = 28, 29, 30, 31
S_XM, S_XO = 98, 99
SRD_DBG, SRD_FL = 32, 36

ACC_OFF = 160
V_LANE = 1
V_XR, V_XT = 2, 3
V_WR = 5
V_ACC1 = 32
V_E = 2; NTEMP = 8
V_L, V_TS, V_T, V_F = 10, 11, 12, 14
V_KA, V_VA = 16, 24
V_TMP = 28
V_S = [32, 48]; V_P = [64, 72]; V_NEGM = 80; V_O = 96
A_Q, A_K, A_V = 0, 32, 64
A_A1 = [0, 16]; A_B1 = [32, 44]
V_OB, V_OR, V_SW, V_ST = 28, 29, 30, 31
V_OT = 14
V_RI = 8
V_QW = 88
V_ACC3 = 64
WOR = [10, 11, 12, 13] + list(range(16, 28))
V_A3 = [32, 48]
A_A3 = [0, 16]; A_B3 = [32, 44]
V_STG = 32
V_XD = 2; V_WD = 4; V_KE0, V_KE1, V_VE = 8, 9, 10; V_WOD = 12; V_LT = 16
V_FA, V_FD, V_RA, V_RD = 20, 21, 22, 23
V_FT = 24

def vr(b, n=1): return f"v{b}" if n == 1 else f"v[{b}:{b+n-1}]"
def ar(b, n=1): return f"a{b}" if n == 1 else f"a[{b}:{b+n-1}]"

class Opt:
    nt_kv = "nt"; pol_w = ""; pol_x = ""; pol_st = "sc1"
    stamps = False; rot = True; sleep = 1; dbgwg = 37
    cap_lo = 24; cap_hi = 24
    ld_defer = False; layout = "cf"; ldprio = 0; probe = None; al8 = True; align = 0; p3fine = True; swap_first = False; vtouch = False; pol_out = ""; wq3 = False; dot2 = True; early_ld = True; ld_first = False; code_pf = False; wo_pf = False; stage = False; front = 9; kv_pol1 = None; first_nt = False; nt_x = 0; nt_wq = 2; nt_wo = 1; pretouch = False; m0init = True; prio = 0; thr = 20
    x_now = False; x_nost = False; x_nok = False; x_nov = False; x_novalu = False; x_nomfma = False; x_nodma = False
OPT = None

def stamp(g, o, idx):
    if o.stamps:
        g.A("s_memrealtime s[100:101]"); g.A("s_waitcnt lgkmcnt(0)"); g.A(f"s_mov_b32 s{S_STAMP+idx}, s100")
        cyc = {0: 12, 3: 13, 4: 14, 8: 15}
        if idx in cyc:
            g.A("s_memtime s[100:101]"); g.A("s_waitcnt lgkmcnt(0)"); g.A(f"s_mov_b32 s{S_STAMP+cyc[idx]}, s100")
        g.lg = []

def header(g, name):
    g.A(".text"); g.A(f".globl {name}"); g.A(".p2align 8"); g.A(f".type {name},@function"); g.label(name)

def descriptor(g, name, vgpr, accum, sgpr=102):
    g.A('.section .rodata,"a"'); g.A(".p2align 6"); g.A(f".amdhsa_kernel {name}")
    g.A(f".amdhsa_next_free_vgpr {vgpr}"); g.A(f".amdhsa_next_free_sgpr {sgpr}"); g.A(f".amdhsa_accum_offset {accum}")
    g.A(".amdhsa_group_segment_fixed_size 0"); g.A(".amdhsa_kernarg_size 104"); g.A(".amdhsa_user_sgpr_count 2")
    g.A(".amdhsa_user_sgpr_kernarg_segment_ptr 1"); g.A(".amdhsa_system_sgpr_workgroup_id_x 1"); g.A(".end_amdhsa_kernel")

def srd(g, d, lo, hi, off_s, nrec):
    if off_s is None:
        g.A(f"s_mov_b32 s{d}, s{lo}"); g.A(f"s_and_b32 s{d+1}, s{hi}, 0xffff")
    else:
        g.A(f"s_add_u32 s{d}, s{lo}, {off_s}"); g.A(f"s_addc_u32 s{d+1}, s{hi}, 0"); g.A(f"s_and_b32 s{d+1}, s{d+1}, 0xffff")
    g.A(f"s_mov_b32 s{d+2}, {nrec}"); g.A(f"s_mov_b32 s{d+3}, 0x20000")

def dma(g, voff, srd_, soff, imm, pol, tag):
    off = f" offset:{imm}" if imm else ""
    pol = f" {pol}" if pol else ""
    g.vmem(f"buffer_load_dwordx4 v{voff}, s[{srd_}:{srd_+3}], {soff} offen{off}{pol} lds", tag)

_lab = [0]
def dma_group(g, o, items, tag):
    if o.kv_pol1 is None:
        for it in items: dma(g, *it, o.nt_kv, tag)
        return
    _lab[0] += 1; n = _lab[0]
    g.A(f"s_cmp_eq_u32 s{S_HALF}, 1"); g.A(f"s_cbranch_scc1 L_kvp{n}")
    vm = list(g.vm)
    for it in items: dma(g, *it, o.nt_kv, tag)
    g.A(f"s_branch L_kvq{n}")
    g.label(f"L_kvp{n}")
    g.vm = vm
    for it in items: dma(g, *it, o.kv_pol1, tag)
    g.label(f"L_kvq{n}")

def weave(main, fill):
    n = len(main); m = len(fill); k = 0
    for i, f in enumerate(main):
        f()
        tgt = (i + 1) * m // n
        while k < tgt:
            fill[k](); k += 1

def gemm_step(g, n, mfma, fill, front=9, after=None, addr=None):
    k = 0; m = len(fill)
    for i in range(12):
        cb = i // 3
        if i % 3 == 0: g.wait_lg([f"f{n}B", f"f{n}A{cb}"])
        mfma(cb, i % 3)
        tgt = min(m, -(-(i + 1) * m // front))
        while k < tgt:
            fill[k](); k += 1
        if addr and i == 9: addr()
        if after and i in after: after[i]()

def loop_label(g, name):
    if int(OPT.align): g.A(f".p2align {int(OPT.align)}")
    g.label(name)

def select_by_wave(g, dst, vals):
    g.A(f"s_mov_b32 s{dst}, {vals[0]}")
    for k in range(1, len(vals)):
        g.A(f"s_cmp_eq_u32 s{S_W}, {k}"); g.A(f"s_cselect_b32 s{dst}, {vals[k]}, s{dst}")

def entry(g, o):
    g.A("s_cmp_ge_u32 s2, 256"); g.A("s_cbranch_scc1 L_end")
    stamp(g, o, 0)
    g.A("s_load_dwordx16 s[32:47], s[0:1], 0")
    g.A("s_load_dwordx4 s[48:51], s[0:1], 64")
    g.A(f"s_load_dwordx2 s[{S_WS}:{S_WS+1}], s[0:1], 96")
    g.A(f"s_load_dwordx2 s[{S_OUT}:{S_OUT+1}], s[0:1], 80")
    g.A(f"s_load_dwordx2 s[{S_DBG}:{S_DBG+1}], s[0:1], 88")
    g.A(f"v_and_b32 v{V_LANE}, 63, v0")
    g.A("v_lshrrev_b32 v2, 6, v0")
    g.A(f"s_and_b32 s{S_HKV}, s2, 7")
    g.A(f"v_readfirstlane_b32 s{S_W}, v2")
    g.A(f"s_lshr_b32 s{S_T0}, s2, 3")
    g.A(f"s_and_b32 s{S_HALF}, s{S_T0}, 1")
    g.A(f"s_lshr_b32 s{S_B}, s{S_T0}, 1"); g.A(f"s_and_b32 s{S_B}, s{S_B}, 7")
    g.A(f"s_lshr_b32 s{S_BR}, s{S_T0}, 4")
    g.A(f"s_lshl_b32 s{S_HP}, s{S_HKV}, 1"); g.A(f"s_add_u32 s{S_HP}, s{S_HP}, s{S_HALF}")
    g.A(f"s_lshl_b32 s{S_BB}, s{S_BR}, 3"); g.A(f"s_add_u32 s{S_BB}, s{S_BB}, s{S_B}")
    if o.rot:
        g.A(f"s_lshl_b32 s{S_S0}, s{S_B}, 1"); g.A(f"s_lshl_b32 s{S_T0}, s{S_HALF}, 3")
        g.A(f"s_add_u32 s{S_S0}, s{S_S0}, s{S_T0}"); g.A(f"s_and_b32 s{S_S0}, s{S_S0}, 15")
        g.A(f"s_mov_b32 s{S_WOROT}, s{S_B}")
    else:
        g.A(f"s_mov_b32 s{S_S0}, 0"); g.A(f"s_mov_b32 s{S_WOROT}, 0")

def select_branch(g, idx):
    g.A(f"s_cmp_eq_u32 s{S_BR}, 1")
    for i in idx: g.A(f"s_cselect_b32 s{32+i}, s{42+i}, s{32+i}")

def srd_kv(g, which):
    g.A(f"s_lshl_b32 s{S_T0}, s{S_B}, 3"); g.A(f"s_add_u32 s{S_T0}, s{S_T0}, s{S_HKV}"); g.A(f"s_lshl_b32 s{S_T0}, s{S_T0}, 18")
    if "K" in which: srd(g, SRD_K, 34, 35, f"s{S_T0}", 262144)
    if "V" in which: srd(g, SRD_V, 36, 37, f"s{S_T0}", 262144)

EARLY = [("K", 0), ("K", 1), ("V", 0), ("K", 2), ("V", 1), ("K", 3)]

def full_tile_regs(g, kind):
    L = V_LANE; t0, t1 = 60, 61
    g.A(f"v_lshrrev_b32 v{t0}, 4, v{L}"); g.A(f"v_and_b32 v{t1}, 15, v{L}")
    for e in range(4 if kind == "K" else 1):
        d = V_FT + e
        if kind == "K": g.A(f"v_add_u32 v{d}, {4*e}, v{t0}")
        else: g.A(f"v_lshlrev_b32 v{d}, 2, v{t0}")
        g.A(f"v_xor_b32 v{d}, v{d}, v{t1}"); g.A(f"v_lshlrev_b32 v{d}, 4, v{d}"); g.A(f"v_lshl_add_u32 v{d}, v{t0}, 8, v{d}")

def full_tile(g, o, kind, t, tag):
    so = S_KOFF if kind == "K" else S_VOFF
    base = kslot(t) if kind == "K" else vslot(t)
    for hf in range(2):
        g.A(f"s_mov_b32 m0, {base + hf*4096}"); g.A("s_nop 0")
        dma_group(g, o, [(V_FT + (e if kind == "K" else 0), SRD_K if kind == "K" else SRD_V, f"s{so}", 1024*e) for e in range(4)], tag)
        g.A(f"s_add_u32 s{so}, s{so}, 4096")

def loader(g, o):
    g.C("================ loader waves")
    L = V_LANE; t0, t1, t2, t3 = V_LT, V_LT+1, V_LT+2, V_LT+3
    g.A(f"s_sub_u32 s{S_W}, s{S_W}, 4")
    g.A(f"v_lshrrev_b32 v{t0}, 4, v{L}"); g.A(f"v_and_b32 v{t1}, 15, v{L}")
    g.A(f"s_lshl_b32 s{S_T0}, s{S_W}, 2")
    g.A(f"v_add_u32 v{t2}, s{S_T0}, v{t0}"); g.A(f"v_xor_b32 v{t2}, v{t2}, v{t1}"); g.A(f"v_lshlrev_b32 v{t2}, 4, v{t2}")
    g.A(f"v_lshl_add_u32 v{V_XD}, v{t0}, 10, v{t2}")
    def x_prep(j):
        g.A(f"s_lshr_b32 s{S_T0}, s{S_S0}, 2"); g.A(f"s_add_u32 s{S_T0}, s{S_T0}, {j}"); g.A(f"s_and_b32 s{S_T0}, s{S_T0}, 3")
        g.A(f"s_mul_i32 s{S_XM}, s{S_T0}, 12288"); g.A(f"s_lshl_b32 s{S_T1}, s{S_W}, 10"); g.A(f"s_add_u32 s{S_XM}, s{S_XM}, s{S_T1}")
        g.A(f"s_lshl_b32 s{S_XO}, s{S_T0}, 8"); g.A(f"s_lshl_b32 s{S_T1}, s{S_W}, 12"); g.A(f"s_add_u32 s{S_XO}, s{S_XO}, s{S_T1}")
    def x_issue(j):
        for i3 in range(3):
            g.A(f"s_add_u32 m0, s{S_XM}, {XB + i3*4096}")
            g.A(f"s_add_u32 s{S_T0}, s{S_XO}, {i3*16384}")
            dma(g, V_XD, SRD_X, f"s{S_T0}", 0, "nt" if (o.first_nt and j < int(o.nt_x)) else o.pol_x, f"x{j}")
    def wq_step(i):
        g.A(f"s_add_u32 s{S_T2}, s{S_S0}, {i}"); g.A(f"s_and_b32 s{S_T2}, s{S_T2}, 15")
        g.A(f"s_add_u32 m0, s{S_RING}, {(i%4)*4096}")
        g.A(f"s_lshl_b32 s{S_T2}, s{S_T2}, 18")
        pol = "nt" if (o.first_nt and i < int(o.nt_wq)) else o.pol_w
        for jj in range(4): dma(g, V_WD + jj, SRD_WQ, f"s{S_T2}", 1024*jj, pol, f"wq{i}")
    x_prep(0)
    g.A("s_waitcnt lgkmcnt(0)")
    stamp(g, o, 1)
    select_branch(g, [0, 1, 6, 7])
    g.A(f"s_mul_i32 s{S_T0}, s{S_B}, 49152"); srd(g, SRD_X, 32, 33, f"s{S_T0}", 49152)
    x_issue(0)
    g.A(f"v_lshrrev_b32 v{t2}, 3, v{L}"); g.A(f"v_and_b32 v{t3}, 7, v{L}")
    g.A(f"s_lshl_b32 s{S_T0}, s{S_W}, 7")
    for jj in range(4):
        d = V_WD + jj
        g.A(f"v_and_b32 v{d}, 2, v{t2}")
        if jj & 1: g.A(f"v_or_b32 v{d}, 4, v{d}")
        g.A(f"v_xor_b32 v{d}, v{d}, v{t3}"); g.A(f"v_lshlrev_b32 v{d}, 4, v{d}")
        g.A(f"v_lshl_add_u32 v{d}, v{t2}, 13, v{d}")
        g.A(f"v_add_u32 v{d}, s{S_T0}, v{d}")
        if jj: g.A(f"v_add_u32 v{d}, {jj*64512}, v{d}")
    g.A(f"s_lshl_b32 s{S_RING}, s{S_W}, 14"); g.A(f"s_add_u32 s{S_RING}, s{S_RING}, {WQB}")
    g.A(f"s_lshl_b32 s{S_T1}, s{S_HP}, 9")
    srd(g, SRD_WQ, 38, 39, f"s{S_T1}", 0)
    g.A(f"s_sub_u32 s{SRD_WQ+2}, 0x400000, s{S_T1}")
    wq_step(0); wq_step(1)
    x_prep(1); x_issue(1)
    wq_step(2)
    if o.wq3: wq_step(3)
    stamp(g, o, 2)
    g.C("@SPLIT")
    if o.code_pf:
        g.A(f"s_cmp_lg_u32 s{S_W}, 1"); g.A("s_cbranch_scc1 L_cpf")
        g.A("s_getpc_b64 s[98:99]"); g.label("L_pc")
        g.A(f"s_sub_u32 s98, s98, L_pc-{K1}"); g.A("s_subb_u32 s99, s99, 0")
        g.A(f"s_lshr_b32 s{S_T3}, s2, 3"); g.A(f"s_lshl_b32 s{S_T3}, s{S_T3}, 10")
        g.A(f"v_lshl_add_u32 v{t2}, v{L}, 4, s{S_T3}")
        g.A(f"v_min_u32 v{t2}, L_code_end-{K1}-16, v{t2}")
        g.A(f"global_load_dwordx4 v[32:35], v{t2}, s[98:99]")
        g.label("L_cpf")
    gd = G(); TA, TB = S_T3, S_CNT
    select_branch(gd, [2, 3, 4, 5, 8, 9])
    gd.A(f"s_lshl_b32 s{TA}, s{S_B}, 3"); gd.A(f"s_add_u32 s{TA}, s{TA}, s{S_HKV}"); gd.A(f"s_lshl_b32 s{TA}, s{TA}, 18")
    srd(gd, SRD_K, 34, 35, f"s{TA}", 262144); srd(gd, SRD_V, 36, 37, f"s{TA}", 262144)
    gd.A(f"s_lshl_b32 s{TA}, s{S_HP}, 18")
    srd(gd, SRD_WO, 40, 41, f"s{TA}", 262144)
    gd.A(f"s_lshl_b32 s{S_LD2K}, s{S_W}, 11")
    gd.A(f"v_lshlrev_b32 v{t2}, 8, v{t0}"); gd.A(f"v_add_u32 v{t2}, s{S_LD2K}, v{t2}")
    gd.A(f"s_lshl_b32 s{TA}, s{S_W}, 3"); gd.A(f"s_and_b32 s{TA}, s{TA}, 15")
    for e in range(2):
        d = V_KE0 + e
        gd.A(f"v_add_u32 v{d}, s{TA}, v{t0}")
        if e: gd.A(f"v_add_u32 v{d}, 4, v{d}")
        gd.A(f"v_xor_b32 v{d}, v{d}, v{t1}"); gd.A(f"v_lshl_add_u32 v{d}, v{d}, 4, v{t2}")
    gd.A(f"v_lshlrev_b32 v{V_VE}, 2, v{t0}"); gd.A(f"v_xor_b32 v{V_VE}, v{V_VE}, v{t1}")
    gd.A(f"v_lshl_add_u32 v{V_VE}, v{V_VE}, 4, v{t2}")
    gd.A(f"v_lshrrev_b32 v{t2}, 3, v{L}"); gd.A(f"v_and_b32 v{t3}, 7, v{L}")
    gd.A(f"s_lshl_b32 s{TB}, s{S_W}, 8")
    for jj in range(4):
        d = V_WOD + jj
        gd.A(f"v_and_b32 v{d}, 2, v{t2}")
        if jj & 1: gd.A(f"v_or_b32 v{d}, 4, v{d}")
        gd.A(f"v_xor_b32 v{d}, v{d}, v{t3}"); gd.A(f"v_lshlrev_b32 v{d}, 4, v{d}")
        gd.A(f"v_lshl_add_u32 v{d}, v{t2}, 10, v{d}")
        gd.A(f"v_add_u32 v{d}, s{TB}, v{d}")
        if jj: gd.A(f"v_add_u32 v{d}, {jj*7168}, v{d}")
    for s_ in range(4): select_by_wave(gd, S_WOA + s_, [WO_ADDR[s_][w] for w in range(4)])
    gd.A(f"s_mov_b32 s{S_KOFF}, 0"); gd.A(f"s_mov_b32 s{S_VOFF}, 0")
    if o.ld_defer: ld_chunks = chunks(gd.L, 10)
    else:
        ld_chunks = [[] for _ in range(10)]
        for l in gd.L: g.A(l)
    def kv(kind, t, tag):
        so = S_KOFF if kind == "K" else S_VOFF
        g.A(f"s_add_u32 m0, s{S_LD2K}, {kslot(t) if kind == 'K' else vslot(t)}")
        g.A("s_nop 0")
        if kind == "K": dma_group(g, o, [(V_KE0, SRD_K, f"s{so}", 0), (V_KE1, SRD_K, f"s{so}", 1024)], tag)
        else: dma_group(g, o, [(V_VE, SRD_V, f"s{so}", 0), (V_VE, SRD_V, f"s{so}", 1024)], tag)
        g.A(f"s_add_u32 s{so}, s{so}, 8192")
    def wo_soff(n):
        g.A(f"s_add_u32 s{S_T2}, s{S_WOROT}, {n % 8}"); g.A(f"s_and_b32 s{S_T2}, s{S_T2}, 7"); g.A(f"s_lshl_b32 s{S_T2}, s{S_T2}, 15")
        if n >= 8: g.A(f"s_add_u32 s{S_T2}, s{S_T2}, 128")
    def wo_step(d):
        for n in (2*d, 2*d+1):
            g.A(f"s_add_u32 m0, s{S_WOA + d % 4}, {(n % 2)*4096}")
            wo_soff(n)
            pol = "nt" if (o.first_nt and (n if o.wo_pf else n % 8) < int(o.nt_wo)) else o.pol_w
            for jj in range(4): dma(g, V_WOD + jj, SRD_WO, f"s{S_T2}", 1024*jj, pol, f"wo{d}")
    def wo_piece(n):
        g.A(f"s_add_u32 m0, s{S_WOA + ((n - 8) // 2)}, {(n % 2)*4096}")
        wo_soff(n)
        for jj in range(4): dma(g, V_WOD + jj, SRD_WO, f"s{S_T2}", 1024*jj, o.pol_w, f"wp{n}")
    def wo_regs(k):
        for n in (8 + 2*k, 9 + 2*k):
            wo_soff(n)
            pol = " nt" if (o.first_nt and n - 8 < int(o.nt_wo)) else (f" {o.pol_w}" if o.pol_w else "")
            for jj in range(4):
                r = V_STG + ((n - 8)*4 + jj)*4
                off = f" offset:{1024*jj}" if jj else ""
                g.vmem(f"buffer_load_dwordx4 {vr(r,4)}, v{V_WOD+jj}, s[{SRD_WO}:{SRD_WO+3}], s{S_T2} offen{off}{pol}", f"wr{k}")
    def wo_write(d):
        g.wait_vm(f"wr{d-4}")
        g.A(f"v_add_u32 v{V_LT+2}, s{S_WOA + d - 4}, v{V_LT+3}")
        for k in range(8):
            if o.x_now: break
            r = V_STG + ((d-4)*8 + k)*4
            g.lds(f"ds_write_b128 v{V_LT+2}, {vr(r,4)} offset:{k*1024}", "ww")
    need_x = {0: "x0", 1: "x1", 5: "x2", 9: "x3"}
    for i in range(16):
        tags = []
        if i == 0: tags += ["wq0", "wq1"]
        elif i + 1 < 16: tags.append(f"wq{i+1}")
        if i in need_x: tags.append(need_x[i])
        if tags: g.wait_vm(tags)
        if i == 0: stamp(g, o, 3)
        g.A("s_barrier")
        if i + 3 < 16:
            if not (o.wq3 and i == 0): wq_step(i + 3)
        else:
            for kind, t in EARLY[(i-13)*2:(i-13)*2+2]: kv(kind, t, f"{kind}{t}")
        if i == 0: x_prep(2); x_issue(2)
        if i == 3: x_prep(3); x_issue(3)
        if i < 10:
            for l in ld_chunks[i]: g.A(l)
    g.A("s_barrier")
    g.wait_vm(["K0", "K1"]); g.A("s_barrier")
    stamp(g, o, 4)
    def tail_p3(first):
        g.A("s_barrier")
        wo_step(3)
        if o.stage: wo_regs(2)
        g.A(f"v_lshlrev_b32 v{V_LT+3}, 4, v{V_LANE}")
        g.wait_vm(["wo0", "wo1"]); g.A("s_barrier")
        if o.stage: wo_regs(3)
        if o.p3fine:
            for m in range(1, 16):
                need = m + 1
                if need < 8:
                    if need % 2 == 0: g.wait_vm(f"wo{need // 2}")
                elif need < 16: g.wait_vm(f"wp{need}")
                if m == 15 and first: ready_check()
                g.A("s_barrier")
                if m + 7 < 16: wo_piece(m + 7)
            g.A("s_branch L_ld_end")
            return
        for d in range(1, 8):
            if d + 1 < 4 or (not o.stage and d + 1 < 8): g.wait_vm(f"wo{d+1}")
            elif o.stage: g.wait_lg0()
            if d == 7 and first: ready_check()
            g.A("s_barrier")
            if d + 3 < 8:
                if o.stage: wo_write(d + 3)
                else: wo_step(d + 3)
        g.A("s_branch L_ld_end")
    def ready_check():
        g.A(f"s_cmp_lg_u32 s{S_W}, 0"); g.A("s_cbranch_scc1 L_rdy_done")
        g.A(f"s_mov_b32 s{S_CNT}, 0")
        g.label("L_rdy")
        g.A(f"v_readfirstlane_b32 s{S_T1}, v{V_RD}")
        g.A(f"s_add_u32 s{S_CNT}, s{S_CNT}, 1")
        g.A(f"s_cmp_lg_u32 s{S_T1}, 0"); g.A("s_cbranch_scc1 L_rdy_done")
        g.A(f"s_cmp_ge_u32 s{S_CNT}, 0x40000"); g.A("s_cbranch_scc1 L_rdy_done")
        g.A(f"buffer_load_dword v{V_RD}, v{V_RA}, s[{SRD_DBG}:{SRD_DBG+3}], 0 offen sc1")
        g.A("s_waitcnt vmcnt(0)")
        g.A("s_branch L_rdy")
        g.label("L_rdy_done")
    def idle(n, lab):
        g.A(f"s_mov_b32 s{S_CNT}, {n}")
        g.label(lab)
        g.A("s_barrier")
        g.A(f"s_sub_u32 s{S_CNT}, s{S_CNT}, 1"); g.A(f"s_cmp_lg_u32 s{S_CNT}, 0"); g.A(f"s_cbranch_scc1 {lab}")
    def drain(vtags):
        wo_step(0)
        if o.wo_pf:
            g.A(f"v_and_b32 v{V_LT+2}, 31, v{V_LANE}"); g.A(f"v_lshlrev_b32 v{V_LT+2}, 10, v{V_LT+2}")
            g.A(f"s_lshl_b32 s{S_T0}, s{S_W}, 8"); g.A(f"s_add_u32 s{S_T0}, s{S_T0}, 128")
            g.A(f"v_add_u32 v{V_LT+2}, s{S_T0}, v{V_LT+2}")
            g.A(f"s_lshl_b32 s{S_T2}, s{S_WOROT}, 15")
            g.vmem(f"buffer_load_dword v{V_LT+1}, v{V_LT+2}, s[{SRD_WO}:{SRD_WO+3}], s{S_T2} offen nt", "pf")
        for t in range(28, 32):
            if vtags: g.wait_vm(f"V{t}")
            g.A("s_barrier")
            if t == 28: wo_step(1)
            if t == 29 and o.stage: wo_regs(0)
            if t == 30: wo_step(2)
            if t == 31 and o.stage: wo_regs(1)
        tail_p3(not vtags)
    g.A(f"s_cmp_eq_u32 s{S_W}, 3"); g.A("s_cbranch_scc1 L_vloader")
    vm_early = list(g.vm)
    g.wait_vm(["V0", "K2"]); g.A("s_barrier")
    g.wait_vm(["V1", "K3"]); g.A("s_barrier")
    srd(g, SRD_DBG, S_DBG, S_DBG+1, None, 256)
    srd(g, SRD_FL, S_WS, S_WS+1, None, FLAGB + 1024*128)
    g.A(f"s_lshl_b32 s{S_T0}, s{S_BB}, 13"); g.A(f"s_add_u32 s{S_T0}, s{S_T0}, {FLAGB}")
    g.A(f"v_lshlrev_b32 v{V_FA}, 7, v{V_LANE}"); g.A(f"v_add_u32 v{V_FA}, s{S_T0}, v{V_FA}")
    g.A(f"s_lshl_b32 s{S_T0}, s{S_BB}, 2"); g.A(f"v_mov_b32 v{V_RA}, s{S_T0}")
    g.A(f"s_or_b32 s{S_FIRST}, s{S_W}, s{S_HP}")
    g.A(f"s_cmp_lg_u32 s{S_FIRST}, 0"); g.A("s_cbranch_scc1 L_fl1")
    g.A(f"v_mov_b32 v{V_FD}, 0")
    g.A(f"buffer_store_dword v{V_FD}, v{V_FA}, s[{SRD_FL}:{SRD_FL+3}], 0 offen sc1")
    g.label("L_fl1")
    idle(8, "L_ld_idle1")
    g.A(f"s_cmp_lg_u32 s{S_FIRST}, 0"); g.A("s_cbranch_scc1 L_fl2")
    g.A("s_waitcnt vmcnt(0)")
    g.A(f"v_mov_b32 v{V_FD}, 1")
    g.A("s_mov_b64 exec, 1")
    g.A(f"buffer_store_dword v{V_FD}, v{V_RA}, s[{SRD_DBG}:{SRD_DBG+3}], 0 offen sc1")
    g.A("s_mov_b64 exec, -1")
    g.label("L_fl2")
    idle(10, "L_ld_idle2")
    g.A(f"s_cmp_lg_u32 s{S_W}, 0"); g.A("s_cbranch_scc1 L_fl3")
    g.A(f"buffer_load_dword v{V_RD}, v{V_RA}, s[{SRD_DBG}:{SRD_DBG+3}], 0 offen sc1")
    g.label("L_fl3")
    idle(8, "L_ld_idle3")
    g.A("s_waitcnt vmcnt(0)"); g.vm = []
    drain(False)
    g.label("L_vloader")
    g.vm = vm_early
    full_tile_regs(g, "V")
    g.A(f"s_mov_b32 s{S_VOFF}, {2*8192}")
    full_tile(g, o, "V", 2, "V2"); full_tile(g, o, "V", 3, "V3")
    g.wait_vm(["V0", "K2"])
    g.A(f"s_mov_b32 s{S_CNT}, 4")
    loop_label(g, "L_vld_loop")
    for t in range(6):
        g.A("s_waitcnt vmcnt(24)"); g.A("s_barrier")
        if not o.x_nodma: full_tile(g, o, "V", t+4, f"V{t+4}")
    g.A(f"s_sub_u32 s{S_CNT}, s{S_CNT}, 1"); g.A(f"s_cmp_lg_u32 s{S_CNT}, 0"); g.A("s_cbranch_scc1 L_vld_loop")
    g.vm = []
    for t in range(24, 28): g.vm += [f"V{t}"]*8
    for t in range(24, 28):
        g.wait_vm(f"V{t}"); g.A("s_barrier"); full_tile(g, o, "V", t+4, f"V{t+4}")
    drain(True)

def loader_tail(g, o):
    g.label("L_ld_end")
    if o.stamps is True:
        stamp(g, o, 7)
        g.A(f"s_cmp_lg_u32 s{S_W}, 0"); g.A("s_cbranch_scc1 L_ld_end2")
        dump_stamps(g, 0x1010000)
        g.label("L_ld_end2")
    g.A("s_endpgm")

def dump_stamps(g, base):
    g.A(f"s_add_u32 s40, s{S_WS}, {base}"); g.A(f"s_addc_u32 s41, s{S_WS+1}, 0"); g.A("s_and_b32 s41, s41, 0xffff")
    g.A("s_mov_b32 s42, 0x10000"); g.A("s_mov_b32 s43, 0x20000")
    for k in range(16): g.A(f"v_mov_b32 v{16+k}, s{S_STAMP+k}")
    g.A(f"s_lshl_b32 s{S_T0}, s2, 6"); g.A(f"v_mov_b32 v13, s{S_T0}")
    g.A("s_mov_b64 exec, 1")
    for k in range(4): g.A(f"buffer_store_dwordx4 v[{16+4*k}:{19+4*k}], v13, s[40:43], 0 offen offset:{16*k}")
    g.A("s_waitcnt vmcnt(0)")
    g.A("s_mov_b64 exec, -1")

def deferred_setup(o):
    g = G(); L = V_LANE; t0, t1, t2 = 92, 93, 94
    T0, T1 = S_T2, S_T3
    g.A(f"s_mov_b32 s{S_THR}, {hex(fbits(float(2.0 ** float(o.thr))))}"); g.A(f"s_mov_b32 s{S_THRLO}, {hex(fbits(THR_LO))}")
    g.A(f"s_mov_b32 s{S_C}, {hex(fbits(CSCALE))}"); g.A(f"s_mov_b32 s{S_C+1}, {hex(fbits(CSCALE))}")
    g.A(f"v_lshrrev_b32 v{t0}, 4, v{L}"); g.A(f"v_and_b32 v{t1}, 15, v{L}")
    g.A(f"s_and_b32 s{T0}, s{S_W}, 1"); g.A(f"s_lshl_b32 s{T0}, s{T0}, 3")
    g.A(f"v_lshrrev_b32 v{t2}, 1, v{t0}")
    g.A(f"v_xor_b32 v{t2}, v{t2}, v{t1}"); g.A(f"v_xor_b32 v{t2}, s{T0}, v{t2}"); g.A(f"v_lshlrev_b32 v{t2}, 4, v{t2}")
    g.A(f"v_and_b32 v{t0}, 1, v{t0}"); g.A(f"v_lshl_add_u32 v{t2}, v{t0}, 3, v{t2}")
    g.A(f"s_lshr_b32 s{T0}, s{S_W}, 1"); g.A(f"s_mul_i32 s{T0}, s{T0}, {48*256}"); g.A(f"s_add_u32 s{T0}, s{T0}, {QB}")
    g.A(f"v_lshl_add_u32 v{t2}, v{t1}, 8, v{t2}"); g.A(f"v_add_u32 v{t2}, s{T0}, v{t2}")
    for cb in range(4): g.A(f"v_xor_b32 v{V_QW+cb}, {cb << 5}, v{t2}")
    later_addresses(g, T0)
    g.A(f"s_lshl_b32 s{T1}, s{S_BB}, 4"); g.A(f"s_add_u32 s{T1}, s{T1}, s{S_HP}"); g.A(f"s_mul_i32 s{T1}, s{T1}, 49152")
    srd(g, SRD_P, S_WS, S_WS+1, f"s{T1}", 49152)
    select_branch(g, [2, 3])
    g.A(f"s_lshl_b32 s{T0}, s{S_B}, 3"); g.A(f"s_add_u32 s{T0}, s{T0}, s{S_HKV}"); g.A(f"s_lshl_b32 s{T0}, s{T0}, 18")
    srd(g, SRD_K, 34, 35, f"s{T0}", 262144)
    for i in range(64): g.A(f"v_mov_b32 v{V_O+i}, 0")
    return [l for l in g.L if not l.startswith(";")]

def chunks(lines, n):
    out = []; k = 0
    for i in range(n):
        e = len(lines) if i == n - 1 else max(k, (i + 1) * len(lines) // n)
        while e < len(lines) and (lines[e].startswith(("s_cselect", "s_addc", "v_cndmask", "s_nop")) or lines[e-1].startswith(("s_cmp", "v_cmp"))
                                  or (lines[e-2].startswith("v_cmp") or lines[e-3].startswith("v_cmp") or lines[e-4].startswith("v_cmp"))): e += 1
        out.append(lines[k:e]); k = e
    return out

def p1_compute(g, o):
    g.C("==== P1: Q projection")
    L = V_LANE; t0, t1, t2 = 9, 15, 12
    g.A(f"v_lshrrev_b32 v{t0}, 4, v{L}"); g.A(f"v_and_b32 v{t1}, 15, v{L}")
    g.A(f"v_xor_b32 v{t2}, v{t0}, v{t1}"); g.A(f"v_lshlrev_b32 v{t2}, 4, v{t2}")
    g.A(f"v_lshl_add_u32 v{V_XR}, v{t1}, 8, v{t2}")
    g.A(f"s_lshl_b32 s{S_RING}, s{S_W}, 14"); g.A(f"s_add_u32 s{S_RING}, s{S_RING}, {WQB}")
    r_, cc, sw = 13, 15, 14
    g.A(f"v_bfe_u32 v{r_}, v{L}, 2, 2"); g.A(f"v_and_b32 v{cc}, 3, v{L}")
    g.A(f"v_and_b32 v{sw}, 2, v{r_}"); g.A(f"v_and_b32 v{t2}, 1, v{t0}")
    g.A(f"v_lshl_or_b32 v{sw}, v{t2}, 2, v{sw}")
    g.A(f"v_lshrrev_b32 v{t2}, 1, v{cc}"); g.A(f"v_or_b32 v{sw}, v{sw}, v{t2}"); g.A(f"v_lshlrev_b32 v{sw}, 4, v{sw}")
    g.A(f"v_and_b32 v{t2}, 1, v{cc}"); g.A(f"v_lshl_add_u32 v{sw}, v{t2}, 3, v{sw}")
    g.A(f"v_lshl_add_u32 v{t2}, v{t0}, 3, v{r_}"); g.A(f"v_lshl_add_u32 v{sw}, v{t2}, 7, v{sw}")
    g.A(f"v_add_u32 v{sw}, s{S_RING}, v{sw}")
    for cb in range(4): g.A(f"v_xor_b32 v{V_WR+cb}, {cb << 5}, v{sw}")
    defer = chunks(deferred_setup(o), 15)
    def reads(i):
        out = []; buf = i % 2; slot = i % 4; vt = V_XT + buf
        def addr():
            g.A(f"s_add_u32 s{S_T0}, s{S_S0}, {i}"); g.A(f"s_and_b32 s{S_T0}, s{S_T0}, 15")
            g.A(f"s_and_b32 s{S_T1}, s{S_T0}, 3"); g.A(f"s_lshl_b32 s{S_T1}, s{S_T1}, 6")
            g.A(f"s_lshr_b32 s{S_T0}, s{S_T0}, 2"); g.A(f"s_mul_i32 s{S_T0}, s{S_T0}, 12288"); g.A(f"s_add_u32 s{S_T0}, s{S_T0}, {XB}")
            g.A(f"v_xor_b32 v{vt}, s{S_T1}, v{V_XR}"); g.A(f"v_add_u32 v{vt}, s{S_T0}, v{vt}")
        out.append(addr)
        for rb in range(3):
            out.append(lambda rb=rb: g.lds(f"ds_read_b128 {ar(A_B1[buf]+4*rb,4)}, v{vt} offset:{rb*4096}", f"f{i}B"))
        for cb in range(4):
            for u in range(2):
                out.append(lambda cb=cb, u=u: g.lds(
                    f"ds_read_b64_tr_b16 {ar(A_A1[buf]+4*cb+2*u,2)}, v{V_WR+cb} offset:{slot*4096+u*512}", f"f{i}A{cb}"))
        return out
    r0 = reads(0); r0[0](); reads(1)[0]()
    g.A("s_waitcnt lgkmcnt(0)")
    for i in range(16):
        buf = i % 2
        g.A("s_barrier")
        if i == 0:
            stamp(g, o, 1)
            for f in r0[1:]: f()
        def mf(cb, rb, i=i, buf=buf):
            a = vr(V_ACC1 + (cb*3 + rb)*4, 4)
            g.A(f"v_mfma_f32_16x16x32_bf16 {a}, {ar(A_A1[buf]+4*cb,4)}, {ar(A_B1[buf]+4*rb,4)}, {'0' if i == 0 else a}")
        gemm_step(g, i, mf, reads(i + 1)[1:] if i + 1 < 16 else [], int(o.front), None, reads(i + 2)[0] if i + 2 < 16 else None)
        if i < 15:
            for l in defer[i]: g.A(l)
    stamp(g, o, 2)
    g.A("s_barrier")
    for cb in range(4):
        for rb in range(3):
            a = V_ACC1 + (cb*3 + rb)*4
            g.A(f"v_pk_mul_f32 {vr(a,2)}, {vr(a,2)}, s[{S_C}:{S_C+1}]"); g.A(f"v_pk_mul_f32 {vr(a+2,2)}, {vr(a+2,2)}, s[{S_C}:{S_C+1}]")
            g.A(f"v_cvt_pk_bf16_f32 v{a}, v{a}, v{a+1}"); g.A(f"v_cvt_pk_bf16_f32 v{a+1}, v{a+2}, v{a+3}")
            g.lds(f"ds_write_b64 v{V_QW+cb}, {vr(a,2)} offset:{rb*4096}", "qw")

def later_addresses(g, T0):
    L = V_LANE; t0, t1, t2, t3 = 92, 93, 94, 95
    g.A(f"v_and_b32 v{t0}, 31, v{L}"); g.A(f"v_lshrrev_b32 v{t1}, 5, v{L}")
    g.A(f"v_and_b32 v{t2}, 15, v{L}"); g.A(f"v_xor_b32 v{t2}, v{t2}, v{t1}")
    g.A(f"v_lshlrev_b32 v{t2}, 4, v{t2}"); g.A(f"v_lshl_add_u32 v{t2}, v{t0}, 8, v{t2}")
    g.A(f"v_add_u32 v{t2}, {KB}, v{t2}")
    for s in range(8): g.A(f"v_xor_b32 v{V_KA+s}, {s << 5}, v{t2}")
    g.A(f"s_lshl_b32 s{T0}, s{S_W}, 13"); g.A(f"s_add_u32 s{T0}, s{T0}, {QB-KB}")
    for s in range(8): g.A(f"v_add_u32 v{V_NEGM+s}, s{T0}, v{V_KA+s}")
    g.A(f"v_bfe_u32 v{t0}, v{L}, 2, 2")
    g.A(f"v_lshl_add_u32 v{t2}, v{t1}, 2, v{t0}"); g.A(f"v_lshlrev_b32 v{t2}, 8, v{t2}")
    g.A(f"v_lshl_add_u32 v{t2}, v{t0}, 6, v{t2}")
    g.A(f"v_bfe_u32 v{t3}, v{L}, 4, 1"); g.A(f"v_lshl_add_u32 v{t2}, v{t3}, 5, v{t2}")
    g.A(f"v_and_b32 v{t3}, 3, v{L}"); g.A(f"v_lshl_add_u32 v{t2}, v{t3}, 3, v{t2}")
    for blk in range(4): g.A(f"v_xor_b32 v{V_VA+blk}, {blk << 6}, v{t2}")
    g.A(f"s_lshl_b32 s{T0}, s{S_W}, 5")
    g.A(f"v_and_b32 v{t0}, 31, v{L}"); g.A(f"v_add_u32 v{t0}, s{T0}, v{t0}")
    g.A(f"v_cmp_le_u32 vcc, 48, v{t0}"); g.A(f"v_subrev_u32 v{t3}, 48, v{t0}"); g.A(f"v_mov_b32 v{t2}, 0"); g.A("s_nop 0")
    g.A(f"v_cndmask_b32 v{t0}, v{t0}, v{t3}, vcc"); g.A(f"v_mov_b32 v{t3}, 256")
    g.A(f"v_cndmask_b32 v{t2}, v{t2}, v{t3}, vcc"); g.A(f"v_lshl_add_u32 v{V_OB}, v{t0}, 9, v{t2}")
    g.A(f"v_and_b32 v{t0}, 15, v{t0}"); g.A(f"v_lshl_add_u32 v{V_OB}, v{t0}, 4, v{V_OB}")
    g.A(f"v_lshl_add_u32 v{V_OB}, v{t1}, 3, v{V_OB}"); g.A(f"v_add_u32 v{V_OB}, {OB}, v{V_OB}")
    g.A(f"v_lshrrev_b32 v{t0}, 4, v{L}"); g.A(f"v_and_b32 v{t1}, 15, v{L}")
    g.A(f"v_xor_b32 v{t2}, v{t0}, v{t1}"); g.A(f"v_lshlrev_b32 v{t2}, 4, v{t2}")
    g.A(f"v_lshl_add_u32 v{V_OR}, v{t1}, 9, v{t2}"); g.A(f"v_add_u32 v{V_OR}, {OB}, v{V_OR}")
    r_, cc, sw = 9, 15, V_SW
    g.A(f"v_bfe_u32 v{r_}, v{L}, 2, 2"); g.A(f"v_and_b32 v{cc}, 3, v{L}")
    g.A(f"v_and_b32 v{sw}, 2, v{r_}"); g.A(f"v_and_b32 v{t2}, 1, v{t0}")
    g.A(f"v_lshl_or_b32 v{sw}, v{t2}, 2, v{sw}")
    g.A(f"v_lshrrev_b32 v{t2}, 1, v{cc}"); g.A(f"v_or_b32 v{sw}, v{sw}, v{t2}"); g.A(f"v_lshlrev_b32 v{sw}, 4, v{sw}")
    g.A(f"v_and_b32 v{t2}, 1, v{cc}"); g.A(f"v_lshl_add_u32 v{sw}, v{t2}, 3, v{sw}")
    g.A(f"v_lshl_add_u32 v{t2}, v{t0}, 3, v{r_}"); g.A(f"v_lshl_add_u32 v{sw}, v{t2}, 7, v{sw}")
    g.A(f"v_lshlrev_b32 v{V_ST}, 4, v{L}")
    for s in range(4): select_by_wave(g, S_WOA + s, [WO_ADDR[s][w] for w in range(4)])
    g.A(f"v_mov_b32 v{V_L}, 0")

def qk_mfma(g, s, dst, first_c):
    c = first_c if s == 0 else vr(dst, 16)
    g.A(f"v_mfma_f32_32x32x16_bf16 {vr(dst,16)}, {ar(A_K+4*s,4)}, {ar(A_Q+4*s,4)}, {c}")
def pv_mfma(g, s, blk, p):
    g.A(f"v_mfma_f32_32x32x16_bf16 {vr(V_O+16*blk,16)}, {ar(A_V+(s*4+blk)*4,4)}, {vr(p+4*s,4)}, {vr(V_O+16*blk,16)}")
def k_read(g, s, t):
    g.lds(f"ds_read_b128 {ar(A_K+4*s,4)}, v{V_KA+s} offset:{kslot(t)-KB}", "K")
def v_read(g, s, blk, u, t):
    g.lds(f"ds_read_b64_tr_b16 {ar(A_V+(s*4+blk)*4+2*u,2)}, v{V_VA+blk} offset:{vslot(t)-VB+4096*s+2048*u}", "V")

def p2_iter(g, t, do_qk=True, do_pv=True):
    o = OPT
    par = t % 2
    Scur, Snew, Pcur, Pprev = V_S[par], V_S[1-par], V_P[par], V_P[1-par]
    g.C(f"---- iteration {t}")
    gaps, left, load = schedule(do_qk, do_pv, cap_lo=int(o.cap_lo), cap_hi=int(o.cap_hi), ntemp=NTEMP)
    assert not left, left
    last_a = max(i for i, gp in enumerate(gaps) if ("A", 15) in gp)
    cmp_gap = min(last_a + 1, 15); br_gap = 15
    first = (t == 0 and o.m0init)
    e = lambda i: V_E + i % NTEMP
    def emit(it):
        k = it[0]
        if k == "E":
            if not o.x_novalu: g.A(f"v_exp_f32 v{e(it[1])}, v{Scur+it[1]}")
        elif k == "A":
            if o.x_novalu: return
            if it[1] == 1: g.A(f"v_add_f32 v{V_TS}, v{e(0)}, v{e(1)}")
            else: g.A(f"v_add_f32 v{V_TS}, v{V_TS}, v{e(it[1])}")
        elif k == "C":
            if not o.x_novalu: g.A(f"v_cvt_pk_bf16_f32 v{Pcur+it[1]}, v{e(2*it[1])}, v{e(2*it[1]+1)}")
        elif k == "K":
            if not o.x_nok: k_read(g, it[1], t+2)
        elif k == "V":
            if not o.x_nov: v_read(g, it[1]//4, it[1] % 4, it[2], t)
    for m in range(16):
        if m < 8 and do_qk and not o.x_nomfma: qk_mfma(g, m, Snew, vr(V_NEGM, 16))
        elif m >= 8 and do_pv and not o.x_nomfma: pv_mfma(g, (m-8)//4, (m-8) % 4, Pprev)
        else: g.A("s_nop 0")
        items = gaps[m]
        if ("X", "bar") in items: g.A("s_barrier")
        if m == cmp_gap:
            g.A(f"v_cmp_lt_f32 vcc, s{S_THR}, v{V_TS}")
            if first: g.A(f"v_cmp_gt_f32 s[{S_RET}:{S_RET+1}], s{S_THRLO}, v{V_TS}")
        for it in items:
            if it[0] != "X": emit(it)
        if m == br_gap:
            if first: g.A(f"s_or_b64 vcc, vcc, s[{S_RET}:{S_RET+1}]")
            g.A(f"s_cbranch_vccnz L_rare_{t}")
            g.label(f"L_back_{t}")
            g.A(f"v_add_f32 v{V_L}, v{V_L}, v{V_TS}")
        if m == 7 and do_pv: g.A(f"s_waitcnt lgkmcnt({8 if do_qk else 0})")
        if m == 15: g.A(f"s_waitcnt lgkmcnt({15 if do_pv else 0})")
    g.lg = []

def rare_stub(g, t):
    g.label(f"L_rare_{t}")
    sub = "L_rescale_first" if (t == 0 and OPT.m0init) else f"L_rescale_{t%2}"
    g.A(f"s_call_b64 s[{S_RET}:{S_RET+1}], {sub}")
    g.A(f"s_branch L_back_{t}")

def rowmax(g, S, dst, tmp):
    g.A(f"v_max3_f32 v{dst}, v{S}, v{S+1}, v{S+2}")
    for k in range(3, 15, 2): g.A(f"v_max3_f32 v{dst}, v{dst}, v{S+k}, v{S+k+1}")
    g.A(f"v_max_f32 v{dst}, v{dst}, v{S+15}")
    g.A(f"v_mov_b32 v{tmp}, v{dst}"); g.A("s_nop 1")
    g.A(f"v_permlane32_swap_b32 v{tmp}, v{dst}")
    g.A(f"v_max_f32 v{dst}, v{dst}, v{tmp}")

def rescale_sub(g, par, first=False):
    Scur, Snew, Pcur = V_S[par], V_S[1-par], V_P[par]
    d, tmp, f = V_T, V_T+1, V_F
    g.label("L_rescale_first" if first else f"L_rescale_{par}")
    g.A("s_nop 15"); g.A("s_nop 15")
    rowmax(g, Scur, d, tmp)
    if not first: g.A(f"v_max_f32 v{d}, 0, v{d}")
    for i in range(16):
        g.A(f"v_sub_f32 v{Scur+i}, v{Scur+i}, v{d}")
        g.A(f"v_sub_f32 v{Snew+i}, v{Snew+i}, v{d}")
        g.A(f"v_sub_f32 v{V_NEGM+i}, v{V_NEGM+i}, v{d}")
    if not first:
        g.A(f"v_sub_f32 v{f}, 0, v{d}"); g.A(f"v_exp_f32 v{f}, v{f}"); g.A("s_nop 0")
        g.A(f"v_mul_f32 v{V_L}, v{V_L}, v{f}")
        for i in range(64): g.A(f"v_mul_f32 v{V_O+i}, v{V_O+i}, v{f}")
    for k in range(8):
        g.A(f"v_exp_f32 v{V_E}, v{Scur+2*k}"); g.A(f"v_exp_f32 v{V_E+1}, v{Scur+2*k+1}"); g.A("s_nop 0")
        if k == 0: g.A(f"v_add_f32 v{V_TS}, v{V_E}, v{V_E+1}")
        else:
            g.A(f"v_add_f32 v{V_TS}, v{V_TS}, v{V_E}"); g.A(f"v_add_f32 v{V_TS}, v{V_TS}, v{V_E+1}")
        g.A(f"v_cvt_pk_bf16_f32 v{Pcur+k}, v{V_E}, v{V_E+1}")
    g.A("s_nop 1")
    g.A(f"s_setpc_b64 s[{S_RET}:{S_RET+1}]")

def p2_compute(g, o):
    g.C("==== P2: attention, compute waves 0..2")
    L = V_LANE; t0, t1, t2 = V_TMP, V_TMP+1, V_TMP+2
    for s in range(8): g.lds(f"ds_read_b128 {ar(A_Q+4*s,4)}, v{V_NEGM+s}", "Q")
    for s in range(8): k_read(g, s, 0)
    if o.m0init:
        for i in range(16): g.A(f"v_mov_b32 v{V_NEGM+i}, 0")
    g.wait_lg0()
    for s in range(8):
        qk_mfma(g, s, V_S[0], "0")
        k_read(g, s, 1)
    if not o.m0init:
        g.A("s_nop 15")
        rowmax(g, V_S[0], V_T, V_T+1)
        for i in range(16): g.A(f"v_sub_f32 v{V_NEGM+i}, 0, v{V_T}")
        for i in range(16): g.A(f"v_sub_f32 v{V_S[0]+i}, v{V_S[0]+i}, v{V_T}")
    else:
        g.A("s_nop 7")
    g.A("s_waitcnt lgkmcnt(0)")
    p2_iter(g, 0, do_pv=False)
    g.A(f"s_mov_b32 s{S_CNT}, 5")
    loop_label(g, "L_p2_loop")
    for t in range(1, 7): p2_iter(g, t)
    g.A(f"s_sub_u32 s{S_CNT}, s{S_CNT}, 1"); g.A(f"s_cmp_lg_u32 s{S_CNT}, 0"); g.A("s_cbranch_scc1 L_p2_loop")
    p2_iter(g, 31, do_qk=False)
    AD = V_S[0]
    g.A(f"v_mov_b32 v{V_RI}, v{V_L}"); g.A("s_nop 1")
    g.A(f"v_permlane32_swap_b32 v{V_RI}, v{V_L}")
    g.A(f"v_add_f32 v{V_L}, v{V_L}, v{V_RI}")
    g.A(f"v_rcp_f32 v{V_RI}, v{V_L}")
    g.A("s_waitcnt lgkmcnt(0)")
    g.A(f"v_mov_b32 v{V_RI+1}, v{V_RI}")
    g.A("s_barrier")
    stamp(g, o, 4)
    def norm(blk, i):
        a = V_O + 16*blk + 4*i
        g.A(f"v_pk_mul_f32 {vr(a,2)}, {vr(a,2)}, {vr(V_RI,2)}"); g.A(f"v_pk_mul_f32 {vr(a+2,2)}, {vr(a+2,2)}, {vr(V_RI,2)}")
        g.A(f"v_cvt_pk_bf16_f32 v{a}, v{a}, v{a+1}"); g.A(f"v_cvt_pk_bf16_f32 v{a+1}, v{a+2}, v{a+3}")
        g.lds(f"ds_write_b64 v{AD+4*blk+i}, {vr(a,2)}", "ow")
    pv = lambda s, blk: pv_mfma(g, s, blk, V_P[1])
    ad = lambda lo, hi: [g.A(f"v_xor_b32 v{AD+j}, {j << 4}, v{V_OB}") for j in range(lo, hi)]
    pv(0, 0); ad(0, 4); pv(1, 0); ad(4, 8); pv(0, 1); ad(8, 12); pv(1, 1); ad(12, 16)
    p3_setup(g, o, 0, 1)
    norm(0, 0); norm(0, 1); pv(0, 2); norm(0, 2); norm(0, 3); pv(1, 2)
    norm(1, 0); norm(1, 1); pv(0, 3); norm(1, 2); norm(1, 3); pv(1, 3)
    p3_setup(g, o, 1, 4)
    for blk in (2, 3):
        for i in range(4): norm(blk, i)

def p2_kloader(g, o):
    g.C("==== P2: wave 3 streams K")
    g.vm = []
    full_tile_regs(g, "K")
    g.A(f"s_mov_b32 s{S_KOFF}, {4*8192}")
    full_tile(g, o, "K", 4, "K4"); full_tile(g, o, "K", 5, "K5")
    g.A(f"s_mov_b32 s{S_CNT}, 4")
    loop_label(g, "L_kld_loop")
    for t in range(6):
        g.A("s_waitcnt vmcnt(24)"); g.A("s_barrier")
        if not o.x_nodma: full_tile(g, o, "K", t+6, f"K{t+6}")
    g.A(f"s_sub_u32 s{S_CNT}, s{S_CNT}, 1"); g.A(f"s_cmp_lg_u32 s{S_CNT}, 0"); g.A("s_cbranch_scc1 L_kld_loop")
    g.vm = []
    for t in range(26, 30): g.vm += [f"K{t}"]*8
    for t in range(24, 32):
        if t + 2 < 32: g.wait_vm(f"K{t+2}")
        g.A("s_barrier")
        if t + 6 < 32: full_tile(g, o, "K", t+6, f"K{t+6}")
    p3_setup(g, o, 0, 4)
    g.A("s_barrier")

def b_addr(g, j):
    g.A(f"s_add_u32 s{S_T0}, s{S_WOROT}, {j}"); g.A(f"s_and_b32 s{S_T0}, s{S_T0}, 7"); g.A(f"s_lshl_b32 s{S_T0}, s{S_T0}, 6")
    g.A(f"v_xor_b32 v{V_OT + j % 2}, s{S_T0}, v{V_OR}")

def p3_setup(g, o, d0, d1):
    if d0 == 0:
        for cb in range(4): g.A(f"v_xor_b32 v{2+cb}, {cb << 5}, v{V_SW}")
        g.A(f"s_mul_i32 s{S_T3}, s{S_W}, 12288")
    for d in range(d0, d1):
        for cb in range(4): g.A(f"v_add_u32 v{WOR[4*d+cb]}, s{S_WOA+d}, v{2+cb}")
    if d1 == 4: b_addr(g, 0); b_addr(g, 1)

def p3_compute(g, o):
    g.C("==== P3: partial output projection, two column halves of 8 k-steps")
    L = V_LANE
    if o.probe == "line":
        for i in range(256): g.A(f"v_mov_b32_e64 v{6 + i % 2}, v1")
    elif o.probe == "loop":
        g.A(f"s_mov_b32 s{S_CNT}, 16")
        g.label("L_probe")
        for i in range(16): g.A(f"v_mov_b32_e64 v{6 + i % 2}, v1")
        g.A(f"s_sub_u32 s{S_CNT}, s{S_CNT}, 1"); g.A(f"s_cmp_lg_u32 s{S_CNT}, 0"); g.A("s_cbranch_scc1 L_probe")
    g.wait_lg0()
    def reads(n):
        out = []; buf = n % 2; d = (n // 2) % 4
        if n < 8:
            for rb in range(3):
                out.append(lambda rb=rb: g.lds(f"ds_read_b128 {ar(12*n+4*rb,4)}, v{V_OT + n % 2} offset:{rb*8192}", f"f{n}B"))
        for cb in range(4):
            for u in range(2):
                out.append(lambda cb=cb, u=u: g.lds(
                    f"ds_read_b64_tr_b16 {vr(V_A3[buf]+4*cb+2*u,2)}, v{WOR[4*d+cb]} offset:{(n % 2)*4096+u*512}", f"f{n}A{cb}"))
        return out
    def acc(hb, cb, rb): return V_ACC3 + ((4*hb + cb)*3 + rb)*4
    def store_frag(cbp, rb):
        hb, c0 = cbp // 2, 2*(cbp % 2)
        a0, a1 = acc(hb, c0, rb), acc(hb, c0+1, rb)
        d = 2 + 4*((cbp*3+rb) % 2)
        g.A(f"v_cvt_pk_bf16_f32 v{d}, v{a0}, v{a0+1}"); g.A(f"v_cvt_pk_bf16_f32 v{d+1}, v{a0+2}, v{a0+3}")
        g.A(f"v_cvt_pk_bf16_f32 v{d+2}, v{a1}, v{a1+1}"); g.A(f"v_cvt_pk_bf16_f32 v{d+3}, v{a1+2}, v{a1+3}")
        pol = f" {o.pol_st}" if o.pol_st else ""
        g.A(f"s_add_u32 s{S_T2}, s{S_T3}, {rb*4096}")
        if o.x_nost and cbp < 2: return
        g.vmem(f"buffer_store_dwordx4 {vr(d,4)}, v{V_ST}, s[{SRD_P}:{SRD_P+3}], s{S_T2} offen offset:{cbp*1024}{pol}", "st")
    g.A("s_barrier")
    stamp(g, o, 5)
    for f in reads(0): f()
    early = [(cbp, rb) for cbp in (0, 1) for rb in range(3)]
    for n in range(16):
        hb, buf = n // 8, n % 2
        if (n % 2 == 0 or o.p3fine) and n > 0: g.A("s_barrier")
        if n in (4, 8, 12): stamp(g, o, 9 + (n - 4)//4)
        def mf(cb, rb, n=n, hb=hb, buf=buf):
            a = vr(acc(hb, cb, rb), 4)
            g.A(f"v_mfma_f32_16x16x32_bf16 {a}, {vr(V_A3[buf]+4*cb,4)}, {ar(12*(n % 8)+4*rb,4)}, {'0' if n % 8 == 0 else a}")
        after = None
        if 9 <= n < 15: after = {10: lambda k=n-9: store_frag(*early[k])}
        if n == 15: after = {9: lambda: store_frag(2, 0), 10: lambda: store_frag(2, 1), 11: lambda: store_frag(2, 2)}
        gemm_step(g, n, mf, reads(n + 1) if n + 1 < 16 else [], int(o.front), after, (lambda n=n: b_addr(g, n + 2)) if n + 2 < 8 else None)
    stamp(g, o, 6)
    g.A("s_nop 7")
    for rb in range(3): store_frag(3, rb)

def compute_tail(g, o):
    L = V_LANE
    g.C("==== hand-off and reduction of the 16 partial slabs of this (branch, batch)")
    R, T = S_T2, S_T3
    g.A(f"s_mul_i32 s{R}, s{S_HP}, 3"); g.A(f"s_add_u32 s{R}, s{R}, s{S_W}")
    srd(g, 4, S_WS, S_WS+1, None, 256*49152)
    srd(g, 8, S_OUT, S_OUT+1, None, 786432)
    srd(g, SRD_FL, S_WS, S_WS+1, None, FLAGB + 1024*128)
    g.A(f"s_mul_i32 s12, s{S_BB}, 786432"); g.A(f"s_lshl_b32 s{T}, s{R}, 10"); g.A(f"s_add_u32 s12, s12, s{T}")
    g.A(f"s_mul_i32 s13, s{R}, 43"); g.A("s_lshr_b32 s13, s13, 9")
    g.A("s_mul_i32 s14, s13, 12"); g.A(f"s_sub_u32 s14, s{R}, s14")
    g.A("s_lshr_b32 s15, s14, 2"); g.A("s_and_b32 s14, s14, 3")
    g.A(f"s_mul_i32 s16, s{S_B}, 98304")
    g.A(f"s_lshl_b32 s17, s{S_BR}, 10"); g.A("s_add_u32 s16, s16, s17")
    g.A("s_lshl_b32 s17, s15, 15"); g.A("s_add_u32 s16, s16, s17")
    g.A("s_lshl_b32 s17, s13, 8"); g.A("s_add_u32 s16, s16, s17")
    g.A("s_lshl_b32 s17, s14, 6"); g.A("s_add_u32 s16, s16, s17")
    g.A(f"v_lshlrev_b32 v12, 4, v{L}")
    g.A(f"v_and_b32 v13, 15, v{L}"); g.A(f"v_lshrrev_b32 v14, 4, v{L}")
    g.A("v_lshlrev_b32 v13, 11, v13"); g.A("v_lshl_add_u32 v13, v14, 3, v13")
    g.A(f"s_lshl_b32 s18, s{S_BB}, 13"); g.A(f"s_add_u32 s18, s18, {FLAGB}")
    g.A(f"s_lshl_b32 s19, s{S_HP}, 2"); g.A(f"s_add_u32 s19, s19, s{S_W}"); g.A("s_lshl_b32 s19, s19, 7"); g.A("s_add_u32 s19, s19, s18")
    g.A("s_lshl_b32 s20, s13, 7"); g.A("s_add_u32 s20, s20, s18")
    g.A(f"v_and_b32 v15, 15, v{L}"); g.A("v_lshlrev_b32 v15, 9, v15"); g.A("v_add_u32 v15, s20, v15")
    g.A("v_mov_b32 v10, s19"); g.A("v_mov_b32 v11, 1")
    g.A("s_waitcnt vmcnt(0)"); g.vm = []
    g.A("s_mov_b64 exec, 1")
    g.A(f"buffer_store_dword v11, v10, s[{SRD_FL}:{SRD_FL+3}], 0 offen sc1")
    g.A("s_mov_b64 exec, -1")
    g.A(f"s_cmp_ge_u32 s{S_W}, 3"); g.A("s_cbranch_scc1 L_red_done")
    g.A(f"s_mov_b32 s{S_CNT}, 0")
    if o.early_ld:
        g.A("s_mov_b32 s22, 0")
        g.label("L_poll")
        g.A("s_mov_b64 exec, 0xffff")
        g.A(f"buffer_load_dword v10, v15, s[{SRD_FL}:{SRD_FL+3}], 0 offen sc1")
        g.A(f"s_add_u32 s{S_CNT}, s{S_CNT}, 1")
        g.A("s_waitcnt vmcnt(0)")
        g.A("v_cmp_eq_u32 vcc, 1, v10")
        g.A("s_mov_b64 exec, -1")
        g.A(f"s_cmp_ge_u32 s{S_CNT}, 0x40000"); g.A("s_cselect_b32 s23, 0xffff, vcc_lo")
        g.A("s_andn2_b32 s23, s23, s22")
        g.A("s_cbranch_scc0 L_poll_next")
        for q in range(16):
            g.A(f"s_bitcmp1_b32 s23, {q}"); g.A(f"s_cbranch_scc0 L_skip{q}")
            g.A(f"s_add_u32 s21, s12, {q*49152}")
            g.A(f"buffer_load_dwordx4 v[{16+4*q}:{19+4*q}], v12, s[4:7], s21 offen sc1")
            g.label(f"L_skip{q}")
        g.A("s_or_b32 s22, s22, s23")
        g.A("s_cmp_eq_u32 s22, 0xffff"); g.A("s_cbranch_scc1 L_poll_done")
        g.label("L_poll_next")
        if int(o.sleep): g.A(f"s_sleep {int(o.sleep)}")
        g.A("s_branch L_poll")
        g.label("L_poll_done")
        stamp(g, o, 7)
        g.A("s_waitcnt vmcnt(0)")
    else:
        g.A("s_mov_b64 exec, 0xffff")
        g.label("L_poll")
        g.A(f"buffer_load_dword v10, v15, s[{SRD_FL}:{SRD_FL+3}], 0 offen sc1")
        g.A(f"s_add_u32 s{S_CNT}, s{S_CNT}, 1")
        g.A("s_waitcnt vmcnt(0)")
        g.A("v_cmp_eq_u32 vcc, 1, v10")
        g.A("s_cmp_eq_u64 vcc, exec"); g.A("s_cbranch_scc1 L_poll_done")
        g.A(f"s_cmp_ge_u32 s{S_CNT}, 0x40000"); g.A("s_cbranch_scc1 L_poll_done")
        if int(o.sleep): g.A(f"s_sleep {int(o.sleep)}")
        g.A("s_branch L_poll")
        g.label("L_poll_done")
        g.A("s_mov_b64 exec, -1")
        stamp(g, o, 7)
        for q in range(16):
            g.vmem(f"buffer_load_dwordx4 v[{16+4*q}:{19+4*q}], v12, s[4:7], s12 offen sc1", f"p{q}")
            if q < 15: g.A("s_add_u32 s12, s12, 49152")
    if o.dot2:
        g.A("s_mov_b32 s22, 0x00003f80"); g.A("s_mov_b32 s23, 0x3f800000")
        for j in range(8): g.A(f"v_mov_b32 v{2+j}, 0")
        for q in range(16):
            g.wait_vm(f"p{q}")
            for j in range(4):
                g.A(f"v_dot2c_f32_bf16 v{2+2*j}, s22, v{16+4*q+j}"); g.A(f"v_dot2c_f32_bf16 v{3+2*j}, s23, v{16+4*q+j}")
    else:
        for q in range(16):
            g.wait_vm(f"p{q}")
            for j in range(4):
                src = 16 + 4*q + j
                if q == 0:
                    g.A(f"v_lshlrev_b32 v{2+2*j}, 16, v{src}"); g.A(f"v_and_b32 v{3+2*j}, 0xffff0000, v{src}")
                else:
                    g.A(f"v_lshlrev_b32 v10, 16, v{src}"); g.A(f"v_and_b32 v11, 0xffff0000, v{src}")
                    g.A(f"v_add_f32 v{2+2*j}, v{2+2*j}, v10"); g.A(f"v_add_f32 v{3+2*j}, v{3+2*j}, v11")
    for j in range(4): g.A(f"v_cvt_pk_bf16_f32 v{16+j}, v{2+2*j}, v{3+2*j}")
    po = f" {o.pol_out}" if o.pol_out else ""
    g.A(f"buffer_store_dwordx2 v[16:17], v13, s[8:11], s16 offen{po}")
    g.A(f"buffer_store_dwordx2 v[18:19], v13, s[8:11], s16 offen offset:32{po}")
    g.label("L_red_done")
    if o.stamps is True:
        g.A(f"s_cmp_lg_u32 s{S_W}, 0"); g.A("s_cbranch_scc1 L_end")
        g.A("s_waitcnt vmcnt(0)")
        stamp(g, o, 8)
        dump_stamps(g, 0x1000000)
    elif o.stamps == "dbg":
        dbg_stamps(g, o)

def dbg_stamps(g, o):
    g.A("s_waitcnt vmcnt(0)")
    stamp(g, o, 8)
    g.A(f"s_cmp_lg_u32 s{S_W}, 0"); g.A("s_cbranch_scc1 L_end")
    g.A(f"s_cmp_lg_u32 s2, {int(o.dbgwg)}"); g.A("s_cbranch_scc1 L_end")
    srd(g, 40, S_DBG, S_DBG+1, None, 256)
    for k in range(12):
        g.A(f"s_sub_u32 s{S_T0}, s{S_STAMP+k}, s{S_STAMP}"); g.A(f"v_mov_b32 v{16+k}, s{S_T0}")
    for k in range(12, 16):
        g.A(f"s_sub_u32 s{S_T0}, s{S_STAMP+k}, s{S_STAMP+12}"); g.A(f"v_mov_b32 v{16+k}, s{S_T0}")
    g.A("v_mov_b32 v13, 0")
    g.A("s_mov_b64 exec, 1")
    for k in range(4): g.A(f"buffer_store_dwordx4 v[{16+4*k}:{19+4*k}], v13, s[40:43], 0 offen offset:{16*k}")
    g.A("s_waitcnt vmcnt(0)")

def compute_path(g, o):
    if int(o.prio): g.A(f"s_setprio {int(o.prio)}")
    p1_compute(g, o)
    g.A(f"s_cmp_eq_u32 s{S_W}, 3"); g.A("s_cbranch_scc1 L_wave3")
    g.wait_lg0()
    g.A("s_barrier")
    stamp(g, o, 3)
    p2_compute(g, o)
    g.label("L_p3")
    g.vm = []
    p3_compute(g, o)
    compute_tail(g, o)
    g.label("L_end")
    g.A("s_endpgm")
    g.label("L_wave3")
    g.A("s_waitcnt lgkmcnt(0)"); g.lg = []
    g.A("s_barrier")
    p2_kloader(g, o)
    g.A("s_branch L_p3")

def loader_path(g, o):
    g.lg = []; g.vm = []
    if int(o.ldprio): g.A(f"s_setprio {int(o.ldprio)}")
    loader(g, o)
    loader_tail(g, o)

def k1(g, o):
    header(g, K1)
    entry(g, o)
    if o.layout == "near":
        gl = G(); loader_path(gl, o)
        k = gl.L.index("; @SPLIT")
        g.A(f"s_cmp_lt_u32 s{S_W}, 4"); g.A("s_cbranch_scc1 L_compute")
        g.L += gl.L[:k]
        g.A("s_branch L_loader_b")
        g.label("L_compute")
        g.lg = []; g.vm = []
        compute_path(g, o)
        g.label("L_loader_b")
        g.L += gl.L[k+1:]
    elif o.ld_first:
        g.A(f"s_cmp_lt_u32 s{S_W}, 4"); g.A("s_cbranch_scc1 L_compute")
        loader_path(g, o)
        g.label("L_compute")
        g.lg = []; g.vm = []
        compute_path(g, o)
    else:
        g.A(f"s_cmp_ge_u32 s{S_W}, 4"); g.A("s_cbranch_scc1 L_loader")
        compute_path(g, o)
        g.label("L_loader")
        loader_path(g, o)
    for par in range(2): rescale_sub(g, par)
    if o.m0init: rescale_sub(g, 0, first=True)
    for t in [0, 1, 2, 3, 4, 5, 6, 31]: rare_stub(g, t)
    g.label("L_code_end")

def build(o):
    g = G()
    g.A("; @launch grid=(256,1,1) block=(512,1,1) lds=163840")
    g.A('.amdgcn_target "amdgcn-amd-amdhsa--gfx950"')
    k1(g, o)
    descriptor(g, K1, 256, ACC_OFF)
    return g

if __name__ == "__main__":
    o = Opt(); OPT = o
    for a in sys.argv[2:]:
        k, v = a.split("=", 1)
        setattr(o, k, {"True": True, "False": False}.get(v, v))
    g = build(o)
    if o.al8:
        g.L, fixed, left = alignpass.run(g.L, o.al8 == "pad")
        print("aligned", fixed, "left misaligned", left)
    probs = check(g.L)
    for p in probs[:8]: print("HAZARD", p)
    open(sys.argv[1], "w").write(g.text())
    print("lines", len(g.L))
```

```python
import sys, math, struct
from asmlib import G, check
from sched import schedule
import alignpass

PREFIX = "concat_heads__gqa_block_cached__gqa_block_cached__near_ridge"
K1 = PREFIX + "_kernel"

VB = 0
KB = 65536
XB = 114688
QB = XB
OB = 139264
WQB = 16384
NS = 6
def kslot(i): return KB + (NS - 1 - i % NS) * 8192
def vslot(i): return VB + (i % NS) * 8192
WO_ADDR = [[49152, 57344, 114688, 122880],
           [131072, kslot(26), kslot(27), kslot(28)],
           [vslot(26), kslot(29), vslot(27), kslot(30)],
           [vslot(28), kslot(31), vslot(29), vslot(30)]]
WO_EXTRA = [139264, 147456, 155648, 8192]
FLAGB = 14 << 20

CSCALE = math.log2(math.e) / math.sqrt(128.0)
def fbits(x): return struct.unpack("<I", struct.pack("<f", x))[0]
THR_HI = float(2 ** 20)
THR_LO = float(2 ** -20)

S_W = 3
SRD_X, SRD_WQ, SRD_K, SRD_V, SRD_WO, SRD_P = 4, 8, 12, 16, 20, 24
S_DBG, S_OUT, S_WS = 94, 96, 52
S_HKV, S_HALF, S_B, S_BR = 54, 55, 56, 57
S_S0, S_RING = 58, 59
S_T0, S_T1, S_T2, S_T3 = 60, 61, 62, 63
S_CNT = 64
S_KOFF, S_VOFF = 65, 66
S_THR = 67
S_C = 68
S_RET = 70
S_STAMP = 72
S_WOA = 88
S_BB, S_HP = 92, 93
S_LD2K, S_FIRST, S_THRLO, S_WOROT = 28, 29, 30, 31
S_XM, S_XO = 98, 99
S_WOX = 98
SRD_DBG, SRD_FL = 32, 36

ACC_OFF = 160
V_LANE = 1
V_XR, V_XT = 2, 3
V_WR = 5
V_ACC1 = 32
V_E = 2; NTEMP = 8
V_L, V_TS, V_T, V_F = 10, 11, 12, 14
V_KA, V_VA = 16, 24
V_TMP = 28
V_S = [32, 48]; V_P = [64, 72]; V_NEGM = 80; V_O = 96
A_Q, A_K, A_V = 0, 32, 64
A_A1 = [0, 16]; A_B1 = [32, 44]
V_OB, V_OR, V_SW, V_ST = 28, 29, 30, 31
V_OT = 14
V_RI = 8
V_QW = 88
V_ACC3 = 64
WOR = [10, 11, 12, 13] + list(range(16, 28))
V_A3 = [32, 48]
A_A3 = [0, 16]; A_B3 = [32, 44]
V_STG = 32
V_XD = 2; V_WD = 4; V_KE0, V_KE1, V_VE = 8, 9, 10; V_WOD = 12; V_LT = 16
V_FA, V_FD, V_RA, V_RD = 20, 21, 22, 23
V_FT = 24

def vr(b, n=1): return f"v{b}" if n == 1 else f"v[{b}:{b+n-1}]"
def ar(b, n=1): return f"a{b}" if n == 1 else f"a[{b}:{b+n-1}]"

class Opt:
    nt_kv = "nt"; pol_w = ""; pol_x = ""; pol_st = "sc1"
    stamps = False; rot = True; sleep = 1; dbgwg = 37
    cap_lo = 24; cap_hi = 24
    p3x = True; ld_defer = False; layout = "cf"; ldprio = 0; probe = None; al8 = True; align = 0; p3fine = True; swap_first = False; vtouch = False; pol_out = ""; wq3 = False; dot2 = True; early_ld = True; ld_first = False; code_pf = False; wo_pf = False; stage = False; front = 9; kv_pol1 = None; first_nt = False; nt_x = 0; nt_wq = 2; nt_wo = 1; pretouch = False; m0init = True; prio = 0; thr = 20
    x_now = False; x_nost = False; x_nok = False; x_nov = False; x_novalu = False; x_nomfma = False; x_nodma = False
OPT = None

def stamp(g, o, idx):
    if o.stamps:
        g.A("s_memrealtime s[100:101]"); g.A("s_waitcnt lgkmcnt(0)"); g.A(f"s_mov_b32 s{S_STAMP+idx}, s100")
        cyc = {0: 12, 3: 13, 4: 14, 8: 15}
        if idx in cyc:
            g.A("s_memtime s[100:101]"); g.A("s_waitcnt lgkmcnt(0)"); g.A(f"s_mov_b32 s{S_STAMP+cyc[idx]}, s100")
        g.lg = []

def header(g, name):
    g.A(".text"); g.A(f".globl {name}"); g.A(".p2align 8"); g.A(f".type {name},@function"); g.label(name)

def descriptor(g, name, vgpr, accum, sgpr=102):
    g.A('.section .rodata,"a"'); g.A(".p2align 6"); g.A(f".amdhsa_kernel {name}")
    g.A(f".amdhsa_next_free_vgpr {vgpr}"); g.A(f".amdhsa_next_free_sgpr {sgpr}"); g.A(f".amdhsa_accum_offset {accum}")
    g.A(".amdhsa_group_segment_fixed_size 0"); g.A(".amdhsa_kernarg_size 104"); g.A(".amdhsa_user_sgpr_count 2")
    g.A(".amdhsa_user_sgpr_kernarg_segment_ptr 1"); g.A(".amdhsa_system_sgpr_workgroup_id_x 1"); g.A(".end_amdhsa_kernel")

def srd(g, d, lo, hi, off_s, nrec):
    if off_s is None:
        g.A(f"s_mov_b32 s{d}, s{lo}"); g.A(f"s_and_b32 s{d+1}, s{hi}, 0xffff")
    else:
        g.A(f"s_add_u32 s{d}, s{lo}, {off_s}"); g.A(f"s_addc_u32 s{d+1}, s{hi}, 0"); g.A(f"s_and_b32 s{d+1}, s{d+1}, 0xffff")
    g.A(f"s_mov_b32 s{d+2}, {nrec}"); g.A(f"s_mov_b32 s{d+3}, 0x20000")

def dma(g, voff, srd_, soff, imm, pol, tag):
    off = f" offset:{imm}" if imm else ""
    pol = f" {pol}" if pol else ""
    g.vmem(f"buffer_load_dwordx4 v{voff}, s[{srd_}:{srd_+3}], {soff} offen{off}{pol} lds", tag)

_lab = [0]
def dma_group(g, o, items, tag):
    if o.kv_pol1 is None:
        for it in items: dma(g, *it, o.nt_kv, tag)
        return
    _lab[0] += 1; n = _lab[0]
    g.A(f"s_cmp_eq_u32 s{S_HALF}, 1"); g.A(f"s_cbranch_scc1 L_kvp{n}")
    vm = list(g.vm)
    for it in items: dma(g, *it, o.nt_kv, tag)
    g.A(f"s_branch L_kvq{n}")
    g.label(f"L_kvp{n}")
    g.vm = vm
    for it in items: dma(g, *it, o.kv_pol1, tag)
    g.label(f"L_kvq{n}")

def weave(main, fill):
    n = len(main); m = len(fill); k = 0
    for i, f in enumerate(main):
        f()
        tgt = (i + 1) * m // n
        while k < tgt:
            fill[k](); k += 1

def gemm_step(g, n, mfma, fill, front=9, after=None, addr=None):
    k = 0; m = len(fill)
    for i in range(12):
        cb = i // 3
        if i % 3 == 0: g.wait_lg([f"f{n}B", f"f{n}A{cb}"])
        mfma(cb, i % 3)
        tgt = min(m, -(-(i + 1) * m // front))
        while k < tgt:
            fill[k](); k += 1
        if addr and i == 9: addr()
        if after and i in after: after[i]()

def loop_label(g, name):
    if int(OPT.align): g.A(f".p2align {int(OPT.align)}")
    g.label(name)

def select_by_wave(g, dst, vals):
    g.A(f"s_mov_b32 s{dst}, {vals[0]}")
    for k in range(1, len(vals)):
        g.A(f"s_cmp_eq_u32 s{S_W}, {k}"); g.A(f"s_cselect_b32 s{dst}, {vals[k]}, s{dst}")

def entry(g, o):
    g.A("s_cmp_ge_u32 s2, 256"); g.A("s_cbranch_scc1 L_end")
    stamp(g, o, 0)
    g.A("s_load_dwordx16 s[32:47], s[0:1], 0")
    g.A("s_load_dwordx4 s[48:51], s[0:1], 64")
    g.A(f"s_load_dwordx2 s[{S_WS}:{S_WS+1}], s[0:1], 96")
    g.A(f"s_load_dwordx2 s[{S_OUT}:{S_OUT+1}], s[0:1], 80")
    g.A(f"s_load_dwordx2 s[{S_DBG}:{S_DBG+1}], s[0:1], 88")
    g.A(f"v_and_b32 v{V_LANE}, 63, v0")
    g.A("v_lshrrev_b32 v2, 6, v0")
    g.A(f"s_and_b32 s{S_HKV}, s2, 7")
    g.A(f"v_readfirstlane_b32 s{S_W}, v2")
    g.A(f"s_lshr_b32 s{S_T0}, s2, 3")
    g.A(f"s_and_b32 s{S_HALF}, s{S_T0}, 1")
    g.A(f"s_lshr_b32 s{S_B}, s{S_T0}, 1"); g.A(f"s_and_b32 s{S_B}, s{S_B}, 7")
    g.A(f"s_lshr_b32 s{S_BR}, s{S_T0}, 4")
    g.A(f"s_lshl_b32 s{S_HP}, s{S_HKV}, 1"); g.A(f"s_add_u32 s{S_HP}, s{S_HP}, s{S_HALF}")
    g.A(f"s_lshl_b32 s{S_BB}, s{S_BR}, 3"); g.A(f"s_add_u32 s{S_BB}, s{S_BB}, s{S_B}")
    if o.rot:
        g.A(f"s_lshl_b32 s{S_S0}, s{S_B}, 1"); g.A(f"s_lshl_b32 s{S_T0}, s{S_HALF}, 3")
        g.A(f"s_add_u32 s{S_S0}, s{S_S0}, s{S_T0}"); g.A(f"s_and_b32 s{S_S0}, s{S_S0}, 15")
        g.A(f"s_mov_b32 s{S_WOROT}, s{S_B}")
    else:
        g.A(f"s_mov_b32 s{S_S0}, 0"); g.A(f"s_mov_b32 s{S_WOROT}, 0")

def select_branch(g, idx):
    g.A(f"s_cmp_eq_u32 s{S_BR}, 1")
    for i in idx: g.A(f"s_cselect_b32 s{32+i}, s{42+i}, s{32+i}")

def srd_kv(g, which):
    g.A(f"s_lshl_b32 s{S_T0}, s{S_B}, 3"); g.A(f"s_add_u32 s{S_T0}, s{S_T0}, s{S_HKV}"); g.A(f"s_lshl_b32 s{S_T0}, s{S_T0}, 18")
    if "K" in which: srd(g, SRD_K, 34, 35, f"s{S_T0}", 262144)
    if "V" in which: srd(g, SRD_V, 36, 37, f"s{S_T0}", 262144)

EARLY = [("K", 0), ("K", 1), ("V", 0), ("K", 2), ("V", 1), ("K", 3)]

def full_tile_regs(g, kind):
    L = V_LANE; t0, t1 = 60, 61
    g.A(f"v_lshrrev_b32 v{t0}, 4, v{L}"); g.A(f"v_and_b32 v{t1}, 15, v{L}")
    for e in range(4 if kind == "K" else 1):
        d = V_FT + e
        if kind == "K": g.A(f"v_add_u32 v{d}, {4*e}, v{t0}")
        else: g.A(f"v_lshlrev_b32 v{d}, 2, v{t0}")
        g.A(f"v_xor_b32 v{d}, v{d}, v{t1}"); g.A(f"v_lshlrev_b32 v{d}, 4, v{d}"); g.A(f"v_lshl_add_u32 v{d}, v{t0}, 8, v{d}")

def full_tile(g, o, kind, t, tag):
    so = S_KOFF if kind == "K" else S_VOFF
    base = kslot(t) if kind == "K" else vslot(t)
    for hf in range(2):
        g.A(f"s_mov_b32 m0, {base + hf*4096}"); g.A("s_nop 0")
        dma_group(g, o, [(V_FT + (e if kind == "K" else 0), SRD_K if kind == "K" else SRD_V, f"s{so}", 1024*e) for e in range(4)], tag)
        g.A(f"s_add_u32 s{so}, s{so}, 4096")

def loader(g, o):
    g.C("================ loader waves")
    L = V_LANE; t0, t1, t2, t3 = V_LT, V_LT+1, V_LT+2, V_LT+3
    g.A(f"s_sub_u32 s{S_W}, s{S_W}, 4")
    g.A(f"v_lshrrev_b32 v{t0}, 4, v{L}"); g.A(f"v_and_b32 v{t1}, 15, v{L}")
    g.A(f"s_lshl_b32 s{S_T0}, s{S_W}, 2")
    g.A(f"v_add_u32 v{t2}, s{S_T0}, v{t0}"); g.A(f"v_xor_b32 v{t2}, v{t2}, v{t1}"); g.A(f"v_lshlrev_b32 v{t2}, 4, v{t2}")
    g.A(f"v_lshl_add_u32 v{V_XD}, v{t0}, 10, v{t2}")
    def x_prep(j):
        g.A(f"s_lshr_b32 s{S_T0}, s{S_S0}, 2"); g.A(f"s_add_u32 s{S_T0}, s{S_T0}, {j}"); g.A(f"s_and_b32 s{S_T0}, s{S_T0}, 3")
        g.A(f"s_mul_i32 s{S_XM}, s{S_T0}, 12288"); g.A(f"s_lshl_b32 s{S_T1}, s{S_W}, 10"); g.A(f"s_add_u32 s{S_XM}, s{S_XM}, s{S_T1}")
        g.A(f"s_lshl_b32 s{S_XO}, s{S_T0}, 8"); g.A(f"s_lshl_b32 s{S_T1}, s{S_W}, 12"); g.A(f"s_add_u32 s{S_XO}, s{S_XO}, s{S_T1}")
    def x_issue(j):
        for i3 in range(3):
            g.A(f"s_add_u32 m0, s{S_XM}, {XB + i3*4096}")
            g.A(f"s_add_u32 s{S_T0}, s{S_XO}, {i3*16384}")
            dma(g, V_XD, SRD_X, f"s{S_T0}", 0, "nt" if (o.first_nt and j < int(o.nt_x)) else o.pol_x, f"x{j}")
    def wq_step(i):
        g.A(f"s_add_u32 s{S_T2}, s{S_S0}, {i}"); g.A(f"s_and_b32 s{S_T2}, s{S_T2}, 15")
        g.A(f"s_add_u32 m0, s{S_RING}, {(i%4)*4096}")
        g.A(f"s_lshl_b32 s{S_T2}, s{S_T2}, 18")
        pol = "nt" if (o.first_nt and i < int(o.nt_wq)) else o.pol_w
        for jj in range(4): dma(g, V_WD + jj, SRD_WQ, f"s{S_T2}", 1024*jj, pol, f"wq{i}")
    x_prep(0)
    g.A("s_waitcnt lgkmcnt(0)")
    stamp(g, o, 1)
    select_branch(g, [0, 1, 6, 7])
    g.A(f"s_mul_i32 s{S_T0}, s{S_B}, 49152"); srd(g, SRD_X, 32, 33, f"s{S_T0}", 49152)
    x_issue(0)
    g.A(f"v_lshrrev_b32 v{t2}, 3, v{L}"); g.A(f"v_and_b32 v{t3}, 7, v{L}")
    g.A(f"s_lshl_b32 s{S_T0}, s{S_W}, 7")
    for jj in range(4):
        d = V_WD + jj
        g.A(f"v_and_b32 v{d}, 2, v{t2}")
        if jj & 1: g.A(f"v_or_b32 v{d}, 4, v{d}")
        g.A(f"v_xor_b32 v{d}, v{d}, v{t3}"); g.A(f"v_lshlrev_b32 v{d}, 4, v{d}")
        g.A(f"v_lshl_add_u32 v{d}, v{t2}, 13, v{d}")
        g.A(f"v_add_u32 v{d}, s{S_T0}, v{d}")
        if jj: g.A(f"v_add_u32 v{d}, {jj*64512}, v{d}")
    g.A(f"s_lshl_b32 s{S_RING}, s{S_W}, 14"); g.A(f"s_add_u32 s{S_RING}, s{S_RING}, {WQB}")
    g.A(f"s_lshl_b32 s{S_T1}, s{S_HP}, 9")
    srd(g, SRD_WQ, 38, 39, f"s{S_T1}", 0)
    g.A(f"s_sub_u32 s{SRD_WQ+2}, 0x400000, s{S_T1}")
    wq_step(0); wq_step(1)
    x_prep(1); x_issue(1)
    wq_step(2)
    if o.wq3: wq_step(3)
    stamp(g, o, 2)
    g.C("@SPLIT")
    if o.code_pf:
        g.A(f"s_cmp_lg_u32 s{S_W}, 1"); g.A("s_cbranch_scc1 L_cpf")
        g.A("s_getpc_b64 s[98:99]"); g.label("L_pc")
        g.A(f"s_sub_u32 s98, s98, L_pc-{K1}"); g.A("s_subb_u32 s99, s99, 0")
        g.A(f"s_lshr_b32 s{S_T3}, s2, 3"); g.A(f"s_lshl_b32 s{S_T3}, s{S_T3}, 10")
        g.A(f"v_lshl_add_u32 v{t2}, v{L}, 4, s{S_T3}")
        g.A(f"v_min_u32 v{t2}, L_code_end-{K1}-16, v{t2}")
        g.A(f"global_load_dwordx4 v[32:35], v{t2}, s[98:99]")
        g.label("L_cpf")
    gd = G(); TA, TB = S_T3, S_CNT
    select_branch(gd, [2, 3, 4, 5, 8, 9])
    gd.A(f"s_lshl_b32 s{TA}, s{S_B}, 3"); gd.A(f"s_add_u32 s{TA}, s{TA}, s{S_HKV}"); gd.A(f"s_lshl_b32 s{TA}, s{TA}, 18")
    srd(gd, SRD_K, 34, 35, f"s{TA}", 262144); srd(gd, SRD_V, 36, 37, f"s{TA}", 262144)
    gd.A(f"s_lshl_b32 s{TA}, s{S_HP}, 18")
    srd(gd, SRD_WO, 40, 41, f"s{TA}", 262144)
    gd.A(f"s_lshl_b32 s{S_LD2K}, s{S_W}, 11")
    gd.A(f"v_lshlrev_b32 v{t2}, 8, v{t0}"); gd.A(f"v_add_u32 v{t2}, s{S_LD2K}, v{t2}")
    gd.A(f"s_lshl_b32 s{TA}, s{S_W}, 3"); gd.A(f"s_and_b32 s{TA}, s{TA}, 15")
    for e in range(2):
        d = V_KE0 + e
        gd.A(f"v_add_u32 v{d}, s{TA}, v{t0}")
        if e: gd.A(f"v_add_u32 v{d}, 4, v{d}")
        gd.A(f"v_xor_b32 v{d}, v{d}, v{t1}"); gd.A(f"v_lshl_add_u32 v{d}, v{d}, 4, v{t2}")
    gd.A(f"v_lshlrev_b32 v{V_VE}, 2, v{t0}"); gd.A(f"v_xor_b32 v{V_VE}, v{V_VE}, v{t1}")
    gd.A(f"v_lshl_add_u32 v{V_VE}, v{V_VE}, 4, v{t2}")
    gd.A(f"v_lshrrev_b32 v{t2}, 3, v{L}"); gd.A(f"v_and_b32 v{t3}, 7, v{L}")
    gd.A(f"s_lshl_b32 s{TB}, s{S_W}, 8")
    for jj in range(4):
        d = V_WOD + jj
        gd.A(f"v_and_b32 v{d}, 2, v{t2}")
        if jj & 1: gd.A(f"v_or_b32 v{d}, 4, v{d}")
        gd.A(f"v_xor_b32 v{d}, v{d}, v{t3}"); gd.A(f"v_lshlrev_b32 v{d}, 4, v{d}")
        gd.A(f"v_lshl_add_u32 v{d}, v{t2}, 10, v{d}")
        gd.A(f"v_add_u32 v{d}, s{TB}, v{d}")
        if jj: gd.A(f"v_add_u32 v{d}, {jj*7168}, v{d}")
    for s_ in range(4): select_by_wave(gd, S_WOA + s_, [WO_ADDR[s_][w] for w in range(4)])
    gd.A(f"s_mov_b32 s{S_KOFF}, 0"); gd.A(f"s_mov_b32 s{S_VOFF}, 0")
    if o.ld_defer: ld_chunks = chunks(gd.L, 10)
    else:
        ld_chunks = [[] for _ in range(10)]
        for l in gd.L: g.A(l)
    def kv(kind, t, tag):
        so = S_KOFF if kind == "K" else S_VOFF
        g.A(f"s_add_u32 m0, s{S_LD2K}, {kslot(t) if kind == 'K' else vslot(t)}")
        g.A("s_nop 0")
        if kind == "K": dma_group(g, o, [(V_KE0, SRD_K, f"s{so}", 0), (V_KE1, SRD_K, f"s{so}", 1024)], tag)
        else: dma_group(g, o, [(V_VE, SRD_V, f"s{so}", 0), (V_VE, SRD_V, f"s{so}", 1024)], tag)
        g.A(f"s_add_u32 s{so}, s{so}, 8192")
    def wo_soff(n):
        g.A(f"s_add_u32 s{S_T2}, s{S_WOROT}, {n % 8}"); g.A(f"s_and_b32 s{S_T2}, s{S_T2}, 7"); g.A(f"s_lshl_b32 s{S_T2}, s{S_T2}, 15")
        if n >= 8: g.A(f"s_add_u32 s{S_T2}, s{S_T2}, 128")
    def wo_step(d):
        for n in (2*d, 2*d+1):
            g.A(f"s_add_u32 m0, s{S_WOA + d % 4}, {(n % 2)*4096}")
            wo_soff(n)
            pol = "nt" if (o.first_nt and (n if o.wo_pf else n % 8) < int(o.nt_wo)) else o.pol_w
            for jj in range(4): dma(g, V_WOD + jj, SRD_WO, f"s{S_T2}", 1024*jj, pol, f"wo{d}")
    def wo_piece(n):
        if not o.p3x: g.A(f"s_add_u32 m0, s{S_WOA + ((n - 8) // 2)}, {(n % 2)*4096}")
        elif n < 10: g.A(f"s_add_u32 m0, s{S_WOX}, {(n % 2)*4096}")
        else: g.A(f"s_add_u32 m0, s{S_WOA + ((n - 10) // 2)}, {(n % 2)*4096}")
        wo_soff(n)
        for jj in range(4): dma(g, V_WOD + jj, SRD_WO, f"s{S_T2}", 1024*jj, o.pol_w, f"wp{n}")
    def wo_regs(k):
        for n in (8 + 2*k, 9 + 2*k):
            wo_soff(n)
            pol = " nt" if (o.first_nt and n - 8 < int(o.nt_wo)) else (f" {o.pol_w}" if o.pol_w else "")
            for jj in range(4):
                r = V_STG + ((n - 8)*4 + jj)*4
                off = f" offset:{1024*jj}" if jj else ""
                g.vmem(f"buffer_load_dwordx4 {vr(r,4)}, v{V_WOD+jj}, s[{SRD_WO}:{SRD_WO+3}], s{S_T2} offen{off}{pol}", f"wr{k}")
    def wo_write(d):
        g.wait_vm(f"wr{d-4}")
        g.A(f"v_add_u32 v{V_LT+2}, s{S_WOA + d - 4}, v{V_LT+3}")
        for k in range(8):
            if o.x_now: break
            r = V_STG + ((d-4)*8 + k)*4
            g.lds(f"ds_write_b128 v{V_LT+2}, {vr(r,4)} offset:{k*1024}", "ww")
    need_x = {0: "x0", 1: "x1", 5: "x2", 9: "x3"}
    for i in range(16):
        tags = []
        if i == 0: tags += ["wq0", "wq1"]
        elif i + 1 < 16: tags.append(f"wq{i+1}")
        if i in need_x: tags.append(need_x[i])
        if tags: g.wait_vm(tags)
        if i == 0: stamp(g, o, 3)
        g.A("s_barrier")
        if i + 3 < 16:
            if not (o.wq3 and i == 0): wq_step(i + 3)
        else:
            for kind, t in EARLY[(i-13)*2:(i-13)*2+2]: kv(kind, t, f"{kind}{t}")
        if i == 0: x_prep(2); x_issue(2)
        if i == 3: x_prep(3); x_issue(3)
        if i < 10:
            for l in ld_chunks[i]: g.A(l)
    g.A("s_barrier")
    g.wait_vm(["K0", "K1"]); g.A("s_barrier")
    stamp(g, o, 4)
    def tail_p3(first):
        g.A("s_barrier")
        wo_step(3)
        if o.p3x: select_by_wave(g, S_WOX, WO_EXTRA)
        if o.stage: wo_regs(2)
        g.A(f"v_lshlrev_b32 v{V_LT+3}, 4, v{V_LANE}")
        g.wait_vm(["wo0", "wo1"]); g.A("s_barrier")
        if o.stage: wo_regs(3)
        if o.p3fine:
            for m in range(1, 16):
                need = m + 1
                if need < 8:
                    if need % 2 == 0: g.wait_vm(f"wo{need // 2}")
                elif need < 16: g.wait_vm(f"wp{need}")
                if m == 15 and first: ready_check()
                g.A("s_barrier")
                if not o.p3x:
                    if m + 7 < 16: wo_piece(m + 7)
                else:
                    if m == 1: wo_piece(8); wo_piece(9)
                    if m + 9 < 16: wo_piece(m + 9)
            g.A("s_branch L_ld_end")
            return
        for d in range(1, 8):
            if d + 1 < 4 or (not o.stage and d + 1 < 8): g.wait_vm(f"wo{d+1}")
            elif o.stage: g.wait_lg0()
            if d == 7 and first: ready_check()
            g.A("s_barrier")
            if d + 3 < 8:
                if o.stage: wo_write(d + 3)
                else: wo_step(d + 3)
        g.A("s_branch L_ld_end")
    def ready_check():
        g.A(f"s_cmp_lg_u32 s{S_W}, 0"); g.A("s_cbranch_scc1 L_rdy_done")
        g.A(f"s_mov_b32 s{S_CNT}, 0")
        g.label("L_rdy")
        g.A(f"v_readfirstlane_b32 s{S_T1}, v{V_RD}")
        g.A(f"s_add_u32 s{S_CNT}, s{S_CNT}, 1")
        g.A(f"s_cmp_lg_u32 s{S_T1}, 0"); g.A("s_cbranch_scc1 L_rdy_done")
        g.A(f"s_cmp_ge_u32 s{S_CNT}, 0x40000"); g.A("s_cbranch_scc1 L_rdy_done")
        g.A(f"buffer_load_dword v{V_RD}, v{V_RA}, s[{SRD_DBG}:{SRD_DBG+3}], 0 offen sc1")
        g.A("s_waitcnt vmcnt(0)")
        g.A("s_branch L_rdy")
        g.label("L_rdy_done")
    def idle(n, lab):
        g.A(f"s_mov_b32 s{S_CNT}, {n}")
        g.label(lab)
        g.A("s_barrier")
        g.A(f"s_sub_u32 s{S_CNT}, s{S_CNT}, 1"); g.A(f"s_cmp_lg_u32 s{S_CNT}, 0"); g.A(f"s_cbranch_scc1 {lab}")
    def drain(vtags):
        wo_step(0)
        if o.wo_pf:
            g.A(f"v_and_b32 v{V_LT+2}, 31, v{V_LANE}"); g.A(f"v_lshlrev_b32 v{V_LT+2}, 10, v{V_LT+2}")
            g.A(f"s_lshl_b32 s{S_T0}, s{S_W}, 8"); g.A(f"s_add_u32 s{S_T0}, s{S_T0}, 128")
            g.A(f"v_add_u32 v{V_LT+2}, s{S_T0}, v{V_LT+2}")
            g.A(f"s_lshl_b32 s{S_T2}, s{S_WOROT}, 15")
            g.vmem(f"buffer_load_dword v{V_LT+1}, v{V_LT+2}, s[{SRD_WO}:{SRD_WO+3}], s{S_T2} offen nt", "pf")
        for t in range(28, 32):
            if vtags: g.wait_vm(f"V{t}")
            g.A("s_barrier")
            if t == 28: wo_step(1)
            if t == 29 and o.stage: wo_regs(0)
            if t == 30: wo_step(2)
            if t == 31 and o.stage: wo_regs(1)
        tail_p3(not vtags)
    g.A(f"s_cmp_eq_u32 s{S_W}, 3"); g.A("s_cbranch_scc1 L_vloader")
    vm_early = list(g.vm)
    g.wait_vm(["V0", "K2"]); g.A("s_barrier")
    g.wait_vm(["V1", "K3"]); g.A("s_barrier")
    srd(g, SRD_DBG, S_DBG, S_DBG+1, None, 256)
    srd(g, SRD_FL, S_WS, S_WS+1, None, FLAGB + 1024*128)
    g.A(f"s_lshl_b32 s{S_T0}, s{S_BB}, 13"); g.A(f"s_add_u32 s{S_T0}, s{S_T0}, {FLAGB}")
    g.A(f"v_lshlrev_b32 v{V_FA}, 7, v{V_LANE}"); g.A(f"v_add_u32 v{V_FA}, s{S_T0}, v{V_FA}")
    g.A(f"s_lshl_b32 s{S_T0}, s{S_BB}, 2"); g.A(f"v_mov_b32 v{V_RA}, s{S_T0}")
    g.A(f"s_or_b32 s{S_FIRST}, s{S_W}, s{S_HP}")
    g.A(f"s_cmp_lg_u32 s{S_FIRST}, 0"); g.A("s_cbranch_scc1 L_fl1")
    g.A(f"v_mov_b32 v{V_FD}, 0")
    g.A(f"buffer_store_dword v{V_FD}, v{V_FA}, s[{SRD_FL}:{SRD_FL+3}], 0 offen sc1")
    g.label("L_fl1")
    idle(8, "L_ld_idle1")
    g.A(f"s_cmp_lg_u32 s{S_FIRST}, 0"); g.A("s_cbranch_scc1 L_fl2")
    g.A("s_waitcnt vmcnt(0)")
    g.A(f"v_mov_b32 v{V_FD}, 1")
    g.A("s_mov_b64 exec, 1")
    g.A(f"buffer_store_dword v{V_FD}, v{V_RA}, s[{SRD_DBG}:{SRD_DBG+3}], 0 offen sc1")
    g.A("s_mov_b64 exec, -1")
    g.label("L_fl2")
    idle(10, "L_ld_idle2")
    g.A(f"s_cmp_lg_u32 s{S_W}, 0"); g.A("s_cbranch_scc1 L_fl3")
    g.A(f"buffer_load_dword v{V_RD}, v{V_RA}, s[{SRD_DBG}:{SRD_DBG+3}], 0 offen sc1")
    g.label("L_fl3")
    idle(8, "L_ld_idle3")
    g.A("s_waitcnt vmcnt(0)"); g.vm = []
    drain(False)
    g.label("L_vloader")
    g.vm = vm_early
    full_tile_regs(g, "V")
    g.A(f"s_mov_b32 s{S_VOFF}, {2*8192}")
    full_tile(g, o, "V", 2, "V2"); full_tile(g, o, "V", 3, "V3")
    g.wait_vm(["V0", "K2"])
    g.A(f"s_mov_b32 s{S_CNT}, 4")
    loop_label(g, "L_vld_loop")
    for t in range(6):
        g.A("s_waitcnt vmcnt(24)"); g.A("s_barrier")
        if not o.x_nodma: full_tile(g, o, "V", t+4, f"V{t+4}")
    g.A(f"s_sub_u32 s{S_CNT}, s{S_CNT}, 1"); g.A(f"s_cmp_lg_u32 s{S_CNT}, 0"); g.A("s_cbranch_scc1 L_vld_loop")
    g.vm = []
    for t in range(24, 28): g.vm += [f"V{t}"]*8
    for t in range(24, 28):
        g.wait_vm(f"V{t}"); g.A("s_barrier"); full_tile(g, o, "V", t+4, f"V{t+4}")
    drain(True)

def loader_tail(g, o):
    g.label("L_ld_end")
    if o.stamps is True:
        stamp(g, o, 7)
        g.A(f"s_cmp_lg_u32 s{S_W}, 0"); g.A("s_cbranch_scc1 L_ld_end2")
        dump_stamps(g, 0x1010000)
        g.label("L_ld_end2")
    g.A("s_endpgm")

def dump_stamps(g, base):
    g.A(f"s_add_u32 s40, s{S_WS}, {base}"); g.A(f"s_addc_u32 s41, s{S_WS+1}, 0"); g.A("s_and_b32 s41, s41, 0xffff")
    g.A("s_mov_b32 s42, 0x10000"); g.A("s_mov_b32 s43, 0x20000")
    for k in range(16): g.A(f"v_mov_b32 v{16+k}, s{S_STAMP+k}")
    g.A(f"s_lshl_b32 s{S_T0}, s2, 6"); g.A(f"v_mov_b32 v13, s{S_T0}")
    g.A("s_mov_b64 exec, 1")
    for k in range(4): g.A(f"buffer_store_dwordx4 v[{16+4*k}:{19+4*k}], v13, s[40:43], 0 offen offset:{16*k}")
    g.A("s_waitcnt vmcnt(0)")
    g.A("s_mov_b64 exec, -1")

def deferred_setup(o):
    g = G(); L = V_LANE; t0, t1, t2 = 92, 93, 94
    T0, T1 = S_T2, S_T3
    g.A(f"s_mov_b32 s{S_THR}, {hex(fbits(float(2.0 ** float(o.thr))))}"); g.A(f"s_mov_b32 s{S_THRLO}, {hex(fbits(THR_LO))}")
    g.A(f"s_mov_b32 s{S_C}, {hex(fbits(CSCALE))}"); g.A(f"s_mov_b32 s{S_C+1}, {hex(fbits(CSCALE))}")
    g.A(f"v_lshrrev_b32 v{t0}, 4, v{L}"); g.A(f"v_and_b32 v{t1}, 15, v{L}")
    g.A(f"s_and_b32 s{T0}, s{S_W}, 1"); g.A(f"s_lshl_b32 s{T0}, s{T0}, 3")
    g.A(f"v_lshrrev_b32 v{t2}, 1, v{t0}")
    g.A(f"v_xor_b32 v{t2}, v{t2}, v{t1}"); g.A(f"v_xor_b32 v{t2}, s{T0}, v{t2}"); g.A(f"v_lshlrev_b32 v{t2}, 4, v{t2}")
    g.A(f"v_and_b32 v{t0}, 1, v{t0}"); g.A(f"v_lshl_add_u32 v{t2}, v{t0}, 3, v{t2}")
    g.A(f"s_lshr_b32 s{T0}, s{S_W}, 1"); g.A(f"s_mul_i32 s{T0}, s{T0}, {48*256}"); g.A(f"s_add_u32 s{T0}, s{T0}, {QB}")
    g.A(f"v_lshl_add_u32 v{t2}, v{t1}, 8, v{t2}"); g.A(f"v_add_u32 v{t2}, s{T0}, v{t2}")
    for cb in range(4): g.A(f"v_xor_b32 v{V_QW+cb}, {cb << 5}, v{t2}")
    later_addresses(g, T0)
    g.A(f"s_lshl_b32 s{T1}, s{S_BB}, 4"); g.A(f"s_add_u32 s{T1}, s{T1}, s{S_HP}"); g.A(f"s_mul_i32 s{T1}, s{T1}, 49152")
    srd(g, SRD_P, S_WS, S_WS+1, f"s{T1}", 49152)
    select_branch(g, [2, 3])
    g.A(f"s_lshl_b32 s{T0}, s{S_B}, 3"); g.A(f"s_add_u32 s{T0}, s{T0}, s{S_HKV}"); g.A(f"s_lshl_b32 s{T0}, s{T0}, 18")
    srd(g, SRD_K, 34, 35, f"s{T0}", 262144)
    for i in range(64): g.A(f"v_mov_b32 v{V_O+i}, 0")
    return [l for l in g.L if not l.startswith(";")]

def chunks(lines, n):
    out = []; k = 0
    for i in range(n):
        e = len(lines) if i == n - 1 else max(k, (i + 1) * len(lines) // n)
        while e < len(lines) and (lines[e].startswith(("s_cselect", "s_addc", "v_cndmask", "s_nop")) or lines[e-1].startswith(("s_cmp", "v_cmp"))
                                  or (lines[e-2].startswith("v_cmp") or lines[e-3].startswith("v_cmp") or lines[e-4].startswith("v_cmp"))): e += 1
        out.append(lines[k:e]); k = e
    return out

def p1_compute(g, o):
    g.C("==== P1: Q projection")
    L = V_LANE; t0, t1, t2 = 9, 15, 12
    g.A(f"v_lshrrev_b32 v{t0}, 4, v{L}"); g.A(f"v_and_b32 v{t1}, 15, v{L}")
    g.A(f"v_xor_b32 v{t2}, v{t0}, v{t1}"); g.A(f"v_lshlrev_b32 v{t2}, 4, v{t2}")
    g.A(f"v_lshl_add_u32 v{V_XR}, v{t1}, 8, v{t2}")
    g.A(f"s_lshl_b32 s{S_RING}, s{S_W}, 14"); g.A(f"s_add_u32 s{S_RING}, s{S_RING}, {WQB}")
    r_, cc, sw = 13, 15, 14
    g.A(f"v_bfe_u32 v{r_}, v{L}, 2, 2"); g.A(f"v_and_b32 v{cc}, 3, v{L}")
    g.A(f"v_and_b32 v{sw}, 2, v{r_}"); g.A(f"v_and_b32 v{t2}, 1, v{t0}")
    g.A(f"v_lshl_or_b32 v{sw}, v{t2}, 2, v{sw}")
    g.A(f"v_lshrrev_b32 v{t2}, 1, v{cc}"); g.A(f"v_or_b32 v{sw}, v{sw}, v{t2}"); g.A(f"v_lshlrev_b32 v{sw}, 4, v{sw}")
    g.A(f"v_and_b32 v{t2}, 1, v{cc}"); g.A(f"v_lshl_add_u32 v{sw}, v{t2}, 3, v{sw}")
    g.A(f"v_lshl_add_u32 v{t2}, v{t0}, 3, v{r_}"); g.A(f"v_lshl_add_u32 v{sw}, v{t2}, 7, v{sw}")
    g.A(f"v_add_u32 v{sw}, s{S_RING}, v{sw}")
    for cb in range(4): g.A(f"v_xor_b32 v{V_WR+cb}, {cb << 5}, v{sw}")
    defer = chunks(deferred_setup(o), 15)
    def reads(i):
        out = []; buf = i % 2; slot = i % 4; vt = V_XT + buf
        def addr():
            g.A(f"s_add_u32 s{S_T0}, s{S_S0}, {i}"); g.A(f"s_and_b32 s{S_T0}, s{S_T0}, 15")
            g.A(f"s_and_b32 s{S_T1}, s{S_T0}, 3"); g.A(f"s_lshl_b32 s{S_T1}, s{S_T1}, 6")
            g.A(f"s_lshr_b32 s{S_T0}, s{S_T0}, 2"); g.A(f"s_mul_i32 s{S_T0}, s{S_T0}, 12288"); g.A(f"s_add_u32 s{S_T0}, s{S_T0}, {XB}")
            g.A(f"v_xor_b32 v{vt}, s{S_T1}, v{V_XR}"); g.A(f"v_add_u32 v{vt}, s{S_T0}, v{vt}")
        out.append(addr)
        for rb in range(3):
            out.append(lambda rb=rb: g.lds(f"ds_read_b128 {ar(A_B1[buf]+4*rb,4)}, v{vt} offset:{rb*4096}", f"f{i}B"))
        for cb in range(4):
            for u in range(2):
                out.append(lambda cb=cb, u=u: g.lds(
                    f"ds_read_b64_tr_b16 {ar(A_A1[buf]+4*cb+2*u,2)}, v{V_WR+cb} offset:{slot*4096+u*512}", f"f{i}A{cb}"))
        return out
    r0 = reads(0); r0[0](); reads(1)[0]()
    g.A("s_waitcnt lgkmcnt(0)")
    for i in range(16):
        buf = i % 2
        g.A("s_barrier")
        if i == 0:
            stamp(g, o, 1)
            for f in r0[1:]: f()
        def mf(cb, rb, i=i, buf=buf):
            a = vr(V_ACC1 + (cb*3 + rb)*4, 4)
            g.A(f"v_mfma_f32_16x16x32_bf16 {a}, {ar(A_A1[buf]+4*cb,4)}, {ar(A_B1[buf]+4*rb,4)}, {'0' if i == 0 else a}")
        gemm_step(g, i, mf, reads(i + 1)[1:] if i + 1 < 16 else [], int(o.front), None, reads(i + 2)[0] if i + 2 < 16 else None)
        if i < 15:
            for l in defer[i]: g.A(l)
    stamp(g, o, 2)
    g.A("s_barrier")
    for cb in range(4):
        for rb in range(3):
            a = V_ACC1 + (cb*3 + rb)*4
            g.A(f"v_pk_mul_f32 {vr(a,2)}, {vr(a,2)}, s[{S_C}:{S_C+1}]"); g.A(f"v_pk_mul_f32 {vr(a+2,2)}, {vr(a+2,2)}, s[{S_C}:{S_C+1}]")
            g.A(f"v_cvt_pk_bf16_f32 v{a}, v{a}, v{a+1}"); g.A(f"v_cvt_pk_bf16_f32 v{a+1}, v{a+2}, v{a+3}")
            g.lds(f"ds_write_b64 v{V_QW+cb}, {vr(a,2)} offset:{rb*4096}", "qw")

def later_addresses(g, T0):
    L = V_LANE; t0, t1, t2, t3 = 92, 93, 94, 95
    g.A(f"v_and_b32 v{t0}, 31, v{L}"); g.A(f"v_lshrrev_b32 v{t1}, 5, v{L}")
    g.A(f"v_and_b32 v{t2}, 15, v{L}"); g.A(f"v_xor_b32 v{t2}, v{t2}, v{t1}")
    g.A(f"v_lshlrev_b32 v{t2}, 4, v{t2}"); g.A(f"v_lshl_add_u32 v{t2}, v{t0}, 8, v{t2}")
    g.A(f"v_add_u32 v{t2}, {KB}, v{t2}")
    for s in range(8): g.A(f"v_xor_b32 v{V_KA+s}, {s << 5}, v{t2}")
    g.A(f"s_lshl_b32 s{T0}, s{S_W}, 13"); g.A(f"s_add_u32 s{T0}, s{T0}, {QB-KB}")
    for s in range(8): g.A(f"v_add_u32 v{V_NEGM+s}, s{T0}, v{V_KA+s}")
    g.A(f"v_bfe_u32 v{t0}, v{L}, 2, 2")
    g.A(f"v_lshl_add_u32 v{t2}, v{t1}, 2, v{t0}"); g.A(f"v_lshlrev_b32 v{t2}, 8, v{t2}")
    g.A(f"v_lshl_add_u32 v{t2}, v{t0}, 6, v{t2}")
    g.A(f"v_bfe_u32 v{t3}, v{L}, 4, 1"); g.A(f"v_lshl_add_u32 v{t2}, v{t3}, 5, v{t2}")
    g.A(f"v_and_b32 v{t3}, 3, v{L}"); g.A(f"v_lshl_add_u32 v{t2}, v{t3}, 3, v{t2}")
    for blk in range(4): g.A(f"v_xor_b32 v{V_VA+blk}, {blk << 6}, v{t2}")
    g.A(f"s_lshl_b32 s{T0}, s{S_W}, 5")
    g.A(f"v_and_b32 v{t0}, 31, v{L}"); g.A(f"v_add_u32 v{t0}, s{T0}, v{t0}")
    g.A(f"v_cmp_le_u32 vcc, 48, v{t0}"); g.A(f"v_subrev_u32 v{t3}, 48, v{t0}"); g.A(f"v_mov_b32 v{t2}, 0"); g.A("s_nop 0")
    g.A(f"v_cndmask_b32 v{t0}, v{t0}, v{t3}, vcc"); g.A(f"v_mov_b32 v{t3}, 256")
    g.A(f"v_cndmask_b32 v{t2}, v{t2}, v{t3}, vcc"); g.A(f"v_lshl_add_u32 v{V_OB}, v{t0}, 9, v{t2}")
    g.A(f"v_and_b32 v{t0}, 15, v{t0}"); g.A(f"v_lshl_add_u32 v{V_OB}, v{t0}, 4, v{V_OB}")
    g.A(f"v_lshl_add_u32 v{V_OB}, v{t1}, 3, v{V_OB}"); g.A(f"v_add_u32 v{V_OB}, {OB}, v{V_OB}")
    g.A(f"v_lshrrev_b32 v{t0}, 4, v{L}"); g.A(f"v_and_b32 v{t1}, 15, v{L}")
    g.A(f"v_xor_b32 v{t2}, v{t0}, v{t1}"); g.A(f"v_lshlrev_b32 v{t2}, 4, v{t2}")
    g.A(f"v_lshl_add_u32 v{V_OR}, v{t1}, 9, v{t2}"); g.A(f"v_add_u32 v{V_OR}, {OB}, v{V_OR}")
    r_, cc, sw = 9, 15, V_SW
    g.A(f"v_bfe_u32 v{r_}, v{L}, 2, 2"); g.A(f"v_and_b32 v{cc}, 3, v{L}")
    g.A(f"v_and_b32 v{sw}, 2, v{r_}"); g.A(f"v_and_b32 v{t2}, 1, v{t0}")
    g.A(f"v_lshl_or_b32 v{sw}, v{t2}, 2, v{sw}")
    g.A(f"v_lshrrev_b32 v{t2}, 1, v{cc}"); g.A(f"v_or_b32 v{sw}, v{sw}, v{t2}"); g.A(f"v_lshlrev_b32 v{sw}, 4, v{sw}")
    g.A(f"v_and_b32 v{t2}, 1, v{cc}"); g.A(f"v_lshl_add_u32 v{sw}, v{t2}, 3, v{sw}")
    g.A(f"v_lshl_add_u32 v{t2}, v{t0}, 3, v{r_}"); g.A(f"v_lshl_add_u32 v{sw}, v{t2}, 7, v{sw}")
    g.A(f"v_lshlrev_b32 v{V_ST}, 4, v{L}")
    for s in range(4): select_by_wave(g, S_WOA + s, [WO_ADDR[s][w] for w in range(4)])
    g.A(f"v_mov_b32 v{V_L}, 0")

def qk_mfma(g, s, dst, first_c):
    c = first_c if s == 0 else vr(dst, 16)
    g.A(f"v_mfma_f32_32x32x16_bf16 {vr(dst,16)}, {ar(A_K+4*s,4)}, {ar(A_Q+4*s,4)}, {c}")
def pv_mfma(g, s, blk, p):
    g.A(f"v_mfma_f32_32x32x16_bf16 {vr(V_O+16*blk,16)}, {ar(A_V+(s*4+blk)*4,4)}, {vr(p+4*s,4)}, {vr(V_O+16*blk,16)}")
def k_read(g, s, t):
    g.lds(f"ds_read_b128 {ar(A_K+4*s,4)}, v{V_KA+s} offset:{kslot(t)-KB}", "K")
def v_read(g, s, blk, u, t):
    g.lds(f"ds_read_b64_tr_b16 {ar(A_V+(s*4+blk)*4+2*u,2)}, v{V_VA+blk} offset:{vslot(t)-VB+4096*s+2048*u}", "V")

def p2_iter(g, t, do_qk=True, do_pv=True):
    o = OPT
    par = t % 2
    Scur, Snew, Pcur, Pprev = V_S[par], V_S[1-par], V_P[par], V_P[1-par]
    g.C(f"---- iteration {t}")
    gaps, left, load = schedule(do_qk, do_pv, cap_lo=int(o.cap_lo), cap_hi=int(o.cap_hi), ntemp=NTEMP)
    assert not left, left
    last_a = max(i for i, gp in enumerate(gaps) if ("A", 15) in gp)
    cmp_gap = min(last_a + 1, 15); br_gap = 15
    first = (t == 0 and o.m0init)
    e = lambda i: V_E + i % NTEMP
    def emit(it):
        k = it[0]
        if k == "E":
            if not o.x_novalu: g.A(f"v_exp_f32 v{e(it[1])}, v{Scur+it[1]}")
        elif k == "A":
            if o.x_novalu: return
            if it[1] == 1: g.A(f"v_add_f32 v{V_TS}, v{e(0)}, v{e(1)}")
            else: g.A(f"v_add_f32 v{V_TS}, v{V_TS}, v{e(it[1])}")
        elif k == "C":
            if not o.x_novalu: g.A(f"v_cvt_pk_bf16_f32 v{Pcur+it[1]}, v{e(2*it[1])}, v{e(2*it[1]+1)}")
        elif k == "K":
            if not o.x_nok: k_read(g, it[1], t+2)
        elif k == "V":
            if not o.x_nov: v_read(g, it[1]//4, it[1] % 4, it[2], t)
    for m in range(16):
        if m < 8 and do_qk and not o.x_nomfma: qk_mfma(g, m, Snew, vr(V_NEGM, 16))
        elif m >= 8 and do_pv and not o.x_nomfma: pv_mfma(g, (m-8)//4, (m-8) % 4, Pprev)
        else: g.A("s_nop 0")
        items = gaps[m]
        if ("X", "bar") in items: g.A("s_barrier")
        if m == cmp_gap:
            g.A(f"v_cmp_lt_f32 vcc, s{S_THR}, v{V_TS}")
            if first: g.A(f"v_cmp_gt_f32 s[{S_RET}:{S_RET+1}], s{S_THRLO}, v{V_TS}")
        for it in items:
            if it[0] != "X": emit(it)
        if m == br_gap:
            if first: g.A(f"s_or_b64 vcc, vcc, s[{S_RET}:{S_RET+1}]")
            g.A(f"s_cbranch_vccnz L_rare_{t}")
            g.label(f"L_back_{t}")
            g.A(f"v_add_f32 v{V_L}, v{V_L}, v{V_TS}")
        if m == 7 and do_pv: g.A(f"s_waitcnt lgkmcnt({8 if do_qk else 0})")
        if m == 15: g.A(f"s_waitcnt lgkmcnt({15 if do_pv else 0})")
    g.lg = []

def rare_stub(g, t):
    g.label(f"L_rare_{t}")
    sub = "L_rescale_first" if (t == 0 and OPT.m0init) else f"L_rescale_{t%2}"
    g.A(f"s_call_b64 s[{S_RET}:{S_RET+1}], {sub}")
    g.A(f"s_branch L_back_{t}")

def rowmax(g, S, dst, tmp):
    g.A(f"v_max3_f32 v{dst}, v{S}, v{S+1}, v{S+2}")
    for k in range(3, 15, 2): g.A(f"v_max3_f32 v{dst}, v{dst}, v{S+k}, v{S+k+1}")
    g.A(f"v_max_f32 v{dst}, v{dst}, v{S+15}")
    g.A(f"v_mov_b32 v{tmp}, v{dst}"); g.A("s_nop 1")
    g.A(f"v_permlane32_swap_b32 v{tmp}, v{dst}")
    g.A(f"v_max_f32 v{dst}, v{dst}, v{tmp}")

def rescale_sub(g, par, first=False):
    Scur, Snew, Pcur = V_S[par], V_S[1-par], V_P[par]
    d, tmp, f = V_T, V_T+1, V_F
    g.label("L_rescale_first" if first else f"L_rescale_{par}")
    g.A("s_nop 15"); g.A("s_nop 15")
    rowmax(g, Scur, d, tmp)
    if not first: g.A(f"v_max_f32 v{d}, 0, v{d}")
    for i in range(16):
        g.A(f"v_sub_f32 v{Scur+i}, v{Scur+i}, v{d}")
        g.A(f"v_sub_f32 v{Snew+i}, v{Snew+i}, v{d}")
        g.A(f"v_sub_f32 v{V_NEGM+i}, v{V_NEGM+i}, v{d}")
    if not first:
        g.A(f"v_sub_f32 v{f}, 0, v{d}"); g.A(f"v_exp_f32 v{f}, v{f}"); g.A("s_nop 0")
        g.A(f"v_mul_f32 v{V_L}, v{V_L}, v{f}")
        for i in range(64): g.A(f"v_mul_f32 v{V_O+i}, v{V_O+i}, v{f}")
    for k in range(8):
        g.A(f"v_exp_f32 v{V_E}, v{Scur+2*k}"); g.A(f"v_exp_f32 v{V_E+1}, v{Scur+2*k+1}"); g.A("s_nop 0")
        if k == 0: g.A(f"v_add_f32 v{V_TS}, v{V_E}, v{V_E+1}")
        else:
            g.A(f"v_add_f32 v{V_TS}, v{V_TS}, v{V_E}"); g.A(f"v_add_f32 v{V_TS}, v{V_TS}, v{V_E+1}")
        g.A(f"v_cvt_pk_bf16_f32 v{Pcur+k}, v{V_E}, v{V_E+1}")
    g.A("s_nop 1")
    g.A(f"s_setpc_b64 s[{S_RET}:{S_RET+1}]")

def p2_compute(g, o):
    g.C("==== P2: attention, compute waves 0..2")
    L = V_LANE; t0, t1, t2 = V_TMP, V_TMP+1, V_TMP+2
    for s in range(8): g.lds(f"ds_read_b128 {ar(A_Q+4*s,4)}, v{V_NEGM+s}", "Q")
    for s in range(8): k_read(g, s, 0)
    if o.m0init:
        for i in range(16): g.A(f"v_mov_b32 v{V_NEGM+i}, 0")
    g.wait_lg0()
    for s in range(8):
        qk_mfma(g, s, V_S[0], "0")
        k_read(g, s, 1)
    if not o.m0init:
        g.A("s_nop 15")
        rowmax(g, V_S[0], V_T, V_T+1)
        for i in range(16): g.A(f"v_sub_f32 v{V_NEGM+i}, 0, v{V_T}")
        for i in range(16): g.A(f"v_sub_f32 v{V_S[0]+i}, v{V_S[0]+i}, v{V_T}")
    else:
        g.A("s_nop 7")
    g.A("s_waitcnt lgkmcnt(0)")
    p2_iter(g, 0, do_pv=False)
    g.A(f"s_mov_b32 s{S_CNT}, 5")
    loop_label(g, "L_p2_loop")
    for t in range(1, 7): p2_iter(g, t)
    g.A(f"s_sub_u32 s{S_CNT}, s{S_CNT}, 1"); g.A(f"s_cmp_lg_u32 s{S_CNT}, 0"); g.A("s_cbranch_scc1 L_p2_loop")
    p2_iter(g, 31, do_qk=False)
    AD = V_S[0]
    g.A(f"v_mov_b32 v{V_RI}, v{V_L}"); g.A("s_nop 1")
    g.A(f"v_permlane32_swap_b32 v{V_RI}, v{V_L}")
    g.A(f"v_add_f32 v{V_L}, v{V_L}, v{V_RI}")
    g.A(f"v_rcp_f32 v{V_RI}, v{V_L}")
    g.A("s_waitcnt lgkmcnt(0)")
    g.A(f"v_mov_b32 v{V_RI+1}, v{V_RI}")
    g.A("s_barrier")
    stamp(g, o, 4)
    def norm(blk, i):
        a = V_O + 16*blk + 4*i
        g.A(f"v_pk_mul_f32 {vr(a,2)}, {vr(a,2)}, {vr(V_RI,2)}"); g.A(f"v_pk_mul_f32 {vr(a+2,2)}, {vr(a+2,2)}, {vr(V_RI,2)}")
        g.A(f"v_cvt_pk_bf16_f32 v{a}, v{a}, v{a+1}"); g.A(f"v_cvt_pk_bf16_f32 v{a+1}, v{a+2}, v{a+3}")
        g.lds(f"ds_write_b64 v{AD+4*blk+i}, {vr(a,2)}", "ow")
    pv = lambda s, blk: pv_mfma(g, s, blk, V_P[1])
    ad = lambda lo, hi: [g.A(f"v_xor_b32 v{AD+j}, {j << 4}, v{V_OB}") for j in range(lo, hi)]
    pv(0, 0); ad(0, 4); pv(1, 0); ad(4, 8); pv(0, 1); ad(8, 12); pv(1, 1); ad(12, 16)
    p3_setup(g, o, 0, 1)
    norm(0, 0); norm(0, 1); pv(0, 2); norm(0, 2); norm(0, 3); pv(1, 2)
    norm(1, 0); norm(1, 1); pv(0, 3); norm(1, 2); norm(1, 3); pv(1, 3)
    p3_setup(g, o, 1, 4)
    for blk in (2, 3):
        for i in range(4): norm(blk, i)

def p2_kloader(g, o):
    g.C("==== P2: wave 3 streams K")
    g.vm = []
    full_tile_regs(g, "K")
    g.A(f"s_mov_b32 s{S_KOFF}, {4*8192}")
    full_tile(g, o, "K", 4, "K4"); full_tile(g, o, "K", 5, "K5")
    g.A(f"s_mov_b32 s{S_CNT}, 4")
    loop_label(g, "L_kld_loop")
    for t in range(6):
        g.A("s_waitcnt vmcnt(24)"); g.A("s_barrier")
        if not o.x_nodma: full_tile(g, o, "K", t+6, f"K{t+6}")
    g.A(f"s_sub_u32 s{S_CNT}, s{S_CNT}, 1"); g.A(f"s_cmp_lg_u32 s{S_CNT}, 0"); g.A("s_cbranch_scc1 L_kld_loop")
    g.vm = []
    for t in range(26, 30): g.vm += [f"K{t}"]*8
    for t in range(24, 32):
        if t + 2 < 32: g.wait_vm(f"K{t+2}")
        g.A("s_barrier")
        if t + 6 < 32: full_tile(g, o, "K", t+6, f"K{t+6}")
    p3_setup(g, o, 0, 4)
    g.A("s_barrier")

def b_addr(g, j):
    g.A(f"s_add_u32 s{S_T0}, s{S_WOROT}, {j}"); g.A(f"s_and_b32 s{S_T0}, s{S_T0}, 7"); g.A(f"s_lshl_b32 s{S_T0}, s{S_T0}, 6")
    g.A(f"v_xor_b32 v{V_OT + j % 2}, s{S_T0}, v{V_OR}")

def p3_setup(g, o, d0, d1):
    if d0 == 0:
        for cb in range(4): g.A(f"v_xor_b32 v{2+cb}, {cb << 5}, v{V_SW}")
        g.A(f"s_mul_i32 s{S_T3}, s{S_W}, 12288")
    for d in range(d0, d1):
        for cb in range(4): g.A(f"v_add_u32 v{WOR[4*d+cb]}, s{S_WOA+d}, v{2+cb}")
    if d1 == 4: b_addr(g, 0); b_addr(g, 1)

def p3_compute(g, o):
    g.C("==== P3: partial output projection, two column halves of 8 k-steps")
    L = V_LANE
    if o.probe == "line":
        for i in range(256): g.A(f"v_mov_b32_e64 v{6 + i % 2}, v1")
    elif o.probe == "loop":
        g.A(f"s_mov_b32 s{S_CNT}, 16")
        g.label("L_probe")
        for i in range(16): g.A(f"v_mov_b32_e64 v{6 + i % 2}, v1")
        g.A(f"s_sub_u32 s{S_CNT}, s{S_CNT}, 1"); g.A(f"s_cmp_lg_u32 s{S_CNT}, 0"); g.A("s_cbranch_scc1 L_probe")
    XW = 6
    if o.p3x:
        select_by_wave(g, S_WOX, WO_EXTRA)
        for cb in range(4): g.A(f"v_add_u32 v{XW+cb}, s{S_WOX}, v{2+cb}")
    g.wait_lg0()
    def b_reads(n):
        return [lambda rb=rb: g.lds(f"ds_read_b128 {ar(12*n+4*rb,4)}, v{V_OT + n % 2} offset:{rb*8192}", f"f{n}B") for rb in range(3)]
    def reads(n):
        out = []; buf = n % 2
        if n < 8 and (not o.p3x or n == 0): out += b_reads(n)
        if o.p3x and n == 1:
            for j in range(1, 8):
                out += b_reads(j)
                if j + 1 < 8: out.append(lambda j=j: b_addr(g, j + 1))
        for cb in range(4):
            if o.p3x and n in (8, 9): reg = XW + cb
            else: reg = WOR[4*(((n - 10) if (o.p3x and n >= 10) else n) // 2 % 4) + cb]
            for u in range(2):
                out.append(lambda cb=cb, u=u, reg=reg: g.lds(
                    f"ds_read_b64_tr_b16 {vr(V_A3[buf]+4*cb+2*u,2)}, v{reg} offset:{(n % 2)*4096+u*512}", f"f{n}A{cb}"))
        return out
    def acc(hb, cb, rb): return V_ACC3 + ((4*hb + cb)*3 + rb)*4
    def store_frag(cbp, rb):
        hb, c0 = cbp // 2, 2*(cbp % 2)
        a0, a1 = acc(hb, c0, rb), acc(hb, c0+1, rb)
        d = 2 + 4*((cbp*3+rb) % 2)
        g.A(f"v_cvt_pk_bf16_f32 v{d}, v{a0}, v{a0+1}"); g.A(f"v_cvt_pk_bf16_f32 v{d+1}, v{a0+2}, v{a0+3}")
        g.A(f"v_cvt_pk_bf16_f32 v{d+2}, v{a1}, v{a1+1}"); g.A(f"v_cvt_pk_bf16_f32 v{d+3}, v{a1+2}, v{a1+3}")
        pol = f" {o.pol_st}" if o.pol_st else ""
        g.A(f"s_add_u32 s{S_T2}, s{S_T3}, {rb*4096}")
        if o.x_nost and cbp < 2: return
        g.vmem(f"buffer_store_dwordx4 {vr(d,4)}, v{V_ST}, s[{SRD_P}:{SRD_P+3}], s{S_T2} offen offset:{cbp*1024}{pol}", "st")
    g.A("s_barrier")
    stamp(g, o, 5)
    for f in reads(0): f()
    early = [(cbp, rb) for cbp in (0, 1) for rb in range(3)]
    for n in range(16):
        hb, buf = n // 8, n % 2
        if (n % 2 == 0 or o.p3fine) and n > 0: g.A("s_barrier")
        if n in (4, 8, 12): stamp(g, o, 9 + (n - 4)//4)
        def mf(cb, rb, n=n, hb=hb, buf=buf):
            a = vr(acc(hb, cb, rb), 4)
            g.A(f"v_mfma_f32_16x16x32_bf16 {a}, {vr(V_A3[buf]+4*cb,4)}, {ar(12*(n % 8)+4*rb,4)}, {'0' if n % 8 == 0 else a}")
        after = None
        if 9 <= n < 15: after = {10: lambda k=n-9: store_frag(*early[k])}
        if n == 15: after = {9: lambda: store_frag(2, 0), 10: lambda: store_frag(2, 1), 11: lambda: store_frag(2, 2)}
        gemm_step(g, n, mf, reads(n + 1) if n + 1 < 16 else [], 12 if (o.p3x and n == 0) else int(o.front), after,
                  (lambda n=n: b_addr(g, n + 2)) if (n + 2 < 8 and not o.p3x) else None)
        if o.p3x and n == 0: g.wait_lg([f"f{j}B" for j in range(1, 8)])
    stamp(g, o, 6)
    g.A("s_nop 7")
    for rb in range(3): store_frag(3, rb)

def compute_tail(g, o):
    L = V_LANE
    g.C("==== hand-off and reduction of the 16 partial slabs of this (branch, batch)")
    R, T = S_T2, S_T3
    g.A(f"s_mul_i32 s{R}, s{S_HP}, 3"); g.A(f"s_add_u32 s{R}, s{R}, s{S_W}")
    srd(g, 4, S_WS, S_WS+1, None, 256*49152)
    srd(g, 8, S_OUT, S_OUT+1, None, 786432)
    srd(g, SRD_FL, S_WS, S_WS+1, None, FLAGB + 1024*128)
    g.A(f"s_mul_i32 s12, s{S_BB}, 786432"); g.A(f"s_lshl_b32 s{T}, s{R}, 10"); g.A(f"s_add_u32 s12, s12, s{T}")
    g.A(f"s_mul_i32 s13, s{R}, 43"); g.A("s_lshr_b32 s13, s13, 9")
    g.A("s_mul_i32 s14, s13, 12"); g.A(f"s_sub_u32 s14, s{R}, s14")
    g.A("s_lshr_b32 s15, s14, 2"); g.A("s_and_b32 s14, s14, 3")
    g.A(f"s_mul_i32 s16, s{S_B}, 98304")
    g.A(f"s_lshl_b32 s17, s{S_BR}, 10"); g.A("s_add_u32 s16, s16, s17")
    g.A("s_lshl_b32 s17, s15, 15"); g.A("s_add_u32 s16, s16, s17")
    g.A("s_lshl_b32 s17, s13, 8"); g.A("s_add_u32 s16, s16, s17")
    g.A("s_lshl_b32 s17, s14, 6"); g.A("s_add_u32 s16, s16, s17")
    g.A(f"v_lshlrev_b32 v12, 4, v{L}")
    g.A(f"v_and_b32 v13, 15, v{L}"); g.A(f"v_lshrrev_b32 v14, 4, v{L}")
    g.A("v_lshlrev_b32 v13, 11, v13"); g.A("v_lshl_add_u32 v13, v14, 3, v13")
    g.A(f"s_lshl_b32 s18, s{S_BB}, 13"); g.A(f"s_add_u32 s18, s18, {FLAGB}")
    g.A(f"s_lshl_b32 s19, s{S_HP}, 2"); g.A(f"s_add_u32 s19, s19, s{S_W}"); g.A("s_lshl_b32 s19, s19, 7"); g.A("s_add_u32 s19, s19, s18")
    g.A("s_lshl_b32 s20, s13, 7"); g.A("s_add_u32 s20, s20, s18")
    g.A(f"v_and_b32 v15, 15, v{L}"); g.A("v_lshlrev_b32 v15, 9, v15"); g.A("v_add_u32 v15, s20, v15")
    g.A("v_mov_b32 v10, s19"); g.A("v_mov_b32 v11, 1")
    g.A("s_waitcnt vmcnt(0)"); g.vm = []
    g.A("s_mov_b64 exec, 1")
    g.A(f"buffer_store_dword v11, v10, s[{SRD_FL}:{SRD_FL+3}], 0 offen sc1")
    g.A("s_mov_b64 exec, -1")
    g.A(f"s_cmp_ge_u32 s{S_W}, 3"); g.A("s_cbranch_scc1 L_red_done")
    g.A(f"s_mov_b32 s{S_CNT}, 0")
    if o.early_ld:
        g.A("s_mov_b32 s22, 0")
        g.label("L_poll")
        g.A("s_mov_b64 exec, 0xffff")
        g.A(f"buffer_load_dword v10, v15, s[{SRD_FL}:{SRD_FL+3}], 0 offen sc1")
        g.A(f"s_add_u32 s{S_CNT}, s{S_CNT}, 1")
        g.A("s_waitcnt vmcnt(0)")
        g.A("v_cmp_eq_u32 vcc, 1, v10")
        g.A("s_mov_b64 exec, -1")
        g.A(f"s_cmp_ge_u32 s{S_CNT}, 0x40000"); g.A("s_cselect_b32 s23, 0xffff, vcc_lo")
        g.A("s_andn2_b32 s23, s23, s22")
        g.A("s_cbranch_scc0 L_poll_next")
        for q in range(16):
            g.A(f"s_bitcmp1_b32 s23, {q}"); g.A(f"s_cbranch_scc0 L_skip{q}")
            g.A(f"s_add_u32 s21, s12, {q*49152}")
            g.A(f"buffer_load_dwordx4 v[{16+4*q}:{19+4*q}], v12, s[4:7], s21 offen sc1")
            g.label(f"L_skip{q}")
        g.A("s_or_b32 s22, s22, s23")
        g.A("s_cmp_eq_u32 s22, 0xffff"); g.A("s_cbranch_scc1 L_poll_done")
        g.label("L_poll_next")
        if int(o.sleep): g.A(f"s_sleep {int(o.sleep)}")
        g.A("s_branch L_poll")
        g.label("L_poll_done")
        stamp(g, o, 7)
        g.A("s_waitcnt vmcnt(0)")
    else:
        g.A("s_mov_b64 exec, 0xffff")
        g.label("L_poll")
        g.A(f"buffer_load_dword v10, v15, s[{SRD_FL}:{SRD_FL+3}], 0 offen sc1")
        g.A(f"s_add_u32 s{S_CNT}, s{S_CNT}, 1")
        g.A("s_waitcnt vmcnt(0)")
        g.A("v_cmp_eq_u32 vcc, 1, v10")
        g.A("s_cmp_eq_u64 vcc, exec"); g.A("s_cbranch_scc1 L_poll_done")
        g.A(f"s_cmp_ge_u32 s{S_CNT}, 0x40000"); g.A("s_cbranch_scc1 L_poll_done")
        if int(o.sleep): g.A(f"s_sleep {int(o.sleep)}")
        g.A("s_branch L_poll")
        g.label("L_poll_done")
        g.A("s_mov_b64 exec, -1")
        stamp(g, o, 7)
        for q in range(16):
            g.vmem(f"buffer_load_dwordx4 v[{16+4*q}:{19+4*q}], v12, s[4:7], s12 offen sc1", f"p{q}")
            if q < 15: g.A("s_add_u32 s12, s12, 49152")
    if o.dot2:
        g.A("s_mov_b32 s22, 0x00003f80"); g.A("s_mov_b32 s23, 0x3f800000")
        for j in range(8): g.A(f"v_mov_b32 v{2+j}, 0")
        for q in range(16):
            g.wait_vm(f"p{q}")
            for j in range(4):
                g.A(f"v_dot2c_f32_bf16 v{2+2*j}, s22, v{16+4*q+j}"); g.A(f"v_dot2c_f32_bf16 v{3+2*j}, s23, v{16+4*q+j}")
    else:
        for q in range(16):
            g.wait_vm(f"p{q}")
            for j in range(4):
                src = 16 + 4*q + j
                if q == 0:
                    g.A(f"v_lshlrev_b32 v{2+2*j}, 16, v{src}"); g.A(f"v_and_b32 v{3+2*j}, 0xffff0000, v{src}")
                else:
                    g.A(f"v_lshlrev_b32 v10, 16, v{src}"); g.A(f"v_and_b32 v11, 0xffff0000, v{src}")
                    g.A(f"v_add_f32 v{2+2*j}, v{2+2*j}, v10"); g.A(f"v_add_f32 v{3+2*j}, v{3+2*j}, v11")
    for j in range(4): g.A(f"v_cvt_pk_bf16_f32 v{16+j}, v{2+2*j}, v{3+2*j}")
    po = f" {o.pol_out}" if o.pol_out else ""
    g.A(f"buffer_store_dwordx2 v[16:17], v13, s[8:11], s16 offen{po}")
    g.A(f"buffer_store_dwordx2 v[18:19], v13, s[8:11], s16 offen offset:32{po}")
    g.label("L_red_done")
    if o.stamps is True:
        g.A(f"s_cmp_lg_u32 s{S_W}, 0"); g.A("s_cbranch_scc1 L_end")
        g.A("s_waitcnt vmcnt(0)")
        stamp(g, o, 8)
        dump_stamps(g, 0x1000000)
    elif o.stamps == "dbg":
        dbg_stamps(g, o)

def dbg_stamps(g, o):
    g.A("s_waitcnt vmcnt(0)")
    stamp(g, o, 8)
    g.A(f"s_cmp_lg_u32 s{S_W}, 0"); g.A("s_cbranch_scc1 L_end")
    g.A(f"s_cmp_lg_u32 s2, {int(o.dbgwg)}"); g.A("s_cbranch_scc1 L_end")
    srd(g, 40, S_DBG, S_DBG+1, None, 256)
    for k in range(12):
        g.A(f"s_sub_u32 s{S_T0}, s{S_STAMP+k}, s{S_STAMP}"); g.A(f"v_mov_b32 v{16+k}, s{S_T0}")
    for k in range(12, 16):
        g.A(f"s_sub_u32 s{S_T0}, s{S_STAMP+k}, s{S_STAMP+12}"); g.A(f"v_mov_b32 v{16+k}, s{S_T0}")
    g.A("v_mov_b32 v13, 0")
    g.A("s_mov_b64 exec, 1")
    for k in range(4): g.A(f"buffer_store_dwordx4 v[{16+4*k}:{19+4*k}], v13, s[40:43], 0 offen offset:{16*k}")
    g.A("s_waitcnt vmcnt(0)")

def compute_path(g, o):
    if int(o.prio): g.A(f"s_setprio {int(o.prio)}")
    p1_compute(g, o)
    g.A(f"s_cmp_eq_u32 s{S_W}, 3"); g.A("s_cbranch_scc1 L_wave3")
    g.wait_lg0()
    g.A("s_barrier")
    stamp(g, o, 3)
    p2_compute(g, o)
    g.label("L_p3")
    g.vm = []
    p3_compute(g, o)
    compute_tail(g, o)
    g.label("L_end")
    g.A("s_endpgm")
    g.label("L_wave3")
    g.A("s_waitcnt lgkmcnt(0)"); g.lg = []
    g.A("s_barrier")
    p2_kloader(g, o)
    g.A("s_branch L_p3")

def loader_path(g, o):
    g.lg = []; g.vm = []
    if int(o.ldprio): g.A(f"s_setprio {int(o.ldprio)}")
    loader(g, o)
    loader_tail(g, o)

def k1(g, o):
    header(g, K1)
    entry(g, o)
    if o.layout == "near":
        gl = G(); loader_path(gl, o)
        k = gl.L.index("; @SPLIT")
        g.A(f"s_cmp_lt_u32 s{S_W}, 4"); g.A("s_cbranch_scc1 L_compute")
        g.L += gl.L[:k]
        g.A("s_branch L_loader_b")
        g.label("L_compute")
        g.lg = []; g.vm = []
        compute_path(g, o)
        g.label("L_loader_b")
        g.L += gl.L[k+1:]
    elif o.ld_first:
        g.A(f"s_cmp_lt_u32 s{S_W}, 4"); g.A("s_cbranch_scc1 L_compute")
        loader_path(g, o)
        g.label("L_compute")
        g.lg = []; g.vm = []
        compute_path(g, o)
    else:
        g.A(f"s_cmp_ge_u32 s{S_W}, 4"); g.A("s_cbranch_scc1 L_loader")
        compute_path(g, o)
        g.label("L_loader")
        loader_path(g, o)
    for par in range(2): rescale_sub(g, par)
    if o.m0init: rescale_sub(g, 0, first=True)
    for t in [0, 1, 2, 3, 4, 5, 6, 31]: rare_stub(g, t)
    g.label("L_code_end")

def build(o):
    g = G()
    g.A("; @launch grid=(256,1,1) block=(512,1,1) lds=163840")
    g.A('.amdgcn_target "amdgcn-amd-amdhsa--gfx950"')
    k1(g, o)
    descriptor(g, K1, 256, ACC_OFF)
    return g

if __name__ == "__main__":
    o = Opt(); OPT = o
    for a in sys.argv[2:]:
        k, v = a.split("=", 1)
        setattr(o, k, {"True": True, "False": False}.get(v, v))
    g = build(o)
    if o.al8:
        g.L, fixed, left = alignpass.run(g.L, o.al8 == "pad")
        print("aligned", fixed, "left misaligned", left)
    probs = check(g.L)
    for p in probs[:8]: print("HAZARD", p)
    open(sys.argv[1], "w").write(g.text())
    print("lines", len(g.L))
```
